```python
import torch

def _softmax(x, axis=-1):
    return torch.softmax(x, dim=axis)
def _gelu(x):
    return torch.nn.functional.gelu(x, approximate="tanh")
def _silu(x):
    return torch.nn.functional.silu(x)
def _sigmoid(x):
    return torch.sigmoid(x)
def _layernorm(x, axis=-1, eps=1e-5):
    m = x.mean(dim=axis, keepdim=True)
    v = x.var(dim=axis, keepdim=True, unbiased=False)
    return (x - m) / torch.sqrt(v + eps)
def _scatter_add(tgt, idx, src, axis=0):
    return tgt.clone().index_add_(axis, idx, src)
def _segment_sum(src, seg, n):
    out = torch.zeros((n,) + src.shape[1:], dtype=src.dtype)
    return out.index_add_(0, seg, src)
def _pad(x, pw):
    flat = tuple(v for pair in reversed(pw) for v in pair)
    return torch.nn.functional.pad(x, flat)

kernel_name = 'gated_mix__ssm_conv_h3__dense_activation_squared_relu__prompt'

def setup_inputs():

    _w = (lambda a: (lambda t: t.to(torch.bfloat16) if t.is_floating_point() else t)(torch.as_tensor(a)))
    def _A_setup():
        B, S, D = 1, 2048, 512
        ks = 4
        return {
            "q": _w((lambda *s: torch.randn(*s, dtype=torch.bfloat16) * 0.05)(B, S, D)),
            "k": _w((lambda *s: torch.randn(*s, dtype=torch.bfloat16) * 0.4)(B, S, D)),
            "v": _w((lambda *s: torch.randn(*s, dtype=torch.bfloat16) * 0.4)(B, S, D)),
            "shift_k": _w((lambda *s: torch.randn(*s, dtype=torch.bfloat16) * 0.4)(D, ks) * 0.5),
            "ssm_k": _w((lambda *s: torch.randn(*s, dtype=torch.bfloat16) * 1.6)(D, S) * (1.0 / S ** 0.5)),
            "ssm_D": _w((lambda *s: torch.randn(*s, dtype=torch.bfloat16) * 0.4)(D)),
        }
    _A_in = _A_setup()

    def _B_setup():
        B, S, D, F = 1, 2048, 512, 1792
        return {
            "x": _w((lambda *s: torch.randn(*s, dtype=torch.bfloat16) * 0.05)(B, S, D)),
            "w1": _w((lambda *s: torch.randn(*s, dtype=torch.bfloat16) * 0.05)(D, F)),
            "b1": _w((lambda *s: torch.randn(*s, dtype=torch.bfloat16) * 0.05)(F)),
            "w2": _w((lambda *s: torch.randn(*s, dtype=torch.bfloat16) * 0.05)(F, D)),
            "b2": _w((lambda *s: torch.randn(*s, dtype=torch.bfloat16) * 0.05)(D)),
        }
    _B_in = _B_setup()

    return {
        "A_q": _A_in["q"],
        "A_k": _A_in["k"],
        "A_v": _A_in["v"],
        "A_shift_k": _A_in["shift_k"],
        "A_ssm_k": _A_in["ssm_k"],
        "A_ssm_D": _A_in["ssm_D"],
        "B_x": _B_in["x"],
        "B_w1": _B_in["w1"],
        "B_b1": _B_in["b1"],
        "B_w2": _B_in["w2"],
        "B_b2": _B_in["b2"],
        "gate_w": _w((lambda *s: torch.randn(*s, dtype=torch.bfloat16) * 0.05)(512) * 16.0),
    }

def reference(A_q, A_k, A_v, A_shift_k, A_ssm_k, A_ssm_D, B_x, B_w1, B_b1, B_w2, B_b2, gate_w):
    def _A_ref(q, k, v, shift_k, ssm_k, ssm_D):
        B, S, D = q.shape
        ks = shift_k.shape[-1]
        k_pad = _pad(k, ((0, 0), (ks - 1, 0), (0, 0)))
        k_shift = torch.zeros_like(k)
        for t in range(ks):
            k_shift = k_shift + k_pad[:, t:t + S, :] * shift_k[:, ks - 1 - t][None, None, :]
        kv = k_shift * v
        L = 2 * S
        kv_pad = _pad(kv, ((0, 0), (0, S), (0, 0)))
        kf_pad = _pad(ssm_k, ((0, 0), (0, S)))
        kv_f = (lambda x, axes=(-2,-1): torch.fft.rfft2(x.float(), dim=axes))(kv_pad[:, None, :, :], axes=(1, 2))
        kf_f = (lambda x, axes=(-2,-1): torch.fft.rfft2(x.float(), dim=axes))(kf_pad[:, None, :], axes=(1, 2))
        kf_f = (lambda x, *d: x.permute(*d))(kf_f, 1, 2, 0)
        y_f = kv_f * kf_f[None, :, :, :]
        y = (lambda x, s, axes=(-2,-1): torch.fft.irfft2(x, s=s, dim=axes).to(torch.bfloat16))(y_f, (1, L), axes=(1, 2))[:, 0, :S, :]
        y = y + kv * ssm_D[None, None, :]
        return q * y

    def _B_ref(x, w1, b1, w2, b2):
        h = torch.einsum("bsd,df->bsf", x, w1) + b1
        zero = torch.zeros_like(h)
        r = torch.where(h > zero, h, zero)
        h = r * r
        out = torch.einsum("bsf,fd->bsd", h, w2) + b2
        return out

    x = A_q
    g = _sigmoid((x * gate_w).sum(-1, keepdims=True))
    a = _A_ref(x, A_k, A_v, A_shift_k, A_ssm_k, A_ssm_D)
    b = _B_ref(x, B_w1, B_b1, B_w2, B_b2)
    return g * a + (1 - g) * b
```

```python
import re

TRANS = ("v_exp_f32", "v_log_f32", "v_rcp_f32", "v_rsq_f32", "v_sqrt_f32", "v_sin_f32", "v_cos_f32",
         "v_rcp_iflag_f32")


def _regs(tok):
    tok = tok.strip()
    m = re.fullmatch(r"([vas])\[(\d+):(\d+)\]", tok)
    if m:
        return {(m.group(1), i) for i in range(int(m.group(2)), int(m.group(3)) + 1)}
    m = re.fullmatch(r"([vas])(\d+)", tok)
    if m:
        return {(m.group(1), int(m.group(2)))}
    if tok == "vcc":
        return {("s", "vcc_lo"), ("s", "vcc_hi")}
    if tok in ("vcc_lo", "vcc_hi"):
        return {("s", tok)}
    if tok == "exec":
        return {("s", "exec_lo"), ("s", "exec_hi")}
    if tok in ("exec_lo", "exec_hi", "m0"):
        return {("s", tok)}
    m = re.fullmatch(r"-?\|?([vas])(\d+)\|?", tok)
    if m:
        return {(m.group(1), int(m.group(2)))}
    m = re.fullmatch(r"-([vas])\[(\d+):(\d+)\]", tok)
    if m:
        return {(m.group(1), i) for i in range(int(m.group(2)), int(m.group(3)) + 1)}
    return set()


class Ins:
    __slots__ = ("text", "op", "cls", "defs", "uses", "srcC", "srcAB", "passes", "storedata", "wide", "isdpp",
                 "lds_dma")

    def __init__(self, text):
        self.text = text
        t = text.split(";")[0].strip()
        self.op = ""
        self.cls = "other"
        self.defs = set()
        self.uses = set()
        self.srcC = set()
        self.srcAB = set()
        self.passes = 0
        self.storedata = set()
        self.wide = False
        self.isdpp = False
        self.lds_dma = False
        if not t or t.endswith(":") or t.startswith("."):
            self.cls = "label" if t.endswith(":") else "none"
            return
        parts = t.split(None, 1)
        op = parts[0]
        self.op = op
        rest = parts[1] if len(parts) > 1 else ""
        ops = [x.strip() for x in rest.split(",")]
        mods = ""
        if ops:
            last = ops[-1].split()
            if len(last) > 1:
                ops[-1] = last[0]
                mods = " ".join(last[1:])
        allmods = mods
        R = [_regs(o) for o in ops]
        if op.startswith("v_mfma"):
            self.cls = "mfma"
            self.defs = R[0]
            self.srcAB = R[1] | R[2]
            self.srcC = R[3]
            self.uses = self.srcAB | self.srcC
            self.passes = 8 if "32x32" in op else 4
        elif op.startswith("v_"):
            self.cls = "valu"
            self.isdpp = ("row_" in allmods or "quad_perm" in allmods or "wave_" in allmods or "row_bcast" in allmods
                          or op.endswith("_dpp"))
            if op.startswith("v_cmp"):
                self.defs = R[0]
                for r in R[1:]:
                    self.uses |= r
            elif op.startswith("v_permlane32_swap") or op.startswith("v_permlane16_swap") or op.startswith("v_swap"):
                self.defs = R[0] | R[1]
                self.uses = R[0] | R[1]
            elif op.startswith("v_readfirstlane") or op.startswith("v_readlane"):
                self.defs = R[0]
                for r in R[1:]:
                    self.uses |= r
            elif op in ("v_add_co_u32", "v_sub_co_u32", "v_addc_co_u32", "v_subb_co_u32"):
                self.defs = R[0] | R[1]
                for r in R[2:]:
                    self.uses |= r
            elif op == "v_nop":
                pass
            else:
                self.defs = R[0]
                for r in R[1:]:
                    self.uses |= r
                if op.startswith(("v_fmac", "v_mac", "v_pk_fmac", "v_dot2c", "v_writelane")) or "_dpp" in op or self.isdpp \
                        or "_sdwa" in op or "op_sel" in allmods and op.startswith("v_cvt"):
                    self.uses |= R[0]
                if op.startswith("v_cndmask") and len(ops) == 3:
                    self.uses |= _regs("vcc")
        elif op.startswith("ds_"):
            self.cls = "ds"
            if op.startswith("ds_read") or op.startswith("ds_bpermute") or op.startswith("ds_permute") \
                    or op.startswith("ds_swizzle"):
                self.defs = R[0]
                for r in R[1:]:
                    self.uses |= r
            elif "_rtn" in op:
                self.defs = R[0]
                for r in R[1:]:
                    self.uses |= r
            else:
                for r in R:
                    self.uses |= r
                if len(R) > 1:
                    self.storedata = set().union(*R[1:])
        elif op.startswith(("buffer_", "global_")):
            self.cls = "vmem"
            words = (rest.replace(",", " ")).split()
            islds = "lds" in words
            self.lds_dma = islds
            if op.startswith("buffer_load") and not islds:
                self.defs = R[0]
                for r in R[1:]:
                    self.uses |= r
                if "d16" in op:
                    self.uses |= R[0]
            elif op.startswith("buffer_load") and islds:
                for r in R:
                    self.uses |= r
                self.uses |= {("s", "m0")}
            elif op.startswith("global_load"):
                self.defs = R[0]
                for r in R[1:]:
                    self.uses |= r
            elif op.startswith("buffer_store") or op.startswith("buffer_atomic"):
                for r in R:
                    self.uses |= r
                self.storedata = R[0]
                self.wide = op.endswith("x4") or op.endswith("x3")
                if op.startswith("buffer_atomic") and "sc0" in words:
                    self.defs = R[0]
            elif op.startswith("global_store") or op.startswith("global_atomic"):
                for r in R:
                    self.uses |= r
                self.storedata = R[1]
                self.wide = op.endswith("x4") or op.endswith("x3")
            else:
                for r in R:
                    self.uses |= r
        elif op.startswith("s_"):
            if op.startswith(("s_load", "s_buffer_load", "s_memtime", "s_memrealtime", "s_atomic")):
                self.cls = "smem"
                self.defs = R[0]
                for r in R[1:]:
                    self.uses |= r
            else:
                self.cls = "salu"
                if op.startswith(("s_cmp", "s_cbranch", "s_branch", "s_waitcnt", "s_barrier", "s_nop", "s_endpgm",
                                  "s_setprio", "s_sleep", "s_bitcmp")):
                    for r in R:
                        self.uses |= r
                else:
                    self.defs = R[0] if R else set()
                    for r in R[1:]:
                        self.uses |= r
                    if "saveexec" in op:
                        self.defs |= _regs("exec")

    def states(self):
        if self.cls in ("label", "none"):
            return 0
        if self.op == "s_nop":
            return int(self.text.split()[1], 0) + 1
        return 1


def isv(rs):
    return {r for r in rs if r[0] in "va"}


def iss(rs):
    return {r for r in rs if r[0] == "s"}


def need(p, c):
    n = 0
    if p.cls == "valu":
        pv = isv(p.defs)
        ps = iss(p.defs)
        if c.cls == "mfma" and pv & c.uses:
            n = max(n, 2)
        if c.cls == "mfma" and any(r[1] in ("exec_lo", "exec_hi") for r in ps):
            n = max(n, 4)
        if c.cls == "vmem" and ps & c.uses:
            n = max(n, 5)
        if c.cls == "valu":
            if ps & c.uses:
                n = max(n, 4 if c.op.startswith(("v_readlane", "v_writelane")) else 2)
            if pv & c.uses:
                if c.op.startswith(("v_readlane", "v_readfirstlane")):
                    n = max(n, 1)
                if c.isdpp or c.op.startswith("v_permlane"):
                    n = max(n, 2)
                if p.op in TRANS:
                    n = max(n, 1)
                if "sdwa" in p.op or "op_sel" in p.text or "dst_sel" in p.text:
                    n = max(n, 1)
            if pv & c.defs and ("sdwa" in p.op or "dst_sel" in p.text):
                n = max(n, 1)
    if p.cls == "mfma":
        big = p.passes == 8
        if c.cls == "mfma":
            if p.defs & c.srcC:
                if not (p.defs == c.srcC and p.passes == c.passes):
                    n = max(n, 10 if big else 6)
            if p.defs & c.srcAB:
                n = max(n, 12 if big else 8)
            if (p.defs & c.defs) and not (p.defs == c.defs and p.passes == c.passes and p.defs == c.srcC):
                n = max(n, 12 if big else 8)
        elif c.cls in ("valu", "vmem", "ds"):
            if p.defs & (c.uses | c.defs):
                n = max(n, 12 if big else 8)
            if c.cls == "valu" and (p.srcC & c.defs):
                n = max(n, 7 if big else 3)
    if p.cls in ("vmem", "ds") and p.storedata and (p.wide or p.cls == "ds" and len(p.storedata) >= 3):
        if p.storedata & c.defs:
            n = max(n, 2)
    if p.cls == "salu" and ("s", "m0") in p.defs:
        if c.lds_dma or "addtid" in c.op:
            n = max(n, 1)
    return n


def pad_hazards(lines):
    out = []
    hist = []
    nins = 0
    for text in lines:
        for sub in text.split("\n"):
            ins = Ins(sub)
            if ins.cls in ("none",):
                out.append(sub)
                continue
            if ins.cls == "label":
                out.append(sub)
                continue
            req = 0
            dist = 0
            for p in reversed(hist):
                r = need(p, ins) - dist
                if r > req:
                    req = r
                dist += p.states()
                if dist >= 22:
                    break
            while req > 0:
                k = min(req, 16)
                nop = Ins(f"s_nop {k - 1}")
                out.append(f"s_nop {k - 1}")
                hist.append(nop)
                req -= k
                nins += 1
            out.append(sub)
            hist.append(ins)
            if len(hist) > 64:
                hist = hist[-40:]
    return out


class K:
    def __init__(self):
        self.lines = []
        self.vm = []
        self.lg = []

    def __call__(self, s):
        for sub in s.strip("\n").split("\n"):
            self.lines.append(sub.strip())

    def c(self, s):
        self.lines.append("; " + s)

    def vmem(self, s, tag=None):
        self(s)
        self.vm.append(tag)

    def ds(self, s, tag=None):
        self(s)
        self.lg.append(tag)

    def _cnt(self, lst, tags):
        if not isinstance(tags, (list, tuple, set)):
            tags = [tags]
        last = -1
        for i, t in enumerate(lst):
            if t in tags:
                last = i
        if last < 0:
            return None
        return len(lst) - 1 - last

    def wait(self, vm=None, lg=None):
        p = []
        if vm is not None:
            n = self._cnt(self.vm, vm)
            if n is not None:
                n = min(n, 63)
                p.append(f"vmcnt({n})")
                self.vm = self.vm[len(self.vm) - n:] if n else []
        if lg is not None:
            n = self._cnt(self.lg, lg)
            if n is not None:
                n = min(n, 15)
                p.append(f"lgkmcnt({n})")
                self.lg = self.lg[len(self.lg) - n:] if n else []
        if p:
            self("s_waitcnt " + " ".join(p))

    def wait_all(self, vm=True, lg=True):
        p = []
        if vm:
            p.append("vmcnt(0)")
            self.vm = []
        if lg:
            p.append("lgkmcnt(0)")
            self.lg = []
        self("s_waitcnt " + " ".join(p))

    def text(self):
        return "\n".join(pad_hazards(self.lines))
```

```python
import sys, itertools
from asmlib import K

NAME = "gated_mix__ssm_conv_h3__dense_activation_squared_relu__prompt"

WS_KVR = 0
WS_HF = 2 << 20
WS_YT = 10 << 20
WS_G = 12 << 20
WS_FLAG = 13 << 20
WS_TS = 14 << 20
WS_SIZE = 16 << 20

SQ, SK, SV, SH, SW1, SW2, SOUT, SWS, STMP = 8, 12, 16, 20, 24, 28, 32, 36, 40
P_Q, P_K, P_V, P_SHIFT, P_SSMK, P_SSMD, P_BX, P_W1 = 44, 46, 48, 50, 52, 54, 56, 58
P_B1, P_W2, P_B2, P_GATE = 60, 62, 64, 66
P_OUT, P_DBG, P_WS = 68, 70, 72


def srd(k, dst, ptr, nbytes):
    k(f"s_mov_b32 s{dst}, s{ptr}")
    k(f"s_mov_b32 s{dst+1}, s{ptr+1}")
    k(f"s_mov_b32 s{dst+2}, {nbytes}")
    k(f"s_mov_b32 s{dst+3}, 0x00020000")


def S(r, n=4):
    return f"s[{r}:{r+n-1}]"


def V(r, n=1):
    return f"v{r}" if n == 1 else f"v[{r}:{r+n-1}]"


def A(r, n=1):
    return f"a{r}" if n == 1 else f"a[{r}:{r+n-1}]"


def prologue(k, endlabel):
    k("s_cmp_ge_u32 s2, 256")
    k(f"s_cbranch_scc1 {endlabel}")
    k("s_load_dwordx16 s[44:59], s[0:1], 0")
    k("s_load_dwordx8 s[60:67], s[0:1], 64")
    k("s_load_dwordx4 s[68:71], s[0:1], 96")
    k("s_load_dwordx2 s[72:73], s[0:1], 112")
    k("v_lshrrev_b32 v1, 6, v0")
    k("s_nop 0")
    k("v_readfirstlane_b32 s4, v1")
    k("s_waitcnt lgkmcnt(0)")
    srd(k, SQ, P_Q, 2 << 20)
    srd(k, SK, P_K, 2 << 20)
    srd(k, SV, P_V, 2 << 20)
    srd(k, SH, P_SSMK, 2 << 20)
    srd(k, SW1, P_W1, 512 * 1792 * 2)
    srd(k, SW2, P_W2, 512 * 1792 * 2)
    srd(k, SOUT, P_OUT, 2 << 20)
    srd(k, SWS, P_WS, WS_SIZE)


def ts_setup(k, cfg):
    if not cfg.get("ts"):
        return
    k("s_lshl_b32 s100, s2, 2")
    k("s_add_u32 s100, s100, s4")
    k("s_lshl_b32 s100, s100, 6")
    k(f"s_add_u32 s100, s100, {WS_TS}")


def ts(k, cfg, idx):
    if not cfg.get("ts"):
        return
    k("s_memrealtime s[98:99]")
    k("s_waitcnt lgkmcnt(0)")
    k.lg = []
    k("v_mov_b32 v63, s98")
    k.vmem(f"buffer_store_dword v63, off, {S(SWS)}, s100 offset:{4*idx}", "ts")


def unpack_lo(k, d, s):
    k(f"v_lshlrev_b32 v{d}, 16, v{s}")


def unpack_hi(k, d, s):
    k(f"v_and_b32 v{d}, 0xffff0000, v{s}")


def t1_issue(k, cfg):
    k.c("---- T1 issue ----")
    k("s_lshr_b32 s5, s2, 5")
    k("s_and_b32 s6, s2, 31")
    k("s_lshl_b32 s6, s6, 6")
    k("s_sub_u32 s7, s6, 3")
    k("s_lshl_b32 s7, s7, 10")
    k("s_lshl_b32 s74, s5, 7")
    k("s_add_u32 s7, s7, s74")
    k("v_lshrrev_b32 v6, 3, v0")
    k("v_and_b32 v7, 7, v0")
    k("v_lshlrev_b32 v1, 11, v6")
    k("v_lshl_add_u32 v1, v7, 4, v1")
    k("v_add_u32 v1, s7, v1")
    k("v_add_u32 v2, 1024, v1")
    k("v_add_u32 v3, 2048, v1")
    k("v_add_u32 v4, 3072, v1")
    k("v_add_u32 v5, 4096, v1")
    for j in range(5):
        k.vmem(f"buffer_load_dwordx4 {V(8+4*j,4)}, v{1+j}, {S(SK)}, 0 offen", "t1")
    k.vmem(f"buffer_load_dwordx4 {V(28,4)}, v4, {S(SV)}, 0 offen", "t1")
    k.vmem(f"buffer_load_dwordx4 {V(32,4)}, v5, {S(SV)}, 0 offen", "t1")
    srd(k, STMP, P_SHIFT, 512 * 4 * 2)
    k("v_lshlrev_b32 v52, 6, v7")
    k("s_lshl_b32 s74, s5, 9")
    for j in range(4):
        k.vmem(f"buffer_load_dwordx4 {V(36+4*j,4)}, v52, {S(STMP)}, s74 offen offset:{16*j}", "t1")


def t1_compute(k, cfg, lds_base):
    k.c("---- T1 compute ----")
    k.wait(vm="t1")
    for j in range(5):
        for c in range(8):
            (unpack_hi if c & 1 else unpack_lo)(k, 64 + 8 * j + c, 8 + 4 * j + (c >> 1))
    for j in range(2):
        for c in range(8):
            (unpack_hi if c & 1 else unpack_lo)(k, 104 + 8 * j + c, 28 + 4 * j + (c >> 1))
    for c in range(8):
        for m in range(4):
            (unpack_hi if m & 1 else unpack_lo)(k, 120 + 8 * m + c, 36 + 2 * c + (m >> 1))
    for tt in range(2):
        for cp in range(0, 8, 2):
            d = 152 + 8 * tt + cp
            for m in range(4):
                j = 3 + tt - m
                a = 64 + 8 * j + cp
                w = 120 + 8 * m + cp
                if m == 0:
                    k(f"v_pk_mul_f32 {V(d,2)}, {V(a,2)}, {V(w,2)}")
                else:
                    k(f"v_pk_fma_f32 {V(d,2)}, {V(a,2)}, {V(w,2)}, {V(d,2)}")
    for tt in range(2):
        for cp in range(0, 8, 2):
            d = 152 + 8 * tt + cp
            k(f"v_pk_mul_f32 {V(d,2)}, {V(d,2)}, {V(104+8*tt+cp,2)}")
    for c in range(8):
        k(f"v_cvt_pk_bf16_f32 v{8+c}, v{160+c}, v{152+c}")
    k("v_sub_u32 v1, 31, v6")
    k("v_lshlrev_b32 v2, 2, v7")
    k("v_xor_b32 v1, v1, v2")
    k("v_lshlrev_b32 v1, 2, v1")
    k("v_lshl_add_u32 v1, v7, 10, v1")
    k(f"v_add_u32 v1, {lds_base}, v1")
    for c in range(8):
        k.ds(f"ds_write_b32 v1, v{8+c} offset:{128*c}", "t1w")
    k("v_lshrrev_b32 v2, 3, v6")
    k("v_xor_b32 v2, v2, v7")
    k("v_lshlrev_b32 v2, 4, v2")
    k("v_lshl_add_u32 v2, v6, 7, v2")
    k("v_xor_b32 v3, 64, v2")
    k(f"v_add_u32 v2, {lds_base}, v2")
    k(f"v_add_u32 v3, {lds_base + 4096}, v3")
    k("v_lshlrev_b32 v4, 12, v6")
    k("v_lshl_add_u32 v4, v7, 4, v4")
    k("s_lshl_b32 s74, s5, 18")
    k("s_sub_u32 s75, 1984, s6")
    k("s_lshl_b32 s75, s75, 1")
    k("s_add_u32 s74, s74, s75")
    k(f"s_add_u32 s74, s74, {WS_KVR}")
    k("s_add_u32 s75, s74, 131072")
    k.wait(lg="t1w")
    k("s_barrier")
    k.ds(f"ds_read_b128 {V(16,4)}, v2", "t1r")
    k.ds(f"ds_read_b128 {V(20,4)}, v3", "t1r")
    k.wait(lg="t1r")
    sc = cfg["sc"]
    k.vmem(f"buffer_store_dwordx4 {V(16,4)}, v4, {S(SWS)}, s74 offen {sc}", "t1s")
    k.vmem(f"buffer_store_dwordx4 {V(20,4)}, v4, {S(SWS)}, s75 offen {sc}", "t1s")


def gate(k, cfg):
    k.c("---- gate ----")
    k("s_and_b32 s5, s2, 7")
    k("s_lshl_b32 s5, s5, 2")
    k("s_lshr_b32 s6, s2, 3")
    k("s_sub_u32 s6, s6, 28")
    k("s_add_u32 s5, s5, s6")
    k("s_lshl_b32 s5, s5, 6")
    k("s_lshl_b32 s6, s4, 4")
    k("s_add_u32 s5, s5, s6")
    k("s_lshl_b32 s6, s5, 10")
    k("v_and_b32 v1, 63, v0")
    k("v_lshlrev_b32 v1, 4, v1")
    srd(k, STMP, P_GATE, 1024)
    k.vmem(f"buffer_load_dwordx4 {V(4,4)}, v1, {S(STMP)}, 0 offen", "gw")
    for i in range(16):
        if i and i % 4 == 0:
            k("s_add_u32 s6, s6, 4096")
        k.vmem(f"buffer_load_dwordx4 {V(64+4*i,4)}, v1, {S(SQ)}, s6 offen offset:{1024*(i%4)}", f"gx{i}")
    k.wait(vm="gw")
    for c in range(8):
        (unpack_hi if c & 1 else unpack_lo)(k, 8 + c, 4 + (c >> 1))
    for i in range(16):
        k.wait(vm=f"gx{i}")
        s = 64 + 4 * i
        for c in range(8):
            (unpack_hi if c & 1 else unpack_lo)(k, 16 + c, s + (c >> 1))
        for cp in range(0, 8, 2):
            if cp == 0:
                k(f"v_pk_mul_f32 {V(24,2)}, {V(16,2)}, {V(8,2)}")
            else:
                k(f"v_pk_fma_f32 {V(24,2)}, {V(16+cp,2)}, {V(8+cp,2)}, {V(24,2)}")
        k(f"v_add_f32 v{32+i}, v24, v25")
    for mod in ["row_shr:1", "row_shr:2", "row_shr:4", "row_shr:8", "row_bcast:15 row_mask:0xa",
                "row_bcast:31 row_mask:0xc"]:
        for i in range(16):
            m = mod if "row_mask" in mod else mod + " row_mask:0xf"
            k(f"v_add_f32_dpp v{32+i}, v{32+i}, v{32+i} {m} bank_mask:0xf")
    for i in range(16):
        k(f"v_readlane_b32 s{76+i}, v{32+i}, 63")
    k("v_mov_b32 v2, 0")
    for i in range(16):
        k(f"v_writelane_b32 v2, s{76+i}, {i}")
    k("v_mul_f32 v2, 0xbfb8aa3b, v2")
    k("v_exp_f32 v2, v2")
    k("v_add_f32 v2, 1.0, v2")
    k("v_rcp_f32 v2, v2")
    k("v_and_b32 v1, 63, v0")
    k("v_lshlrev_b32 v3, 2, v1")
    k("s_lshl_b32 s6, s5, 2")
    k(f"s_add_u32 s6, s6, {WS_G}")
    k("v_cmp_gt_u32 vcc, 16, v1")
    k("s_and_saveexec_b64 s[74:75], vcc")
    k.vmem(f"buffer_store_dword v2, v3, {S(SWS)}, s6 offen {cfg['sc']}", "gs")
    k("s_mov_b64 exec, s[74:75]")


G1_ACC = 64
G1_BIAS = 128
G1_FR = 160


def g1_setup(k, cfg):
    k.c("---- G1 setup ----")
    k("s_and_b32 s74, s2, 7")
    k("s_lshr_b32 s75, s2, 3")
    k("s_lshr_b32 s5, s74, 1")
    k("s_lshl_b32 s5, s5, 2")
    k("s_and_b32 s76, s75, 3")
    k("s_add_u32 s5, s5, s76")
    k("s_and_b32 s6, s74, 1")
    k("s_mul_i32 s6, s6, 7")
    k("s_lshr_b32 s76, s75, 2")
    k("s_add_u32 s6, s6, s76")
    k("s_lshl_b32 s80, s5, 17")
    k("s_lshl_b32 s76, s4, 15")
    k("s_add_u32 s80, s80, s76")
    k("s_mul_i32 s81, s4, 16*3584")
    k("s_lshl_b32 s76, s6, 8")
    k("s_add_u32 s81, s81, s76")
    k("s_lshl_b32 s82, s4, 12")
    k("v_and_b32 v10, 63, v0")
    k("v_lshrrev_b32 v11, 3, v10")
    k("v_and_b32 v12, 7, v10")
    k("v_lshrrev_b32 v13, 4, v10")
    k("v_xor_b32 v12, v12, v13")
    k("v_lshlrev_b32 v12, 4, v12")
    k("v_lshl_add_u32 v1, v11, 10, v12")
    k("v_xor_b32 v2, 64, v1")
    k("v_and_b32 v12, 15, v10")
    k("v_lshlrev_b32 v14, 2, v13")
    k("v_xor_b32 v12, v12, v14")
    k("v_lshlrev_b32 v12, 4, v12")
    k("v_mul_u32_u24 v14, 3584, v13")
    k("v_add_u32 v3, v12, v14")
    k("v_and_b32 v11, 31, v10")
    k("v_lshrrev_b32 v12, 5, v10")
    k("v_lshrrev_b32 v13, 1, v11")
    k("v_and_b32 v13, 7, v13")
    k("v_xor_b32 v13, v13, v12")
    k("s_lshr_b32 s76, s4, 1")
    k("s_lshl_b32 s76, s76, 13")
    k("v_lshlrev_b32 v14, 7, v11")
    k("v_add_u32 v14, s76, v14")
    for ks in range(4):
        k(f"v_xor_b32 v15, {2*ks}, v13")
        k(f"v_lshl_add_u32 v{4+ks}, v15, 4, v14")
    k("v_and_b32 v11, 15, v10")
    k("v_lshrrev_b32 v12, 4, v10")
    k("v_lshrrev_b32 v13, 2, v11")
    k("v_lshrrev_b32 v14, 1, v12")
    k("v_lshl_add_u32 v14, v14, 3, v13")
    k("v_lshlrev_b32 v14, 8, v14")
    k("v_and_b32 v15, 1, v12")
    k("v_lshlrev_b32 v15, 1, v15")
    k("v_bfe_u32 v16, v11, 1, 1")
    k("v_add_u32 v15, v15, v16")
    k("s_and_b32 s76, s4, 1")
    k("s_lshl_b32 s76, s76, 3")
    k("v_add_u32 v15, s76, v15")
    k("v_lshlrev_b32 v13, 2, v13")
    k("v_xor_b32 v15, v15, v13")
    k("v_and_b32 v16, 1, v11")
    k("v_lshlrev_b32 v16, 3, v16")
    k("v_add_u32 v14, v14, v16")
    k("v_lshl_add_u32 v8, v15, 4, v14")
    k("v_xor_b32 v9, 64, v8")
    for i in range(6):
        k(f"v_add_u32 v{24+i}, 65536, v{4+i}")


def g1_dma(k, slab, buf):
    for i in range(4):
        k(f"s_add_u32 m0, s82, {buf + 1024*i}")
        k(f"s_add_u32 s76, s80, {8192*i + 128*slab}")
        k.vmem(f"buffer_load_dwordx4 v{1 + (i&1)}, {S(SQ)}, s76 offen lds", f"slab{slab}")
    for i in range(4):
        k(f"s_add_u32 m0, s82, {buf + 16384 + 1024*i}")
        k(f"s_add_u32 s76, s81, {(64*slab + 4*i)*3584}")
        k.vmem(f"buffer_load_dwordx4 v3, {S(SW1)}, s76 offen lds", f"slab{slab}")


def g1_bias(k):
    srd(k, STMP, P_B1, 1792 * 2)
    k("v_lshrrev_b32 v11, 5, v10")
    k("v_lshlrev_b32 v11, 3, v11")
    k("s_lshl_b32 s76, s6, 8")
    k("s_and_b32 s77, s4, 1")
    k("s_lshl_b32 s77, s77, 7")
    k("s_add_u32 s76, s76, s77")
    for fb in range(2):
        for g in range(4):
            k.vmem(f"buffer_load_dwordx2 {V(224 + 8*fb + 2*g, 2)}, v11, {S(STMP)}, s76 offen offset:{64*fb + 16*g}",
                   "bias")


def g1_bias_unpack(k):
    k.wait(vm="bias")
    for fb in range(2):
        for g in range(4):
            for i in range(4):
                src = 224 + 8 * fb + 2 * g + (i >> 1)
                (unpack_hi if i & 1 else unpack_lo)(k, G1_BIAS + 16 * fb + 4 * g + i, src)


def g1_reads(k, buf, ks, tag):
    fr = G1_FR + 16 * ks
    hi = 20 if buf >= 65536 else 0
    buf &= 65535
    for fb in range(2):
        for half in range(2):
            k.ds(f"ds_read_b64_tr_b16 {V(fr + 4*fb + 2*half, 2)}, v{8+fb+hi} offset:{buf + 16384 + (16*ks + 4*half)*256}",
                 tag)
    for mb in range(2):
        k.ds(f"ds_read_b128 {V(fr + 8 + 4*mb, 4)}, v{4+ks+hi} offset:{buf + 4096*mb}", tag)


def g1_mfma(k, ks, first):
    fr = G1_FR + 16 * ks
    for fb in range(2):
        for mb in range(2):
            d = G1_ACC + 32 * fb + 16 * mb
            c = V(G1_BIAS + 16 * fb, 16) if first else V(d, 16)
            k(f"v_mfma_f32_32x32x16_bf16 {V(d,16)}, {V(fr + 4*fb, 4)}, {V(fr + 8 + 4*mb, 4)}, {c}")


def g1_main(k, cfg, bufs):
    nb = len(bufs)
    k.c("---- G1 main ----")
    k.wait(vm="slab0")
    k("s_barrier")
    g1_reads(k, bufs[0], 0, "r0_0")
    g1_reads(k, bufs[0], 1, "r0_1")
    for s in range(8):
        buf = bufs[s % nb]
        g1_reads(k, buf, 2, f"r{s}_2")
        k.wait(lg=f"r{s}_0")
        g1_mfma(k, 0, s == 0)
        g1_reads(k, buf, 3, f"r{s}_3")
        k.wait(lg=f"r{s}_1")
        g1_mfma(k, 1, False)
        if s < 7:
            k.wait(vm=f"slab{s+1}", lg=f"r{s}_3")
            k("s_barrier")
            if s + nb < 8:
                g1_dma(k, s + nb, buf)
            nbuf = bufs[(s + 1) % nb]
            g1_reads(k, nbuf, 0, f"r{s+1}_0")
            g1_mfma(k, 2, False)
            g1_reads(k, nbuf, 1, f"r{s+1}_1")
            g1_mfma(k, 3, False)
        else:
            k.wait(lg=f"r{s}_3")
            g1_mfma(k, 2, False)
            g1_mfma(k, 3, False)


def g1_epilogue(k, cfg):
    k.c("---- G1 epilogue ----")
    k("s_lshl_b32 s74, s5, 2")
    k("s_lshr_b32 s75, s4, 1")
    k("s_lshl_b32 s75, s75, 1")
    k("s_add_u32 s74, s74, s75")
    k("s_mul_i32 s74, s74, 112")
    k("s_lshl_b32 s75, s6, 3")
    k("s_add_u32 s74, s74, s75")
    k("s_and_b32 s75, s4, 1")
    k("s_lshl_b32 s75, s75, 2")
    k("s_add_u32 s74, s74, s75")
    k("s_lshl_b32 s74, s74, 10")
    k(f"s_add_u32 s74, s74, {WS_HF}")
    k(f"s_add_u32 s75, s74, {112*1024}")
    k("v_and_b32 v10, 63, v0")
    k("v_lshlrev_b32 v10, 4, v10")
    tmp = 160
    ti = 0
    for mb in range(2):
        for fb in range(2):
            acc = G1_ACC + 32 * fb + 16 * mb
            for r in range(16):
                k(f"v_max_f32 v{acc+r}, 0, v{acc+r}")
            for r in range(0, 16, 2):
                k(f"v_pk_mul_f32 {V(acc+r,2)}, {V(acc+r,2)}, {V(acc+r,2)}")
            for half in range(2):
                t = tmp + 4 * ti
                ti += 1
                for i in range(4):
                    r = acc + 8 * half + 2 * i
                    k(f"v_cvt_pk_bf16_f32 v{t+i}, v{r}, v{r+1}")
                k.vmem(f"buffer_store_dwordx4 {V(t,4)}, v10, {S(SWS)}, s{74+mb} offen offset:{(2*fb+half)*1024} {cfg['sc']}",
                       "hs")


def find_copy_offsets():
    groups = [[0, 1, 2, 3, 12, 13, 14, 15, 20, 21, 22, 23, 24, 25, 26, 27],
              [4, 5, 6, 7, 8, 9, 10, 11, 16, 17, 18, 19, 28, 29, 30, 31]]
    need = []
    for g in groups:
        st = set()
        for l in g:
            b, q = l & 15, l >> 4
            st.add(((b + 1) & 7, q + ((b + 1) >> 3)))
        need.append(st)

    def rec(o):
        if len(o) == 8:
            return o
        for cand in range(16):
            o2 = o + [cand]
            ok = True
            for st in need:
                seen = set()
                for (s, d) in st:
                    if s < len(o2):
                        sl = (o2[s] + d) & 15
                        if sl in seen:
                            ok = False
                            break
                        seen.add(sl)
                if not ok:
                    break
            if ok:
                r = rec(o2)
                if r:
                    return r
        return None
    return rec([])


COPY_O = find_copy_offsets()
COPY_STRIDE = 4352
CH_STRIDE = 8 * COPY_STRIDE + 256
KV_STRIDE = 4608


def conv_build_copies(k, cfg, hbase):
    k.c("---- conv: h copies ----")
    k("s_lshl_b32 s74, s2, 13")
    for ch in range(2):
        d = 84 + 4 * ch
        k(f"s_add_u32 s{d}, s{P_SSMK}, s74")
        k(f"s_addc_u32 s{d+1}, s{P_SSMK+1}, 0")
        k(f"s_mov_b32 s{d+2}, 4096")
        k(f"s_mov_b32 s{d+3}, 0x00020000")
        if ch == 0:
            k("s_add_u32 s74, s74, 4096")
    k("v_lshlrev_b32 v1, 4, v0")
    k("v_add_u32 v2, -32, v1")
    k("v_add_u32 v3, -16, v1")
    for ch in range(2):
        k.vmem(f"buffer_load_dwordx4 {V(8+40*ch,4)}, v2, {S(84+4*ch)}, 0 offen", f"h{ch}")
        k.vmem(f"buffer_load_dwordx4 {V(12+40*ch,4)}, v3, {S(84+4*ch)}, 0 offen", f"h{ch}")
    k("v_and_b32 v4, 1, v0")
    k("v_lshlrev_b32 v4, 4, v4")
    k("v_add_u32 v5, 4096, v4")
    k("v_add_u32 v6, 4064, v4")
    k("v_add_u32 v7, 4080, v4")
    for ch in range(2):
        k.vmem(f"buffer_load_dwordx4 {V(88+40*ch,4)}, v6, {S(84+4*ch)}, 0 offen", f"hx{ch}")
        k.vmem(f"buffer_load_dwordx4 {V(92+40*ch,4)}, v7, {S(84+4*ch)}, 0 offen", f"hx{ch}")

    def build(w, addr, base):
        R, P, Q = w + 8, w + 16, w + 24
        for j in range(6):
            k(f"v_mov_b32 v{R+j}, v{w+j+1}")
            k(f"v_alignbyte_b32 v{P+j}, v{w+j+1}, v{w+j}, 2")
            k(f"v_alignbyte_b32 v{Q+j}, v{w+j+2}, v{w+j+1}, 2")
        src = {0: w, 4: w + 2, 2: R, 6: R + 2, 1: P, 5: P + 2, 3: Q, 7: Q + 2}
        for s in range(8):
            k.ds(f"ds_write_b128 v{addr}, {V(src[s],4)} offset:{base + s*COPY_STRIDE + 16*COPY_O[s]}", "hw")

    k(f"v_add_u32 v1, {hbase}, v1")
    k(f"v_add_u32 v5, {hbase}, v5")
    for ch in range(2):
        k.wait(vm=f"h{ch}")
        if ch:
            k(f"v_add_u32 v1, {CH_STRIDE}, v1")
        build(8 + 40 * ch, 1, 0)
    k("v_cmp_gt_u32 vcc, 2, v0")
    k("s_and_saveexec_b64 s[74:75], vcc")
    k("s_cbranch_execz CONV_NOX")
    for ch in range(2):
        k.wait(vm=f"hx{ch}")
        if ch:
            k(f"v_add_u32 v5, {CH_STRIDE}, v5")
        build(88 + 40 * ch, 5, 0)
    k("CONV_NOX:")
    k("s_mov_b64 exec, s[74:75]")
    k.wait_all(vm=True, lg=False)


def conv_load_kv(k, cfg, kvbase):
    k.c("---- conv: kvR ----")
    k("s_lshl_b32 s74, s2, 13")
    k(f"s_add_u32 s74, s74, {WS_KVR}")
    k("v_lshlrev_b32 v1, 4, v0")
    for ch in range(2):
        k.vmem(f"buffer_load_dwordx4 {V(8+4*ch,4)}, v1, {S(SWS)}, s74 offen {cfg['scl']}", "kv")
        if ch == 0:
            k("s_add_u32 s74, s74, 4096")
    for i in range(4):
        k(f"v_mov_b32 v{16+i}, 0")
    k(f"v_add_u32 v2, {kvbase}, v1")
    k("v_cmp_gt_u32 vcc, 32, v0")
    k("s_and_saveexec_b64 s[74:75], vcc")
    for ch in range(2):
        k.ds(f"ds_write_b128 v2, {V(16,4)} offset:{ch*KV_STRIDE + 4096}", "kvw")
    k("s_mov_b64 exec, s[74:75]")
    k.wait(vm="kv")
    for ch in range(2):
        k.ds(f"ds_write_b128 v2, {V(8+4*ch,4)} offset:{ch*KV_STRIDE}", "kvw")


CV_ACC = 64
CV_FA = 96
CV_FB = 160


def conv_order():
    pairs = [(d, c1) for d in range(8) for c1 in range(8 - d)]
    best = None
    rem = sorted(pairs, key=lambda p: (max(p), p[0] + p[1]))
    out = []
    while rem:
        for i, p in enumerate(rem):
            j = p[0] + p[1]
            if len(out) >= 1 and out[-1][0] + out[-1][1] == j and len(rem) > 1:
                continue
            if len(out) >= 2 and out[-2][0] + out[-2][1] == j and len(rem) > 3:
                continue
            out.append(p)
            rem.pop(i)
            break
        else:
            out.append(rem.pop(0))
    return out


def conv_main(k, cfg, hbase, kvbase, hook=None):
    k.c("---- conv main ----")
    k("v_and_b32 v10, 63, v0")
    k("v_and_b32 v11, 15, v10")
    k("v_lshrrev_b32 v12, 4, v10")
    k("v_add_u32 v13, 1, v11")
    k("v_and_b32 v14, 7, v13")
    k("v_lshrrev_b32 v15, 3, v13")
    lut = sum(o << (4 * i) for i, o in enumerate(COPY_O))
    k(f"s_mov_b32 s74, {lut}")
    k("v_lshlrev_b32 v16, 2, v14")
    k("v_bfe_u32 v16, s74, v16, 4")
    k("v_add_u32 v16, v16, v15")
    k("v_add_u32 v16, v16, v12")
    k("v_lshlrev_b32 v16, 4, v16")
    k(f"v_mul_u32_u24 v17, {COPY_STRIDE}, v14")
    k("v_add_u32 v16, v16, v17")
    k("s_lshr_b32 s75, s4, 1")
    k(f"s_mul_i32 s76, s75, {CH_STRIDE}")
    k("s_and_b32 s77, s4, 1")
    k("s_lshl_b32 s77, s77, 8")
    k("s_add_u32 s76, s76, s77")
    k(f"s_add_u32 s76, s76, {hbase}")
    k("v_add_u32 v1, s76, v16")
    k(f"s_mul_i32 s76, s75, {KV_STRIDE}")
    k("s_add_u32 s76, s76, s77")
    k(f"s_add_u32 s76, s76, {kvbase + 480}")
    k("v_lshlrev_b32 v16, 5, v11")
    k("v_lshlrev_b32 v17, 4, v12")
    k("v_sub_u32 v16, v17, v16")
    k("v_add_u32 v2, s76, v16")
    order = conv_order()

    def reads(c0i, st):
        for i in range(8):
            k.ds(f"ds_read_b128 {V(CV_FA + 32*st + 4*i, 4)}, v1 offset:{512*i + 64*c0i}", f"ca{c0i}_{i}")
            k.ds(f"ds_read_b128 {V(CV_FB + 32*st + 4*i, 4)}, v2 offset:{512*(7-i) + 64*c0i}", f"cb{c0i}_{i}")

    reads(0, 0)
    touched = set()
    for c0i in range(4):
        st = c0i & 1
        nxt = []
        if c0i < 3:
            for i in range(8):
                nxt.append((f"ds_read_b128 {V(CV_FA + 32*(st^1) + 4*i, 4)}, v1 offset:{512*i + 64*(c0i+1)}", f"ca{c0i+1}_{i}"))
                nxt.append((f"ds_read_b128 {V(CV_FB + 32*(st^1) + 4*i, 4)}, v2 offset:{512*(7-i) + 64*(c0i+1)}", f"cb{c0i+1}_{i}"))
        waited = set()
        for n, (d, c1) in enumerate(order):
            tags = [t for t in (f"ca{c0i}_{c1}", f"cb{c0i}_{d}") if t not in waited]
            if tags:
                k.wait(lg=tags)
                waited.update(tags)
            j = d + c1
            acc = V(CV_ACC + 4 * j, 4)
            c = acc if j in touched else "0"
            touched.add(j)
            k(f"v_mfma_f32_16x16x32_bf16 {acc}, {V(CV_FA + 32*st + 4*c1, 4)}, {V(CV_FB + 32*st + 4*d, 4)}, {c}")
            if n >= 18 and nxt:
                t, tg = nxt.pop(0)
                k.ds(t, tg)
            if hook:
                hook(k, c0i * 36 + n)


def conv_epilogue(k, cfg, partbase, kvbase):
    k.c("---- conv epilogue ----")
    k("s_barrier")
    k("v_and_b32 v10, 63, v0")
    k("v_and_b32 v11, 15, v10")
    k("v_lshrrev_b32 v12, 4, v10")
    k("v_lshlrev_b32 v11, 6, v11")
    k("v_lshl_add_u32 v11, v12, 4, v11")
    k("s_lshl_b32 s74, s4, 13")
    k("v_add_u32 v11, s74, v11")
    for j in range(8):
        k.ds(f"ds_write_b128 v11, {V(CV_ACC + 4*j, 4)} offset:{partbase + 1024*j}", "pw")
    k("s_lshr_b32 s75, s4, 1")
    k("s_lshl_b32 s76, s2, 2")
    k(f"s_load_dword s77, s[{P_SSMD}:{P_SSMD+1}], s76")
    k.wait_all(vm=False, lg=True)
    k("s_cmp_eq_u32 s75, 0")
    k("s_cbranch_scc1 CONV_D_LO")
    k("s_lshr_b32 s77, s77, 16")
    k("CONV_D_LO:")
    k("s_lshl_b32 s77, s77, 16")
    k("s_barrier")
    k("v_and_b32 v1, 127, v0")
    k("v_lshlrev_b32 v2, 5, v1")
    k("s_lshl_b32 s74, s75, 14")
    k("v_add_u32 v2, s74, v2")
    k(f"s_mul_i32 s74, s75, {KV_STRIDE}")
    k(f"s_add_u32 s74, s74, {kvbase + 4080 - 2048}")
    k("v_lshlrev_b32 v3, 4, v1")
    k("v_sub_u32 v3, s74, v3")
    for seg in range(2):
        b = 8 + 24 * seg
        for p in range(2):
            for hh in range(2):
                k.ds(f"ds_read_b128 {V(b + 8*p + 4*hh, 4)}, v2 offset:{partbase + 8192*p + 4096*seg + 16*hh}", f"pr{seg}")
        k.ds(f"ds_read_b128 {V(b + 16, 4)}, v3 offset:{2048*(1-seg)}", f"pr{seg}")
    k("s_lshl_b32 s74, s2, 13")
    k("s_lshl_b32 s76, s75, 12")
    k("s_add_u32 s74, s74, s76")
    k(f"s_add_u32 s74, s74, {WS_YT}")
    k("v_lshlrev_b32 v4, 4, v1")
    for seg in range(2):
        b = 8 + 24 * seg
        k.wait(lg=f"pr{seg}")
        for i in range(0, 8, 2):
            k(f"v_pk_add_f32 {V(b+i,2)}, {V(b+i,2)}, {V(b+8+i,2)}")
        for i in range(8):
            e = 7 - i
            (unpack_hi if e & 1 else unpack_lo)(k, 60, b + 16 + (e >> 1))
            k(f"v_fmac_f32 v{b+i}, s77, v60")
        for i in range(4):
            k(f"v_cvt_pk_bf16_f32 v{b+20+i}, v{b+2*i}, v{b+2*i+1}")
        k.vmem(f"buffer_store_dwordx4 {V(b+20,4)}, v4, {S(SWS)}, s74 offen offset:{2048*seg} {cfg['sc']}", "ys")


G2_ACC = 64


def g2_ids(k):
    k("s_and_b32 s5, s2, 7")
    k("s_lshl_b32 s5, s5, 2")
    k("s_lshr_b32 s6, s2, 3")
    k("s_and_b32 s6, s6, 3")
    k("s_add_u32 s5, s5, s6")
    k("s_lshr_b32 s6, s2, 5")


def w2_setup(k):
    k.c("---- w2 staging setup ----")
    k("s_lshr_b32 s93, s2, 5")
    k("s_mul_i32 s92, s4, 448*1024")
    k("s_lshl_b32 s93, s93, 7")
    k("s_add_u32 s92, s92, s93")
    k("v_and_b32 v10, 63, v0")
    k("v_lshrrev_b32 v11, 3, v10")
    k("v_and_b32 v12, 7, v10")
    k("v_bfe_u32 v13, v10, 4, 1")
    k("v_lshlrev_b32 v13, 2, v13")
    k("v_xor_b32 v12, v12, v13")
    k("v_lshlrev_b32 v12, 4, v12")
    k("v_lshl_add_u32 v20, v11, 10, v12")
    k("v_and_b32 v11, 15, v10")
    k("v_lshrrev_b32 v12, 5, v10")
    k("v_lshrrev_b32 v13, 2, v11")
    k("v_lshl_add_u32 v12, v12, 2, v13")
    k("v_lshlrev_b32 v12, 7, v12")
    k("v_bfe_u32 v13, v10, 4, 1")
    k("v_lshlrev_b32 v13, 1, v13")
    k("v_bfe_u32 v14, v11, 1, 1")
    k("v_add_u32 v13, v13, v14")
    k("v_bfe_u32 v14, v11, 3, 1")
    k("s_and_b32 s93, s4, 1")
    k("v_xor_b32 v14, s93, v14")
    k("v_lshl_add_u32 v13, v14, 2, v13")
    k("v_lshl_add_u32 v12, v13, 4, v12")
    k("v_and_b32 v14, 1, v11")
    k("v_lshl_add_u32 v21, v14, 3, v12")
    k("v_xor_b32 v22, 64, v21")


def w2_dma(k, piece, lds):
    sreg, off = lds
    for i in range(4):
        k(f"s_add_u32 m0, s{sreg}, {off + 1024*i}")
        k(f"s_add_u32 s94, s92, {(32*piece + 8*i)*1024}")
        k.vmem(f"buffer_load_dwordx4 v20, {S(SW2)}, s94 offen lds", f"w2p{piece}")


def w2_tr(k, piece, vb0, vb1, off):
    for kc in range(2):
        for a in range(2):
            for hf in range(2):
                i = 2 * piece + kc
                k.ds(f"ds_read_b64_tr_b16 {A(8*i + 4*a + 2*hf, 2)}, v{(vb0, vb1)[a]} offset:{off + 2048*kc + 1024*hf}",
                     f"w2t{piece}")


def g2_w2_standalone(k, cfg):
    k("s_lshl_b32 s95, s4, 15")
    k("v_add_u32 v23, s95, v21")
    k("v_add_u32 v24, s95, v22")
    NP = 8
    for p in range(min(NP, 14)):
        w2_dma(k, p, (95, (p % NP) * 4096))
    for p in range(14):
        k.wait(vm=f"w2p{p}")
        w2_tr(k, p, 23, 24, (p % NP) * 4096)
        if p + NP < 14:
            k.wait(lg=f"w2t{p}")
            w2_dma(k, p + NP, (95, (p % NP) * 4096))
    k.wait_all(vm=False, lg=True)


def g2_main(k, cfg, depth=16):
    k.c("---- G2 main ----")
    k("s_lshr_b32 s74, s4, 1")
    k("s_lshl_b32 s75, s5, 1")
    k("s_add_u32 s76, s75, s74")
    k("s_xor_b32 s77, s76, 1")
    k("s_mul_i32 s78, s4, 28")
    for b in range(2):
        k(f"s_mul_i32 s{76+b}, s{76+b}, 112")
        k(f"s_add_u32 s{76+b}, s{76+b}, s78")
        k(f"s_lshl_b32 s{76+b}, s{76+b}, 10")
        k(f"s_add_u32 s{76+b}, s{76+b}, {WS_HF}")
    k("v_and_b32 v1, 63, v0")
    k("v_lshlrev_b32 v1, 4, v1")
    FB = 128
    assert FB + 8 * depth <= 256

    def load(i):
        if i and i % 4 == 0:
            k("s_add_u32 s76, s76, 4096")
            k("s_add_u32 s77, s77, 4096")
        for b in range(2):
            r = FB + 8 * (i % depth) + 4 * b
            k.vmem(f"buffer_load_dwordx4 {V(r,4)}, v1, {S(SWS)}, s{76+b} offen offset:{1024*(i%4)} {cfg['scl']}", f"hf{i}")

    for i in range(min(depth, 28)):
        load(i)
    for i in range(28):
        k.wait(vm=f"hf{i}")
        for b in range(2):
            for a in range(2):
                d = G2_ACC + 16 * (a + 2 * b)
                c = V(d, 16) if i else "0"
                k(f"v_mfma_f32_32x32x16_bf16 {V(d,16)}, {A(8*i + 4*a, 4)}, {V(FB + 8*(i%depth) + 4*b, 4)}, {c}")
        if i + depth < 28:
            load(i + depth)


def g2_epilogue(k, cfg, redbase, ylbase):
    k.c("---- G2 epilogue ----")
    k("v_and_b32 v10, 63, v0")
    k("v_and_b32 v11, 31, v10")
    k("v_lshrrev_b32 v12, 5, v10")
    k("s_and_b32 s74, s4, 1")
    k("s_lshr_b32 s75, s4, 1")
    k("s_lshl_b32 s76, s5, 6")
    k("s_lshl_b32 s77, s75, 5")
    k("s_add_u32 s76, s76, s77")
    k("s_lshl_b32 s77, s6, 6")
    k("s_lshl_b32 s78, s74, 5")
    k("s_add_u32 s77, s77, s78")
    k("v_lshrrev_b32 v13, 2, v10")
    k("v_and_b32 v14, 3, v10")
    k("v_lshlrev_b32 v15, 12, v13")
    k("v_lshl_add_u32 v15, v14, 4, v15")
    k("s_lshl_b32 s78, s77, 12")
    k("s_lshl_b32 s79, s76, 1")
    k("s_add_u32 s78, s78, s79")
    k(f"s_add_u32 s78, s78, {WS_YT}")
    k(f"s_add_u32 s79, s78, {16*4096}")
    k.vmem(f"buffer_load_dwordx4 {V(128,4)}, v15, {S(SWS)}, s78 offen {cfg['scl']}", "yt")
    k.vmem(f"buffer_load_dwordx4 {V(132,4)}, v15, {S(SWS)}, s79 offen {cfg['scl']}", "yt")
    k("v_lshlrev_b32 v16, 10, v11")
    k("v_lshl_add_u32 v16, v12, 3, v16")
    k("s_lshl_b32 s78, s76, 10")
    k("s_lshl_b32 s79, s77, 1")
    k("s_add_u32 s78, s78, s79")
    for g in range(4):
        k.vmem(f"buffer_load_dwordx2 {V(136+2*g,2)}, v16, {S(SQ)}, s78 offen offset:{16*g}", "q")
    srd(k, STMP, P_B2, 1024)
    k("v_lshlrev_b32 v17, 3, v12")
    for g in range(4):
        k.vmem(f"buffer_load_dwordx2 {V(144+2*g,2)}, v17, {S(STMP)}, s79 offen offset:{16*g}", "b2")
    k("v_lshlrev_b32 v18, 2, v11")
    k("s_lshl_b32 s80, s76, 2")
    k(f"s_add_u32 s80, s80, {WS_G}")
    k.vmem(f"buffer_load_dword v152, v18, {S(SWS)}, s80 offen {cfg['scl']}", "g")
    k("v_lshlrev_b32 v19, 4, v10")
    for sg in range(1, 4):
        k(f"s_xor_b32 s80, s4, {sg}")
        k("s_mul_i32 s80, s80, 12288")
        k(f"v_add_u32 v20, s80, v19")
        for g in range(4):
            k.ds(f"ds_write_b128 v20, {V(G2_ACC + 16*sg + 4*g, 4)} offset:{redbase + (sg-1)*4096 + 1024*g}", "rw")
    k("s_lshl_b32 s80, s4, 11")
    k("v_lshlrev_b32 v21, 4, v10")
    k(f"s_add_u32 s80, s80, {ylbase}")
    k("v_add_u32 v21, s80, v21")
    k.wait(vm="yt")
    k.ds(f"ds_write_b128 v21, {V(128,4)}", "yw")
    k.ds(f"ds_write_b128 v21, {V(132,4)} offset:1024", "yw")
    k.wait(lg=["rw", "yw"])
    k("s_barrier")
    k("s_mul_i32 s80, s4, 12288")
    k("v_add_u32 v20, s80, v19")
    for sg in range(3):
        for g in range(4):
            k.ds(f"ds_read_b128 {V(160 + 16*sg + 4*g, 4)}, v20 offset:{redbase + sg*4096 + 1024*g}", f"rr{sg}")
    k("v_and_b32 v22, 15, v10")
    k("v_lshrrev_b32 v23, 2, v22")
    k("v_lshl_add_u32 v23, v12, 2, v23")
    k("v_lshlrev_b32 v23, 6, v23")
    k("v_bfe_u32 v24, v10, 4, 1")
    k("v_lshl_add_u32 v23, v24, 5, v23")
    k("v_and_b32 v24, 3, v22")
    k("v_lshl_add_u32 v23, v24, 3, v23")
    k("s_lshl_b32 s80, s4, 11")
    k(f"s_add_u32 s80, s80, {ylbase}")
    k("v_add_u32 v23, s80, v23")
    for g in range(4):
        k.ds(f"ds_read_b64_tr_b16 {V(208+2*g,2)}, v23 offset:{512*g}", "yr")
    acc = G2_ACC
    for sg in range(3):
        k.wait(lg=f"rr{sg}")
        for r in range(0, 16, 2):
            k(f"v_pk_add_f32 {V(acc+r,2)}, {V(acc+r,2)}, {V(160+16*sg+r,2)}")
    k.wait(vm=["q", "b2", "g"], lg="yr")
    X = 224
    slot = {0: 0, 2: 2, 1: 4, 3: 6}
    for g in range(4):
        for i in range(4):
            up = unpack_hi if i & 1 else unpack_lo
            up(k, 24 + i, 144 + 2 * g + (i >> 1))
            up(k, 28 + i, 136 + 2 * g + (i >> 1))
            up(k, 32 + i, 208 + 2 * g + (i >> 1))
        for i in range(4):
            r = acc + 4 * g + i
            k(f"v_add_f32 v{r}, v{r}, v{24+i}")
        for i in range(4):
            r = acc + 4 * g + i
            k(f"v_fma_f32 v{28+i}, v{28+i}, v{32+i}, -v{r}")
        for i in range(4):
            r = acc + 4 * g + i
            k(f"v_fmac_f32 v{r}, v152, v{28+i}")
        for d in range(2):
            r = acc + 4 * g + 2 * d
            k(f"v_cvt_pk_bf16_f32 v{X + slot[g] + d}, v{r}, v{r+1}")
    for base in (0, 4):
        k(f"v_permlane32_swap_b32 v{X+base}, v{X+base+2}")
        k(f"v_permlane32_swap_b32 v{X+base+1}, v{X+base+3}")
    k("v_lshlrev_b32 v16, 10, v11")
    k("v_lshl_add_u32 v16, v12, 5, v16")
    k.vmem(f"buffer_store_dwordx4 {V(X,4)}, v16, {S(SOUT)}, s78 offen", "os")
    k.vmem(f"buffer_store_dwordx4 {V(X+4,4)}, v16, {S(SOUT)}, s78 offen offset:16", "os")


def kdesc(label, nv=512, acc=256):
    return f""".amdhsa_kernel {label}
  .amdhsa_next_free_vgpr {nv}
  .amdhsa_next_free_sgpr 102
  .amdhsa_accum_offset {acc}
  .amdhsa_group_segment_fixed_size 0
  .amdhsa_kernarg_size 120
  .amdhsa_user_sgpr_count 2
  .amdhsa_user_sgpr_kernarg_segment_ptr 1
  .amdhsa_system_sgpr_workgroup_id_x 1
.end_amdhsa_kernel
"""


def khead(label):
    return f""".globl {label}
.p2align 8
.type {label},@function
{label}:
"""


def gen_multi(tsflag=False):
    cfg = dict(sc="", scl="", ts=tsflag)
    hdr = open("cdna_kernels/" + NAME + ".s.ref").read().split("; Override")[0]
    out = [hdr.rstrip("\n")]
    out.append("; @launch kernel=k1_kernel grid=(256,1,1) block=(256,1,1) lds=163840")
    out.append("; @launch kernel=k2_kernel grid=(256,1,1) block=(256,1,1) lds=163840")
    out.append("; @launch kernel=k3_kernel grid=(256,1,1) block=(256,1,1) lds=163840")
    out.append('.amdgcn_target "amdgcn-amd-amdhsa--gfx950"\n.text')
    k = K()
    prologue(k, "K1_END")
    ts_setup(k, cfg)
    ts(k, cfg, 0)
    t1_issue(k, cfg)
    t1_compute(k, cfg, 131072)
    ts(k, cfg, 1)
    k("s_lshr_b32 s74, s2, 3")
    k("s_cmp_ge_u32 s74, 28")
    k("s_cbranch_scc1 K1_GATE")
    vm_save = list(k.vm)
    g1_setup(k, cfg)
    g1_bias(k)
    bufs = [0, 32768, 65536, 98304]
    for s in range(4):
        g1_dma(k, s, bufs[s])
    g1_bias_unpack(k)
    ts(k, cfg, 2)
    g1_main(k, cfg, bufs)
    ts(k, cfg, 3)
    g1_epilogue(k, cfg)
    k.wait_all()
    ts(k, cfg, 4)
    k.wait_all()
    k("s_endpgm")
    k("K1_GATE:")
    k.vm = vm_save
    gate(k, cfg)
    k.wait_all()
    ts(k, cfg, 4)
    k.wait_all()
    k("K1_END:")
    k("s_endpgm")
    out.append(khead("k1_kernel") + k.text())
    k = K()
    prologue(k, "K2_END")
    ts_setup(k, cfg)
    ts(k, cfg, 5)
    hbase, kvbase = 0, 2 * CH_STRIDE + 256
    kvbase = (kvbase + 255) // 256 * 256
    conv_build_copies(k, cfg, hbase)
    conv_load_kv(k, cfg, kvbase)
    k.wait_all()
    k("s_barrier")
    ts(k, cfg, 6)
    conv_main(k, cfg, hbase, kvbase)
    ts(k, cfg, 7)
    conv_epilogue(k, cfg, 0, kvbase)
    k.wait_all()
    ts(k, cfg, 8)
    k.wait_all()
    k("K2_END:")
    k("s_endpgm")
    out.append(khead("k2_kernel") + k.text())
    k = K()
    prologue(k, "K3_END")
    ts_setup(k, cfg)
    ts(k, cfg, 9)
    g2_ids(k)
    w2_setup(k)
    g2_w2_standalone(k, cfg)
    ts(k, cfg, 10)
    g2_main(k, cfg, depth=16)
    ts(k, cfg, 11)
    k("s_barrier")
    g2_epilogue(k, cfg, 0, 65536)
    k.wait_all()
    ts(k, cfg, 12)
    k.wait_all()
    k("K3_END:")
    k("s_endpgm")
    out.append(khead("k3_kernel") + k.text())
    out.append('.section .rodata,"a"\n.p2align 6')
    for l in ("k1_kernel", "k2_kernel", "k3_kernel"):
        out.append(kdesc(l))
        out.append(".p2align 6")
    return "\n".join(out) + "\n"


if __name__ == "__main__":
    mode = sys.argv[1] if len(sys.argv) > 1 else "multi"
    path = sys.argv[2] if len(sys.argv) > 2 else "multi.s"
    txt = gen_multi("ts" in mode)
    open(path, "w").write(txt)
    print("COPY_O", COPY_O, "order", conv_order()[:10], "bytes", len(txt))
```

```python
import sys
from asmlib import K
import gen as G
from gen import (S, V, A, srd, unpack_lo, unpack_hi, NAME, SQ, SK, SV, SH, SW1, SW2, SOUT, SWS, STMP,
                 P_Q, P_K, P_V, P_SHIFT, P_SSMK, P_SSMD, P_W1, P_B1, P_W2, P_B2, P_GATE, P_OUT, P_WS,
                 COPY_O, COPY_STRIDE, CH_STRIDE, KV_STRIDE, conv_order, G1_ACC, G1_BIAS, G1_FR,
                 CV_ACC, CV_FA, CV_FB, G2_ACC)

WS_F0, WS_F1, WS_F2 = 0, 32768, 65536
WS_EPOCH = 98304
WS_G = 0x20000
WS_KVR = 1 << 20
WS_W2F = 3 << 20
WS_HF = 5 << 20
WS_YT = 13 << 20
WS_TS = 15 << 20
WS_SIZE = 16 << 20

L_W2S = 131072
L_KV = 139264
L_H = 0
L_PART = 98304
L_RED = 0
L_YL = 49152

NONCE = 3
SPIN = 1 << 15


def ts_setup(k, cfg):
    if not cfg.get("ts"):
        return
    k("s_lshl_b32 s100, s2, 2")
    k("s_add_u32 s100, s100, s4")
    k("s_lshl_b32 s100, s100, 7")
    k(f"s_add_u32 s100, s100, {WS_TS}")


def ts(k, cfg, idx):
    if not cfg.get("ts"):
        return
    k("s_memrealtime s[98:99]")
    k("s_waitcnt lgkmcnt(0)")
    k.lg = []
    k("v_mov_b32 v63, s98")
    k(f"buffer_store_dword v63, off, {S(SWS)}, s100 offset:{4*idx}")


class Lbl:
    n = 0

    @classmethod
    def new(cls, p):
        cls.n += 1
        return f"{p}_{cls.n}"


def merge(*streams):
    tot = max(len(s) for s in streams)
    out = []
    pos = [0] * len(streams)
    for step in range(1, tot + 1):
        for i, s in enumerate(streams):
            tgt = (len(s) * step + tot - 1) // tot
            while pos[i] < tgt:
                out.append(s[pos[i]])
                pos[i] += 1
    return out


def run(lst):
    for f in lst:
        f()


def publish(k, wsoff):
    l = Lbl.new("PUB")
    k("s_cmp_eq_u32 s4, 0")
    k(f"s_cbranch_scc0 {l}")
    k("s_lshl_b32 s97, s2, 7")
    k(f"s_add_u32 s97, s97, {wsoff}")
    k(f"v_mov_b32 v62, s{NONCE}")
    k("s_mov_b64 exec, 1")
    k(f"buffer_store_dword v62, off, {S(SWS)}, s97 sc1")
    k("s_mov_b64 exec, -1")
    k(f"{l}:")


def poll_issue(k, vreg, voff, wsoff, tag):
    k(f"s_mov_b32 s97, {wsoff}")
    k.vmem(f"buffer_load_dword v{vreg}, v{voff}, {S(SWS)}, s97 offen sc1", tag)


def poll_check(k, vreg, voff, wsoff, tag):
    ok, rt = Lbl.new("POK"), Lbl.new("PRT")
    k.wait(vm=tag)
    k(f"v_cmp_ne_u32 vcc, s{NONCE}, v{vreg}")
    k(f"s_cbranch_vccz {ok}")
    k(f"s_mov_b32 s97, {wsoff}")
    k(f"s_mov_b32 s101, {SPIN}")
    k(f"{rt}:")
    k("s_sleep 1")
    k(f"buffer_load_dword v{vreg}, v{voff}, {S(SWS)}, s97 offen sc1")
    k("s_waitcnt vmcnt(0)")
    k(f"v_cmp_ne_u32 vcc, s{NONCE}, v{vreg}")
    k(f"s_cbranch_vccz {ok}")
    k("s_sub_u32 s101, s101, 1")
    k(f"s_cbranch_scc0 {rt}")
    k(f"{ok}:")


def prologue(k, cfg, endlabel):
    k("s_cmp_ge_u32 s2, 256")
    k(f"s_cbranch_scc1 {endlabel}")
    k("s_load_dwordx16 s[44:59], s[0:1], 0")
    k("s_load_dwordx8 s[60:67], s[0:1], 64")
    k("s_load_dwordx4 s[68:71], s[0:1], 96")
    k("s_load_dwordx2 s[72:73], s[0:1], 112")
    k("v_lshrrev_b32 v1, 6, v0")
    k("s_nop 0")
    k("v_readfirstlane_b32 s4, v1")


def prologue2(k, cfg):
    k("s_waitcnt lgkmcnt(0)")
    k(f"s_load_dword s96, s[{P_WS}:{P_WS+1}], {WS_EPOCH}")
    srd(k, SQ, P_Q, 2 << 20)
    srd(k, SW1, P_W1, 512 * 1792 * 2)
    srd(k, SK, P_K, 2 << 20)
    srd(k, SV, P_V, 2 << 20)
    srd(k, SW2, P_W2, 512 * 1792 * 2)
    srd(k, SOUT, P_OUT, 2 << 20)
    srd(k, SWS, P_WS, WS_SIZE)


def nonce(k):
    k(f"s_mul_i32 s{NONCE}, s96, 0x9E3779B1")
    k(f"s_add_u32 s{NONCE}, s{NONCE}, 0x85EBCA6B")


T1_KR, T1_VR, T1_WR = 160, 172, 180
T1_K, T1_V, T1_W, T1_A, T1_O = 64, 86, 102, 110, 184


def t1_addr(k):
    k.c("---- T1 addresses ----")
    k("s_lshr_b32 s5, s2, 5")
    k("s_and_b32 s6, s2, 31")
    k("s_lshl_b32 s6, s6, 6")
    k("s_and_b32 s74, s4, 1")
    k("s_lshr_b32 s75, s4, 1")
    k("s_lshl_b32 s76, s74, 5")
    k("s_add_u32 s76, s76, s6")
    k("s_sub_u32 s77, s76, 3")
    k("s_lshl_b32 s77, s77, 10")
    k("s_lshl_b32 s78, s5, 7")
    k("s_add_u32 s77, s77, s78")
    k("s_lshl_b32 s78, s75, 6")
    k("s_add_u32 s77, s77, s78")
    k("v_and_b32 v15, 15, v0")
    k("v_bfe_u32 v16, v0, 4, 2")
    k("v_lshlrev_b32 v10, 13, v16")
    k("v_lshl_add_u32 v10, v15, 2, v10")
    k("v_add_u32 v10, s77, v10")
    k("v_add_u32 v11, 1024, v10")
    k("v_add_u32 v12, 2048, v10")
    k("v_add_u32 v13, 3072, v10")
    k("v_add_u32 v14, 7168, v10")
    k("v_lshlrev_b32 v17, 4, v15")
    k("s_lshl_b32 s78, s5, 9")
    k("s_lshl_b32 s79, s75, 8")
    k("s_add_u32 s24, s78, s79") if False else None
    k("s_add_u32 s7, s78, s79")
    k("v_sub_u32 v16, 3, v16")
    k("v_lshlrev_b32 v16, 4, v16")
    k("v_lshl_add_u32 v18, v15, 13, v16")
    k("s_lshl_b32 s78, s5, 18")
    k("s_lshl_b32 s79, s75, 17")
    k("s_add_u32 s78, s78, s79")
    k("s_sub_u32 s79, 2016, s76")
    k("s_lshl_b32 s79, s79, 1")
    k("s_add_u32 s78, s78, s79")
    k(f"s_add_u32 s95, s78, {WS_KVR}")


def t1_loads(k):
    def ad(j):
        if j < 3:
            return 10 + j, 0
        if j < 7:
            return 13, (j - 3) * 1024
        return 14, (j - 7) * 1024
    for j in range(11):
        r, o = ad(j)
        k.vmem(f"buffer_load_dword v{T1_KR+j}, v{r}, {S(SK)}, 0 offen offset:{o}", "t1")
    for i in range(8):
        r, o = ad(i + 3)
        k.vmem(f"buffer_load_dword v{T1_VR+i}, v{r}, {S(SV)}, 0 offen offset:{o}", "t1")
    srd(k, STMP, P_SHIFT, 512 * 4 * 2)
    k.vmem(f"buffer_load_dwordx4 {V(T1_WR,4)}, v17, {S(STMP)}, s7 offen", "t1")


def t1_compute(k, cfg):
    k.c("---- T1 compute ----")
    k.wait(vm="t1")
    for m in range(4):
        up = unpack_hi if m & 1 else unpack_lo
        up(k, T1_W + 2 * m, T1_WR + (m >> 1))
        up(k, T1_W + 2 * m + 1, T1_WR + 2 + (m >> 1))
    for j in range(11):
        unpack_lo(k, T1_K + 2 * j, T1_KR + j)
        unpack_hi(k, T1_K + 2 * j + 1, T1_KR + j)
    for m in range(4):
        for i in range(8):
            d = T1_A + 2 * i
            a = T1_K + 2 * (i + 3 - m)
            w = T1_W + 2 * m
            if m == 0:
                k(f"v_pk_mul_f32 {V(d,2)}, {V(a,2)}, {V(w,2)}")
            else:
                k(f"v_pk_fma_f32 {V(d,2)}, {V(a,2)}, {V(w,2)}, {V(d,2)}")
    for i in range(8):
        unpack_lo(k, T1_V + 2 * i, T1_VR + i)
        unpack_hi(k, T1_V + 2 * i + 1, T1_VR + i)
    for i in range(8):
        d = T1_A + 2 * i
        k(f"v_pk_mul_f32 {V(d,2)}, {V(d,2)}, {V(T1_V+2*i,2)}")
    for c in range(2):
        for jj in range(4):
            k(f"v_cvt_pk_bf16_f32 v{T1_O+4*c+jj}, v{T1_A+2*(7-2*jj)+c}, v{T1_A+2*(6-2*jj)+c}")
        if c:
            k("s_add_u32 s95, s95, 4096")
        k.vmem(f"buffer_store_dwordx4 {V(T1_O+4*c,4)}, v18, {S(SWS)}, s95 offen sc1", "t1s")


def w2f_addr(k):
    k.c("---- W2F producer addresses ----")
    k("s_and_b32 s92, s2, 31")
    k("s_lshl_b32 s92, s92, 2")
    k("s_add_u32 s92, s92, s4")
    k("s_lshr_b32 s93, s2, 5")
    k("s_lshl_b32 s94, s93, 7")
    k("s_add_u32 s94, s94, s92")
    k("s_lshl_b32 s94, s94, 11")
    k(f"s_add_u32 s94, s94, {WS_W2F}")
    k("s_lshl_b32 s93, s93, 7")
    k("s_lshl_b32 s92, s92, 14")
    k("v_and_b32 v23, 63, v0")
    k("v_lshrrev_b32 v19, 3, v23")
    k("v_and_b32 v20, 7, v23")
    k("v_bfe_u32 v21, v23, 4, 1")
    k("v_lshlrev_b32 v21, 2, v21")
    k("v_xor_b32 v20, v20, v21")
    k("v_lshlrev_b32 v20, 4, v20")
    k("v_lshl_add_u32 v19, v19, 10, v20")
    k("v_add_u32 v19, s92, v19")
    k("s_lshl_b32 s92, s4, 11")
    k(f"s_add_u32 s92, s92, {L_W2S}")
    k("v_and_b32 v20, 15, v23")
    k("v_lshrrev_b32 v21, 5, v23")
    k("v_lshrrev_b32 v22, 2, v20")
    k("v_lshl_add_u32 v21, v21, 2, v22")
    k("v_lshlrev_b32 v21, 7, v21")
    k("v_bfe_u32 v22, v23, 4, 1")
    k("v_lshlrev_b32 v22, 1, v22")
    k("v_bfe_u32 v24, v20, 1, 1")
    k("v_add_u32 v22, v22, v24")
    k("v_bfe_u32 v24, v20, 3, 1")
    k("v_lshl_add_u32 v22, v24, 2, v22")
    k("v_lshl_add_u32 v21, v22, 4, v21")
    k("v_and_b32 v24, 1, v20")
    k("v_lshl_add_u32 v20, v24, 3, v21")
    k("v_add_u32 v20, s92, v20")
    k("v_xor_b32 v21, 64, v20")
    k("v_lshlrev_b32 v22, 4, v23")


def w2f_dma(k):
    for j in range(2):
        k(f"s_add_u32 m0, s92, {1024*j}")
        if j:
            k("s_add_u32 s93, s93, 8192")
        k.vmem(f"buffer_load_dwordx4 v19, {S(SW2)}, s93 offen lds", "w2d")


W2T = 192


def w2f_process(k):
    k.wait(vm="w2d")
    for nb in range(2):
        for hf in range(2):
            k.ds(f"ds_read_b64_tr_b16 {V(W2T + 4*nb + 2*hf, 2)}, v{20+nb} offset:{1024*hf}", "w2t")
    k.wait(lg="w2t")
    for nb in range(2):
        k.vmem(f"buffer_store_dwordx4 {V(W2T+4*nb,4)}, v22, {S(SWS)}, s94 offen offset:{1024*nb} sc1", "w2s")


def w2f_cons_setup(k):
    k("s_lshr_b32 s92, s2, 5")
    k("s_lshl_b32 s92, s92, 7")
    k("s_mul_i32 s93, s4, 28")
    k("s_add_u32 s92, s92, s93")
    k("s_lshl_b32 s92, s92, 11")
    k(f"s_add_u32 s92, s92, {WS_W2F}")
    k("s_and_b32 s93, s4, 1")
    k("s_lshl_b32 s93, s93, 10")
    k("s_add_u32 s92, s92, s93")
    k("s_xor_b32 s93, s92, 1024")


def w2f_cons_loads(k, vlane):
    out = []
    for ii in range(28):
        for a in range(2):
            def f(ii=ii, a=a):
                if ii and ii % 2 == 0:
                    k(f"s_add_u32 s{92+a}, s{92+a}, 4096")
                k.vmem(f"buffer_load_dwordx4 {A(8*ii+4*a,4)}, v{vlane}, {S(SWS)}, s{92+a} offen offset:{2048*(ii%2)} sc1",
                       f"wf{ii}")
            out.append(f)
    return out


HW = 30


def h_loads(k):
    k("s_lshl_b32 s74, s2, 13")
    for ch in range(2):
        d = 84 + 4 * ch
        k(f"s_add_u32 s{d}, s{P_SSMK}, s74")
        k(f"s_addc_u32 s{d+1}, s{P_SSMK+1}, 0")
        k(f"s_mov_b32 s{d+2}, 4096")
        k(f"s_mov_b32 s{d+3}, 0x00020000")
        if ch == 0:
            k("s_add_u32 s74, s74, 4096")
    k("v_lshlrev_b32 v46, 4, v0")
    k("v_add_u32 v47, -16, v46")
    for ch in range(2):
        k.vmem(f"buffer_load_dwordx4 {V(HW+8*ch,4)}, v47, {S(84+4*ch)}, 0 offen", "hw")
        k.vmem(f"buffer_load_dwordx4 {V(HW+4+8*ch,4)}, v46, {S(84+4*ch)}, 0 offen", "hw")


def kv_zero(k):
    for i in range(4):
        k(f"v_mov_b32 v{48+i}, 0")
    k(f"v_add_u32 v52, {L_KV + 4096}, v46")
    k("v_cmp_gt_u32 vcc, 32, v0")
    k("s_and_saveexec_b64 s[74:75], vcc")
    for ch in range(2):
        k.ds(f"ds_write_b128 v52, {V(48,4)} offset:{ch*KV_STRIDE}", "kvz")
    k("s_mov_b64 exec, s[74:75]")


def build_copies(k):
    out = []
    E = out.append
    E(lambda: k.wait(vm="hw"))
    E(lambda: k(f"v_add_u32 v52, {L_H + 16}, v46"))
    E(lambda: k(f"v_add_u32 v53, {L_H + 16 + CH_STRIDE}, v46"))
    for ch in range(2):
        w = HW + 8 * ch
        t = (128, 224)[ch]
        R, P, Q = t, t + 6, t + 12
        for j in range(6):
            E(lambda j=j, w=w, R=R: k(f"v_mov_b32 v{R+j}, v{w+j+1}"))
        for j in range(6):
            E(lambda j=j, w=w, P=P: k(f"v_alignbyte_b32 v{P+j}, v{w+j+1}, v{w+j}, 2"))
        for j in range(6):
            E(lambda j=j, w=w, Q=Q: k(f"v_alignbyte_b32 v{Q+j}, v{w+j+2}, v{w+j+1}, 2"))
        src = {0: w, 4: w + 2, 2: R, 6: R + 2, 1: P, 5: P + 2, 3: Q, 7: Q + 2}
        for s in (0, 4, 2, 6, 1, 5, 3, 7):
            E(lambda s=s, ch=ch, src=src: k.ds(
                f"ds_write_b128 v{52+ch}, {V(src[s],4)} offset:{s*COPY_STRIDE + 16*COPY_O[s]}", "hwr"))

    def specials():
        k("v_cmp_eq_u32 vcc, 255, v0") if False else None
        k("s_mov_b32 s76, 255")
        k("v_cmp_eq_u32 vcc, s76, v0")
        k("s_and_saveexec_b64 s[74:75], vcc")
        for ch in range(2):
            k.ds(f"ds_write_b128 v{52+ch}, {V(HW+8*ch+4,4)} offset:{16 + 16*COPY_O[0]}", "hwr")
        k("s_mov_b64 exec, s[74:75]")
        lut = sum(o << (4 * i) for i, o in enumerate(COPY_O))
        k(f"s_mov_b32 s76, {lut}")
        k("v_lshlrev_b32 v54, 2, v0")
        k("v_bfe_u32 v54, s76, v54, 4")
        k("v_lshlrev_b32 v54, 4, v54")
        k(f"v_mul_u32_u24 v55, {COPY_STRIDE}, v0")
        k("v_add_u32 v54, v54, v55")
        k(f"v_add_u32 v54, {L_H}, v54")
        k("v_cmp_gt_u32 vcc, 8, v0")
        k("s_and_saveexec_b64 s[74:75], vcc")
        k.ds(f"ds_write_b128 v54, {V(48,4)}", "hwr")
        k.ds(f"ds_write_b128 v54, {V(48,4)} offset:{CH_STRIDE}", "hwr")
        k("s_mov_b64 exec, s[74:75]")
    E(specials)
    return out


def kv_loads(k):
    k("s_lshl_b32 s74, s2, 13")
    k(f"s_add_u32 s74, s74, {WS_KVR}")
    k.vmem(f"buffer_load_dwordx4 {V(244,4)}, v46, {S(SWS)}, s74 offen sc1", "kv")
    k("s_add_u32 s74, s74, 4096")
    k.vmem(f"buffer_load_dwordx4 {V(248,4)}, v46, {S(SWS)}, s74 offen sc1", "kv")


def kv_write(k):
    k(f"v_add_u32 v54, {L_KV}, v46")
    k.wait(vm="kv")
    for ch in range(2):
        k.ds(f"ds_write_b128 v54, {V(244+4*ch,4)} offset:{ch*KV_STRIDE}", "kvw")


def flag_addrs(k):
    k("v_and_b32 v56, 31, v0")
    k("s_lshr_b32 s74, s2, 5")
    k("s_lshl_b32 s74, s74, 5")
    k("v_add_u32 v56, s74, v56")
    k("v_lshlrev_b32 v56, 7, v56")
    k("s_and_b32 s74, s2, 7")
    k("s_lshl_b32 s74, s74, 2")
    k("s_lshr_b32 s75, s2, 3")
    k("s_and_b32 s75, s75, 3")
    k("s_add_u32 s74, s74, s75")
    k("s_lshr_b32 s75, s74, 1")
    k("s_lshr_b32 s76, s75, 2")
    k("s_lshl_b32 s76, s76, 1")
    k("s_and_b32 s77, s75, 3")
    k("s_lshl_b32 s77, s77, 3")
    k("s_add_u32 s76, s76, s77")
    k("s_lshr_b32 s77, s74, 2")
    k("s_and_b32 s78, s74, 3")
    k("s_lshl_b32 s78, s78, 3")
    k("s_add_u32 s77, s77, s78")
    k("s_add_u32 s77, s77, 224")
    k("v_and_b32 v58, 63, v0")
    k("v_cmp_lt_u32 vcc, 6, v58")
    k("v_cndmask_b32 v59, 0, 1, vcc")
    k("v_mul_u32_u24 v60, 7, v59")
    k("v_sub_u32 v60, v58, v60")
    k("v_lshlrev_b32 v60, 5, v60")
    k("v_add_u32 v60, v60, v59")
    k("v_add_u32 v60, s76, v60")
    k("v_mov_b32 v59, s77")
    k("v_cmp_gt_u32 vcc, 14, v58")
    k("v_cndmask_b32 v57, v59, v60, vcc")
    k("v_lshlrev_b32 v57, 7, v57")
    k("v_lshlrev_b32 v58, 4, v58")


def g1_main(k, cfg, bufs, pre, post, tail):
    nb = len(bufs)
    k.c("---- G1 main ----")
    k.wait(vm="slab0")
    k("s_barrier")
    G.g1_reads(k, bufs[0], 0, "r0_0")
    G.g1_reads(k, bufs[0], 1, "r0_1")

    def mf(ks, first):
        fr = G1_FR + 16 * ks
        o = []
        for fb in range(2):
            for mb in range(2):
                d = G1_ACC + 32 * fb + 16 * mb
                c = V(G1_BIAS + 16 * fb, 16) if first else V(d, 16)
                o.append(lambda d=d, c=c, fb=fb, mb=mb: k(
                    f"v_mfma_f32_32x32x16_bf16 {V(d,16)}, {V(fr + 4*fb, 4)}, {V(fr + 8 + 4*mb, 4)}, {c}"))
        return o

    for s in range(8):
        buf = bufs[s % nb]
        if s < 7:
            G.g1_reads(k, buf, 2, f"r{s}_2")
            k.wait(lg=f"r{s}_0")
            run(mf(0, s == 0))
            G.g1_reads(k, buf, 3, f"r{s}_3")
            k.wait(lg=f"r{s}_1")
            run(mf(1, False))
            if s in pre:
                pre[s]()
            k.wait(vm=f"slab{s+1}", lg=f"r{s}_3")
            k("s_barrier")
            if s + nb < 8:
                G.g1_dma(k, s + nb, buf)
            if s in post:
                post[s]()
            nbuf = bufs[(s + 1) % nb]
            if s < 6:
                G.g1_reads(k, nbuf, 0, f"r{s+1}_0")
                run(mf(2, False))
                G.g1_reads(k, nbuf, 1, f"r{s+1}_1")
                run(mf(3, False))
            else:
                fg = []
                fg.append(lambda: G.g1_reads(k, nbuf, 0, "r7_0"))
                fg += mf(2, False)
                fg.append(lambda: G.g1_reads(k, nbuf, 1, "r7_1"))
                fg += mf(3, False)
                fg.append(lambda: G.g1_reads(k, nbuf, 2, "r7_2"))
                fg.append(lambda: k.wait(lg="r7_0"))
                fg += mf(0, False)
                fg.append(lambda: G.g1_reads(k, nbuf, 3, "r7_3"))
                fg.append(lambda: k.wait(lg="r7_1"))
                fg += mf(1, False)
                fg.append(lambda: k.wait(lg="r7_2"))
                fg += mf(2, False)
                fg.append(lambda: k.wait(lg="r7_3"))
                fg += mf(3, False)
                run(merge(fg, tail))


def g1_epilogue(k, cfg, bg):
    k.c("---- G1 epilogue ----")
    k("s_lshl_b32 s74, s5, 2")
    k("s_lshr_b32 s75, s4, 1")
    k("s_lshl_b32 s75, s75, 1")
    k("s_add_u32 s74, s74, s75")
    k("s_mul_i32 s74, s74, 112")
    k("s_lshl_b32 s75, s6, 3")
    k("s_add_u32 s74, s74, s75")
    k("s_and_b32 s75, s4, 1")
    k("s_lshl_b32 s75, s75, 2")
    k("s_add_u32 s74, s74, s75")
    k("s_lshl_b32 s74, s74, 10")
    k(f"s_add_u32 s78, s74, {WS_HF}")
    k(f"s_add_u32 s79, s78, {112*1024}")
    tmp = 160
    ti = 0
    fg = []
    for mb in range(2):
        for fb in range(2):
            acc = G1_ACC + 32 * fb + 16 * mb
            for half in range(2):
                t = tmp + 4 * ti
                ti += 1
                for r in range(8 * half, 8 * half + 8):
                    fg.append(lambda r=r, acc=acc: k(f"v_max_f32 v{acc+r}, 0, v{acc+r}"))
                for r in range(8 * half, 8 * half + 8, 2):
                    fg.append(lambda r=r, acc=acc: k(f"v_pk_mul_f32 {V(acc+r,2)}, {V(acc+r,2)}, {V(acc+r,2)}"))
                for i in range(4):
                    r = acc + 8 * half + 2 * i
                    fg.append(lambda r=r, t=t, i=i: k(f"v_cvt_pk_bf16_f32 v{t+i}, v{r}, v{r+1}"))
                fg.append(lambda t=t, mb=mb, fb=fb, half=half: k.vmem(
                    f"buffer_store_dwordx4 {V(t,4)}, v22, {S(SWS)}, s{78+mb} offen offset:{(2*fb+half)*1024} sc1", "hs"))
    run(merge(fg, bg) if bg else fg)


def conv_addr(k):
    k.c("---- conv addresses ----")
    k("v_and_b32 v10, 63, v0")
    k("v_and_b32 v11, 15, v10")
    k("v_lshrrev_b32 v12, 4, v10")
    k("v_add_u32 v13, 1, v11")
    k("v_and_b32 v14, 7, v13")
    k("v_lshrrev_b32 v15, 3, v13")
    lut = sum(o << (4 * i) for i, o in enumerate(COPY_O))
    k(f"s_mov_b32 s74, {lut}")
    k("v_lshlrev_b32 v16, 2, v14")
    k("v_bfe_u32 v16, s74, v16, 4")
    k("v_add_u32 v16, v16, v15")
    k("v_add_u32 v16, v16, v12")
    k("v_lshlrev_b32 v16, 4, v16")
    k(f"v_mul_u32_u24 v17, {COPY_STRIDE}, v14")
    k("v_add_u32 v16, v16, v17")
    k("s_lshr_b32 s75, s4, 1")
    k(f"s_mul_i32 s76, s75, {CH_STRIDE}")
    k("s_and_b32 s77, s4, 1")
    k("s_lshl_b32 s77, s77, 8")
    k("s_add_u32 s76, s76, s77")
    k(f"s_add_u32 s76, s76, {L_H}")
    k("v_add_u32 v1, s76, v16")
    k(f"s_mul_i32 s76, s75, {KV_STRIDE}")
    k("s_add_u32 s76, s76, s77")
    k(f"s_add_u32 s76, s76, {L_KV + 480}")
    k("v_lshlrev_b32 v16, 5, v11")
    k("v_lshlrev_b32 v17, 4, v12")
    k("v_sub_u32 v16, v17, v16")
    k("v_add_u32 v2, s76, v16")


def conv_main(k, cfg, hook):
    k.c("---- conv main ----")
    order = conv_order()
    for i in range(8):
        k.ds(f"ds_read_b128 {V(CV_FA + 4*i, 4)}, v1 offset:{512*i}", f"ca0_{i}")
        k.ds(f"ds_read_b128 {V(CV_FB + 4*i, 4)}, v2 offset:{512*(7-i)}", f"cb0_{i}")
    touched = set()
    for c0i in range(4):
        st = c0i & 1
        nxt = []
        if c0i < 3:
            for i in range(8):
                nxt.append((f"ds_read_b128 {V(CV_FA + 32*(st^1) + 4*i, 4)}, v1 offset:{512*i + 64*(c0i+1)}", f"ca{c0i+1}_{i}"))
                nxt.append((f"ds_read_b128 {V(CV_FB + 32*(st^1) + 4*i, 4)}, v2 offset:{512*(7-i) + 64*(c0i+1)}", f"cb{c0i+1}_{i}"))
        waited = set()
        for n, (d, c1) in enumerate(order):
            tags = [t for t in (f"ca{c0i}_{c1}", f"cb{c0i}_{d}") if t not in waited]
            if tags:
                k.wait(lg=tags)
                waited.update(tags)
            j = d + c1
            acc = V(CV_ACC + 4 * j, 4)
            c = acc if j in touched else "0"
            touched.add(j)
            k(f"v_mfma_f32_16x16x32_bf16 {acc}, {V(CV_FA + 32*st + 4*c1, 4)}, {V(CV_FB + 32*st + 4*d, 4)}, {c}")
            if n >= 18 and nxt:
                t, tg = nxt.pop(0)
                k.ds(t, tg)
            hook(c0i * 36 + n)


def conv_epilogue(k, cfg, bg):
    k.c("---- conv epilogue ----")
    bgi = iter(bg)

    def B(n=1):
        for _ in range(n):
            f = next(bgi, None)
            if f:
                f()
    k("v_and_b32 v10, 63, v0")
    k("v_and_b32 v11, 15, v10")
    k("v_lshrrev_b32 v12, 4, v10")
    k("v_lshlrev_b32 v11, 6, v11")
    k("v_lshl_add_u32 v11, v12, 4, v11")
    k("s_lshl_b32 s74, s4, 13")
    k(f"s_add_u32 s74, s74, {L_PART}")
    k("v_add_u32 v11, s74, v11")
    k("s_lshr_b32 s75, s4, 1")
    k("s_lshl_b32 s76, s2, 2")
    k(f"s_load_dword s77, s[{P_SSMD}:{P_SSMD+1}], s76")
    for j in range(8):
        k.ds(f"ds_write_b128 v11, {V(CV_ACC + 4*j, 4)} offset:{1024*j}", "pw")
        B()
    k("v_and_b32 v1, 127, v0")
    k("v_lshlrev_b32 v2, 5, v1")
    k("s_lshl_b32 s74, s75, 14")
    k(f"s_add_u32 s74, s74, {L_PART}")
    k("v_add_u32 v2, s74, v2")
    k(f"s_mul_i32 s74, s75, {KV_STRIDE}")
    k(f"s_add_u32 s74, s74, {L_KV + 4080 - 2048}")
    k("v_lshlrev_b32 v3, 4, v1")
    k("v_sub_u32 v3, s74, v3")
    k.wait_all(vm=False, lg=True)
    k("s_lshl_b32 s79, s75, 4")
    k("s_lshr_b32 s77, s77, s79")
    k("s_lshl_b32 s77, s77, 16")
    k("s_barrier")
    for seg in range(2):
        b = 8 + 24 * seg
        for p in range(2):
            for hh in range(2):
                k.ds(f"ds_read_b128 {V(b + 8*p + 4*hh, 4)}, v2 offset:{8192*p + 4096*seg + 16*hh}", f"pr{seg}")
        k.ds(f"ds_read_b128 {V(b + 16, 4)}, v3 offset:{2048*(1-seg)}", f"pr{seg}")
        B(2)
    k("s_lshl_b32 s74, s2, 13")
    k("s_lshl_b32 s79, s75, 12")
    k("s_add_u32 s74, s74, s79")
    k(f"s_add_u32 s74, s74, {WS_YT}")
    k("v_lshlrev_b32 v4, 4, v1")
    for seg in range(2):
        b = 8 + 24 * seg
        k.wait(lg=f"pr{seg}")
        for i in range(0, 8, 2):
            k(f"v_pk_add_f32 {V(b+i,2)}, {V(b+i,2)}, {V(b+8+i,2)}")
        B()
        for i in range(8):
            e = 7 - i
            (unpack_hi if e & 1 else unpack_lo)(k, 60, b + 16 + (e >> 1))
            k(f"v_fmac_f32 v{b+i}, s77, v60")
            if i % 2:
                B()
        for i in range(4):
            k(f"v_cvt_pk_bf16_f32 v{b+20+i}, v{b+2*i}, v{b+2*i+1}")
        k.vmem(f"buffer_store_dwordx4 {V(b+20,4)}, v4, {S(SWS)}, s74 offen offset:{2048*seg} sc1", "ys")
    B(100)


FB = 128


def g2_setup(k):
    G.g2_ids(k)
    k("s_lshr_b32 s74, s4, 1")
    k("s_lshl_b32 s75, s5, 1")
    k("s_add_u32 s80, s75, s74")
    k("s_xor_b32 s81, s80, 1")
    k("s_mul_i32 s78, s4, 28")
    for b in range(2):
        k(f"s_mul_i32 s{80+b}, s{80+b}, 112")
        k(f"s_add_u32 s{80+b}, s{80+b}, s78")
        k(f"s_lshl_b32 s{80+b}, s{80+b}, 10")
        k(f"s_add_u32 s{80+b}, s{80+b}, {WS_HF}")


def hf_load(k, i, depth):
    out = []
    for b in range(2):
        def f(b=b):
            if b == 0 and i and i % 4 == 0:
                k("s_add_u32 s80, s80, 4096")
                k("s_add_u32 s81, s81, 4096")
            r = FB + 8 * (i % depth) + 4 * b
            k.vmem(f"buffer_load_dwordx4 {V(r,4)}, v58, {S(SWS)}, s{80+b} offen offset:{1024*(i%4)} sc1", f"hf{i}")
        out.append(f)
    return out


def g2_main(k, cfg, depth, hooks):
    k.c("---- G2 main ----")
    for i in range(28):
        k.wait(vm=[f"hf{i}", f"wf{i}"])
        for b in range(2):
            for a in range(2):
                d = G2_ACC + 16 * (a + 2 * b)
                c = V(d, 16) if i else "0"
                k(f"v_mfma_f32_32x32x16_bf16 {V(d,16)}, {A(8*i + 4*a, 4)}, {V(FB + 8*(i%depth) + 4*b, 4)}, {c}")
        if i + depth < 28:
            run(hf_load(k, i + depth, depth))
        if i in hooks:
            hooks[i]()


def g2_ep_addr(k):
    k("v_and_b32 v10, 63, v0")
    k("v_and_b32 v11, 31, v10")
    k("v_lshrrev_b32 v12, 5, v10")
    k("s_and_b32 s74, s4, 1")
    k("s_lshr_b32 s75, s4, 1")
    k("s_lshl_b32 s76, s5, 6")
    k("s_lshl_b32 s77, s75, 5")
    k("s_add_u32 s76, s76, s77")
    k("s_lshl_b32 s77, s6, 6")
    k("s_lshl_b32 s78, s74, 5")
    k("s_add_u32 s77, s77, s78")


def g2_ep_loads_plain(k):
    k("v_lshlrev_b32 v16, 10, v11")
    k("v_lshl_add_u32 v16, v12, 3, v16")
    k("s_lshl_b32 s82, s76, 10")
    k("s_lshl_b32 s79, s77, 1")
    k("s_add_u32 s82, s82, s79")
    for g in range(4):
        k.vmem(f"buffer_load_dwordx2 {V(136+2*g,2)}, v16, {S(SQ)}, s82 offen offset:{16*g}", "q")
    srd(k, STMP, P_B2, 1024)
    k("v_lshlrev_b32 v17, 3, v12")
    for g in range(4):
        k.vmem(f"buffer_load_dwordx2 {V(144+2*g,2)}, v17, {S(STMP)}, s79 offen offset:{16*g}", "b2")


def g2_ep_loads_sc1(k):
    k("v_lshrrev_b32 v13, 2, v10")
    k("v_and_b32 v14, 3, v10")
    k("v_lshlrev_b32 v15, 12, v13")
    k("v_lshl_add_u32 v15, v14, 4, v15")
    k("s_lshl_b32 s78, s77, 12")
    k("s_lshl_b32 s79, s76, 1")
    k("s_add_u32 s78, s78, s79")
    k(f"s_add_u32 s78, s78, {WS_YT}")
    k(f"s_add_u32 s79, s78, {16*4096}")
    k.vmem(f"buffer_load_dwordx4 {V(128,4)}, v15, {S(SWS)}, s78 offen sc1", "yt")
    k.vmem(f"buffer_load_dwordx4 {V(132,4)}, v15, {S(SWS)}, s79 offen sc1", "yt")
    k("v_lshlrev_b32 v18, 2, v11")
    k("s_lshl_b32 s78, s76, 2")
    k(f"s_add_u32 s78, s78, {WS_G}")
    k.vmem(f"buffer_load_dword v152, v18, {S(SWS)}, s78 offen sc1", "g")


def g2_epilogue(k, cfg):
    k.c("---- G2 epilogue ----")
    k("v_lshlrev_b32 v19, 4, v10")
    for sg in range(1, 4):
        k(f"s_xor_b32 s80, s4, {sg}")
        k("s_mul_i32 s80, s80, 12288")
        k(f"v_add_u32 v20, s80, v19")
        for g in range(4):
            k.ds(f"ds_write_b128 v20, {V(G2_ACC + 16*sg + 4*g, 4)} offset:{L_RED + (sg-1)*4096 + 1024*g}", "rw")
    k("s_lshl_b32 s80, s4, 11")
    k(f"s_add_u32 s80, s80, {L_YL}")
    k("v_add_u32 v21, s80, v19")
    k.wait(vm="yt")
    k.ds(f"ds_write_b128 v21, {V(128,4)}", "yw")
    k.ds(f"ds_write_b128 v21, {V(132,4)} offset:1024", "yw")
    k.wait(lg=["rw", "yw"])
    k("s_barrier")
    k("s_mul_i32 s80, s4, 12288")
    k("v_add_u32 v20, s80, v19")
    for sg in range(3):
        for g in range(4):
            k.ds(f"ds_read_b128 {V(160 + 16*sg + 4*g, 4)}, v20 offset:{L_RED + sg*4096 + 1024*g}", f"rr{sg}")
    k("v_and_b32 v22, 15, v10")
    k("v_lshrrev_b32 v23, 2, v22")
    k("v_lshl_add_u32 v23, v12, 2, v23")
    k("v_lshlrev_b32 v23, 6, v23")
    k("v_bfe_u32 v24, v10, 4, 1")
    k("v_lshl_add_u32 v23, v24, 5, v23")
    k("v_and_b32 v24, 3, v22")
    k("v_lshl_add_u32 v23, v24, 3, v23")
    k("s_lshl_b32 s80, s4, 11")
    k(f"s_add_u32 s80, s80, {L_YL}")
    k("v_add_u32 v23, s80, v23")
    for g in range(4):
        k.ds(f"ds_read_b64_tr_b16 {V(208+2*g,2)}, v23 offset:{512*g}", "yr")
    acc = G2_ACC
    for sg in range(3):
        k.wait(lg=f"rr{sg}")
        for r in range(0, 16, 2):
            k(f"v_pk_add_f32 {V(acc+r,2)}, {V(acc+r,2)}, {V(160+16*sg+r,2)}")
    k.wait(vm=["q", "b2", "g"], lg="yr")
    X = 224
    slot = {0: 0, 2: 2, 1: 4, 3: 6}
    for g in range(4):
        for i in range(4):
            up = unpack_hi if i & 1 else unpack_lo
            up(k, 24 + i, 144 + 2 * g + (i >> 1))
            up(k, 28 + i, 136 + 2 * g + (i >> 1))
            up(k, 32 + i, 208 + 2 * g + (i >> 1))
        for i in range(4):
            r = acc + 4 * g + i
            k(f"v_add_f32 v{r}, v{r}, v{24+i}")
        for i in range(4):
            r = acc + 4 * g + i
            k(f"v_fma_f32 v{28+i}, v{28+i}, v{32+i}, -v{r}")
        for i in range(4):
            r = acc + 4 * g + i
            k(f"v_fmac_f32 v{r}, v152, v{28+i}")
        for d in range(2):
            r = acc + 4 * g + 2 * d
            k(f"v_cvt_pk_bf16_f32 v{X + slot[g] + d}, v{r}, v{r+1}")
    for base in (0, 4):
        k(f"v_permlane32_swap_b32 v{X+base}, v{X+base+2}")
        k(f"v_permlane32_swap_b32 v{X+base+1}, v{X+base+3}")
    k("v_lshlrev_b32 v16, 10, v11")
    k("v_lshl_add_u32 v16, v12, 5, v16")
    k.vmem(f"buffer_store_dwordx4 {V(X,4)}, v16, {S(SOUT)}, s82 offen", "os")
    k.vmem(f"buffer_store_dwordx4 {V(X+4,4)}, v16, {S(SOUT)}, s82 offen offset:16", "os")


GX = 64


def gate_loads(k):
    k("s_and_b32 s5, s2, 7")
    k("s_lshl_b32 s5, s5, 2")
    k("s_lshr_b32 s6, s2, 3")
    k("s_sub_u32 s6, s6, 28")
    k("s_add_u32 s5, s5, s6")
    k("s_lshl_b32 s5, s5, 6")
    k("s_lshl_b32 s6, s4, 4")
    k("s_add_u32 s5, s5, s6")
    k("s_lshl_b32 s6, s5, 10")
    srd(k, 76, P_GATE, 1024)
    k.vmem(f"buffer_load_dwordx4 {V(4,4)}, v22, {S(76)}, 0 offen", "gw")
    for i in range(16):
        if i and i % 4 == 0:
            k("s_add_u32 s6, s6, 4096")
        k.vmem(f"buffer_load_dwordx4 {A(4*i,4)}, v22, {S(SQ)}, s6 offen offset:{1024*(i%4)}", f"gx{i}")


def gate_compute(k, cfg):
    k.c("---- gate compute ----")
    k.wait(vm="gw")
    for c in range(8):
        (unpack_hi if c & 1 else unpack_lo)(k, 8 + c, 4 + (c >> 1))
    R = 96
    for i in range(16):
        k.wait(vm=f"gx{i}")
        s = 64 + 4 * (i & 1)
        for c in range(4):
            k(f"v_accvgpr_read_b32 v{s+c}, a{4*i+c}")
        u = 72 + 8 * (i & 1)
        for c in range(8):
            (unpack_hi if c & 1 else unpack_lo)(k, u + c, s + (c >> 1))
        t = 88 + 2 * (i & 1)
        for cp in range(0, 8, 2):
            if cp == 0:
                k(f"v_pk_mul_f32 {V(t,2)}, {V(u,2)}, {V(8,2)}")
            else:
                k(f"v_pk_fma_f32 {V(t,2)}, {V(u+cp,2)}, {V(8+cp,2)}, {V(t,2)}")
        k(f"v_add_f32 v{R+i}, v{t}, v{t+1}")
    for mod in ["row_shr:1", "row_shr:2", "row_shr:4", "row_shr:8", "row_bcast:15 row_mask:0xa",
                "row_bcast:31 row_mask:0xc"]:
        for i in range(16):
            m = mod if "row_mask" in mod else mod + " row_mask:0xf"
            k(f"v_add_f32_dpp v{R+i}, v{R+i}, v{R+i} {m} bank_mask:0xf")
    k("v_mov_b32 v2, 0")
    for g in range(0, 16, 4):
        for i in range(g, g + 4):
            k(f"v_readlane_b32 s{76+i-g}, v{R+i}, 63")
        for i in range(g, g + 4):
            k(f"v_writelane_b32 v2, s{76+i-g}, {i}")
    k("v_mul_f32 v2, 0xbfb8aa3b, v2")
    k("v_exp_f32 v2, v2")
    k("v_add_f32 v2, 1.0, v2")
    k("v_rcp_f32 v2, v2")
    k("v_and_b32 v1, 63, v0")
    k("v_lshlrev_b32 v3, 2, v1")
    k("s_lshl_b32 s6, s5, 2")
    k(f"s_add_u32 s6, s6, {WS_G}")
    k("v_cmp_gt_u32 vcc, 16, v1")
    k("s_and_saveexec_b64 s[74:75], vcc")
    k.vmem(f"buffer_store_dword v2, v3, {S(SWS)}, s6 offen sc1", "gs")
    k("s_mov_b64 exec, s[74:75]")


def gen(cfg):
    k = K()
    END = "K_END"
    prologue(k, cfg, END)
    t1_addr(k)
    w2f_addr(k)
    k("s_lshr_b32 s74, s2, 3")
    k("s_cmp_ge_u32 s74, 28")
    k("s_cbranch_scc1 GATE")
    return k


def gen_full(cfg):
    k = K()
    END = "K_END"
    bufs = [0, 32768, 65536, 98304]
    NB1 = cfg.get("nb1", 8)
    NB2 = cfg.get("nb2", 8)
    prologue(k, cfg, END)
    k("s_lshr_b32 s74, s2, 3")
    k("s_cmp_ge_u32 s74, 28")
    k("s_cbranch_scc1 GATE")
    G.g1_setup(k, cfg)
    k("s_mov_b32 s20, s5")
    k("s_mov_b32 s21, s6")
    k("v_lshrrev_b32 v61, 5, v10")
    k("v_lshlrev_b32 v61, 3, v61")
    k("s_lshl_b32 s76, s6, 8")
    k("s_and_b32 s77, s4, 1")
    k("s_lshl_b32 s77, s77, 7")
    k("s_add_u32 s83, s76, s77")
    w2f_addr(k)
    k("v_add_u32 v24, 65536, v4")
    t1_addr(k)
    prologue2(k, cfg)
    ts_setup(k, cfg)
    G.g1_dma(k, 0, bufs[0])
    t1_loads(k)
    srd(k, STMP, P_B1, 1792 * 2)
    for fb in range(2):
        for g in range(4):
            k.vmem(f"buffer_load_dwordx2 {V(224 + 8*fb + 2*g, 2)}, v61, {S(STMP)}, s83 offen offset:{64*fb + 16*g}", "bias")
    w2f_dma(k)
    for s in range(1, 4):
        G.g1_dma(k, s, bufs[s])
    h_loads(k)
    kv_zero(k)
    ts(k, cfg, 0)
    t1_compute(k, cfg)
    w2f_process(k)
    k("s_waitcnt lgkmcnt(0)")
    k.lg = []
    nonce(k)
    flag_addrs(k)
    G.g1_bias_unpack(k)
    k("s_mov_b32 s5, s20")
    k("s_mov_b32 s6, s21")
    ts(k, cfg, 1)
    P0 = cfg.get("pub0", 2)
    pre = {P0: lambda: k.wait(vm=["t1s", "w2s"]),
           6: lambda: (poll_check(k, 62, 56, WS_F0, "p0"), ts(k, cfg, 2))}
    wl = None

    def post6():
        nonlocal wl
        kv_loads(k)
        w2f_cons_setup(k)
        wl = w2f_cons_loads(k, 58)
        for _ in range(NB1):
            wl.pop(0)()
    post = {P0: lambda: publish(k, WS_F0), 5: lambda: poll_issue(k, 62, 56, WS_F0, "p0"), 6: post6}
    g1_main(k, cfg, bufs, pre, post, build_copies(k))
    ts(k, cfg, 3)
    bg = [wl.pop(0) for _ in range(NB2)]
    g1_epilogue(k, cfg, bg)
    kv_write(k)
    vm_join = list(k.vm)
    wl_join = list(wl)
    k("s_branch JOIN")
    k("GATE:")
    k.vm, k.lg = [], []
    w2f_addr(k)
    t1_addr(k)
    prologue2(k, cfg)
    ts_setup(k, cfg)
    t1_loads(k)
    w2f_dma(k)
    gate_loads(k)
    h_loads(k)
    kv_zero(k)
    ts(k, cfg, 0)
    t1_compute(k, cfg)
    w2f_process(k)
    k("s_waitcnt lgkmcnt(0)")
    k.lg = []
    nonce(k)
    flag_addrs(k)
    k.wait(vm=["t1s", "w2s"])
    k("s_barrier")
    publish(k, WS_F0)
    ts(k, cfg, 1)
    gate_compute(k, cfg)
    run(build_copies(k))
    poll_issue(k, 62, 56, WS_F0, "p0")
    poll_check(k, 62, 56, WS_F0, "p0")
    ts(k, cfg, 2)
    kv_loads(k)
    w2f_cons_setup(k)
    wl = w2f_cons_loads(k, 58)
    for _ in range(NB1 + NB2):
        wl.pop(0)()
    kv_write(k)
    k.wait_all(vm=True, lg=False)
    k("JOIN:")
    k.vm = vm_join
    k.lg = ["x"]
    wl = wl_join_rebind(k, len(wl_join))
    conv_addr(k)
    k.wait_all(vm=False, lg=True)
    k("s_barrier")
    ts(k, cfg, 4)
    PUB1 = cfg.get("pub1", 54)
    POLL1 = cfg.get("poll1", 112)
    nrem = len(wl)
    span = cfg.get("wspan", 132)

    def hook(n):
        tgt = min(nrem, (n + 1) * nrem // span + 1)
        while nrem - len(wl) < tgt:
            wl.pop(0)()
        if n == PUB1:
            k.wait(vm="hs")
            k("s_barrier")
            publish(k, WS_F1)
        if n == POLL1:
            poll_issue(k, 62, 57, WS_F1, "p1")
    conv_main(k, cfg, hook)
    ts(k, cfg, 5)
    poll_check(k, 62, 57, WS_F1, "p1")
    ts(k, cfg, 6)
    g2_setup(k)
    depth = 16
    bg = []
    for i in range(depth):
        bg += hf_load(k, i, depth)
    conv_epilogue(k, cfg, bg)
    ts(k, cfg, 7)
    PUB2 = cfg.get("pub2", 6)
    POLL2 = cfg.get("poll2", 17)
    CHK2 = cfg.get("chk2", 21)

    def h_pub2():
        k.wait(vm="ys")
        k("s_barrier")
        publish(k, WS_F2)

    def h_chk2():
        poll_check(k, 62, 56, WS_F2, "p2")
        ts(k, cfg, 8)
        g2_ep_addr(k)
        g2_ep_loads_sc1(k)
        g2_ep_loads_plain(k)
    hooks = {PUB2: h_pub2, POLL2: lambda: poll_issue(k, 62, 56, WS_F2, "p2"), CHK2: h_chk2}
    g2_main(k, cfg, depth, hooks)
    ts(k, cfg, 9)
    g2_epilogue(k, cfg)
    k("s_or_b32 s74, s2, s4")
    k("s_cmp_eq_u32 s74, 0")
    k("s_cbranch_scc0 NOEP")
    k("s_add_u32 s96, s96, 1")
    k("v_mov_b32 v62, s96")
    k(f"s_mov_b32 s97, {WS_EPOCH}")
    k("s_mov_b64 exec, 1")
    k(f"buffer_store_dword v62, off, {S(SWS)}, s97")
    k("s_mov_b64 exec, -1")
    k("NOEP:")
    k.wait_all()
    ts(k, cfg, 10)
    k("s_waitcnt vmcnt(0)")
    k(f"{END}:")
    k("s_endpgm")
    return k


def wl_join_rebind(k, n):
    allw = w2f_cons_loads(k, 58)
    return allw[len(allw) - n:]


def build(cfg):
    hdr = open("cdna_kernels/" + NAME + ".s.ref").read().split("; Override")[0]
    out = [hdr.rstrip("\n")]
    out.append("; @launch grid=(256,1,1) block=(256,1,1) lds=163840")
    out.append('.amdgcn_target "amdgcn-amd-amdhsa--gfx950"\n.text')
    k = gen_full(cfg)
    lab = NAME + "_kernel"
    out.append(G.khead(lab) + k.text())
    out.append('.section .rodata,"a"\n.p2align 6')
    out.append(G.kdesc(lab))
    return "\n".join(out) + "\n"


if __name__ == "__main__":
    path = sys.argv[1]
    cfg = {}
    for a in sys.argv[2:]:
        kk, vv = a.split("=")
        cfg[kk] = int(vv)
    txt = build(cfg)
    open(path, "w").write(txt)
    print("bytes", len(txt))
```

```python
import sys
from asmlib import K
import gen as G
from gen import (S, V, A, srd, unpack_lo, unpack_hi, NAME, SQ, SK, SV, SH, SW1, SW2, SOUT, SWS, STMP,
                 P_Q, P_K, P_V, P_SHIFT, P_SSMK, P_SSMD, P_W1, P_B1, P_W2, P_B2, P_GATE, P_OUT, P_WS,
                 COPY_O, COPY_STRIDE, CH_STRIDE, KV_STRIDE, conv_order, G1_ACC, G1_BIAS, G1_FR,
                 CV_ACC, CV_FA, CV_FB, G2_ACC)

WS_F0, WS_F1, WS_F2 = 0, 32768, 65536
WS_EPOCH = 98304
WS_G = 0x20000
WS_KVR = 1 << 20
WS_W2F = 3 << 20
WS_HF = 5 << 20
WS_YT = 13 << 20
WS_TS = 15 << 20
WS_SIZE = 16 << 20

L_W2S = 131072
L_KV = 139264
L_H = 0
L_PART = 98304
L_RED = 0
L_YL = 49152

NONCE = 3
SPIN = 1 << 15


def ts_setup(k, cfg):
    if not cfg.get("ts"):
        return
    k("s_lshl_b32 s100, s2, 2")
    k("s_add_u32 s100, s100, s4")
    k("s_lshl_b32 s100, s100, 8")
    k(f"s_add_u32 s100, s100, {WS_TS}")


class KT(K):
    pend = None

    def flush_ts(self):
        if self.pend is not None:
            K.__call__(self, f"v_writelane_b32 v63, s98, {self.pend}")
            self.pend = None

    def __call__(self, s):
        K.__call__(self, s)
        if self.pend is not None and "s_waitcnt" in s and "lgkmcnt(0)" in s:
            self.flush_ts()


def ts(k, cfg, idx):
    if not cfg.get("ts"):
        return
    if cfg.get("tsmin") and idx not in (0, 27, cfg.get("ampa", 0), cfg.get("ampb", 27)):
        return
    if k.pend is not None:
        k("s_waitcnt lgkmcnt(0)")
        k.lg = []
    k("s_memtime s[98:99]" if cfg.get("ts") == 2 else "s_memrealtime s[98:99]")
    k.pend = idx


def ts_final(k, cfg, idx):
    if not cfg.get("ts"):
        return
    ts(k, cfg, idx)
    k("s_waitcnt lgkmcnt(0)")
    k("v_and_b32 v62, 63, v0")
    k("v_lshlrev_b32 v62, 2, v62")
    k(f"buffer_store_dword v63, v62, {S(SWS)}, s100 offen")


class Lbl:
    n = 0

    @classmethod
    def new(cls, p):
        cls.n += 1
        return f"{p}_{cls.n}"


def merge(*streams):
    tot = max(len(s) for s in streams)
    out = []
    pos = [0] * len(streams)
    for step in range(1, tot + 1):
        for i, s in enumerate(streams):
            tgt = (len(s) * step + tot - 1) // tot
            while pos[i] < tgt:
                out.append(s[pos[i]])
                pos[i] += 1
    return out


def run(lst):
    for f in lst:
        f()


def publish(k, wsoff):
    l = Lbl.new("PUB")
    k("s_cmp_eq_u32 s4, 0")
    k(f"s_cbranch_scc0 {l}")
    k("s_lshl_b32 s97, s2, 7")
    k(f"s_add_u32 s97, s97, {wsoff}")
    k(f"v_mov_b32 v62, s{NONCE}")
    k("s_mov_b64 exec, 1")
    k(f"buffer_store_dword v62, off, {S(SWS)}, s97 sc1")
    k("s_mov_b64 exec, -1")
    k(f"{l}:")


def poll_issue(k, vreg, voff, wsoff, tag):
    k(f"s_mov_b32 s97, {wsoff}")
    k.vmem(f"buffer_load_dword v{vreg}, v{voff}, {S(SWS)}, s97 offen sc1", tag)


def poll_check(k, vreg, voff, wsoff, tag):
    ok, rt = Lbl.new("POK"), Lbl.new("PRT")
    k.wait(vm=tag)
    k(f"v_cmp_ne_u32 vcc, s{NONCE}, v{vreg}")
    k(f"s_cbranch_vccz {ok}")
    k(f"s_mov_b32 s97, {wsoff}")
    k(f"s_mov_b32 s101, {SPIN}")
    k(f"{rt}:")
    k("s_sleep 1")
    k(f"buffer_load_dword v{vreg}, v{voff}, {S(SWS)}, s97 offen sc1")
    k("s_waitcnt vmcnt(0)")
    k(f"v_cmp_ne_u32 vcc, s{NONCE}, v{vreg}")
    k(f"s_cbranch_vccz {ok}")
    k("s_sub_u32 s101, s101, 1")
    k(f"s_cbranch_scc0 {rt}")
    k(f"{ok}:")


def prologue(k, cfg, endlabel):
    k("s_cmp_ge_u32 s2, 256")
    k(f"s_cbranch_scc1 {endlabel}")
    k("s_load_dwordx16 s[44:59], s[0:1], 0")
    k("s_load_dwordx8 s[60:67], s[0:1], 64")
    k("s_load_dwordx4 s[68:71], s[0:1], 96")
    k("s_load_dwordx2 s[72:73], s[0:1], 112")
    k("v_lshrrev_b32 v1, 6, v0")
    k("s_nop 0")
    k("v_readfirstlane_b32 s4, v1")


def prologue2(k, cfg):
    k("s_waitcnt lgkmcnt(0)")
    k(f"s_load_dword s96, s[{P_WS}:{P_WS+1}], {WS_EPOCH}")
    srd(k, SQ, P_Q, 2 << 20)
    srd(k, SW1, P_W1, 512 * 1792 * 2)
    srd(k, SK, P_K, 2 << 20)
    srd(k, SV, P_V, 2 << 20)
    srd(k, SW2, P_W2, 512 * 1792 * 2)
    srd(k, SOUT, P_OUT, 2 << 20)
    srd(k, SWS, P_WS, WS_SIZE)


def nonce(k):
    k(f"s_mul_i32 s{NONCE}, s96, 0x9E3779B1")
    k(f"s_add_u32 s{NONCE}, s{NONCE}, 0x85EBCA6B")


T1_KR, T1_VR, T1_WR = 160, 172, 180
T1_K, T1_V, T1_W, T1_A, T1_O = 64, 86, 102, 110, 184


def t1_addr(k):
    k.c("---- T1 addresses ----")
    k("s_lshr_b32 s5, s2, 5")
    k("s_and_b32 s6, s2, 31")
    k("s_lshl_b32 s6, s6, 6")
    k("s_and_b32 s74, s4, 1")
    k("s_lshr_b32 s75, s4, 1")
    k("s_lshl_b32 s76, s74, 5")
    k("s_add_u32 s76, s76, s6")
    k("s_sub_u32 s77, s76, 3")
    k("s_lshl_b32 s77, s77, 10")
    k("s_lshl_b32 s78, s5, 7")
    k("s_add_u32 s77, s77, s78")
    k("s_lshl_b32 s78, s75, 6")
    k("s_add_u32 s77, s77, s78")
    k("v_and_b32 v15, 15, v0")
    k("v_bfe_u32 v16, v0, 4, 2")
    k("v_lshlrev_b32 v10, 13, v16")
    k("v_lshl_add_u32 v10, v15, 2, v10")
    k("v_add_u32 v10, s77, v10")
    k("v_add_u32 v11, 1024, v10")
    k("v_add_u32 v12, 2048, v10")
    k("v_add_u32 v13, 3072, v10")
    k("v_add_u32 v14, 7168, v10")
    k("v_lshlrev_b32 v17, 4, v15")
    k("s_lshl_b32 s78, s5, 9")
    k("s_lshl_b32 s79, s75, 8")
    k("s_add_u32 s24, s78, s79") if False else None
    k("s_add_u32 s7, s78, s79")
    k("v_sub_u32 v16, 3, v16")
    k("v_lshlrev_b32 v16, 4, v16")
    k("v_lshl_add_u32 v18, v15, 13, v16")
    k("s_lshl_b32 s78, s5, 18")
    k("s_lshl_b32 s79, s75, 17")
    k("s_add_u32 s78, s78, s79")
    k("s_sub_u32 s79, 2016, s76")
    k("s_lshl_b32 s79, s79, 1")
    k("s_add_u32 s78, s78, s79")
    k(f"s_add_u32 s95, s78, {WS_KVR}")


def t1_loads(k):
    def ad(j):
        if j < 3:
            return 10 + j, 0
        if j < 7:
            return 13, (j - 3) * 1024
        return 14, (j - 7) * 1024
    for j in range(11):
        r, o = ad(j)
        k.vmem(f"buffer_load_dword v{T1_KR+j}, v{r}, {S(SK)}, 0 offen offset:{o}", "t1")
    for i in range(8):
        r, o = ad(i + 3)
        k.vmem(f"buffer_load_dword v{T1_VR+i}, v{r}, {S(SV)}, 0 offen offset:{o}", "t1")
    srd(k, STMP, P_SHIFT, 512 * 4 * 2)
    k.vmem(f"buffer_load_dwordx4 {V(T1_WR,4)}, v17, {S(STMP)}, s7 offen", "t1")


def t1_compute(k, cfg):
    k.c("---- T1 compute ----")
    k.wait(vm="t1")
    ts(k, cfg, 4)
    for m in range(4):
        up = unpack_hi if m & 1 else unpack_lo
        up(k, T1_W + 2 * m, T1_WR + (m >> 1))
        up(k, T1_W + 2 * m + 1, T1_WR + 2 + (m >> 1))
    for j in range(11):
        unpack_lo(k, T1_K + 2 * j, T1_KR + j)
        unpack_hi(k, T1_K + 2 * j + 1, T1_KR + j)
    for m in range(4):
        for i in range(8):
            d = T1_A + 2 * i
            a = T1_K + 2 * (i + 3 - m)
            w = T1_W + 2 * m
            if m == 0:
                k(f"v_pk_mul_f32 {V(d,2)}, {V(a,2)}, {V(w,2)}")
            else:
                k(f"v_pk_fma_f32 {V(d,2)}, {V(a,2)}, {V(w,2)}, {V(d,2)}")
    for i in range(8):
        unpack_lo(k, T1_V + 2 * i, T1_VR + i)
        unpack_hi(k, T1_V + 2 * i + 1, T1_VR + i)
    for i in range(8):
        d = T1_A + 2 * i
        k(f"v_pk_mul_f32 {V(d,2)}, {V(d,2)}, {V(T1_V+2*i,2)}")
    for c in range(2):
        for jj in range(4):
            k(f"v_cvt_pk_bf16_f32 v{T1_O+4*c+jj}, v{T1_A+2*(7-2*jj)+c}, v{T1_A+2*(6-2*jj)+c}")
        if c:
            k("s_add_u32 s95, s95, 4096")
        k.vmem(f"buffer_store_dwordx4 {V(T1_O+4*c,4)}, v18, {S(SWS)}, s95 offen sc1", "t1s")


def w2f_addr(k):
    k.c("---- W2F producer addresses ----")
    k("s_and_b32 s92, s2, 31")
    k("s_lshl_b32 s92, s92, 2")
    k("s_add_u32 s92, s92, s4")
    k("s_lshr_b32 s93, s2, 5")
    k("s_lshl_b32 s94, s93, 7")
    k("s_add_u32 s94, s94, s92")
    k("s_lshl_b32 s94, s94, 11")
    k(f"s_add_u32 s94, s94, {WS_W2F}")
    k("s_lshl_b32 s93, s93, 7")
    k("s_lshl_b32 s92, s92, 14")
    k("v_and_b32 v23, 63, v0")
    k("v_lshrrev_b32 v19, 3, v23")
    k("v_and_b32 v20, 7, v23")
    k("v_bfe_u32 v21, v23, 4, 1")
    k("v_lshlrev_b32 v21, 2, v21")
    k("v_xor_b32 v20, v20, v21")
    k("v_lshlrev_b32 v20, 4, v20")
    k("v_lshl_add_u32 v19, v19, 10, v20")
    k("v_add_u32 v19, s92, v19")
    k("s_lshl_b32 s92, s4, 11")
    k(f"s_add_u32 s92, s92, {L_W2S}")
    k("v_and_b32 v20, 15, v23")
    k("v_lshrrev_b32 v21, 5, v23")
    k("v_lshrrev_b32 v22, 2, v20")
    k("v_lshl_add_u32 v21, v21, 2, v22")
    k("v_lshlrev_b32 v21, 7, v21")
    k("v_bfe_u32 v22, v23, 4, 1")
    k("v_lshlrev_b32 v22, 1, v22")
    k("v_bfe_u32 v24, v20, 1, 1")
    k("v_add_u32 v22, v22, v24")
    k("v_bfe_u32 v24, v20, 3, 1")
    k("v_lshl_add_u32 v22, v24, 2, v22")
    k("v_lshl_add_u32 v21, v22, 4, v21")
    k("v_and_b32 v24, 1, v20")
    k("v_lshl_add_u32 v20, v24, 3, v21")
    k("v_add_u32 v20, s92, v20")
    k("v_xor_b32 v21, 64, v20")
    k("v_lshlrev_b32 v22, 4, v23")


def w2f_dma(k):
    for j in range(2):
        k(f"s_add_u32 m0, s92, {1024*j}")
        if j:
            k("s_add_u32 s93, s93, 8192")
        k.vmem(f"buffer_load_dwordx4 v19, {S(SW2)}, s93 offen lds", "w2d")


W2T = 192


def w2f_process(k):
    k.wait(vm="w2d")
    for nb in range(2):
        for hf in range(2):
            k.ds(f"ds_read_b64_tr_b16 {V(W2T + 4*nb + 2*hf, 2)}, v{20+nb} offset:{1024*hf}", "w2t")
    k.wait(lg="w2t")
    for nb in range(2):
        k.vmem(f"buffer_store_dwordx4 {V(W2T+4*nb,4)}, v22, {S(SWS)}, s94 offen offset:{1024*nb} sc1", "w2s")


def w2f_cons_setup(k):
    k("s_lshr_b32 s92, s2, 5")
    k("s_lshl_b32 s92, s92, 7")
    k("s_mul_i32 s93, s4, 28")
    k("s_add_u32 s92, s92, s93")
    k("s_lshl_b32 s92, s92, 11")
    k(f"s_add_u32 s92, s92, {WS_W2F}")
    k("s_and_b32 s93, s4, 1")
    k("s_lshl_b32 s93, s93, 10")
    k("s_add_u32 s92, s92, s93")
    k("s_xor_b32 s93, s92, 1024")


def w2f_cons_loads(k, vlane):
    out = []
    for ii in range(28):
        for a in range(2):
            def f(ii=ii, a=a):
                if ii and ii % 2 == 0:
                    k(f"s_add_u32 s{92+a}, s{92+a}, 4096")
                k.vmem(f"buffer_load_dwordx4 {A(8*ii+4*a,4)}, v{vlane}, {S(SWS)}, s{92+a} offen offset:{2048*(ii%2)} sc1",
                       f"wf{ii}")
            out.append(f)
    return out


HW = 30


def h_loads(k):
    k("s_lshl_b32 s74, s2, 13")
    for ch in range(2):
        d = 84 + 4 * ch
        k(f"s_add_u32 s{d}, s{P_SSMK}, s74")
        k(f"s_addc_u32 s{d+1}, s{P_SSMK+1}, 0")
        k(f"s_mov_b32 s{d+2}, 4096")
        k(f"s_mov_b32 s{d+3}, 0x00020000")
        if ch == 0:
            k("s_add_u32 s74, s74, 4096")
    k("v_lshlrev_b32 v46, 4, v0")
    k("v_add_u32 v47, -16, v46")
    for ch in range(2):
        k.vmem(f"buffer_load_dwordx4 {V(HW+8*ch,4)}, v47, {S(84+4*ch)}, 0 offen", "hw")
        k.vmem(f"buffer_load_dwordx4 {V(HW+4+8*ch,4)}, v46, {S(84+4*ch)}, 0 offen", "hw")


def kv_zero(k):
    for i in range(4):
        k(f"v_mov_b32 v{48+i}, 0")
    k(f"v_add_u32 v52, {L_KV + 4096}, v46")
    k("v_cmp_gt_u32 vcc, 32, v0")
    k("s_and_saveexec_b64 s[74:75], vcc")
    for ch in range(2):
        k.ds(f"ds_write_b128 v52, {V(48,4)} offset:{ch*KV_STRIDE}", "kvz")
    k("s_mov_b64 exec, s[74:75]")


def build_copies(k):
    out = []
    E = out.append
    E(lambda: k.wait(vm="hw"))
    E(lambda: k(f"v_add_u32 v52, {L_H + 16}, v46"))
    E(lambda: k(f"v_add_u32 v53, {L_H + 16 + CH_STRIDE}, v46"))
    for ch in range(2):
        w = HW + 8 * ch
        t = (128, 224)[ch]
        R, P, Q = t, t + 6, t + 12
        for j in range(6):
            E(lambda j=j, w=w, R=R: k(f"v_mov_b32 v{R+j}, v{w+j+1}"))
        for j in range(6):
            E(lambda j=j, w=w, P=P: k(f"v_alignbyte_b32 v{P+j}, v{w+j+1}, v{w+j}, 2"))
        for j in range(6):
            E(lambda j=j, w=w, Q=Q: k(f"v_alignbyte_b32 v{Q+j}, v{w+j+2}, v{w+j+1}, 2"))
        src = {0: w, 4: w + 2, 2: R, 6: R + 2, 1: P, 5: P + 2, 3: Q, 7: Q + 2}
        for s in (0, 4, 2, 6, 1, 5, 3, 7):
            E(lambda s=s, ch=ch, src=src: k.ds(
                f"ds_write_b128 v{52+ch}, {V(src[s],4)} offset:{s*COPY_STRIDE + 16*COPY_O[s]}", "hwr"))

    def specials():
        k("v_cmp_eq_u32 vcc, 255, v0") if False else None
        k("s_mov_b32 s76, 255")
        k("v_cmp_eq_u32 vcc, s76, v0")
        k("s_and_saveexec_b64 s[74:75], vcc")
        for ch in range(2):
            k.ds(f"ds_write_b128 v{52+ch}, {V(HW+8*ch+4,4)} offset:{16 + 16*COPY_O[0]}", "hwr")
        k("s_mov_b64 exec, s[74:75]")
        lut = sum(o << (4 * i) for i, o in enumerate(COPY_O))
        k(f"s_mov_b32 s76, {lut}")
        k("v_lshlrev_b32 v54, 2, v0")
        k("v_bfe_u32 v54, s76, v54, 4")
        k("v_lshlrev_b32 v54, 4, v54")
        k(f"v_mul_u32_u24 v55, {COPY_STRIDE}, v0")
        k("v_add_u32 v54, v54, v55")
        k(f"v_add_u32 v54, {L_H}, v54")
        k("v_cmp_gt_u32 vcc, 8, v0")
        k("s_and_saveexec_b64 s[74:75], vcc")
        k.ds(f"ds_write_b128 v54, {V(48,4)}", "hwr")
        k.ds(f"ds_write_b128 v54, {V(48,4)} offset:{CH_STRIDE}", "hwr")
        k("s_mov_b64 exec, s[74:75]")
    E(specials)
    return out


def kv_loads(k):
    k("s_lshl_b32 s74, s2, 13")
    k(f"s_add_u32 s74, s74, {WS_KVR}")
    k.vmem(f"buffer_load_dwordx4 {V(244,4)}, v46, {S(SWS)}, s74 offen sc1", "kv")
    k("s_add_u32 s74, s74, 4096")
    k.vmem(f"buffer_load_dwordx4 {V(248,4)}, v46, {S(SWS)}, s74 offen sc1", "kv")


def kv_write(k):
    k(f"v_add_u32 v54, {L_KV}, v46")
    k.wait(vm="kv")
    for ch in range(2):
        k.ds(f"ds_write_b128 v54, {V(244+4*ch,4)} offset:{ch*KV_STRIDE}", "kvw")


def flag_addrs(k):
    k("v_and_b32 v56, 31, v0")
    k("s_lshr_b32 s74, s2, 5")
    k("s_lshl_b32 s74, s74, 5")
    k("v_add_u32 v56, s74, v56")
    k("v_lshlrev_b32 v56, 7, v56")
    k("s_and_b32 s74, s2, 7")
    k("s_lshl_b32 s74, s74, 2")
    k("s_lshr_b32 s75, s2, 3")
    k("s_and_b32 s75, s75, 3")
    k("s_add_u32 s74, s74, s75")
    k("s_lshr_b32 s75, s74, 1")
    k("s_lshr_b32 s76, s75, 2")
    k("s_lshl_b32 s76, s76, 1")
    k("s_and_b32 s77, s75, 3")
    k("s_lshl_b32 s77, s77, 3")
    k("s_add_u32 s76, s76, s77")
    k("s_lshr_b32 s77, s74, 2")
    k("s_and_b32 s78, s74, 3")
    k("s_lshl_b32 s78, s78, 3")
    k("s_add_u32 s77, s77, s78")
    k("s_add_u32 s77, s77, 224")
    k("v_and_b32 v58, 63, v0")
    k("v_cmp_lt_u32 vcc, 6, v58")
    k("v_cndmask_b32 v59, 0, 1, vcc")
    k("v_mul_u32_u24 v60, 7, v59")
    k("v_sub_u32 v60, v58, v60")
    k("v_lshlrev_b32 v60, 5, v60")
    k("v_add_u32 v60, v60, v59")
    k("v_add_u32 v60, s76, v60")
    k("v_mov_b32 v59, s77")
    k("v_cmp_gt_u32 vcc, 14, v58")
    k("v_cndmask_b32 v57, v59, v60, vcc")
    k("v_lshlrev_b32 v57, 7, v57")
    k("v_lshlrev_b32 v58, 4, v58")


def g1_main(k, cfg, bufs, pre, post, tail):
    nb = len(bufs)
    k.c("---- G1 main ----")
    k.wait(vm="slab0")
    k("s_barrier")
    ts(k, cfg, 6)
    G.g1_reads(k, bufs[0], 0, "r0_0")
    G.g1_reads(k, bufs[0], 1, "r0_1")

    def mf(ks, first):
        fr = G1_FR + 16 * ks
        o = []
        for fb in range(2):
            for mb in range(2):
                d = G1_ACC + 32 * fb + 16 * mb
                c = V(G1_BIAS + 16 * fb, 16) if first else V(d, 16)
                o.append(lambda d=d, c=c, fb=fb, mb=mb: k(
                    f"v_mfma_f32_32x32x16_bf16 {V(d,16)}, {V(fr + 4*fb, 4)}, {V(fr + 8 + 4*mb, 4)}, {c}"))
        return o

    for s in range(8):
        buf = bufs[s % nb]
        if s < 7:
            G.g1_reads(k, buf, 2, f"r{s}_2")
            k.wait(lg=f"r{s}_0")
            run(mf(0, s == 0))
            G.g1_reads(k, buf, 3, f"r{s}_3")
            k.wait(lg=f"r{s}_1")
            run(mf(1, False))
            if s in pre:
                pre[s]()
            k.wait(vm=f"slab{s+1}", lg=f"r{s}_3")
            k("s_barrier")
            ts(k, cfg, 7 + s)
            if s + nb < 8:
                G.g1_dma(k, s + nb, buf)
            if s in post:
                post[s]()
            nbuf = bufs[(s + 1) % nb]
            if s < 6:
                G.g1_reads(k, nbuf, 0, f"r{s+1}_0")
                run(mf(2, False))
                G.g1_reads(k, nbuf, 1, f"r{s+1}_1")
                run(mf(3, False))
            else:
                fg = []
                fg.append(lambda: G.g1_reads(k, nbuf, 0, "r7_0"))
                fg += mf(2, False)
                fg.append(lambda: G.g1_reads(k, nbuf, 1, "r7_1"))
                fg += mf(3, False)
                fg.append(lambda: G.g1_reads(k, nbuf, 2, "r7_2"))
                fg.append(lambda: k.wait(lg="r7_0"))
                fg += mf(0, False)
                fg.append(lambda: G.g1_reads(k, nbuf, 3, "r7_3"))
                fg.append(lambda: k.wait(lg="r7_1"))
                fg += mf(1, False)
                fg.append(lambda: k.wait(lg="r7_2"))
                fg += mf(2, False)
                fg.append(lambda: k.wait(lg="r7_3"))
                fg += mf(3, False)
                run(merge(fg, tail))


def g1_epilogue(k, cfg, bg):
    k.c("---- G1 epilogue ----")
    k("s_lshl_b32 s74, s5, 2")
    k("s_lshr_b32 s75, s4, 1")
    k("s_lshl_b32 s75, s75, 1")
    k("s_add_u32 s74, s74, s75")
    k("s_mul_i32 s74, s74, 112")
    k("s_lshl_b32 s75, s6, 3")
    k("s_add_u32 s74, s74, s75")
    k("s_and_b32 s75, s4, 1")
    k("s_lshl_b32 s75, s75, 2")
    k("s_add_u32 s74, s74, s75")
    k("s_lshl_b32 s74, s74, 10")
    k(f"s_add_u32 s78, s74, {WS_HF}")
    k(f"s_add_u32 s79, s78, {112*1024}")
    tmp = 160
    ti = 0
    fg = []
    for mb in range(2):
        for fb in range(2):
            acc = G1_ACC + 32 * fb + 16 * mb
            for half in range(2):
                t = tmp + 4 * ti
                ti += 1
                for r in range(8 * half, 8 * half + 8):
                    fg.append(lambda r=r, acc=acc: k(f"v_max_f32 v{acc+r}, 0, v{acc+r}"))
                for r in range(8 * half, 8 * half + 8, 2):
                    fg.append(lambda r=r, acc=acc: k(f"v_pk_mul_f32 {V(acc+r,2)}, {V(acc+r,2)}, {V(acc+r,2)}"))
                for i in range(4):
                    r = acc + 8 * half + 2 * i
                    fg.append(lambda r=r, t=t, i=i: k(f"v_cvt_pk_bf16_f32 v{t+i}, v{r}, v{r+1}"))
                fg.append(lambda t=t, mb=mb, fb=fb, half=half: k.vmem(
                    f"buffer_store_dwordx4 {V(t,4)}, v22, {S(SWS)}, s{78+mb} offen offset:{(2*fb+half)*1024} sc1", "hs"))
    run(merge(fg, bg) if bg else fg)


def conv_addr(k):
    k.c("---- conv addresses ----")
    k("v_and_b32 v10, 63, v0")
    k("v_and_b32 v11, 15, v10")
    k("v_lshrrev_b32 v12, 4, v10")
    k("v_add_u32 v13, 1, v11")
    k("v_and_b32 v14, 7, v13")
    k("v_lshrrev_b32 v15, 3, v13")
    lut = sum(o << (4 * i) for i, o in enumerate(COPY_O))
    k(f"s_mov_b32 s74, {lut}")
    k("v_lshlrev_b32 v16, 2, v14")
    k("v_bfe_u32 v16, s74, v16, 4")
    k("v_add_u32 v16, v16, v15")
    k("v_add_u32 v16, v16, v12")
    k("v_lshlrev_b32 v16, 4, v16")
    k(f"v_mul_u32_u24 v17, {COPY_STRIDE}, v14")
    k("v_add_u32 v16, v16, v17")
    k("s_lshr_b32 s75, s4, 1")
    k(f"s_mul_i32 s76, s75, {CH_STRIDE}")
    k("s_and_b32 s77, s4, 1")
    k("s_lshl_b32 s77, s77, 8")
    k("s_add_u32 s76, s76, s77")
    k(f"s_add_u32 s76, s76, {L_H}")
    k("v_add_u32 v1, s76, v16")
    k(f"s_mul_i32 s76, s75, {KV_STRIDE}")
    k("s_add_u32 s76, s76, s77")
    k(f"s_add_u32 s76, s76, {L_KV + 480}")
    k("v_lshlrev_b32 v16, 5, v11")
    k("v_lshlrev_b32 v17, 4, v12")
    k("v_sub_u32 v16, v17, v16")
    k("v_add_u32 v2, s76, v16")


def conv_main(k, cfg, hook):
    k.c("---- conv main ----")
    order = conv_order()
    for i in range(8):
        k.ds(f"ds_read_b128 {V(CV_FA + 4*i, 4)}, v1 offset:{512*i}", f"ca0_{i}")
        k.ds(f"ds_read_b128 {V(CV_FB + 4*i, 4)}, v2 offset:{512*(7-i)}", f"cb0_{i}")
    touched = set()
    for c0i in range(4):
        st = c0i & 1
        nxt = []
        if c0i < 3:
            for i in range(8):
                nxt.append((f"ds_read_b128 {V(CV_FA + 32*(st^1) + 4*i, 4)}, v1 offset:{512*i + 64*(c0i+1)}", f"ca{c0i+1}_{i}"))
                nxt.append((f"ds_read_b128 {V(CV_FB + 32*(st^1) + 4*i, 4)}, v2 offset:{512*(7-i) + 64*(c0i+1)}", f"cb{c0i+1}_{i}"))
        waited = set()
        for n, (d, c1) in enumerate(order):
            tags = [t for t in (f"ca{c0i}_{c1}", f"cb{c0i}_{d}") if t not in waited]
            if tags:
                k.wait(lg=tags)
                waited.update(tags)
            j = d + c1
            acc = V(CV_ACC + 4 * j, 4)
            c = acc if j in touched else "0"
            touched.add(j)
            k(f"v_mfma_f32_16x16x32_bf16 {acc}, {V(CV_FA + 32*st + 4*c1, 4)}, {V(CV_FB + 32*st + 4*d, 4)}, {c}")
            if n >= 18 and nxt:
                t, tg = nxt.pop(0)
                k.ds(t, tg)
            hook(c0i * 36 + n)


def conv_epilogue(k, cfg, bg):
    k.c("---- conv epilogue ----")
    bgi = iter(bg)

    def B(n=1):
        for _ in range(n):
            f = next(bgi, None)
            if f:
                f()
    k("v_and_b32 v10, 63, v0")
    k("v_and_b32 v11, 15, v10")
    k("v_lshrrev_b32 v12, 4, v10")
    k("v_lshlrev_b32 v11, 6, v11")
    k("v_lshl_add_u32 v11, v12, 4, v11")
    k("s_lshl_b32 s74, s4, 13")
    k(f"s_add_u32 s74, s74, {L_PART}")
    k("v_add_u32 v11, s74, v11")
    k("s_lshr_b32 s75, s4, 1")
    k("s_lshl_b32 s76, s2, 2")
    k(f"s_load_dword s77, s[{P_SSMD}:{P_SSMD+1}], s76")
    for j in range(8):
        k.ds(f"ds_write_b128 v11, {V(CV_ACC + 4*j, 4)} offset:{1024*j}", "pw")
        B()
    k("v_and_b32 v1, 127, v0")
    k("v_lshlrev_b32 v2, 5, v1")
    k("s_lshl_b32 s74, s75, 14")
    k(f"s_add_u32 s74, s74, {L_PART}")
    k("v_add_u32 v2, s74, v2")
    k(f"s_mul_i32 s74, s75, {KV_STRIDE}")
    k(f"s_add_u32 s74, s74, {L_KV + 4080 - 2048}")
    k("v_lshlrev_b32 v3, 4, v1")
    k("v_sub_u32 v3, s74, v3")
    k.wait_all(vm=False, lg=True)
    k("s_lshl_b32 s79, s75, 4")
    k("s_lshr_b32 s77, s77, s79")
    k("s_lshl_b32 s77, s77, 16")
    k("s_barrier")
    for seg in range(2):
        b = 8 + 24 * seg
        for p in range(2):
            for hh in range(2):
                k.ds(f"ds_read_b128 {V(b + 8*p + 4*hh, 4)}, v2 offset:{8192*p + 4096*seg + 16*hh}", f"pr{seg}")
        k.ds(f"ds_read_b128 {V(b + 16, 4)}, v3 offset:{2048*(1-seg)}", f"pr{seg}")
        B(2)
    k("s_lshl_b32 s74, s2, 13")
    k("s_lshl_b32 s79, s75, 12")
    k("s_add_u32 s74, s74, s79")
    k(f"s_add_u32 s74, s74, {WS_YT}")
    k("v_lshlrev_b32 v4, 4, v1")
    for seg in range(2):
        b = 8 + 24 * seg
        k.wait(lg=f"pr{seg}")
        for i in range(0, 8, 2):
            k(f"v_pk_add_f32 {V(b+i,2)}, {V(b+i,2)}, {V(b+8+i,2)}")
        B()
        for i in range(8):
            e = 7 - i
            (unpack_hi if e & 1 else unpack_lo)(k, 60, b + 16 + (e >> 1))
            k(f"v_fmac_f32 v{b+i}, s77, v60")
            if i % 2:
                B()
        for i in range(4):
            k(f"v_cvt_pk_bf16_f32 v{b+20+i}, v{b+2*i}, v{b+2*i+1}")
        k.vmem(f"buffer_store_dwordx4 {V(b+20,4)}, v4, {S(SWS)}, s74 offen offset:{2048*seg} sc1", "ys")
    B(100)


FB = 128


def g2_setup(k):
    G.g2_ids(k)
    k("s_lshr_b32 s74, s4, 1")
    k("s_lshl_b32 s75, s5, 1")
    k("s_add_u32 s80, s75, s74")
    k("s_xor_b32 s81, s80, 1")
    k("s_mul_i32 s78, s4, 28")
    for b in range(2):
        k(f"s_mul_i32 s{80+b}, s{80+b}, 112")
        k(f"s_add_u32 s{80+b}, s{80+b}, s78")
        k(f"s_lshl_b32 s{80+b}, s{80+b}, 10")
        k(f"s_add_u32 s{80+b}, s{80+b}, {WS_HF}")


def hf_load(k, i, depth):
    out = []
    for b in range(2):
        def f(b=b):
            if b == 0 and i and i % 4 == 0:
                k("s_add_u32 s80, s80, 4096")
                k("s_add_u32 s81, s81, 4096")
            r = FB + 8 * (i % depth) + 4 * b
            k.vmem(f"buffer_load_dwordx4 {V(r,4)}, v58, {S(SWS)}, s{80+b} offen offset:{1024*(i%4)} sc1", f"hf{i}")
        out.append(f)
    return out


def g2_main(k, cfg, depth, hooks):
    k.c("---- G2 main ----")
    for i in range(28):
        k.wait(vm=[f"hf{i}", f"wf{i}"])
        for b in range(2):
            for a in range(2):
                d = G2_ACC + 16 * (a + 2 * b)
                c = V(d, 16) if i else "0"
                k(f"v_mfma_f32_32x32x16_bf16 {V(d,16)}, {A(8*i + 4*a, 4)}, {V(FB + 8*(i%depth) + 4*b, 4)}, {c}")
        if i + depth < 28:
            run(hf_load(k, i + depth, depth))
        if i in hooks:
            hooks[i]()


def g2_ep_addr(k):
    k("v_and_b32 v10, 63, v0")
    k("v_and_b32 v11, 31, v10")
    k("v_lshrrev_b32 v12, 5, v10")
    k("s_and_b32 s74, s4, 1")
    k("s_lshr_b32 s75, s4, 1")
    k("s_lshl_b32 s76, s5, 6")
    k("s_lshl_b32 s77, s75, 5")
    k("s_add_u32 s76, s76, s77")
    k("s_lshl_b32 s77, s6, 6")
    k("s_lshl_b32 s78, s74, 5")
    k("s_add_u32 s77, s77, s78")


def g2_ep_loads_plain(k):
    k("v_lshlrev_b32 v16, 10, v11")
    k("v_lshl_add_u32 v16, v12, 3, v16")
    k("s_lshl_b32 s82, s76, 10")
    k("s_lshl_b32 s79, s77, 1")
    k("s_add_u32 s82, s82, s79")
    for g in range(4):
        k.vmem(f"buffer_load_dwordx2 {V(136+2*g,2)}, v16, {S(SQ)}, s82 offen offset:{16*g}", "q")
    srd(k, STMP, P_B2, 1024)
    k("v_lshlrev_b32 v17, 3, v12")
    for g in range(4):
        k.vmem(f"buffer_load_dwordx2 {V(144+2*g,2)}, v17, {S(STMP)}, s79 offen offset:{16*g}", "b2")


def g2_ep_loads_sc1(k):
    k("v_lshrrev_b32 v13, 2, v10")
    k("v_and_b32 v14, 3, v10")
    k("v_lshlrev_b32 v15, 12, v13")
    k("v_lshl_add_u32 v15, v14, 4, v15")
    k("s_lshl_b32 s78, s77, 12")
    k("s_lshl_b32 s79, s76, 1")
    k("s_add_u32 s78, s78, s79")
    k(f"s_add_u32 s78, s78, {WS_YT}")
    k(f"s_add_u32 s79, s78, {16*4096}")
    k.vmem(f"buffer_load_dwordx4 {V(128,4)}, v15, {S(SWS)}, s78 offen sc1", "yt")
    k.vmem(f"buffer_load_dwordx4 {V(132,4)}, v15, {S(SWS)}, s79 offen sc1", "yt")
    k("v_lshlrev_b32 v18, 2, v11")
    k("s_lshl_b32 s78, s76, 2")
    k(f"s_add_u32 s78, s78, {WS_G}")
    k.vmem(f"buffer_load_dword v152, v18, {S(SWS)}, s78 offen sc1", "g")


def g2_epilogue(k, cfg):
    k.c("---- G2 epilogue ----")
    k("v_lshlrev_b32 v19, 4, v10")
    for sg in range(1, 4):
        k(f"s_xor_b32 s80, s4, {sg}")
        k("s_mul_i32 s80, s80, 12288")
        k(f"v_add_u32 v20, s80, v19")
        for g in range(4):
            k.ds(f"ds_write_b128 v20, {V(G2_ACC + 16*sg + 4*g, 4)} offset:{L_RED + (sg-1)*4096 + 1024*g}", "rw")
    k("s_lshl_b32 s80, s4, 11")
    k(f"s_add_u32 s80, s80, {L_YL}")
    k("v_add_u32 v21, s80, v19")
    k.wait(vm="yt")
    k.ds(f"ds_write_b128 v21, {V(128,4)}", "yw")
    k.ds(f"ds_write_b128 v21, {V(132,4)} offset:1024", "yw")
    k.wait(lg=["rw", "yw"])
    k("s_barrier")
    ts(k, cfg, 25)
    k("s_mul_i32 s80, s4, 12288")
    k("v_add_u32 v20, s80, v19")
    for sg in range(3):
        for g in range(4):
            k.ds(f"ds_read_b128 {V(160 + 16*sg + 4*g, 4)}, v20 offset:{L_RED + sg*4096 + 1024*g}", f"rr{sg}")
    k("v_and_b32 v22, 15, v10")
    k("v_lshrrev_b32 v23, 2, v22")
    k("v_lshl_add_u32 v23, v12, 2, v23")
    k("v_lshlrev_b32 v23, 6, v23")
    k("v_bfe_u32 v24, v10, 4, 1")
    k("v_lshl_add_u32 v23, v24, 5, v23")
    k("v_and_b32 v24, 3, v22")
    k("v_lshl_add_u32 v23, v24, 3, v23")
    k("s_lshl_b32 s80, s4, 11")
    k(f"s_add_u32 s80, s80, {L_YL}")
    k("v_add_u32 v23, s80, v23")
    for g in range(4):
        k.ds(f"ds_read_b64_tr_b16 {V(208+2*g,2)}, v23 offset:{512*g}", "yr")
    acc = G2_ACC
    for sg in range(3):
        k.wait(lg=f"rr{sg}")
        for r in range(0, 16, 2):
            k(f"v_pk_add_f32 {V(acc+r,2)}, {V(acc+r,2)}, {V(160+16*sg+r,2)}")
    k.wait(vm=["q", "b2", "g"], lg="yr")
    X = 224
    slot = {0: 0, 2: 2, 1: 4, 3: 6}
    for g in range(4):
        for i in range(4):
            up = unpack_hi if i & 1 else unpack_lo
            up(k, 24 + i, 144 + 2 * g + (i >> 1))
            up(k, 28 + i, 136 + 2 * g + (i >> 1))
            up(k, 32 + i, 208 + 2 * g + (i >> 1))
        for i in range(4):
            r = acc + 4 * g + i
            k(f"v_add_f32 v{r}, v{r}, v{24+i}")
        for i in range(4):
            r = acc + 4 * g + i
            k(f"v_fma_f32 v{28+i}, v{28+i}, v{32+i}, -v{r}")
        for i in range(4):
            r = acc + 4 * g + i
            k(f"v_fmac_f32 v{r}, v152, v{28+i}")
        for d in range(2):
            r = acc + 4 * g + 2 * d
            k(f"v_cvt_pk_bf16_f32 v{X + slot[g] + d}, v{r}, v{r+1}")
    for base in (0, 4):
        k(f"v_permlane32_swap_b32 v{X+base}, v{X+base+2}")
        k(f"v_permlane32_swap_b32 v{X+base+1}, v{X+base+3}")
    k("v_lshlrev_b32 v16, 10, v11")
    k("v_lshl_add_u32 v16, v12, 5, v16")
    k.vmem(f"buffer_store_dwordx4 {V(X,4)}, v16, {S(SOUT)}, s82 offen", "os")
    k.vmem(f"buffer_store_dwordx4 {V(X+4,4)}, v16, {S(SOUT)}, s82 offen offset:16", "os")


GX = 64


def gate_loads(k):
    k("s_and_b32 s5, s2, 7")
    k("s_lshl_b32 s5, s5, 2")
    k("s_lshr_b32 s6, s2, 3")
    k("s_sub_u32 s6, s6, 28")
    k("s_add_u32 s5, s5, s6")
    k("s_lshl_b32 s5, s5, 6")
    k("s_lshl_b32 s6, s4, 4")
    k("s_add_u32 s5, s5, s6")
    k("s_lshl_b32 s6, s5, 10")
    srd(k, 76, P_GATE, 1024)
    k.vmem(f"buffer_load_dwordx4 {V(4,4)}, v22, {S(76)}, 0 offen", "gw")
    for i in range(16):
        if i and i % 4 == 0:
            k("s_add_u32 s6, s6, 4096")
        k.vmem(f"buffer_load_dwordx4 {A(4*i,4)}, v22, {S(SQ)}, s6 offen offset:{1024*(i%4)}", f"gx{i}")


def gate_compute(k, cfg):
    k.c("---- gate compute ----")
    k.wait(vm="gw")
    for c in range(8):
        (unpack_hi if c & 1 else unpack_lo)(k, 8 + c, 4 + (c >> 1))
    R = 96
    for i in range(16):
        k.wait(vm=f"gx{i}")
        s = 64 + 4 * (i & 1)
        for c in range(4):
            k(f"v_accvgpr_read_b32 v{s+c}, a{4*i+c}")
        u = 72 + 8 * (i & 1)
        for c in range(8):
            (unpack_hi if c & 1 else unpack_lo)(k, u + c, s + (c >> 1))
        t = 88 + 2 * (i & 1)
        for cp in range(0, 8, 2):
            if cp == 0:
                k(f"v_pk_mul_f32 {V(t,2)}, {V(u,2)}, {V(8,2)}")
            else:
                k(f"v_pk_fma_f32 {V(t,2)}, {V(u+cp,2)}, {V(8+cp,2)}, {V(t,2)}")
        k(f"v_add_f32 v{R+i}, v{t}, v{t+1}")
    for mod in ["row_shr:1", "row_shr:2", "row_shr:4", "row_shr:8", "row_bcast:15 row_mask:0xa",
                "row_bcast:31 row_mask:0xc"]:
        for i in range(16):
            m = mod if "row_mask" in mod else mod + " row_mask:0xf"
            k(f"v_add_f32_dpp v{R+i}, v{R+i}, v{R+i} {m} bank_mask:0xf")
    k("v_mov_b32 v2, 0")
    for g in range(0, 16, 4):
        for i in range(g, g + 4):
            k(f"v_readlane_b32 s{76+i-g}, v{R+i}, 63")
        for i in range(g, g + 4):
            k(f"v_writelane_b32 v2, s{76+i-g}, {i}")
    k("v_mul_f32 v2, 0xbfb8aa3b, v2")
    k("v_exp_f32 v2, v2")
    k("v_add_f32 v2, 1.0, v2")
    k("v_rcp_f32 v2, v2")
    k("v_and_b32 v1, 63, v0")
    k("v_lshlrev_b32 v3, 2, v1")
    k("s_lshl_b32 s6, s5, 2")
    k(f"s_add_u32 s6, s6, {WS_G}")
    k("v_cmp_gt_u32 vcc, 16, v1")
    k("s_and_saveexec_b64 s[74:75], vcc")
    k.vmem(f"buffer_store_dword v2, v3, {S(SWS)}, s6 offen sc1", "gs")
    k("s_mov_b64 exec, s[74:75]")


def gen_full(cfg):
    k = KT()
    END = "K_END"
    bufs = [0, 32768, 65536, 98304]
    NB1 = cfg.get("nb1", 8)
    NB2 = cfg.get("nb2", 8)
    prologue(k, cfg, END)
    if cfg.get("ts"):
        k("v_mov_b32 v63, 0")
    ts(k, cfg, 0)
    k("s_lshr_b32 s74, s2, 3")
    k("s_cmp_ge_u32 s74, 28")
    k("s_cbranch_scc1 GATE")
    G.g1_setup(k, cfg)
    k("s_mov_b32 s20, s5")
    k("s_mov_b32 s21, s6")
    k("v_lshrrev_b32 v61, 5, v10")
    k("v_lshlrev_b32 v61, 3, v61")
    k("s_lshl_b32 s76, s6, 8")
    k("s_and_b32 s77, s4, 1")
    k("s_lshl_b32 s77, s77, 7")
    k("s_add_u32 s83, s76, s77")
    w2f_addr(k)
    k("v_add_u32 v24, 65536, v4")
    t1_addr(k)
    prologue2(k, cfg)
    ts_setup(k, cfg)
    ts(k, cfg, 1)
    G.g1_dma(k, 0, bufs[0])
    ts(k, cfg, 2)
    t1_loads(k)
    srd(k, STMP, P_B1, 1792 * 2)
    for fb in range(2):
        for g in range(4):
            k.vmem(f"buffer_load_dwordx2 {V(224 + 8*fb + 2*g, 2)}, v61, {S(STMP)}, s83 offen offset:{64*fb + 16*g}", "bias")
    w2f_dma(k)
    for s in range(1, 4):
        G.g1_dma(k, s, bufs[s])
    h_loads(k)
    kv_zero(k)
    ts(k, cfg, 3)
    t1_compute(k, cfg)
    w2f_process(k)
    k("s_waitcnt lgkmcnt(0)")
    k.lg = []
    nonce(k)
    flag_addrs(k)
    G.g1_bias_unpack(k)
    k("s_mov_b32 s5, s20")
    k("s_mov_b32 s6, s21")
    ts(k, cfg, 5)
    P0 = cfg.get("pub0", 2)
    pre = {P0: lambda: k.wait(vm=["t1s", "w2s"]),
           6: lambda: (poll_check(k, 62, 56, WS_F0, "p0"), ts(k, cfg, 14))}
    wl = None

    def post6():
        nonlocal wl
        kv_loads(k)
        w2f_cons_setup(k)
        wl = w2f_cons_loads(k, 58)
        for _ in range(NB1):
            wl.pop(0)()
    post = {P0: lambda: publish(k, WS_F0), 5: lambda: poll_issue(k, 62, 56, WS_F0, "p0"), 6: post6}
    g1_main(k, cfg, bufs, pre, post, build_copies(k))
    ts(k, cfg, 15)
    bg = [wl.pop(0) for _ in range(NB2)]
    g1_epilogue(k, cfg, bg)
    kv_write(k)
    ts(k, cfg, 16)
    if k.pend is not None:
        k("s_waitcnt lgkmcnt(0)")
    vm_join = list(k.vm)
    wl_join = list(wl)
    k("s_branch JOIN")
    k("GATE:")
    k.vm, k.lg = [], []
    if cfg.get("ts"):
        k.pend = 0
    w2f_addr(k)
    t1_addr(k)
    prologue2(k, cfg)
    ts_setup(k, cfg)
    ts(k, cfg, 1)
    t1_loads(k)
    w2f_dma(k)
    gate_loads(k)
    h_loads(k)
    kv_zero(k)
    ts(k, cfg, 3)
    t1_compute(k, cfg)
    w2f_process(k)
    k("s_waitcnt lgkmcnt(0)")
    k.lg = []
    nonce(k)
    flag_addrs(k)
    k.wait(vm=["t1s", "w2s"])
    k("s_barrier")
    publish(k, WS_F0)
    ts(k, cfg, 5)
    gate_compute(k, cfg)
    run(build_copies(k))
    poll_issue(k, 62, 56, WS_F0, "p0")
    poll_check(k, 62, 56, WS_F0, "p0")
    ts(k, cfg, 14)
    kv_loads(k)
    w2f_cons_setup(k)
    wl = w2f_cons_loads(k, 58)
    for _ in range(NB1 + NB2):
        wl.pop(0)()
    kv_write(k)
    ts(k, cfg, 16)
    k.wait_all(vm=True, lg=True)
    k("JOIN:")
    k.vm = vm_join
    k.lg = ["x"]
    wl = wl_join_rebind(k, len(wl_join))
    conv_addr(k)
    k.wait_all(vm=False, lg=True)
    k("s_barrier")
    ts(k, cfg, 17)
    PUB1 = cfg.get("pub1", 54)
    POLL1 = cfg.get("poll1", 112)
    nrem = len(wl)
    span = cfg.get("wspan", 132)

    def hook(n):
        tgt = min(nrem, (n + 1) * nrem // span + 1)
        while nrem - len(wl) < tgt:
            wl.pop(0)()
        if n == PUB1:
            k.wait(vm="hs")
            k("s_barrier")
            ts(k, cfg, 18)
            publish(k, WS_F1)
        if n == POLL1:
            poll_issue(k, 62, 57, WS_F1, "p1")
    conv_main(k, cfg, hook)
    ts(k, cfg, 19)
    poll_check(k, 62, 57, WS_F1, "p1")
    ts(k, cfg, 20)
    g2_setup(k)
    depth = 16
    bg = []
    for i in range(depth):
        bg += hf_load(k, i, depth)
    conv_epilogue(k, cfg, bg)
    ts(k, cfg, 21)
    PUB2 = cfg.get("pub2", 6)
    POLL2 = cfg.get("poll2", 17)
    CHK2 = cfg.get("chk2", 21)

    def h_pub2():
        k.wait(vm="ys")
        k("s_barrier")
        ts(k, cfg, 22)
        publish(k, WS_F2)

    def h_chk2():
        poll_check(k, 62, 56, WS_F2, "p2")
        ts(k, cfg, 23)
        g2_ep_addr(k)
        g2_ep_loads_sc1(k)
        g2_ep_loads_plain(k)
    hooks = {PUB2: h_pub2, POLL2: lambda: poll_issue(k, 62, 56, WS_F2, "p2"), CHK2: h_chk2}
    g2_main(k, cfg, depth, hooks)
    ts(k, cfg, 24)
    g2_epilogue(k, cfg)
    ts(k, cfg, 26)
    k("s_or_b32 s74, s2, s4")
    k("s_cmp_eq_u32 s74, 0")
    k("s_cbranch_scc0 NOEP")
    k("s_add_u32 s96, s96, 1")
    k("v_mov_b32 v62, s96")
    k(f"s_mov_b32 s97, {WS_EPOCH}")
    k("s_mov_b64 exec, 1")
    k(f"buffer_store_dword v62, off, {S(SWS)}, s97")
    k("s_mov_b64 exec, -1")
    k("NOEP:")
    k.wait_all()
    ts_final(k, cfg, 27)
    k("s_waitcnt vmcnt(0)")
    k(f"{END}:")
    k("s_endpgm")
    return k


def wl_join_rebind(k, n):
    allw = w2f_cons_loads(k, 58)
    return allw[len(allw) - n:]


def build(cfg):
    hdr = open("cdna_kernels/" + NAME + ".s.ref").read().split("; Override")[0]
    out = [hdr.rstrip("\n")]
    out.append("; @launch grid=(256,1,1) block=(256,1,1) lds=163840")
    out.append('.amdgcn_target "amdgcn-amd-amdhsa--gfx950"\n.text')
    k = gen_full(cfg)
    lab = NAME + "_kernel"
    out.append(G.khead(lab) + k.text())
    out.append('.section .rodata,"a"\n.p2align 6')
    out.append(G.kdesc(lab))
    return "\n".join(out) + "\n"


if __name__ == "__main__":
    path = sys.argv[1]
    cfg = {}
    for a in sys.argv[2:]:
        kk, vv = a.split("=")
        cfg[kk] = int(vv)
    txt = build(cfg)
    open(path, "w").write(txt)
    print("bytes", len(txt))
```

```python
from contextlib import contextmanager
from asmlib import K, Ins


class Rec:
    def __init__(self):
        self.items = []
        self._st = [self.items]

    def _add(self, it):
        self._st[-1].append(it)

    def __call__(self, s):
        for sub in s.strip("\n").split("\n"):
            self._add(("i", sub.strip()))

    def c(self, s):
        self._add(("c", s))

    def vmem(self, s, tag=None, cost=None):
        self._add(("vm", s, tag, cost))

    def ds(self, s, tag=None):
        self._add(("ds", s, tag))

    def wait(self, vm=None, lg=None):
        self._add(("w", vm, lg))

    def wait_all(self, vm=True, lg=True):
        self._add(("wa", vm, lg))

    def mark(self, name):
        self._add(("m", name))

    def fn(self, f):
        self._add(("f", f))

    def period(self, p):
        self._add(("p", p))

    @contextmanager
    def atom(self, after=None, cost=None):
        lst = []
        self._st.append(lst)
        try:
            yield
        finally:
            self._st.pop()
            self._add(("a", lst, after, cost))


def flat(items):
    for it in items:
        if it[0] == "a":
            yield from flat(it[1])
        else:
            yield it


def emit(k, it):
    t = it[0]
    if t == "i":
        k(it[1])
    elif t == "c":
        k.c(it[1])
    elif t == "vm":
        k.vmem(it[1], it[2])
    elif t == "ds":
        k.ds(it[1], it[2])
    elif t == "w":
        k.wait(vm=it[1], lg=it[2])
    elif t == "wa":
        k.wait_all(vm=it[1], lg=it[2])
    elif t == "f":
        it[1](k)
    elif t == "a":
        for x in it[1]:
            emit(k, x)
    elif t in ("m", "p"):
        pass
    else:
        raise ValueError(t)


def aslist(x):
    if x is None:
        return []
    return list(x) if isinstance(x, (list, tuple, set)) else [x]


def tags_of(it):
    return {x[2] for x in flat([it]) if x[0] == "vm"}


class Weaver:
    DSLAT = 96

    def __init__(self, k, x=32, cost=88, lat=650):
        self.k = k
        self.bg = []
        self.marks = set()
        self.x = x
        self.cost = cost
        self.lat = lat
        self.t = 0
        self.mf = 0
        self.ta = 0
        self.dst = {}
        self.vt = {}
        self.log = []
        self.nbg = 0

    def push(self, items):
        for it in items:
            if it[0] != "a":
                it = ("a", [it], None, None)
            self.bg.append(it)

    def _time(self, it):
        for x in flat([it]):
            if x[0] == "i":
                op = x[1].split()[0] if x[1] else ""
                if op.startswith("v_mfma"):
                    self.t = max(self.t, self.mf)
                    self.mf = self.t + (32 if "32x32" in op else 16)
                    self.t += 4
                elif op == "s_barrier":
                    self.t += 16
                elif op.endswith(":"):
                    pass
                else:
                    self.t += 4
            elif x[0] == "ds":
                self.t += 12 if x[1].startswith("ds_write_b128") else 4
                self.dst[x[2]] = self.t + self.DSLAT
            elif x[0] == "vm":
                self.t = max(self.t, self.ta) + 4
                c = x[3] if x[3] is not None else self.cost
                self.ta = self.t - 4 + c
                self.vt[x[2]] = self.t + self.lat + c
            elif x[0] == "w":
                self.t = max(self.t, self.ready(x)) + 4
            elif x[0] == "wa":
                self.t += 4

    def ready(self, x):
        r = 0
        for tg in aslist(x[2]):
            r = max(r, self.dst.get(tg, 0))
        for tg in aslist(x[1]):
            r = max(r, self.vt.get(tg, 0))
        return r

    def avail(self):
        return self.bg and (self.bg[0][2] is None or self.bg[0][2] in self.marks)

    def pop(self):
        it = self.bg.pop(0)
        assert it[2] is None or it[2] in self.marks, f"bg item forced before mark {it[2]}"
        emit(self.k, it)
        self._time(it)
        self.nbg += 1

    def flush_tags(self, tags):
        tags = set(tags)
        last = -1
        for i, it in enumerate(self.bg):
            if tags_of(it) & tags:
                last = i
        for _ in range(last + 1):
            self.pop()

    def flush(self, n=None):
        while self.bg and (n is None or n > 0):
            self.pop()
            if n is not None:
                n -= 1

    def run(self, fg):
        for it in fg:
            if it[0] == "m":
                self.marks.add(it[1])
                self.log.append((it[1], self.t, self.nbg))
                continue
            if it[0] == "p":
                self.x = it[1]
                continue
            wt = []
            first = next(iter(flat([it])), None)
            for x in flat([it]):
                if x[0] == "w":
                    wt += aslist(x[1])
                if x[0] == "m":
                    self.marks.add(x[1])
            if wt:
                self.flush_tags(wt)
            if first is not None and first[0] == "w":
                while self.avail() and self.ta < self.ready(first):
                    self.pop()
            emit(self.k, it)
            self._time(it)
            while self.avail() and self.ta <= max(self.t, self.mf) + self.x:
                self.pop()


def regsets(items):
    d, u = set(), set()
    for x in flat(items):
        if x[0] in ("i", "vm", "ds"):
            ins = Ins(x[1])
            d |= ins.defs
            u |= ins.uses
    return d, u


def conflicts(name, fg, bg, ok=()):
    fd, fu = regsets(fg)
    bd, bu = regsets(bg)
    c = (bd & (fd | fu)) | (fd & bu)
    okset = set()
    for o in ok:
        if isinstance(o, tuple) and len(o) == 3:
            okset |= {(o[0], i) for i in range(o[1], o[2] + 1)}
        else:
            okset.add(o)
    c -= okset
    if c:
        print(f"[conflict] {name}: ", sorted(c, key=str))
```

```python
import sys
from asmlib import K
import gen as G
from gen import (S, V, A, srd, unpack_lo, unpack_hi, NAME, SQ, SK, SV, SW1, SW2, SOUT, SWS, STMP,
                 P_Q, P_K, P_V, P_SHIFT, P_SSMK, P_SSMD, P_W1, P_B1, P_W2, P_B2, P_GATE, P_OUT, P_WS,
                 COPY_O, COPY_STRIDE, CH_STRIDE, KV_STRIDE, conv_order, G1_ACC, G1_FR,
                 CV_ACC, CV_FA, CV_FB, G2_ACC)
from weave import Rec, Weaver, emit, flat, conflicts
import gen2
from gen2 import KT, Lbl, ts_setup, ts_final

WS_F0, WS_F1, WS_F2 = 0, 32768, 65536
WS_EPOCH = 98304
WS_G = 0x20000
WS_KVR = 1 << 20
WS_W2F = 3 << 20
WS_HF = 5 << 20
WS_YT = 13 << 20
WS_TS = 15 << 20
WS_SIZE = 16 << 20

L_W2S = 73728
L_KV = 139264
L_H = 0
L_PART = 98304
L_RED = 0
L_YL = 49152

NONCE = 3
SPIN = 1 << 15
OOB = 0x40000000
SDMA = 22
SC_ST = 300
CFG = {}


def ts(k, idx):
    if not CFG.get("ts"):
        return
    if isinstance(k, Rec):
        k.fn(lambda kk: gen2.ts(kk, CFG, idx))
    else:
        gen2.ts(k, CFG, idx)


def vm(k, s, tag, cost=None):
    if isinstance(k, Rec):
        k.vmem(s, tag, cost)
    else:
        k.vmem(s, tag)


class nullatom:
    def __enter__(self):
        return self

    def __exit__(self, *a):
        return False


def atom(k, after=None, cost=None):
    return k.atom(after, cost) if isinstance(k, Rec) else nullatom()


def publish(k, wsoff):
    l = Lbl.new("PUB")
    with atom(k):
        k("s_cmp_eq_u32 s4, 0")
        k(f"s_cbranch_scc0 {l}")
        k("s_lshl_b32 s97, s2, 7")
        k(f"s_add_u32 s97, s97, {wsoff}")
        k(f"v_mov_b32 v62, s{NONCE}")
        k("s_mov_b64 exec, 1")
        k(f"buffer_store_dword v62, off, {S(SWS)}, s97 sc1")
        k("s_mov_b64 exec, -1")
        k(f"{l}:")


def poll_issue(k, vreg, voff, wsoff, tag, after=None):
    with atom(k, after):
        k(f"s_mov_b32 s94, {wsoff}")
        vm(k, f"buffer_load_dword v{vreg}, v{voff}, {S(SWS)}, s94 offen sc1", tag, 40)


def poll_check(k, vreg, voff, wsoff, tag):
    ok, rt = Lbl.new("POK"), Lbl.new("PRT")
    with atom(k):
        k.wait(vm=tag)
        k("s_cmp_eq_u32 s4, 0")
        k(f"s_cbranch_scc0 {ok}")
        k(f"v_cmp_ne_u32 vcc, s{NONCE}, v{vreg}")
        k(f"s_cbranch_vccz {ok}")
        k(f"s_mov_b32 s97, {wsoff}")
        k(f"s_mov_b32 s101, {SPIN}")
        k(f"{rt}:")
        k("s_sleep 1")
        k(f"buffer_load_dword v{vreg}, v{voff}, {S(SWS)}, s97 offen sc1")
        k("s_waitcnt vmcnt(0)")
        k(f"v_cmp_ne_u32 vcc, s{NONCE}, v{vreg}")
        k(f"s_cbranch_vccz {ok}")
        k("s_sub_u32 s101, s101, 1")
        k(f"s_cbranch_scc0 {rt}")
        k(f"{ok}:")


def prologue(k, endlabel):
    k("s_cmp_ge_u32 s2, 256")
    k(f"s_cbranch_scc1 {endlabel}")
    k("s_load_dwordx16 s[44:59], s[0:1], 0")
    k("s_load_dwordx8 s[60:67], s[0:1], 64")
    k("s_load_dwordx4 s[68:71], s[0:1], 96")
    k("s_load_dwordx2 s[72:73], s[0:1], 112")
    k("v_lshrrev_b32 v1, 6, v0")
    k("s_nop 0")
    k("v_readfirstlane_b32 s4, v1")


SRDS = [(SQ, P_Q, 2 << 20), (SW1, P_W1, 512 * 1792 * 2), (SK, P_K, 2 << 20), (SV, P_V, 2 << 20),
        (SW2, P_W2, 512 * 1792 * 2), (SOUT, P_OUT, 2 << 20), (SWS, P_WS, WS_SIZE)]


def srd_consts(k):
    for d, p, n in SRDS:
        k(f"s_mov_b32 s{d+2}, {n}")
        k(f"s_mov_b32 s{d+3}, 0x00020000")
    k(f"s_mov_b32 s{STMP+3}, 0x00020000")


def srd_ptrs(k, which):
    for d, p, n in SRDS:
        if d in which:
            k(f"s_mov_b32 s{d}, s{p}")
            k(f"s_mov_b32 s{d+1}, s{p+1}")


def stmp(k, ptr, nbytes):
    k(f"s_mov_b32 s{STMP}, s{ptr}")
    k(f"s_mov_b32 s{STMP+1}, s{ptr+1}")
    k(f"s_mov_b32 s{STMP+2}, {nbytes}")


def nonce(k):
    k(f"s_mul_i32 s{NONCE}, s96, 0x9E3779B1")
    k(f"s_add_u32 s{NONCE}, s{NONCE}, 0x85EBCA6B")


T1_KR, T1_VR, T1_WR = 224, 235, 244
T1_K, T1_W, T1_A, T1_V, T1_O = 128, 150, 30, 128, 144


def t1_addr(k):
    k.c("---- T1 addresses ----")
    k("s_lshr_b32 s84, s2, 5")
    k("s_and_b32 s85, s2, 31")
    k("s_lshl_b32 s85, s85, 6")
    k("s_and_b32 s74, s4, 1")
    k("s_lshr_b32 s75, s4, 1")
    k("s_lshl_b32 s76, s74, 5")
    k("s_add_u32 s76, s76, s85")
    k("s_sub_u32 s77, s76, 3")
    k("s_lshl_b32 s77, s77, 10")
    k("s_lshl_b32 s78, s84, 7")
    k("s_add_u32 s77, s77, s78")
    k("s_lshl_b32 s78, s75, 6")
    k("s_add_u32 s77, s77, s78")
    k("v_and_b32 v15, 15, v0")
    k("v_bfe_u32 v16, v0, 4, 2")
    k("v_lshlrev_b32 v10, 13, v16")
    k("v_lshl_add_u32 v10, v15, 2, v10")
    k("v_add_u32 v10, s77, v10")
    k("v_add_u32 v11, 1024, v10")
    k("v_add_u32 v12, 2048, v10")
    k("v_add_u32 v13, 3072, v10")
    k("v_add_u32 v14, 7168, v10")
    k("v_lshlrev_b32 v17, 4, v15")
    k("s_lshl_b32 s78, s84, 9")
    k("s_lshl_b32 s79, s75, 8")
    k("s_add_u32 s7, s78, s79")
    k("v_sub_u32 v16, 3, v16")
    k("v_lshlrev_b32 v16, 4, v16")
    k("v_lshl_add_u32 v18, v15, 13, v16")
    k("s_lshl_b32 s78, s84, 18")
    k("s_lshl_b32 s79, s75, 17")
    k("s_add_u32 s78, s78, s79")
    k("s_sub_u32 s79, 2016, s76")
    k("s_lshl_b32 s79, s79, 1")
    k("s_add_u32 s78, s78, s79")
    k(f"s_add_u32 s95, s78, {WS_KVR}")


def t1_loads(k, cost=32):
    def ad(j):
        if j < 3:
            return 10 + j, 0
        if j < 7:
            return 13, (j - 3) * 1024
        return 14, (j - 7) * 1024
    with atom(k):
        stmp(k, P_SHIFT, 512 * 4 * 2)
        vm(k, f"buffer_load_dwordx4 {V(T1_WR,4)}, v17, {S(STMP)}, s7 offen", "t1", 64)
    for j in range(11):
        r, o = ad(j)
        vm(k, f"buffer_load_dword v{T1_KR+j}, v{r}, {S(SK)}, 0 offen offset:{o}", "t1", cost)
    for i in range(8):
        r, o = ad(i + 3)
        vm(k, f"buffer_load_dword v{T1_VR+i}, v{r}, {S(SV)}, 0 offen offset:{o}", "t1", cost)


def t1_compute(k):
    k.c("---- T1 compute ----")
    k.wait(vm="t1")
    for m in range(4):
        up = unpack_hi if m & 1 else unpack_lo
        up(k, T1_W + 2 * m, T1_WR + (m >> 1))
        up(k, T1_W + 2 * m + 1, T1_WR + 2 + (m >> 1))
    for j in range(11):
        unpack_lo(k, T1_K + 2 * j, T1_KR + j)
        unpack_hi(k, T1_K + 2 * j + 1, T1_KR + j)
    for m in range(4):
        for i in range(8):
            d = T1_A + 2 * i
            a = T1_K + 2 * (i + 3 - m)
            w = T1_W + 2 * m
            if m == 0:
                k(f"v_pk_mul_f32 {V(d,2)}, {V(a,2)}, {V(w,2)}")
            else:
                k(f"v_pk_fma_f32 {V(d,2)}, {V(a,2)}, {V(w,2)}, {V(d,2)}")
    for i in range(8):
        unpack_lo(k, T1_V + 2 * i, T1_VR + i)
        unpack_hi(k, T1_V + 2 * i + 1, T1_VR + i)
    for i in range(8):
        d = T1_A + 2 * i
        k(f"v_pk_mul_f32 {V(d,2)}, {V(d,2)}, {V(T1_V+2*i,2)}")
    for c in range(2):
        for jj in range(4):
            k(f"v_cvt_pk_bf16_f32 v{T1_O+4*c+jj}, v{T1_A+2*(7-2*jj)+c}, v{T1_A+2*(6-2*jj)+c}")
        with atom(k):
            if c:
                k("s_add_u32 s95, s95, 4096")
            vm(k, f"buffer_store_dwordx4 {V(T1_O+4*c,4)}, v18, {S(SWS)}, s95 offen sc1", "t1s", SC_ST)


W2T = 64


def w2f_addr(k):
    k.c("---- W2F producer addresses ----")
    k("s_lshr_b32 s92, s2, 3")
    k("s_sub_u32 s92, s92, 28")
    k("s_mul_i32 s92, s92, 28")
    k("s_mul_i32 s93, s4, 7")
    k("s_add_u32 s92, s92, s93")
    k("s_and_b32 s93, s2, 7")
    k("s_lshl_b32 s21, s93, 7")
    k("s_add_u32 s21, s21, s92")
    k("s_lshl_b32 s21, s21, 11")
    k(f"s_add_u32 s21, s21, {WS_W2F}")
    k("s_lshl_b32 s93, s93, 7")
    k("s_lshl_b32 s92, s92, 14")
    k("s_add_u32 s93, s93, s92")
    k("v_and_b32 v23, 63, v0")
    k("v_lshrrev_b32 v19, 3, v23")
    k("v_and_b32 v20, 7, v23")
    k("v_bfe_u32 v21, v23, 4, 1")
    k("v_lshlrev_b32 v21, 2, v21")
    k("v_xor_b32 v20, v20, v21")
    k("v_lshlrev_b32 v20, 4, v20")
    k("v_lshl_add_u32 v19, v19, 10, v20")
    k("s_mul_i32 s92, s4, 14336")
    k(f"s_add_u32 s92, s92, {L_W2S}")
    k("v_and_b32 v20, 15, v23")
    k("v_lshrrev_b32 v21, 5, v23")
    k("v_lshrrev_b32 v22, 2, v20")
    k("v_lshl_add_u32 v21, v21, 2, v22")
    k("v_lshlrev_b32 v21, 7, v21")
    k("v_bfe_u32 v22, v23, 4, 1")
    k("v_lshlrev_b32 v22, 1, v22")
    k("v_bfe_u32 v24, v20, 1, 1")
    k("v_add_u32 v22, v22, v24")
    k("v_bfe_u32 v24, v20, 3, 1")
    k("v_lshl_add_u32 v22, v24, 2, v22")
    k("v_lshl_add_u32 v21, v22, 4, v21")
    k("v_and_b32 v24, 1, v20")
    k("v_lshl_add_u32 v20, v24, 3, v21")
    k("v_add_u32 v20, s92, v20")
    k("v_xor_b32 v21, 64, v20")
    k("v_lshlrev_b32 v22, 4, v23")


def w2f_dma(k):
    for j in range(7):
        for h in range(2):
            with atom(k):
                k(f"s_add_u32 m0, s92, {2048*j + 1024*h}")
                k(f"s_add_u32 s{SDMA}, s93, {16384*j + 8192*h}")
                vm(k, f"buffer_load_dwordx4 v19, {S(SW2)}, s{SDMA} offen lds", f"w2d{j}")


def w2f_tr(k):
    for j in range(7):
        k.wait(vm=f"w2d{j}")
        for nb in range(2):
            for hf in range(2):
                k.ds(f"ds_read_b64_tr_b16 {V(W2T + 8*j + 4*nb + 2*hf, 2)}, v{20+nb} offset:{2048*j + 1024*hf}", f"w2t{j}")


def w2f_stores(k):
    for j in range(7):
        for nb in range(2):
            with atom(k):
                if nb == 0:
                    k.wait(lg=f"w2t{j}")
                    if j and j % 2 == 0:
                        k("s_add_u32 s21, s21, 4096")
                vm(k, f"buffer_store_dwordx4 {V(W2T+8*j+4*nb,4)}, v22, {S(SWS)}, s21 offen offset:{1024*nb + 2048*(j&1)} sc1",
                   "w2s", 120)


def w2f_cons_setup(k):
    k("s_lshr_b32 s92, s2, 5")
    k("s_lshl_b32 s92, s92, 7")
    k("s_mul_i32 s93, s4, 28")
    k("s_add_u32 s92, s92, s93")
    k("s_lshl_b32 s92, s92, 11")
    k(f"s_add_u32 s92, s92, {WS_W2F}")
    k("s_and_b32 s93, s4, 1")
    k("s_lshl_b32 s93, s93, 10")
    k("s_add_u32 s92, s92, s93")
    k("s_xor_b32 s93, s92, 1024")


def w2f_cons_loads(k, after=None):
    for ii in range(28):
        for a in range(2):
            with atom(k, after):
                if ii and ii % 2 == 0:
                    k(f"s_add_u32 s{92+a}, s{92+a}, 4096")
                vm(k, f"buffer_load_dwordx4 {A(8*ii+4*a,4)}, v58, {S(SWS)}, s{92+a} offen offset:{2048*(ii%2)} sc1",
                   f"wf{ii}")


HW = 30


def h_setup(k):
    k("s_lshl_b32 s74, s2, 13")
    for ch in range(2):
        d = 84 + 4 * ch
        k(f"s_add_u32 s{d}, s{P_SSMK}, s74")
        k(f"s_addc_u32 s{d+1}, s{P_SSMK+1}, 0")
        k(f"s_mov_b32 s{d+2}, 4096")
        k(f"s_mov_b32 s{d+3}, 0x00020000")
        if ch == 0:
            k("s_add_u32 s74, s74, 4096")
    k("v_lshlrev_b32 v46, 4, v0")
    k("v_add_u32 v47, -16, v46")


def h_loads(k, after=None):
    for ch in range(2):
        with atom(k, after):
            vm(k, f"buffer_load_dwordx4 {V(HW+8*ch,4)}, v47, {S(84+4*ch)}, 0 offen", "hw")
        with atom(k, after):
            vm(k, f"buffer_load_dwordx4 {V(HW+4+8*ch,4)}, v46, {S(84+4*ch)}, 0 offen", "hw")


def kv_zero(k):
    for i in range(4):
        k(f"v_mov_b32 v{48+i}, 0")
    k(f"v_add_u32 v52, {L_KV + 4096}, v46")
    with atom(k):
        k("v_cmp_gt_u32 vcc, 32, v0")
        k("s_and_saveexec_b64 s[74:75], vcc")
        for ch in range(2):
            k.ds(f"ds_write_b128 v52, {V(48,4)} offset:{ch*KV_STRIDE}", "kvz")
        k("s_mov_b64 exec, s[74:75]")


def build_copies(k):
    k.wait(vm="hw")
    k(f"v_add_u32 v52, {L_H + 16}, v46")
    k(f"v_add_u32 v53, {L_H + 16 + CH_STRIDE}, v46")
    for ch in range(2):
        w = HW + 8 * ch
        t = (128, 224)[ch]
        R, P, Q = t, t + 6, t + 12
        src = {0: w, 4: w + 2, 2: R, 6: R + 2, 1: P, 5: P + 2, 3: Q, 7: Q + 2}

        def wr(s):
            k.ds(f"ds_write_b128 v{52+ch}, {V(src[s],4)} offset:{s*COPY_STRIDE + 16*COPY_O[s]}", "hwr")
        wr(0)
        wr(4)
        for j in range(6):
            k(f"v_mov_b32 v{R+j}, v{w+j+1}")
        wr(2)
        wr(6)
        for j in range(6):
            k(f"v_alignbyte_b32 v{P+j}, v{w+j+1}, v{w+j}, 2")
        wr(1)
        wr(5)
        for j in range(6):
            k(f"v_alignbyte_b32 v{Q+j}, v{w+j+2}, v{w+j+1}, 2")
        wr(3)
        wr(7)
    with atom(k):
        k("s_mov_b32 s76, 255")
        k("v_cmp_eq_u32 vcc, s76, v0")
        k("s_and_saveexec_b64 s[74:75], vcc")
        for ch in range(2):
            k.ds(f"ds_write_b128 v{52+ch}, {V(HW+8*ch+4,4)} offset:{16 + 16*COPY_O[0]}", "hwr")
        k("s_mov_b64 exec, s[74:75]")
    with atom(k):
        lut = sum(o << (4 * i) for i, o in enumerate(COPY_O))
        k(f"s_mov_b32 s76, {lut}")
        k("v_lshlrev_b32 v54, 2, v0")
        k("v_bfe_u32 v54, s76, v54, 4")
        k("v_lshlrev_b32 v54, 4, v54")
        k(f"v_mul_u32_u24 v55, {COPY_STRIDE}, v0")
        k("v_add_u32 v54, v54, v55")
        k(f"v_add_u32 v54, {L_H}, v54")
        k("v_cmp_gt_u32 vcc, 8, v0")
        k("s_and_saveexec_b64 s[74:75], vcc")
        k.ds(f"ds_write_b128 v54, {V(48,4)}", "hwr")
        k.ds(f"ds_write_b128 v54, {V(48,4)} offset:{CH_STRIDE}", "hwr")
        k("s_mov_b64 exec, s[74:75]")


KVR = 244


def kv_loads(k, after=None):
    with atom(k, after):
        k("s_lshl_b32 s94, s2, 13")
        k(f"s_add_u32 s94, s94, {WS_KVR}")
        vm(k, f"buffer_load_dwordx4 {V(KVR,4)}, v46, {S(SWS)}, s94 offen sc1", "kv")
    with atom(k, after):
        k("s_lshl_b32 s94, s2, 13")
        k(f"s_add_u32 s94, s94, {WS_KVR + 4096}")
        vm(k, f"buffer_load_dwordx4 {V(KVR+4,4)}, v46, {S(SWS)}, s94 offen sc1", "kv")


def kv_write(k):
    k(f"v_add_u32 v54, {L_KV}, v46")
    k.wait(vm="kv")
    for ch in range(2):
        k.ds(f"ds_write_b128 v54, {V(KVR+4*ch,4)} offset:{ch*KV_STRIDE}", "kvw")


def flag_addrs(k):
    k("v_and_b32 v58, 63, v0")
    k("s_lshr_b32 s75, s2, 5")
    k("s_lshl_b32 s74, s75, 5")
    k("v_and_b32 v59, 31, v58")
    k("v_add_u32 v59, s74, v59")
    k("v_and_b32 v60, 3, v58")
    k("v_lshlrev_b32 v60, 3, v60")
    k("s_add_u32 s75, s75, 224")
    k("v_add_u32 v60, s75, v60")
    k("v_cmp_gt_u32 vcc, 32, v58")
    k("v_cndmask_b32 v56, v60, v59, vcc")
    k("v_lshlrev_b32 v56, 7, v56")
    k("v_lshlrev_b32 v61, 7, v59")
    k("s_and_b32 s74, s2, 7")
    k("s_lshl_b32 s74, s74, 2")
    k("s_lshr_b32 s75, s2, 3")
    k("s_and_b32 s75, s75, 3")
    k("s_add_u32 s74, s74, s75")
    k("s_lshr_b32 s75, s74, 1")
    k("s_lshr_b32 s76, s75, 2")
    k("s_lshl_b32 s76, s76, 1")
    k("s_and_b32 s77, s75, 3")
    k("s_lshl_b32 s77, s77, 3")
    k("s_add_u32 s76, s76, s77")
    k("s_lshr_b32 s77, s74, 2")
    k("s_and_b32 s78, s74, 3")
    k("s_lshl_b32 s78, s78, 3")
    k("s_add_u32 s77, s77, s78")
    k("s_add_u32 s77, s77, 224")
    k("v_cmp_lt_u32 vcc, 6, v58")
    k("v_cndmask_b32 v59, 0, 1, vcc")
    k("v_mul_u32_u24 v60, 7, v59")
    k("v_sub_u32 v60, v58, v60")
    k("v_lshlrev_b32 v60, 5, v60")
    k("v_add_u32 v60, v60, v59")
    k("v_add_u32 v60, s76, v60")
    k("v_mov_b32 v59, s77")
    k("v_cmp_gt_u32 vcc, 14, v58")
    k("v_cndmask_b32 v57, v59, v60, vcc")
    k("v_lshlrev_b32 v57, 7, v57")
    k("s_cmp_eq_u32 s4, 0")
    k(f"s_cselect_b32 s74, 0, {OOB}")
    k("v_or_b32 v56, s74, v56")
    k("v_or_b32 v57, s74, v57")
    k("v_or_b32 v61, s74, v61")
    k("v_lshlrev_b32 v58, 4, v58")


BA0, BB1 = 248, 20


def g1_dma(k, slab, buf, after=None):
    for i in range(4):
        with atom(k, after):
            k(f"s_add_u32 m0, s82, {buf + 1024*i}")
            k(f"s_add_u32 s{SDMA}, s80, {8192*i + 128*slab}")
            vm(k, f"buffer_load_dwordx4 v{1 + (i&1)}, {S(SQ)}, s{SDMA} offen lds", f"slab{slab}")
    for i in range(4):
        with atom(k, after):
            k(f"s_add_u32 m0, s82, {buf + 16384 + 1024*i}")
            k(f"s_add_u32 s{SDMA}, s81, {(64*slab + 4*i)*3584}")
            vm(k, f"buffer_load_dwordx4 v3, {S(SW1)}, s{SDMA} offen lds", f"slab{slab}")


def bias_addr(k):
    k("v_lshlrev_b32 v19, 1, v10")
    k("v_cmp_gt_u32 vcc, 32, v10")
    k(f"v_mov_b32 v20, {OOB}")
    k("v_cndmask_b32 v19, v20, v19, vcc")
    k("v_mov_b32 v20, 0")
    k("v_mov_b32 v21, 0x3f80")
    k(f"v_cndmask_b32 v{BB1}, v20, v21, vcc")
    for r in (BB1 + 1, BB1 + 2, BB1 + 3, BA0 + 1, BA0 + 2, BA0 + 3, BA0 + 5, BA0 + 6, BA0 + 7):
        k(f"v_mov_b32 v{r}, 0")
    k("s_lshl_b32 s76, s6, 8")
    k("s_and_b32 s77, s4, 1")
    k("s_lshl_b32 s77, s77, 7")
    k("s_add_u32 s83, s76, s77")


def bias_loads(k):
    with atom(k):
        stmp(k, P_B1, 1792 * 2)
        vm(k, f"buffer_load_ushort v{BA0}, v19, {S(STMP)}, s83 offen", "bias", 32)
    with atom(k):
        vm(k, f"buffer_load_ushort v{BA0+4}, v19, {S(STMP)}, s83 offen offset:64", "bias", 32)


def bias_mfma(k):
    k.wait(vm="bias")
    for fb in range(2):
        for mb in range(2):
            d = G1_ACC + 32 * fb + 16 * mb
            k(f"v_mfma_f32_32x32x16_bf16 {V(d,16)}, {V(BA0+4*fb,4)}, {V(BB1,4)}, {V(d,16)}")


def sprinkle(k, items, per):
    q = list(items)

    def hook(n=per):
        for _ in range(n):
            if q:
                k._add(q.pop(0))
    hook.q = q
    return hook


def g1_main(k, bufs, pre, post, extra):
    nb = len(bufs)
    k.c("---- G1 main ----")
    k.wait(vm="slab0")
    k("s_barrier")
    ts(k, 6)
    G.g1_reads(k, bufs[0], 0, "r0_0")
    G.g1_reads(k, bufs[0], 1, "r0_1")
    hooks = []

    def mf(ks, first):
        fr = G1_FR + 16 * ks
        for fb in range(2):
            for mb in range(2):
                d = G1_ACC + 32 * fb + 16 * mb
                c = "0" if first else V(d, 16)
                k(f"v_mfma_f32_32x32x16_bf16 {V(d,16)}, {V(fr + 4*fb, 4)}, {V(fr + 8 + 4*mb, 4)}, {c}")
                for h in hooks:
                    if h.q:
                        h()
                        break

    for s in range(8):
        buf = bufs[s % nb]
        if ("a", s) in extra:
            hooks.append(sprinkle(k, *extra[("a", s)]))
        G.g1_reads(k, buf, 2, f"r{s}_2")
        k.wait(lg=f"r{s}_0")
        mf(0, s == 0)
        G.g1_reads(k, buf, 3, f"r{s}_3")
        k.wait(lg=f"r{s}_1")
        mf(1, False)
        if s < 7:
            if s in pre:
                pre[s]()
            k.wait(vm=f"slab{s+1}", lg=f"r{s}_3")
            k("s_barrier")
            k.mark(f"bar{s}")
            ts(k, 7 + s)
            if s in post:
                post[s]()
            if ("b", s) in extra:
                hooks.append(sprinkle(k, *extra[("b", s)]))
            nbuf = bufs[(s + 1) % nb]
            G.g1_reads(k, nbuf, 0, f"r{s+1}_0")
            mf(2, False)
            G.g1_reads(k, nbuf, 1, f"r{s+1}_1")
            mf(3, False)
        else:
            k.wait(lg=f"r{s}_2")
            mf(2, False)
            k.wait(lg=f"r{s}_3")
            mf(3, False)
    for h in hooks:
        h(10000)


def g1_epilogue(k):
    k.c("---- G1 epilogue ----")
    k("s_lshl_b32 s74, s5, 2")
    k("s_lshr_b32 s75, s4, 1")
    k("s_lshl_b32 s75, s75, 1")
    k("s_add_u32 s74, s74, s75")
    k("s_mul_i32 s74, s74, 112")
    k("s_lshl_b32 s75, s6, 3")
    k("s_add_u32 s74, s74, s75")
    k("s_and_b32 s75, s4, 1")
    k("s_lshl_b32 s75, s75, 2")
    k("s_add_u32 s74, s74, s75")
    k("s_lshl_b32 s74, s74, 10")
    k(f"s_add_u32 s78, s74, {WS_HF}")
    k(f"s_add_u32 s79, s78, {112*1024}")
    tmp = 160
    ti = 0
    for mb in range(2):
        for fb in range(2):
            acc = G1_ACC + 32 * fb + 16 * mb
            for half in range(2):
                t = tmp + 4 * ti
                ti += 1
                for r in range(8 * half, 8 * half + 8):
                    k(f"v_max_f32 v{acc+r}, 0, v{acc+r}")
                for r in range(8 * half, 8 * half + 8, 2):
                    k(f"v_pk_mul_f32 {V(acc+r,2)}, {V(acc+r,2)}, {V(acc+r,2)}")
                for i in range(4):
                    r = acc + 8 * half + 2 * i
                    k(f"v_cvt_pk_bf16_f32 v{t+i}, v{r}, v{r+1}")
                vm(k, f"buffer_store_dwordx4 {V(t,4)}, v58, {S(SWS)}, s{78+mb} offen offset:{(2*fb+half)*1024} sc1", "hs",
                   CFG.get("hscost", 200))


CA, CB = 59, 60


def conv_addr(k):
    k.c("---- conv addresses ----")
    k("v_and_b32 v10, 63, v0")
    k("v_and_b32 v11, 15, v10")
    k("v_lshrrev_b32 v12, 4, v10")
    k("v_add_u32 v13, 1, v11")
    k("v_and_b32 v14, 7, v13")
    k("v_lshrrev_b32 v15, 3, v13")
    lut = sum(o << (4 * i) for i, o in enumerate(COPY_O))
    k(f"s_mov_b32 s74, {lut}")
    k("v_lshlrev_b32 v16, 2, v14")
    k("v_bfe_u32 v16, s74, v16, 4")
    k("v_add_u32 v16, v16, v15")
    k("v_add_u32 v16, v16, v12")
    k("v_lshlrev_b32 v16, 4, v16")
    k(f"v_mul_u32_u24 v17, {COPY_STRIDE}, v14")
    k("v_add_u32 v16, v16, v17")
    k("s_lshr_b32 s75, s4, 1")
    k(f"s_mul_i32 s76, s75, {CH_STRIDE}")
    k("s_and_b32 s77, s4, 1")
    k("s_lshl_b32 s77, s77, 8")
    k("s_add_u32 s76, s76, s77")
    k(f"s_add_u32 s76, s76, {L_H}")
    k(f"v_add_u32 v{CA}, s76, v16")
    k(f"s_mul_i32 s76, s75, {KV_STRIDE}")
    k("s_add_u32 s76, s76, s77")
    k(f"s_add_u32 s76, s76, {L_KV + 480}")
    k("v_lshlrev_b32 v16, 5, v11")
    k("v_lshlrev_b32 v17, 4, v12")
    k("v_sub_u32 v16, v17, v16")
    k(f"v_add_u32 v{CB}, s76, v16")


def conv_main(k, hook):
    k.c("---- conv main ----")
    order = conv_order()
    for i in range(8):
        k.ds(f"ds_read_b128 {V(CV_FA + 4*i, 4)}, v{CA} offset:{512*i}", f"ca0_{i}")
        k.ds(f"ds_read_b128 {V(CV_FB + 4*i, 4)}, v{CB} offset:{512*(7-i)}", f"cb0_{i}")
    touched = set()
    for c0i in range(4):
        st = c0i & 1
        nxt = []
        if c0i < 3:
            for i in range(8):
                nxt.append((f"ds_read_b128 {V(CV_FA + 32*(st^1) + 4*i, 4)}, v{CA} offset:{512*i + 64*(c0i+1)}", f"ca{c0i+1}_{i}"))
                nxt.append((f"ds_read_b128 {V(CV_FB + 32*(st^1) + 4*i, 4)}, v{CB} offset:{512*(7-i) + 64*(c0i+1)}", f"cb{c0i+1}_{i}"))
        waited = set()
        for n, (d, c1) in enumerate(order):
            tags = [t for t in (f"ca{c0i}_{c1}", f"cb{c0i}_{d}") if t not in waited]
            if tags:
                k.wait(lg=tags)
                waited.update(tags)
            j = d + c1
            acc = V(CV_ACC + 4 * j, 4)
            c = acc if j in touched else "0"
            touched.add(j)
            k(f"v_mfma_f32_16x16x32_bf16 {acc}, {V(CV_FA + 32*st + 4*c1, 4)}, {V(CV_FB + 32*st + 4*d, 4)}, {c}")
            if n >= 18 and nxt:
                t, tg = nxt.pop(0)
                k.ds(t, tg)
            hook(c0i * 36 + n)


def conv_epilogue(k, prebar):
    k.c("---- conv epilogue ----")
    k("v_and_b32 v10, 63, v0")
    k("v_and_b32 v11, 15, v10")
    k("v_lshrrev_b32 v12, 4, v10")
    k("v_lshlrev_b32 v11, 6, v11")
    k("v_lshl_add_u32 v11, v12, 4, v11")
    k("s_lshl_b32 s74, s4, 13")
    k(f"s_add_u32 s74, s74, {L_PART}")
    k("v_add_u32 v11, s74, v11")
    k("s_lshr_b32 s75, s4, 1")
    for j in range(8):
        k.ds(f"ds_write_b128 v11, {V(CV_ACC + 4*j, 4)} offset:{1024*j}", "pw")
    k("v_and_b32 v1, 127, v0")
    k("v_lshlrev_b32 v2, 5, v1")
    k("s_lshl_b32 s74, s75, 14")
    k(f"s_add_u32 s74, s74, {L_PART}")
    k("v_add_u32 v2, s74, v2")
    k(f"s_mul_i32 s74, s75, {KV_STRIDE}")
    k(f"s_add_u32 s74, s74, {L_KV + 4080 - 2048}")
    k("v_lshlrev_b32 v3, 4, v1")
    k("v_sub_u32 v3, s74, v3")
    k("s_lshl_b32 s79, s75, 4")
    k("s_lshr_b32 s77, s23, s79")
    k("s_lshl_b32 s77, s77, 16")
    k.wait(lg="pw")
    prebar()
    k("s_barrier")
    k.mark("cvbar")
    for seg in range(2):
        b = 8 + 24 * seg
        for p in range(2):
            for hh in range(2):
                k.ds(f"ds_read_b128 {V(b + 8*p + 4*hh, 4)}, v2 offset:{8192*p + 4096*seg + 16*hh}", f"pr{seg}")
        k.ds(f"ds_read_b128 {V(b + 16, 4)}, v3 offset:{2048*(1-seg)}", f"pr{seg}")
    k("s_lshl_b32 s74, s2, 13")
    k("s_lshl_b32 s79, s75, 12")
    k("s_add_u32 s74, s74, s79")
    k(f"s_add_u32 s74, s74, {WS_YT}")
    k("v_lshlrev_b32 v4, 4, v1")
    for seg in range(2):
        b = 8 + 24 * seg
        k.wait(lg=f"pr{seg}")
        for i in range(0, 8, 2):
            k(f"v_pk_add_f32 {V(b+i,2)}, {V(b+i,2)}, {V(b+8+i,2)}")
        for i in range(8):
            e = 7 - i
            (unpack_hi if e & 1 else unpack_lo)(k, 6 + (i & 1), b + 16 + (e >> 1))
            k(f"v_fmac_f32 v{b+i}, s77, v{6 + (i & 1)}")
        for i in range(4):
            k(f"v_cvt_pk_bf16_f32 v{b+20+i}, v{b+2*i}, v{b+2*i+1}")
    k.mark("ysready")
    for seg in range(2):
        b = 8 + 24 * seg
        vm(k, f"buffer_store_dwordx4 {V(b+20,4)}, v4, {S(SWS)}, s74 offen offset:{2048*seg} sc1", "ys", SC_ST)


FB = 128


def g2_setup(k):
    G.g2_ids(k)
    k("s_lshr_b32 s74, s4, 1")
    k("s_lshl_b32 s75, s5, 1")
    k("s_add_u32 s80, s75, s74")
    k("s_xor_b32 s81, s80, 1")
    k("s_mul_i32 s78, s4, 28")
    for b in range(2):
        k(f"s_mul_i32 s{80+b}, s{80+b}, 112")
        k(f"s_add_u32 s{80+b}, s{80+b}, s78")
        k(f"s_lshl_b32 s{80+b}, s{80+b}, 10")
        k(f"s_add_u32 s{80+b}, s{80+b}, {WS_HF}")


def hf_loads(k, depth, first_after):
    for i in range(28):
        for b in range(2):
            after = first_after if i < depth else f"g2_{i - depth}"
            with atom(k, after):
                if b == 0 and i and i % 4 == 0:
                    k("s_add_u32 s80, s80, 4096")
                    k("s_add_u32 s81, s81, 4096")
                r = FB + 8 * (i % depth) + 4 * b
                vm(k, f"buffer_load_dwordx4 {V(r,4)}, v58, {S(SWS)}, s{80+b} offen offset:{1024*(i%4)} sc1", f"hf{i}")


def g2_main(k, depth, hooks):
    k.c("---- G2 main ----")
    for i in range(28):
        k.wait(vm=[f"hf{i}", f"wf{i}"])
        for b in range(2):
            for a in range(2):
                d = G2_ACC + 16 * (a + 2 * b)
                c = V(d, 16) if i else "0"
                k(f"v_mfma_f32_32x32x16_bf16 {V(d,16)}, {A(8*i + 4*a, 4)}, {V(FB + 8*(i%depth) + 4*b, 4)}, {c}")
        k.mark(f"g2_{i}")
        if i in hooks:
            hooks[i]()


EQ, EB2, EY, EG = 8, 16, 24, 32


def g2_ep_addr(k):
    k("v_and_b32 v40, 63, v0")
    k("v_and_b32 v41, 31, v40")
    k("v_lshrrev_b32 v42, 5, v40")
    k("s_and_b32 s74, s4, 1")
    k("s_lshr_b32 s75, s4, 1")
    k("s_lshl_b32 s76, s5, 6")
    k("s_lshl_b32 s77, s75, 5")
    k("s_add_u32 s76, s76, s77")
    k("s_lshl_b32 s77, s6, 6")
    k("s_lshl_b32 s78, s74, 5")
    k("s_add_u32 s77, s77, s78")
    k("v_lshlrev_b32 v46, 10, v41")
    k("v_lshl_add_u32 v46, v42, 3, v46")
    k("s_lshl_b32 s82, s76, 10")
    k("s_lshl_b32 s83, s77, 1")
    k("s_add_u32 s82, s82, s83")
    k("v_lshlrev_b32 v47, 3, v42")
    k("v_lshrrev_b32 v43, 2, v40")
    k("v_and_b32 v44, 3, v40")
    k("v_lshlrev_b32 v45, 12, v43")
    k("v_lshl_add_u32 v45, v44, 4, v45")
    k("s_lshl_b32 s84, s77, 12")
    k("s_lshl_b32 s85, s76, 1")
    k("s_add_u32 s84, s84, s85")
    k(f"s_add_u32 s84, s84, {WS_YT}")
    k(f"s_add_u32 s85, s84, {16*4096}")
    k("v_lshlrev_b32 v48, 2, v41")
    k("s_lshl_b32 s86, s76, 2")
    k(f"s_add_u32 s86, s86, {WS_G}")


def g2_ep_loads_plain(k, after=None):
    for g in range(4):
        with atom(k, after):
            vm(k, f"buffer_load_dwordx2 {V(EQ+2*g,2)}, v46, {S(SQ)}, s82 offen offset:{16*g}", "q", 200)
    for g in range(4):
        with atom(k, after):
            if g == 0:
                stmp(k, P_B2, 1024)
            vm(k, f"buffer_load_dwordx2 {V(EB2+2*g,2)}, v47, {S(STMP)}, s83 offen offset:{16*g}", "b2", 64)
    with atom(k, after):
        vm(k, f"buffer_load_dword v{EG}, v48, {S(SWS)}, s86 offen sc1", "g", 32)


def g2_ep_loads_sc1(k, after=None):
    with atom(k, after):
        vm(k, f"buffer_load_dwordx4 {V(EY,4)}, v45, {S(SWS)}, s84 offen sc1", "yt", 81)
    with atom(k, after):
        vm(k, f"buffer_load_dwordx4 {V(EY+4,4)}, v45, {S(SWS)}, s85 offen sc1", "yt", 81)


def g2_epilogue(k):
    k.c("---- G2 epilogue ----")
    k("v_lshlrev_b32 v49, 4, v40")
    for sg in range(1, 4):
        k(f"s_xor_b32 s80, s4, {sg}")
        k("s_mul_i32 s80, s80, 12288")
        k(f"v_add_u32 v50, s80, v49")
        for g in range(4):
            k.ds(f"ds_write_b128 v50, {V(G2_ACC + 16*sg + 4*g, 4)} offset:{L_RED + (sg-1)*4096 + 1024*g}", "rw")
    k("s_lshl_b32 s80, s4, 11")
    k(f"s_add_u32 s80, s80, {L_YL}")
    k("v_add_u32 v51, s80, v49")
    k.wait(vm="yt")
    k.ds(f"ds_write_b128 v51, {V(EY,4)}", "yw")
    k.ds(f"ds_write_b128 v51, {V(EY+4,4)} offset:1024", "yw")
    k.wait(lg=["rw", "yw"])
    k("s_barrier")
    ts(k, 25)
    k("s_mul_i32 s80, s4, 12288")
    k("v_add_u32 v50, s80, v49")
    for sg in range(3):
        for g in range(4):
            k.ds(f"ds_read_b128 {V(160 + 16*sg + 4*g, 4)}, v50 offset:{L_RED + sg*4096 + 1024*g}", f"rr{sg}")
    k("v_and_b32 v52, 15, v40")
    k("v_lshrrev_b32 v53, 2, v52")
    k("v_lshl_add_u32 v53, v42, 2, v53")
    k("v_lshlrev_b32 v53, 6, v53")
    k("v_bfe_u32 v54, v40, 4, 1")
    k("v_lshl_add_u32 v53, v54, 5, v53")
    k("v_and_b32 v54, 3, v52")
    k("v_lshl_add_u32 v53, v54, 3, v53")
    k("s_lshl_b32 s80, s4, 11")
    k(f"s_add_u32 s80, s80, {L_YL}")
    k("v_add_u32 v53, s80, v53")
    for g in range(4):
        k.ds(f"ds_read_b64_tr_b16 {V(208+2*g,2)}, v53 offset:{512*g}", "yr")
    acc = G2_ACC
    for sg in range(3):
        k.wait(lg=f"rr{sg}")
        for r in range(0, 16, 2):
            k(f"v_pk_add_f32 {V(acc+r,2)}, {V(acc+r,2)}, {V(160+16*sg+r,2)}")
    k.wait(vm=["q", "b2", "g"], lg="yr")
    X = 224
    slot = {0: 0, 2: 2, 1: 4, 3: 6}
    for g in range(4):
        for i in range(4):
            up = unpack_hi if i & 1 else unpack_lo
            up(k, 128 + i, EB2 + 2 * g + (i >> 1))
            up(k, 132 + i, EQ + 2 * g + (i >> 1))
            up(k, 136 + i, 208 + 2 * g + (i >> 1))
        for i in range(4):
            r = acc + 4 * g + i
            k(f"v_add_f32 v{r}, v{r}, v{128+i}")
        for i in range(4):
            r = acc + 4 * g + i
            k(f"v_fma_f32 v{132+i}, v{132+i}, v{136+i}, -v{r}")
        for i in range(4):
            r = acc + 4 * g + i
            k(f"v_fmac_f32 v{r}, v{EG}, v{132+i}")
        for d in range(2):
            r = acc + 4 * g + 2 * d
            k(f"v_cvt_pk_bf16_f32 v{X + slot[g] + d}, v{r}, v{r+1}")
    for base in (0, 4):
        k(f"v_permlane32_swap_b32 v{X+base}, v{X+base+2}")
        k(f"v_permlane32_swap_b32 v{X+base+1}, v{X+base+3}")
    k("v_lshlrev_b32 v46, 10, v41")
    k("v_lshl_add_u32 v46, v42, 5, v46")
    vm(k, f"buffer_store_dwordx4 {V(X,4)}, v46, {S(SOUT)}, s82 offen", "os")
    vm(k, f"buffer_store_dwordx4 {V(X+4,4)}, v46, {S(SOUT)}, s82 offen offset:16", "os")


def gate_loads(k):
    k("s_and_b32 s5, s2, 7")
    k("s_lshl_b32 s5, s5, 2")
    k("s_lshr_b32 s6, s2, 3")
    k("s_sub_u32 s6, s6, 28")
    k("s_add_u32 s5, s5, s6")
    k("s_lshl_b32 s5, s5, 6")
    k("s_lshl_b32 s6, s4, 4")
    k("s_add_u32 s5, s5, s6")
    k("s_lshl_b32 s6, s5, 10")
    stmp(k, P_GATE, 1024)
    k.vmem(f"buffer_load_dwordx4 {V(4,4)}, v22, {S(STMP)}, 0 offen", "gw")
    for i in range(16):
        if i and i % 4 == 0:
            k("s_add_u32 s6, s6, 4096")
        k.vmem(f"buffer_load_dwordx4 {A(4*i,4)}, v22, {S(SQ)}, s6 offen offset:{1024*(i%4)}", f"gx{i}")


def gate_compute(k):
    k.c("---- gate compute ----")
    k.wait(vm="gw")
    for c in range(8):
        (unpack_hi if c & 1 else unpack_lo)(k, 8 + c, 4 + (c >> 1))
    R = 96
    for i in range(16):
        k.wait(vm=f"gx{i}")
        s = 64 + 4 * (i & 1)
        for c in range(4):
            k(f"v_accvgpr_read_b32 v{s+c}, a{4*i+c}")
        u = 72 + 8 * (i & 1)
        for c in range(8):
            (unpack_hi if c & 1 else unpack_lo)(k, u + c, s + (c >> 1))
        t = 88 + 2 * (i & 1)
        for cp in range(0, 8, 2):
            if cp == 0:
                k(f"v_pk_mul_f32 {V(t,2)}, {V(u,2)}, {V(8,2)}")
            else:
                k(f"v_pk_fma_f32 {V(t,2)}, {V(u+cp,2)}, {V(8+cp,2)}, {V(t,2)}")
        k(f"v_add_f32 v{R+i}, v{t}, v{t+1}")
    for mod in ["row_shr:1", "row_shr:2", "row_shr:4", "row_shr:8", "row_bcast:15 row_mask:0xa",
                "row_bcast:31 row_mask:0xc"]:
        for i in range(16):
            m = mod if "row_mask" in mod else mod + " row_mask:0xf"
            k(f"v_add_f32_dpp v{R+i}, v{R+i}, v{R+i} {m} bank_mask:0xf")
    k("v_mov_b32 v2, 0")
    for g in range(0, 16, 4):
        for i in range(g, g + 4):
            k(f"v_readlane_b32 s{76+i-g}, v{R+i}, 63")
        for i in range(g, g + 4):
            k(f"v_writelane_b32 v2, s{76+i-g}, {i}")
    k("v_mul_f32 v2, 0xbfb8aa3b, v2")
    k("v_exp_f32 v2, v2")
    k("v_add_f32 v2, 1.0, v2")
    k("v_rcp_f32 v2, v2")
    k("v_and_b32 v1, 63, v0")
    k("v_lshlrev_b32 v3, 2, v1")
    k("s_lshl_b32 s6, s5, 2")
    k(f"s_add_u32 s6, s6, {WS_G}")
    k("v_cmp_gt_u32 vcc, 16, v1")
    k("s_and_saveexec_b64 s[74:75], vcc")
    k.vmem(f"buffer_store_dword v2, v3, {S(SWS)}, s6 offen sc1", "gs")
    k("s_mov_b64 exec, s[74:75]")


def rec(f, *a, **kw):
    r = Rec()
    f(r, *a, **kw)
    return r.items


def late_scalars(k):
    k(f"s_load_dword s96, s[{P_WS}:{P_WS+1}], {WS_EPOCH}")
    k("s_lshl_b32 s74, s2, 2")
    k(f"s_load_dword s23, s[{P_SSMD}:{P_SSMD+1}], s74")


def gen_full(cfg):
    global CFG
    CFG = cfg
    g = cfg.get
    k = KT()
    END = "K_END"
    bufs = [0, 32768, 65536, 98304]
    prologue(k, END)
    if g("ts"):
        k("v_mov_b32 v63, 0")
    ts(k, 0)
    k("s_lshr_b32 s74, s2, 3")
    k("s_cmp_ge_u32 s74, 28")
    k("s_cbranch_scc1 GATE")
    G.g1_setup(k, cfg)
    bias_addr(k)
    t1_addr(k)
    srd_consts(k)
    k("s_waitcnt lgkmcnt(0)")
    srd_ptrs(k, (SQ, SW1))
    ts_setup(k, cfg) if False else None
    T1POS = g("t1pos", 1)
    W = Weaver(k, g("p_g1", 32))
    W.t = W.ta = 8 * 88
    r = Rec()
    g1_dma(r, 0, bufs[0])
    for it in r.items:
        emit(k, it)
    srd_ptrs(k, (SK, SV, SWS, SW2, SOUT))
    late_scalars(k)
    ts_setup(k, cfg)
    ts(k, 1)
    bg = Rec()
    if T1POS == 0:
        t1_loads(bg)
    g1_dma(bg, 1, bufs[1])
    if T1POS == 1:
        t1_loads(bg)
    bias_loads(bg)
    g1_dma(bg, 2, bufs[2])
    if T1POS == 2:
        t1_loads(bg)
    g1_dma(bg, 3, bufs[3])
    for s in range(4, 8):
        g1_dma(bg, s, bufs[s - 4], after=f"bar{s-4}")
    h_loads(bg, after="t1done")
    poll_issue(bg, 62, 56, WS_F0, "p0", after="poll0")
    kv_loads(bg, after="f0ok")
    w2f_cons_loads(bg, after="f0ok")
    W.push(bg.items)
    W.flush(g("ndirect", 0))
    fg = Rec()
    h_setup(fg)
    kv_zero(fg)
    flag_addrs(fg)
    fg("s_waitcnt lgkmcnt(0)")
    nonce(fg)
    w2f_cons_setup(fg)
    ts(fg, 5)
    t1c = rec(t1_compute)
    t1c.append(("m", "t1done"))
    P0 = g("pub0", 4)
    T1SEG = g("t1seg", 1)
    BSEG = g("bseg", 1)
    POLL0 = g("poll0", 5)
    CHK0 = g("chk0", 6)
    pre = {}
    post = {}

    def addh(d, s, f):
        old = d.get(s)
        d[s] = (lambda: (old(), f())) if old else f
    addh(pre, P0, lambda: fg.wait(vm="t1s"))
    addh(post, P0, lambda: publish(fg, WS_F0))
    addh(post, POLL0, lambda: fg.mark("poll0"))
    addh(pre, CHK0, lambda: (poll_check(fg, 62, 56, WS_F0, "p0"), ts(fg, 14)))
    addh(post, CHK0, lambda: fg.mark("f0ok"))
    if T1SEG < 0:
        for it in t1c:
            fg._add(it)
    tail = rec(build_copies) + rec(conv_addr)
    extra = {("b", 6): (tail, g("tailper", 4)), ("a", BSEG): (rec(bias_mfma), 5)}
    if T1SEG >= 0:
        extra[("b", T1SEG)] = (t1c, g("t1per", 5))
    g1_main(fg, bufs, pre, post, extra)
    ts(fg, 15)
    fg.period(g("p_ep", 32))
    g1_epilogue(fg)
    kv_write(fg)
    ts(fg, 16)
    conflicts("g1", fg.items, bg.items, ok=[("s", "m0"), ("v", 62, 62), ("v", 224, 255), ("v", 30, 47), ("s", 92, 93),
                                            ("v", 56, 58), ("s", 84, 91)])
    W.run(fg.items)
    nleft = len(W.bg)
    print("G1 path marks:", W.log, "bg left at JOIN:", nleft)
    for it in W.bg:
        assert all(x[2].startswith("wf") for x in flat([it]) if x[0] == "vm"), it
    if k.pend is not None:
        k("s_waitcnt lgkmcnt(0)")
    vm_join = list(k.vm)
    k("s_branch JOIN")
    k("GATE:")
    k.vm, k.lg = [], []
    if g("ts"):
        k.pend = 0
    w2f_addr(k)
    t1_addr(k)
    srd_consts(k)
    k("s_waitcnt lgkmcnt(0)")
    srd_ptrs(k, (SW2, SK, SV, SQ, SWS, SOUT))
    for it in rec(w2f_dma):
        emit(k, it)
    late_scalars(k)
    ts_setup(k, cfg)
    ts(k, 1)
    for it in rec(t1_loads):
        emit(k, it)
    h_setup(k)
    for it in rec(w2f_tr):
        emit(k, it)
    ts(k, 3)
    Wg = Weaver(k, 32)
    Wg.push(rec(w2f_stores))
    Wg.run(rec(t1_compute)[:-12])
    Wg.flush()
    for it in rec(t1_compute)[-12:]:
        emit(k, it)
    gate_loads(k)
    for it in rec(kv_zero):
        emit(k, it)
    flag_addrs(k)
    k("s_waitcnt lgkmcnt(0)")
    k.lg = []
    nonce(k)
    k.wait(vm=["t1s", "w2s"])
    k("s_barrier")
    publish(k, WS_F0)
    ts(k, 5)
    for it in rec(h_loads):
        emit(k, it)
    gate_compute(k)
    for it in rec(build_copies) + rec(conv_addr):
        emit(k, it)
    poll_issue(k, 62, 56, WS_F0, "p0")
    poll_check(k, 62, 56, WS_F0, "p0")
    k("s_barrier")
    ts(k, 14)
    for it in rec(kv_loads):
        emit(k, it)
    w2f_cons_setup(k)
    allw = rec(w2f_cons_loads)
    for it in allw[:len(allw) - nleft]:
        emit(k, it)
    kv_write(k)
    ts(k, 16)
    k.wait_all(vm=True, lg=True)
    k("JOIN:")
    k.vm = vm_join
    k.lg = ["x"]
    k.wait_all(vm=False, lg=True)
    k("s_barrier")
    ts(k, 17)
    PUB1 = g("pub1", 54)
    POLL1 = g("poll1", 100)
    CHK1 = g("chk1", -1)
    depth = 16
    fg = Rec()
    bg = Rec()
    g2_setup(fg)
    fg.period(g("p_cv", 32))

    def hook(n):
        if n == PUB1:
            fg.wait(vm="hs")
            fg("s_barrier")
            ts(fg, 18)
            publish(fg, WS_F1)
        if n == POLL1:
            poll_issue(fg, 62, 57, WS_F1, "p1")
        if n == CHK1:
            poll_check(fg, 62, 57, WS_F1, "p1")
            fg("s_barrier")
            fg.mark("f1ok")
            ts(fg, 20)
    conv_main(fg, hook)
    ts(fg, 19)

    def prebar():
        if CHK1 < 0:
            poll_check(fg, 62, 57, WS_F1, "p1")
            ts(fg, 20)
    fg.period(g("p_ce", 32))
    conv_epilogue(fg, prebar)
    ts(fg, 21)
    hf_loads(bg, depth, "cvbar" if CHK1 < 0 else "f1ok")
    epl = Rec()
    g2_ep_loads_plain(epl, after="epaddr")
    eps = Rec()
    g2_ep_loads_sc1(eps, after="f2ok")
    PUB2 = g("pub2", 4)
    POLL2 = g("poll2", 16)
    CHK2 = g("chk2", 22)
    EPQ = g("epq", 8)
    hfi = bg.items
    pos = min(2 * (EPQ + depth), len(hfi))
    bgall = hfi[:pos] + epl.items + hfi[pos:] + eps.items
    fg.period(g("p_g2", 32))

    def h_pub2():
        fg.wait(vm="ys")
        fg("s_barrier")
        ts(fg, 22)
        publish(fg, WS_F2)

    def h_chk2():
        poll_check(fg, 62, 61, WS_F2, "p2")
        fg("s_barrier")
        fg.mark("f2ok")
        ts(fg, 23)
    hooks = {}
    addh(hooks, 0, lambda: (g2_ep_addr(fg), fg.mark("epaddr")))
    addh(hooks, PUB2, h_pub2)
    addh(hooks, POLL2, lambda: poll_issue(fg, 62, 61, WS_F2, "p2"))
    addh(hooks, CHK2, h_chk2)
    g2_main(fg, depth, hooks)
    ts(fg, 24)
    g2_epilogue(fg)
    ts(fg, 26)
    conflicts("g2", fg.items, W.bg + bgall,
              ok=[("a", 0, 223), ("v", 128, 255), ("v", 62, 62), ("s", 80, 86), ("v", 8, 32), ("v", 45, 48), ("s", 94, 94)])
    W.push(bgall)
    W.log = []
    W.run(fg.items)
    print("JOIN path marks:", W.log, "bg left:", len(W.bg))
    assert not W.bg
    k("s_or_b32 s74, s2, s4")
    k("s_cmp_eq_u32 s74, 0")
    k("s_cbranch_scc0 NOEP")
    k("s_add_u32 s96, s96, 1")
    k("v_mov_b32 v62, s96")
    k(f"s_mov_b32 s97, {WS_EPOCH}")
    k("s_mov_b64 exec, 1")
    k(f"buffer_store_dword v62, off, {S(SWS)}, s97")
    k("s_mov_b64 exec, -1")
    k("NOEP:")
    k.wait_all()
    ts_final(k, cfg, 27)
    k("s_waitcnt vmcnt(0)")
    k(f"{END}:")
    k("s_endpgm")
    return k


def build(cfg):
    hdr = open("cdna_kernels/" + NAME + ".s.ref").read().split("; Override")[0]
    out = [hdr.rstrip("\n")]
    out.append("; @launch grid=(256,1,1) block=(256,1,1) lds=163840")
    out.append('.amdgcn_target "amdgcn-amd-amdhsa--gfx950"\n.text')
    k = gen_full(cfg)
    lab = NAME + "_kernel"
    out.append(G.khead(lab) + k.text())
    out.append('.section .rodata,"a"\n.p2align 6')
    out.append(G.kdesc(lab))
    return "\n".join(out) + "\n"


if __name__ == "__main__":
    path = sys.argv[1]
    cfg = {}
    for a in sys.argv[2:]:
        kk, vv = a.split("=")
        cfg[kk] = int(vv)
    txt = build(cfg)
    open(path, "w").write(txt)
    print("bytes", len(txt))
```

```python
import sys
from asmlib import K
import gen as G
from gen import (S, V, A, srd, unpack_lo, unpack_hi, NAME, SQ, SK, SV, SW1, SW2, SOUT, SWS, STMP,
                 P_Q, P_K, P_V, P_SHIFT, P_SSMK, P_SSMD, P_W1, P_B1, P_W2, P_B2, P_GATE, P_OUT, P_WS,
                 COPY_O, COPY_STRIDE, CH_STRIDE, KV_STRIDE, conv_order, G1_ACC, G1_FR,
                 CV_ACC, CV_FA, CV_FB, G2_ACC)
from weave import Rec, Weaver, emit, flat, conflicts
import gen2
from gen2 import KT, Lbl, ts_setup, ts_final

WS_F0, WS_F1, WS_F2 = 0, 32768, 65536
WS_EPOCH = 98304
WS_G = 0x20000
WS_KVR = 1 << 20
WS_W2F = 3 << 20
WS_HF = 5 << 20
WS_YT = 13 << 20
WS_TS = 15 << 20
WS_SIZE = 16 << 20

L_W2S = 73728
L_KV = 139264
L_H = 0
L_PART = 98304
L_RED = 0
L_YL = 49152

NONCE = 3
SPIN = 1 << 15
OOB = 0x40000000
SDMA = 22
SC_ST = 300
CFG = {}


def ts(k, idx):
    if not CFG.get("ts"):
        return
    if isinstance(k, Rec):
        k.fn(lambda kk: gen2.ts(kk, CFG, idx))
    else:
        gen2.ts(k, CFG, idx)


def vm(k, s, tag, cost=None):
    if isinstance(k, Rec):
        k.vmem(s, tag, cost)
    else:
        k.vmem(s, tag)


class nullatom:
    def __enter__(self):
        return self

    def __exit__(self, *a):
        return False


def atom(k, after=None, cost=None):
    return k.atom(after, cost) if isinstance(k, Rec) else nullatom()


def publish(k, wsoff):
    l = Lbl.new("PUB")
    with atom(k):
        k("s_cmp_eq_u32 s4, 0")
        k(f"s_cbranch_scc0 {l}")
        k("s_lshl_b32 s97, s2, 7")
        k(f"s_add_u32 s97, s97, {wsoff}")
        k(f"v_mov_b32 v62, s{NONCE}")
        k("s_mov_b64 exec, 1")
        k(f"buffer_store_dword v62, off, {S(SWS)}, s97 sc1")
        k("s_mov_b64 exec, -1")
        k(f"{l}:")


def poll_issue(k, vreg, voff, wsoff, tag, after=None):
    with atom(k, after):
        k(f"s_mov_b32 s94, {wsoff}")
        vm(k, f"buffer_load_dword v{vreg}, v{voff}, {S(SWS)}, s94 offen sc1", tag, 40)


def poll_check(k, vreg, voff, wsoff, tag):
    ok, rt = Lbl.new("POK"), Lbl.new("PRT")
    with atom(k):
        k.wait(vm=tag)
        k("s_cmp_eq_u32 s4, 0")
        k(f"s_cbranch_scc0 {ok}")
        k(f"v_cmp_ne_u32 vcc, s{NONCE}, v{vreg}")
        k(f"s_cbranch_vccz {ok}")
        k(f"s_mov_b32 s97, {wsoff}")
        k(f"s_mov_b32 s101, {SPIN}")
        k(f"{rt}:")
        k("s_sleep 1")
        k(f"buffer_load_dword v{vreg}, v{voff}, {S(SWS)}, s97 offen sc1")
        k("s_waitcnt vmcnt(0)")
        k(f"v_cmp_ne_u32 vcc, s{NONCE}, v{vreg}")
        k(f"s_cbranch_vccz {ok}")
        k("s_sub_u32 s101, s101, 1")
        k(f"s_cbranch_scc0 {rt}")
        k(f"{ok}:")


def prologue(k, endlabel):
    k("s_cmp_ge_u32 s2, 256")
    k(f"s_cbranch_scc1 {endlabel}")
    k("s_load_dwordx16 s[44:59], s[0:1], 0")
    k("s_load_dwordx8 s[60:67], s[0:1], 64")
    k("s_load_dwordx4 s[68:71], s[0:1], 96")
    k("s_load_dwordx2 s[72:73], s[0:1], 112")
    k("v_lshrrev_b32 v1, 6, v0")
    k("s_nop 0")
    k("v_readfirstlane_b32 s4, v1")


def code_prefetch(k):
    lab = NAME + "_kernel"
    k("s_getpc_b64 s[84:85]")
    k("PF_PC:")
    k(f"s_sub_u32 s84, s84, PF_PC-{lab}")
    k("s_subb_u32 s85, s85, 0")
    k(f"s_mov_b32 s86, K_CODE_END-{lab}")
    k("s_mov_b32 s87, 0x00020000")
    k("s_lshr_b32 s88, s2, 3")
    k("s_lshl_b32 s88, s88, 2")
    k("s_add_u32 s88, s88, s4")
    k(f"s_and_b32 s88, s88, {CFG.get('pfmask', 63)}")
    k("s_lshl_b32 s88, s88, 10")
    k("v_and_b32 v2, 63, v0")
    k("v_lshlrev_b32 v2, 4, v2")
    k("v_add_u32 v2, s88, v2")
    k.vmem("buffer_load_dwordx4 a[252:255], v2, s[84:87], 0 offen", "icpf")


SRDS = [(SQ, P_Q, 2 << 20), (SW1, P_W1, 512 * 1792 * 2), (SK, P_K, 2 << 20), (SV, P_V, 2 << 20),
        (SW2, P_W2, 512 * 1792 * 2), (SOUT, P_OUT, 2 << 20), (SWS, P_WS, WS_SIZE)]


def srd_consts(k):
    for d, p, n in SRDS:
        k(f"s_mov_b32 s{d+2}, {n}")
        k(f"s_mov_b32 s{d+3}, 0x00020000")
    k(f"s_mov_b32 s{STMP+3}, 0x00020000")


def srd_ptrs(k, which):
    for d, p, n in SRDS:
        if d in which:
            k(f"s_mov_b32 s{d}, s{p}")
            k(f"s_mov_b32 s{d+1}, s{p+1}")


def stmp(k, ptr, nbytes):
    k(f"s_mov_b32 s{STMP}, s{ptr}")
    k(f"s_mov_b32 s{STMP+1}, s{ptr+1}")
    k(f"s_mov_b32 s{STMP+2}, {nbytes}")


def nonce(k):
    k(f"s_mul_i32 s{NONCE}, s96, 0x9E3779B1")
    k(f"s_add_u32 s{NONCE}, s{NONCE}, 0x85EBCA6B")


T1_KR, T1_VR, T1_WR = 224, 235, 244
T1_K, T1_W, T1_A, T1_V, T1_O = 128, 150, 30, 128, 144


def t1_addr(k):
    k.c("---- T1 addresses ----")
    k("s_lshr_b32 s84, s2, 5")
    k("s_and_b32 s85, s2, 31")
    k("s_lshl_b32 s85, s85, 6")
    k("s_and_b32 s74, s4, 1")
    k("s_lshr_b32 s75, s4, 1")
    k("s_lshl_b32 s76, s74, 5")
    k("s_add_u32 s76, s76, s85")
    k("s_sub_u32 s77, s76, 3")
    k("s_lshl_b32 s77, s77, 10")
    k("s_lshl_b32 s78, s84, 7")
    k("s_add_u32 s77, s77, s78")
    k("s_lshl_b32 s78, s75, 6")
    k("s_add_u32 s77, s77, s78")
    k("v_and_b32 v15, 15, v0")
    k("v_bfe_u32 v16, v0, 4, 2")
    k("v_lshlrev_b32 v10, 13, v16")
    k("v_lshl_add_u32 v10, v15, 2, v10")
    k("v_add_u32 v10, s77, v10")
    k("v_add_u32 v11, 1024, v10")
    k("v_add_u32 v12, 2048, v10")
    k("v_add_u32 v13, 3072, v10")
    k("v_add_u32 v14, 7168, v10")
    k("v_lshlrev_b32 v17, 4, v15")
    k("s_lshl_b32 s78, s84, 9")
    k("s_lshl_b32 s79, s75, 8")
    k("s_add_u32 s7, s78, s79")
    k("v_sub_u32 v16, 3, v16")
    k("v_lshlrev_b32 v16, 4, v16")
    k("v_lshl_add_u32 v18, v15, 13, v16")
    k("s_lshl_b32 s78, s84, 18")
    k("s_lshl_b32 s79, s75, 17")
    k("s_add_u32 s78, s78, s79")
    k("s_sub_u32 s79, 2016, s76")
    k("s_lshl_b32 s79, s79, 1")
    k("s_add_u32 s78, s78, s79")
    k(f"s_add_u32 s95, s78, {WS_KVR}")


def t1_loads(k, cost=32):
    def ad(j):
        if j < 3:
            return 10 + j, 0
        if j < 7:
            return 13, (j - 3) * 1024
        return 14, (j - 7) * 1024
    with atom(k):
        stmp(k, P_SHIFT, 512 * 4 * 2)
        vm(k, f"buffer_load_dwordx4 {V(T1_WR,4)}, v17, {S(STMP)}, s7 offen", "t1", 64)
    for j in range(11):
        r, o = ad(j)
        vm(k, f"buffer_load_dword v{T1_KR+j}, v{r}, {S(SK)}, 0 offen offset:{o}", "t1", cost)
    for i in range(8):
        r, o = ad(i + 3)
        vm(k, f"buffer_load_dword v{T1_VR+i}, v{r}, {S(SV)}, 0 offen offset:{o}", "t1", cost)


def t1_compute(k):
    k.c("---- T1 compute ----")
    k.wait(vm="t1")
    for m in range(4):
        up = unpack_hi if m & 1 else unpack_lo
        up(k, T1_W + 2 * m, T1_WR + (m >> 1))
        up(k, T1_W + 2 * m + 1, T1_WR + 2 + (m >> 1))
    for j in range(11):
        unpack_lo(k, T1_K + 2 * j, T1_KR + j)
        unpack_hi(k, T1_K + 2 * j + 1, T1_KR + j)
    for m in range(4):
        for i in range(8):
            d = T1_A + 2 * i
            a = T1_K + 2 * (i + 3 - m)
            w = T1_W + 2 * m
            if m == 0:
                k(f"v_pk_mul_f32 {V(d,2)}, {V(a,2)}, {V(w,2)}")
            else:
                k(f"v_pk_fma_f32 {V(d,2)}, {V(a,2)}, {V(w,2)}, {V(d,2)}")
    for i in range(8):
        unpack_lo(k, T1_V + 2 * i, T1_VR + i)
        unpack_hi(k, T1_V + 2 * i + 1, T1_VR + i)
    for i in range(8):
        d = T1_A + 2 * i
        k(f"v_pk_mul_f32 {V(d,2)}, {V(d,2)}, {V(T1_V+2*i,2)}")
    for c in range(2):
        for jj in range(4):
            k(f"v_cvt_pk_bf16_f32 v{T1_O+4*c+jj}, v{T1_A+2*(7-2*jj)+c}, v{T1_A+2*(6-2*jj)+c}")
        with atom(k):
            if c:
                k("s_add_u32 s95, s95, 4096")
            vm(k, f"buffer_store_dwordx4 {V(T1_O+4*c,4)}, v18, {S(SWS)}, s95 offen sc1", "t1s", SC_ST)


W2T = 64


def w2f_addr(k):
    k.c("---- W2F producer addresses ----")
    k("s_lshr_b32 s92, s2, 3")
    k("s_sub_u32 s92, s92, 28")
    k("s_mul_i32 s92, s92, 28")
    k("s_mul_i32 s93, s4, 7")
    k("s_add_u32 s92, s92, s93")
    k("s_and_b32 s93, s2, 7")
    k("s_lshl_b32 s21, s93, 7")
    k("s_add_u32 s21, s21, s92")
    k("s_lshl_b32 s21, s21, 11")
    k(f"s_add_u32 s21, s21, {WS_W2F}")
    k("s_lshl_b32 s93, s93, 7")
    k("s_lshl_b32 s92, s92, 14")
    k("s_add_u32 s93, s93, s92")
    k("v_and_b32 v23, 63, v0")
    k("v_lshrrev_b32 v19, 3, v23")
    k("v_and_b32 v20, 7, v23")
    k("v_bfe_u32 v21, v23, 4, 1")
    k("v_lshlrev_b32 v21, 2, v21")
    k("v_xor_b32 v20, v20, v21")
    k("v_lshlrev_b32 v20, 4, v20")
    k("v_lshl_add_u32 v19, v19, 10, v20")
    k("s_mul_i32 s92, s4, 14336")
    k(f"s_add_u32 s92, s92, {L_W2S}")
    k("v_and_b32 v20, 15, v23")
    k("v_lshrrev_b32 v21, 5, v23")
    k("v_lshrrev_b32 v22, 2, v20")
    k("v_lshl_add_u32 v21, v21, 2, v22")
    k("v_lshlrev_b32 v21, 7, v21")
    k("v_bfe_u32 v22, v23, 4, 1")
    k("v_lshlrev_b32 v22, 1, v22")
    k("v_bfe_u32 v24, v20, 1, 1")
    k("v_add_u32 v22, v22, v24")
    k("v_bfe_u32 v24, v20, 3, 1")
    k("v_lshl_add_u32 v22, v24, 2, v22")
    k("v_lshl_add_u32 v21, v22, 4, v21")
    k("v_and_b32 v24, 1, v20")
    k("v_lshl_add_u32 v20, v24, 3, v21")
    k("v_add_u32 v20, s92, v20")
    k("v_xor_b32 v21, 64, v20")
    k("v_lshlrev_b32 v22, 4, v23")


def w2f_dma(k):
    for j in range(7):
        for h in range(2):
            with atom(k):
                k(f"s_add_u32 m0, s92, {2048*j + 1024*h}")
                k(f"s_add_u32 s{SDMA}, s93, {16384*j + 8192*h}")
                vm(k, f"buffer_load_dwordx4 v19, {S(SW2)}, s{SDMA} offen lds", f"w2d{j}")


def w2f_tr(k):
    for j in range(7):
        k.wait(vm=f"w2d{j}")
        for nb in range(2):
            for hf in range(2):
                k.ds(f"ds_read_b64_tr_b16 {V(W2T + 8*j + 4*nb + 2*hf, 2)}, v{20+nb} offset:{2048*j + 1024*hf}", f"w2t{j}")


def w2f_stores(k):
    for j in range(7):
        for nb in range(2):
            with atom(k):
                if nb == 0:
                    k.wait(lg=f"w2t{j}")
                    if j and j % 2 == 0:
                        k("s_add_u32 s21, s21, 4096")
                vm(k, f"buffer_store_dwordx4 {V(W2T+8*j+4*nb,4)}, v22, {S(SWS)}, s21 offen offset:{1024*nb + 2048*(j&1)} sc1",
                   "w2s", 120)


def w2f_cons_setup(k):
    k("s_lshr_b32 s92, s2, 5")
    k("s_lshl_b32 s92, s92, 7")
    k("s_mul_i32 s93, s4, 28")
    k("s_add_u32 s92, s92, s93")
    k("s_lshl_b32 s92, s92, 11")
    k(f"s_add_u32 s92, s92, {WS_W2F}")
    k("s_and_b32 s93, s4, 1")
    k("s_lshl_b32 s93, s93, 10")
    k("s_add_u32 s92, s92, s93")
    k("s_xor_b32 s93, s92, 1024")


def w2f_cons_loads(k, after=None):
    for ii in range(28):
        for a in range(2):
            with atom(k, after):
                if ii and ii % 2 == 0:
                    k(f"s_add_u32 s{92+a}, s{92+a}, 4096")
                vm(k, f"buffer_load_dwordx4 {A(8*ii+4*a,4)}, v58, {S(SWS)}, s{92+a} offen offset:{2048*(ii%2)} sc1",
                   f"wf{ii}")


HW = 30


def h_setup(k):
    k("s_lshl_b32 s74, s2, 13")
    for ch in range(2):
        d = 84 + 4 * ch
        k(f"s_add_u32 s{d}, s{P_SSMK}, s74")
        k(f"s_addc_u32 s{d+1}, s{P_SSMK+1}, 0")
        k(f"s_mov_b32 s{d+2}, 4096")
        k(f"s_mov_b32 s{d+3}, 0x00020000")
        if ch == 0:
            k("s_add_u32 s74, s74, 4096")
    k("v_lshlrev_b32 v46, 4, v0")
    k("v_add_u32 v47, -16, v46")


def h_loads(k, after=None):
    for ch in range(2):
        with atom(k, after):
            vm(k, f"buffer_load_dwordx4 {V(HW+8*ch,4)}, v47, {S(84+4*ch)}, 0 offen", "hw")
        with atom(k, after):
            vm(k, f"buffer_load_dwordx4 {V(HW+4+8*ch,4)}, v46, {S(84+4*ch)}, 0 offen", "hw")


def kv_zero(k):
    for i in range(4):
        k(f"v_mov_b32 v{48+i}, 0")
    k(f"v_add_u32 v52, {L_KV + 4096}, v46")
    with atom(k):
        k("v_cmp_gt_u32 vcc, 32, v0")
        k("s_and_saveexec_b64 s[74:75], vcc")
        for ch in range(2):
            k.ds(f"ds_write_b128 v52, {V(48,4)} offset:{ch*KV_STRIDE}", "kvz")
        k("s_mov_b64 exec, s[74:75]")


def build_copies(k):
    k.wait(vm="hw")
    k(f"v_add_u32 v52, {L_H + 16}, v46")
    k(f"v_add_u32 v53, {L_H + 16 + CH_STRIDE}, v46")
    for ch in range(2):
        w = HW + 8 * ch
        t = (128, 224)[ch]
        R, P, Q = t, t + 6, t + 12
        src = {0: w, 4: w + 2, 2: R, 6: R + 2, 1: P, 5: P + 2, 3: Q, 7: Q + 2}

        def wr(s):
            k.ds(f"ds_write_b128 v{52+ch}, {V(src[s],4)} offset:{s*COPY_STRIDE + 16*COPY_O[s]}", "hwr")
        wr(0)
        wr(4)
        for j in range(6):
            k(f"v_mov_b32 v{R+j}, v{w+j+1}")
        wr(2)
        wr(6)
        for j in range(6):
            k(f"v_alignbyte_b32 v{P+j}, v{w+j+1}, v{w+j}, 2")
        wr(1)
        wr(5)
        for j in range(6):
            k(f"v_alignbyte_b32 v{Q+j}, v{w+j+2}, v{w+j+1}, 2")
        wr(3)
        wr(7)
    with atom(k):
        k("s_mov_b32 s76, 255")
        k("v_cmp_eq_u32 vcc, s76, v0")
        k("s_and_saveexec_b64 s[74:75], vcc")
        for ch in range(2):
            k.ds(f"ds_write_b128 v{52+ch}, {V(HW+8*ch+4,4)} offset:{16 + 16*COPY_O[0]}", "hwr")
        k("s_mov_b64 exec, s[74:75]")
    with atom(k):
        lut = sum(o << (4 * i) for i, o in enumerate(COPY_O))
        k(f"s_mov_b32 s76, {lut}")
        k("v_lshlrev_b32 v54, 2, v0")
        k("v_bfe_u32 v54, s76, v54, 4")
        k("v_lshlrev_b32 v54, 4, v54")
        k(f"v_mul_u32_u24 v55, {COPY_STRIDE}, v0")
        k("v_add_u32 v54, v54, v55")
        k(f"v_add_u32 v54, {L_H}, v54")
        k("v_cmp_gt_u32 vcc, 8, v0")
        k("s_and_saveexec_b64 s[74:75], vcc")
        k.ds(f"ds_write_b128 v54, {V(48,4)}", "hwr")
        k.ds(f"ds_write_b128 v54, {V(48,4)} offset:{CH_STRIDE}", "hwr")
        k("s_mov_b64 exec, s[74:75]")


KVR = 244


def kv_loads(k, after=None):
    with atom(k, after):
        k("s_lshl_b32 s94, s2, 13")
        k(f"s_add_u32 s94, s94, {WS_KVR}")
        vm(k, f"buffer_load_dwordx4 {V(KVR,4)}, v46, {S(SWS)}, s94 offen sc1", "kv")
    with atom(k, after):
        k("s_lshl_b32 s94, s2, 13")
        k(f"s_add_u32 s94, s94, {WS_KVR + 4096}")
        vm(k, f"buffer_load_dwordx4 {V(KVR+4,4)}, v46, {S(SWS)}, s94 offen sc1", "kv")


def kv_write(k):
    k(f"v_add_u32 v54, {L_KV}, v46")
    k.wait(vm="kv")
    for ch in range(2):
        k.ds(f"ds_write_b128 v54, {V(KVR+4*ch,4)} offset:{ch*KV_STRIDE}", "kvw")


def flag_addrs(k):
    k("v_and_b32 v58, 63, v0")
    k("s_lshr_b32 s75, s2, 5")
    k("s_lshl_b32 s74, s75, 5")
    k("v_and_b32 v59, 31, v58")
    k("v_add_u32 v59, s74, v59")
    k("v_and_b32 v60, 3, v58")
    k("v_lshlrev_b32 v60, 3, v60")
    k("s_add_u32 s75, s75, 224")
    k("v_add_u32 v60, s75, v60")
    k("v_cmp_gt_u32 vcc, 32, v58")
    k("v_cndmask_b32 v56, v60, v59, vcc")
    k("v_lshlrev_b32 v56, 7, v56")
    k("v_lshlrev_b32 v61, 7, v59")
    k("s_and_b32 s74, s2, 7")
    k("s_lshl_b32 s74, s74, 2")
    k("s_lshr_b32 s75, s2, 3")
    k("s_and_b32 s75, s75, 3")
    k("s_add_u32 s74, s74, s75")
    k("s_lshr_b32 s75, s74, 1")
    k("s_lshr_b32 s76, s75, 2")
    k("s_lshl_b32 s76, s76, 1")
    k("s_and_b32 s77, s75, 3")
    k("s_lshl_b32 s77, s77, 3")
    k("s_add_u32 s76, s76, s77")
    k("s_lshr_b32 s77, s74, 2")
    k("s_and_b32 s78, s74, 3")
    k("s_lshl_b32 s78, s78, 3")
    k("s_add_u32 s77, s77, s78")
    k("s_add_u32 s77, s77, 224")
    k("v_cmp_lt_u32 vcc, 6, v58")
    k("v_cndmask_b32 v59, 0, 1, vcc")
    k("v_mul_u32_u24 v60, 7, v59")
    k("v_sub_u32 v60, v58, v60")
    k("v_lshlrev_b32 v60, 5, v60")
    k("v_add_u32 v60, v60, v59")
    k("v_add_u32 v60, s76, v60")
    k("v_mov_b32 v59, s77")
    k("v_cmp_gt_u32 vcc, 14, v58")
    k("v_cndmask_b32 v57, v59, v60, vcc")
    k("v_lshlrev_b32 v57, 7, v57")
    k("s_cmp_eq_u32 s4, 0")
    k(f"s_cselect_b32 s74, 0, {OOB}")
    k("v_or_b32 v56, s74, v56")
    k("v_or_b32 v57, s74, v57")
    k("v_or_b32 v61, s74, v61")
    k("v_lshlrev_b32 v58, 4, v58")


BA0, BB1 = 248, 20


def g1_dma(k, slab, buf, after=None):
    for i in range(4):
        with atom(k, after):
            k(f"s_add_u32 m0, s82, {buf + 1024*i}")
            k(f"s_add_u32 s{SDMA}, s80, {8192*i + 128*slab}")
            vm(k, f"buffer_load_dwordx4 v{1 + (i&1)}, {S(SQ)}, s{SDMA} offen lds", f"slab{slab}")
    for i in range(4):
        with atom(k, after):
            k(f"s_add_u32 m0, s82, {buf + 16384 + 1024*i}")
            k(f"s_add_u32 s{SDMA}, s81, {(64*slab + 4*i)*3584}")
            vm(k, f"buffer_load_dwordx4 v3, {S(SW1)}, s{SDMA} offen lds", f"slab{slab}")


def bias_addr(k):
    k("v_lshlrev_b32 v19, 1, v10")
    k("v_cmp_gt_u32 vcc, 32, v10")
    k(f"v_mov_b32 v20, {OOB}")
    k("v_cndmask_b32 v19, v20, v19, vcc")
    k("v_mov_b32 v20, 0")
    k("v_mov_b32 v21, 0x3f80")
    k(f"v_cndmask_b32 v{BB1}, v20, v21, vcc")
    for r in (BB1 + 1, BB1 + 2, BB1 + 3, BA0 + 1, BA0 + 2, BA0 + 3, BA0 + 5, BA0 + 6, BA0 + 7):
        k(f"v_mov_b32 v{r}, 0")
    k("s_lshl_b32 s76, s6, 8")
    k("s_and_b32 s77, s4, 1")
    k("s_lshl_b32 s77, s77, 7")
    k("s_add_u32 s83, s76, s77")


def bias_loads(k):
    with atom(k):
        stmp(k, P_B1, 1792 * 2)
        vm(k, f"buffer_load_ushort v{BA0}, v19, {S(STMP)}, s83 offen", "bias", 32)
    with atom(k):
        vm(k, f"buffer_load_ushort v{BA0+4}, v19, {S(STMP)}, s83 offen offset:64", "bias", 32)


def bias_mfma(k):
    k.wait(vm="bias")
    for fb in range(2):
        for mb in range(2):
            d = G1_ACC + 32 * fb + 16 * mb
            k(f"v_mfma_f32_32x32x16_bf16 {V(d,16)}, {V(BA0+4*fb,4)}, {V(BB1,4)}, {V(d,16)}")


def sprinkle(k, items, per):
    q = list(items)

    def hook(n=per):
        for _ in range(n):
            if q:
                k._add(q.pop(0))
    hook.q = q
    return hook


def g1_main(k, bufs, pre, post, extra):
    nb = len(bufs)
    k.c("---- G1 main ----")
    k.wait(vm="slab0")
    k("s_barrier")
    ts(k, 6)
    G.g1_reads(k, bufs[0], 0, "r0_0")
    G.g1_reads(k, bufs[0], 1, "r0_1")
    hooks = []

    def mf(ks, first):
        fr = G1_FR + 16 * ks
        for fb in range(2):
            for mb in range(2):
                d = G1_ACC + 32 * fb + 16 * mb
                c = "0" if first else V(d, 16)
                k(f"v_mfma_f32_32x32x16_bf16 {V(d,16)}, {V(fr + 4*fb, 4)}, {V(fr + 8 + 4*mb, 4)}, {c}")
                for h in hooks:
                    if h.q:
                        h()
                        break

    for s in range(8):
        buf = bufs[s % nb]
        if ("a", s) in extra:
            hooks.append(sprinkle(k, *extra[("a", s)]))
        G.g1_reads(k, buf, 2, f"r{s}_2")
        k.wait(lg=f"r{s}_0")
        mf(0, s == 0)
        G.g1_reads(k, buf, 3, f"r{s}_3")
        k.wait(lg=f"r{s}_1")
        mf(1, False)
        if s < 7:
            if s in pre:
                pre[s]()
            k.wait(vm=f"slab{s+1}", lg=f"r{s}_3")
            k("s_barrier")
            k.mark(f"bar{s}")
            ts(k, 7 + s)
            if s in post:
                post[s]()
            if ("b", s) in extra:
                hooks.append(sprinkle(k, *extra[("b", s)]))
            nbuf = bufs[(s + 1) % nb]
            G.g1_reads(k, nbuf, 0, f"r{s+1}_0")
            mf(2, False)
            G.g1_reads(k, nbuf, 1, f"r{s+1}_1")
            mf(3, False)
        else:
            k.wait(lg=f"r{s}_2")
            mf(2, False)
            k.wait(lg=f"r{s}_3")
            mf(3, False)
    for h in hooks:
        h(10000)


def g1_epilogue(k):
    k.c("---- G1 epilogue ----")
    k("s_lshl_b32 s74, s5, 2")
    k("s_lshr_b32 s75, s4, 1")
    k("s_lshl_b32 s75, s75, 1")
    k("s_add_u32 s74, s74, s75")
    k("s_mul_i32 s74, s74, 112")
    k("s_lshl_b32 s75, s6, 3")
    k("s_add_u32 s74, s74, s75")
    k("s_and_b32 s75, s4, 1")
    k("s_lshl_b32 s75, s75, 2")
    k("s_add_u32 s74, s74, s75")
    k("s_lshl_b32 s74, s74, 10")
    k(f"s_add_u32 s78, s74, {WS_HF}")
    k(f"s_add_u32 s79, s78, {112*1024}")
    tmp = 160
    ti = 0
    for mb in range(2):
        for fb in range(2):
            acc = G1_ACC + 32 * fb + 16 * mb
            for half in range(2):
                t = tmp + 4 * ti
                ti += 1
                for r in range(8 * half, 8 * half + 8):
                    k(f"v_max_f32 v{acc+r}, 0, v{acc+r}")
                for r in range(8 * half, 8 * half + 8, 2):
                    k(f"v_pk_mul_f32 {V(acc+r,2)}, {V(acc+r,2)}, {V(acc+r,2)}")
                for i in range(4):
                    r = acc + 8 * half + 2 * i
                    k(f"v_cvt_pk_bf16_f32 v{t+i}, v{r}, v{r+1}")
                vm(k, f"buffer_store_dwordx4 {V(t,4)}, v58, {S(SWS)}, s{78+mb} offen offset:{(2*fb+half)*1024} sc1", "hs",
                   CFG.get("hscost", 200))


CA, CB = 59, 60


def conv_addr(k):
    k.c("---- conv addresses ----")
    k("v_and_b32 v10, 63, v0")
    k("v_and_b32 v11, 15, v10")
    k("v_lshrrev_b32 v12, 4, v10")
    k("v_add_u32 v13, 1, v11")
    k("v_and_b32 v14, 7, v13")
    k("v_lshrrev_b32 v15, 3, v13")
    lut = sum(o << (4 * i) for i, o in enumerate(COPY_O))
    k(f"s_mov_b32 s74, {lut}")
    k("v_lshlrev_b32 v16, 2, v14")
    k("v_bfe_u32 v16, s74, v16, 4")
    k("v_add_u32 v16, v16, v15")
    k("v_add_u32 v16, v16, v12")
    k("v_lshlrev_b32 v16, 4, v16")
    k(f"v_mul_u32_u24 v17, {COPY_STRIDE}, v14")
    k("v_add_u32 v16, v16, v17")
    k("s_lshr_b32 s75, s4, 1")
    k(f"s_mul_i32 s76, s75, {CH_STRIDE}")
    k("s_and_b32 s77, s4, 1")
    k("s_lshl_b32 s77, s77, 8")
    k("s_add_u32 s76, s76, s77")
    k(f"s_add_u32 s76, s76, {L_H}")
    k(f"v_add_u32 v{CA}, s76, v16")
    k(f"s_mul_i32 s76, s75, {KV_STRIDE}")
    k("s_add_u32 s76, s76, s77")
    k(f"s_add_u32 s76, s76, {L_KV + 480}")
    k("v_lshlrev_b32 v16, 5, v11")
    k("v_lshlrev_b32 v17, 4, v12")
    k("v_sub_u32 v16, v17, v16")
    k(f"v_add_u32 v{CB}, s76, v16")


def conv_main(k, hook):
    k.c("---- conv main ----")
    order = conv_order()
    for i in range(8):
        k.ds(f"ds_read_b128 {V(CV_FA + 4*i, 4)}, v{CA} offset:{512*i}", f"ca0_{i}")
        k.ds(f"ds_read_b128 {V(CV_FB + 4*i, 4)}, v{CB} offset:{512*(7-i)}", f"cb0_{i}")
    touched = set()
    for c0i in range(4):
        st = c0i & 1
        nxt = []
        if c0i < 3:
            for i in range(8):
                nxt.append((f"ds_read_b128 {V(CV_FA + 32*(st^1) + 4*i, 4)}, v{CA} offset:{512*i + 64*(c0i+1)}", f"ca{c0i+1}_{i}"))
                nxt.append((f"ds_read_b128 {V(CV_FB + 32*(st^1) + 4*i, 4)}, v{CB} offset:{512*(7-i) + 64*(c0i+1)}", f"cb{c0i+1}_{i}"))
        waited = set()
        for n, (d, c1) in enumerate(order):
            tags = [t for t in (f"ca{c0i}_{c1}", f"cb{c0i}_{d}") if t not in waited]
            if tags:
                k.wait(lg=tags)
                waited.update(tags)
            j = d + c1
            acc = V(CV_ACC + 4 * j, 4)
            c = acc if j in touched else "0"
            touched.add(j)
            k(f"v_mfma_f32_16x16x32_bf16 {acc}, {V(CV_FA + 32*st + 4*c1, 4)}, {V(CV_FB + 32*st + 4*d, 4)}, {c}")
            if n >= 18 and nxt:
                t, tg = nxt.pop(0)
                k.ds(t, tg)
            hook(c0i * 36 + n)


def conv_epilogue(k, prebar):
    k.c("---- conv epilogue ----")
    k("v_and_b32 v10, 63, v0")
    k("v_and_b32 v11, 15, v10")
    k("v_lshrrev_b32 v12, 4, v10")
    k("v_lshlrev_b32 v11, 6, v11")
    k("v_lshl_add_u32 v11, v12, 4, v11")
    k("s_lshl_b32 s74, s4, 13")
    k(f"s_add_u32 s74, s74, {L_PART}")
    k("v_add_u32 v11, s74, v11")
    k("s_lshr_b32 s75, s4, 1")
    for j in range(8):
        k.ds(f"ds_write_b128 v11, {V(CV_ACC + 4*j, 4)} offset:{1024*j}", "pw")
    k("v_and_b32 v1, 127, v0")
    k("v_lshlrev_b32 v2, 5, v1")
    k("s_lshl_b32 s74, s75, 14")
    k(f"s_add_u32 s74, s74, {L_PART}")
    k("v_add_u32 v2, s74, v2")
    k(f"s_mul_i32 s74, s75, {KV_STRIDE}")
    k(f"s_add_u32 s74, s74, {L_KV + 4080 - 2048}")
    k("v_lshlrev_b32 v3, 4, v1")
    k("v_sub_u32 v3, s74, v3")
    k("s_lshl_b32 s79, s75, 4")
    k("s_lshr_b32 s77, s23, s79")
    k("s_lshl_b32 s77, s77, 16")
    k.wait(lg="pw")
    prebar()
    k("s_barrier")
    k.mark("cvbar")
    for seg in range(2):
        b = 8 + 24 * seg
        for p in range(2):
            for hh in range(2):
                k.ds(f"ds_read_b128 {V(b + 8*p + 4*hh, 4)}, v2 offset:{8192*p + 4096*seg + 16*hh}", f"pr{seg}")
        k.ds(f"ds_read_b128 {V(b + 16, 4)}, v3 offset:{2048*(1-seg)}", f"pr{seg}")
    k("s_lshl_b32 s74, s2, 13")
    k("s_lshl_b32 s79, s75, 12")
    k("s_add_u32 s74, s74, s79")
    k(f"s_add_u32 s74, s74, {WS_YT}")
    k("v_lshlrev_b32 v4, 4, v1")
    for seg in range(2):
        b = 8 + 24 * seg
        k.wait(lg=f"pr{seg}")
        for i in range(0, 8, 2):
            k(f"v_pk_add_f32 {V(b+i,2)}, {V(b+i,2)}, {V(b+8+i,2)}")
        for i in range(8):
            e = 7 - i
            (unpack_hi if e & 1 else unpack_lo)(k, 6 + (i & 1), b + 16 + (e >> 1))
            k(f"v_fmac_f32 v{b+i}, s77, v{6 + (i & 1)}")
        for i in range(4):
            k(f"v_cvt_pk_bf16_f32 v{b+20+i}, v{b+2*i}, v{b+2*i+1}")
    k.mark("ysready")
    for seg in range(2):
        b = 8 + 24 * seg
        vm(k, f"buffer_store_dwordx4 {V(b+20,4)}, v4, {S(SWS)}, s74 offen offset:{2048*seg} sc1", "ys", SC_ST)


FB = 128


def g2_setup(k):
    G.g2_ids(k)
    k("s_lshr_b32 s74, s4, 1")
    k("s_lshl_b32 s75, s5, 1")
    k("s_add_u32 s80, s75, s74")
    k("s_xor_b32 s81, s80, 1")
    k("s_mul_i32 s78, s4, 28")
    for b in range(2):
        k(f"s_mul_i32 s{80+b}, s{80+b}, 112")
        k(f"s_add_u32 s{80+b}, s{80+b}, s78")
        k(f"s_lshl_b32 s{80+b}, s{80+b}, 10")
        k(f"s_add_u32 s{80+b}, s{80+b}, {WS_HF}")


def hf_loads(k, depth, first_after):
    for i in range(28):
        for b in range(2):
            after = first_after if i < depth else f"g2_{i - depth}"
            with atom(k, after):
                if b == 0 and i and i % 4 == 0:
                    k("s_add_u32 s80, s80, 4096")
                    k("s_add_u32 s81, s81, 4096")
                r = FB + 8 * (i % depth) + 4 * b
                vm(k, f"buffer_load_dwordx4 {V(r,4)}, v58, {S(SWS)}, s{80+b} offen offset:{1024*(i%4)} sc1", f"hf{i}")


def g2_main(k, depth, hooks):
    k.c("---- G2 main ----")
    for i in range(28):
        k.wait(vm=[f"hf{i}", f"wf{i}"])
        for b in range(2):
            for a in range(2):
                d = G2_ACC + 16 * (a + 2 * b)
                c = V(d, 16) if i else "0"
                k(f"v_mfma_f32_32x32x16_bf16 {V(d,16)}, {A(8*i + 4*a, 4)}, {V(FB + 8*(i%depth) + 4*b, 4)}, {c}")
        k.mark(f"g2_{i}")
        if i in hooks:
            hooks[i]()


EQ, EB2, EY, EG = 8, 16, 24, 32


def g2_ep_addr(k):
    k("v_and_b32 v40, 63, v0")
    k("v_and_b32 v41, 31, v40")
    k("v_lshrrev_b32 v42, 5, v40")
    k("s_and_b32 s74, s4, 1")
    k("s_lshr_b32 s75, s4, 1")
    k("s_lshl_b32 s76, s5, 6")
    k("s_lshl_b32 s77, s75, 5")
    k("s_add_u32 s76, s76, s77")
    k("s_lshl_b32 s77, s6, 6")
    k("s_lshl_b32 s78, s74, 5")
    k("s_add_u32 s77, s77, s78")
    k("v_lshlrev_b32 v46, 10, v41")
    k("v_lshl_add_u32 v46, v42, 3, v46")
    k("s_lshl_b32 s82, s76, 10")
    k("s_lshl_b32 s83, s77, 1")
    k("s_add_u32 s82, s82, s83")
    k("v_lshlrev_b32 v47, 3, v42")
    k("v_lshrrev_b32 v43, 2, v40")
    k("v_and_b32 v44, 3, v40")
    k("v_lshlrev_b32 v45, 12, v43")
    k("v_lshl_add_u32 v45, v44, 4, v45")
    k("s_lshl_b32 s84, s77, 12")
    k("s_lshl_b32 s85, s76, 1")
    k("s_add_u32 s84, s84, s85")
    k(f"s_add_u32 s84, s84, {WS_YT}")
    k(f"s_add_u32 s85, s84, {16*4096}")
    k("v_lshlrev_b32 v48, 2, v41")
    k("s_lshl_b32 s86, s76, 2")
    k(f"s_add_u32 s86, s86, {WS_G}")


def g2_ep_loads_plain(k, after=None):
    for g in range(4):
        with atom(k, after):
            vm(k, f"buffer_load_dwordx2 {V(EQ+2*g,2)}, v46, {S(SQ)}, s82 offen offset:{16*g}", "q", 200)
    for g in range(4):
        with atom(k, after):
            if g == 0:
                stmp(k, P_B2, 1024)
            vm(k, f"buffer_load_dwordx2 {V(EB2+2*g,2)}, v47, {S(STMP)}, s83 offen offset:{16*g}", "b2", 64)
    with atom(k, after):
        vm(k, f"buffer_load_dword v{EG}, v48, {S(SWS)}, s86 offen sc1", "g", 32)


def g2_ep_loads_sc1(k, after=None):
    with atom(k, after):
        vm(k, f"buffer_load_dwordx4 {V(EY,4)}, v45, {S(SWS)}, s84 offen sc1", "yt", 81)
    with atom(k, after):
        vm(k, f"buffer_load_dwordx4 {V(EY+4,4)}, v45, {S(SWS)}, s85 offen sc1", "yt", 81)


def g2_epilogue(k):
    k.c("---- G2 epilogue ----")
    k("v_lshlrev_b32 v49, 4, v40")
    for sg in range(1, 4):
        k(f"s_xor_b32 s80, s4, {sg}")
        k("s_mul_i32 s80, s80, 12288")
        k(f"v_add_u32 v50, s80, v49")
        for g in range(4):
            k.ds(f"ds_write_b128 v50, {V(G2_ACC + 16*sg + 4*g, 4)} offset:{L_RED + (sg-1)*4096 + 1024*g}", "rw")
    k("s_lshl_b32 s80, s4, 11")
    k(f"s_add_u32 s80, s80, {L_YL}")
    k("v_add_u32 v51, s80, v49")
    k.wait(vm="yt")
    k.ds(f"ds_write_b128 v51, {V(EY,4)}", "yw")
    k.ds(f"ds_write_b128 v51, {V(EY+4,4)} offset:1024", "yw")
    k.wait(lg=["rw", "yw"])
    k("s_barrier")
    ts(k, 25)
    k("s_mul_i32 s80, s4, 12288")
    k("v_add_u32 v50, s80, v49")
    for sg in range(3):
        for g in range(4):
            k.ds(f"ds_read_b128 {V(160 + 16*sg + 4*g, 4)}, v50 offset:{L_RED + sg*4096 + 1024*g}", f"rr{sg}")
    k("v_and_b32 v52, 15, v40")
    k("v_lshrrev_b32 v53, 2, v52")
    k("v_lshl_add_u32 v53, v42, 2, v53")
    k("v_lshlrev_b32 v53, 6, v53")
    k("v_bfe_u32 v54, v40, 4, 1")
    k("v_lshl_add_u32 v53, v54, 5, v53")
    k("v_and_b32 v54, 3, v52")
    k("v_lshl_add_u32 v53, v54, 3, v53")
    k("s_lshl_b32 s80, s4, 11")
    k(f"s_add_u32 s80, s80, {L_YL}")
    k("v_add_u32 v53, s80, v53")
    for g in range(4):
        k.ds(f"ds_read_b64_tr_b16 {V(208+2*g,2)}, v53 offset:{512*g}", "yr")
    acc = G2_ACC
    for sg in range(3):
        k.wait(lg=f"rr{sg}")
        for r in range(0, 16, 2):
            k(f"v_pk_add_f32 {V(acc+r,2)}, {V(acc+r,2)}, {V(160+16*sg+r,2)}")
    k.wait(vm=["q", "b2", "g"], lg="yr")
    X = 224
    slot = {0: 0, 2: 2, 1: 4, 3: 6}
    for g in range(4):
        for i in range(4):
            up = unpack_hi if i & 1 else unpack_lo
            up(k, 128 + i, EB2 + 2 * g + (i >> 1))
            up(k, 132 + i, EQ + 2 * g + (i >> 1))
            up(k, 136 + i, 208 + 2 * g + (i >> 1))
        for i in range(4):
            r = acc + 4 * g + i
            k(f"v_add_f32 v{r}, v{r}, v{128+i}")
        for i in range(4):
            r = acc + 4 * g + i
            k(f"v_fma_f32 v{132+i}, v{132+i}, v{136+i}, -v{r}")
        for i in range(4):
            r = acc + 4 * g + i
            k(f"v_fmac_f32 v{r}, v{EG}, v{132+i}")
        for d in range(2):
            r = acc + 4 * g + 2 * d
            k(f"v_cvt_pk_bf16_f32 v{X + slot[g] + d}, v{r}, v{r+1}")
    for base in (0, 4):
        k(f"v_permlane32_swap_b32 v{X+base}, v{X+base+2}")
        k(f"v_permlane32_swap_b32 v{X+base+1}, v{X+base+3}")
    k("v_lshlrev_b32 v46, 10, v41")
    k("v_lshl_add_u32 v46, v42, 5, v46")
    osc = ["", " sc1", " nt", " sc0 sc1", " sc1 nt"][CFG.get("osc", 0)]
    vm(k, f"buffer_store_dwordx4 {V(X,4)}, v46, {S(SOUT)}, s82 offen{osc}", "os")
    vm(k, f"buffer_store_dwordx4 {V(X+4,4)}, v46, {S(SOUT)}, s82 offen offset:16{osc}", "os")


def gate_loads(k):
    k("s_and_b32 s5, s2, 7")
    k("s_lshl_b32 s5, s5, 2")
    k("s_lshr_b32 s6, s2, 3")
    k("s_sub_u32 s6, s6, 28")
    k("s_add_u32 s5, s5, s6")
    k("s_lshl_b32 s5, s5, 6")
    k("s_lshl_b32 s6, s4, 4")
    k("s_add_u32 s5, s5, s6")
    k("s_lshl_b32 s6, s5, 10")
    stmp(k, P_GATE, 1024)
    k.vmem(f"buffer_load_dwordx4 {V(4,4)}, v22, {S(STMP)}, 0 offen", "gw")
    for i in range(16):
        if i and i % 4 == 0:
            k("s_add_u32 s6, s6, 4096")
        k.vmem(f"buffer_load_dwordx4 {A(4*i,4)}, v22, {S(SQ)}, s6 offen offset:{1024*(i%4)}", f"gx{i}")


def gate_compute(k):
    k.c("---- gate compute ----")
    k.wait(vm="gw")
    for c in range(8):
        (unpack_hi if c & 1 else unpack_lo)(k, 8 + c, 4 + (c >> 1))
    R = 96
    for i in range(16):
        k.wait(vm=f"gx{i}")
        s = 64 + 4 * (i & 1)
        for c in range(4):
            k(f"v_accvgpr_read_b32 v{s+c}, a{4*i+c}")
        u = 72 + 8 * (i & 1)
        for c in range(8):
            (unpack_hi if c & 1 else unpack_lo)(k, u + c, s + (c >> 1))
        t = 88 + 2 * (i & 1)
        for cp in range(0, 8, 2):
            if cp == 0:
                k(f"v_pk_mul_f32 {V(t,2)}, {V(u,2)}, {V(8,2)}")
            else:
                k(f"v_pk_fma_f32 {V(t,2)}, {V(u+cp,2)}, {V(8+cp,2)}, {V(t,2)}")
        k(f"v_add_f32 v{R+i}, v{t}, v{t+1}")
    for mod in ["row_shr:1", "row_shr:2", "row_shr:4", "row_shr:8", "row_bcast:15 row_mask:0xa",
                "row_bcast:31 row_mask:0xc"]:
        for i in range(16):
            m = mod if "row_mask" in mod else mod + " row_mask:0xf"
            k(f"v_add_f32_dpp v{R+i}, v{R+i}, v{R+i} {m} bank_mask:0xf")
    k("v_mov_b32 v2, 0")
    for g in range(0, 16, 4):
        for i in range(g, g + 4):
            k(f"v_readlane_b32 s{76+i-g}, v{R+i}, 63")
        for i in range(g, g + 4):
            k(f"v_writelane_b32 v2, s{76+i-g}, {i}")
    k("v_mul_f32 v2, 0xbfb8aa3b, v2")
    k("v_exp_f32 v2, v2")
    k("v_add_f32 v2, 1.0, v2")
    k("v_rcp_f32 v2, v2")
    k("v_and_b32 v1, 63, v0")
    k("v_lshlrev_b32 v3, 2, v1")
    k("s_lshl_b32 s6, s5, 2")
    k(f"s_add_u32 s6, s6, {WS_G}")
    k("v_cmp_gt_u32 vcc, 16, v1")
    k("s_and_saveexec_b64 s[74:75], vcc")
    k.vmem(f"buffer_store_dword v2, v3, {S(SWS)}, s6 offen sc1", "gs")
    k("s_mov_b64 exec, s[74:75]")


def rec(f, *a, **kw):
    r = Rec()
    f(r, *a, **kw)
    return r.items


def late_scalars(k):
    k(f"s_load_dword s96, s[{P_WS}:{P_WS+1}], {WS_EPOCH}")
    k("s_lshl_b32 s74, s2, 2")
    k(f"s_load_dword s23, s[{P_SSMD}:{P_SSMD+1}], s74")


def gen_full(cfg):
    global CFG
    CFG = cfg
    g = cfg.get
    k = KT()
    END = "K_END"
    bufs = [0, 32768, 65536, 98304]
    prologue(k, END)
    if g("icpf"):
        code_prefetch(k)
    if g("ts"):
        k("v_mov_b32 v63, 0")
    ts(k, 0)
    k("s_lshr_b32 s74, s2, 3")
    k("s_cmp_ge_u32 s74, 28")
    k("s_cbranch_scc1 GATE")
    G.g1_setup(k, cfg)
    bias_addr(k)
    t1_addr(k)
    srd_consts(k)
    k("s_waitcnt lgkmcnt(0)")
    srd_ptrs(k, (SQ, SW1))
    ts_setup(k, cfg) if False else None
    T1POS = g("t1pos", 1)
    W = Weaver(k, g("p_g1", 32))
    W.t = W.ta = 8 * 88
    r = Rec()
    g1_dma(r, 0, bufs[0])
    for it in r.items:
        emit(k, it)
    srd_ptrs(k, (SK, SV, SWS, SW2, SOUT))
    late_scalars(k)
    ts_setup(k, cfg)
    ts(k, 1)
    bg = Rec()
    if T1POS == 0:
        t1_loads(bg)
    g1_dma(bg, 1, bufs[1])
    if T1POS == 1:
        t1_loads(bg)
    bias_loads(bg)
    g1_dma(bg, 2, bufs[2])
    if T1POS == 2:
        t1_loads(bg)
    g1_dma(bg, 3, bufs[3])
    for s in range(4, 8):
        g1_dma(bg, s, bufs[s - 4], after=f"bar{s-4}")
    h_loads(bg, after="t1done")
    poll_issue(bg, 62, 56, WS_F0, "p0", after="poll0")
    kv_loads(bg, after="f0ok")
    w2f_cons_loads(bg, after="f0ok")
    W.push(bg.items)
    W.flush(g("ndirect", 0))
    fg = Rec()
    h_setup(fg)
    kv_zero(fg)
    flag_addrs(fg)
    fg("s_waitcnt lgkmcnt(0)")
    nonce(fg)
    w2f_cons_setup(fg)
    ts(fg, 5)
    t1c = rec(t1_compute)
    t1c.append(("m", "t1done"))
    P0 = g("pub0", 4)
    T1SEG = g("t1seg", 1)
    BSEG = g("bseg", 1)
    POLL0 = g("poll0", 5)
    CHK0 = g("chk0", 6)
    pre = {}
    post = {}

    def addh(d, s, f):
        old = d.get(s)
        d[s] = (lambda: (old(), f())) if old else f
    addh(pre, P0, lambda: fg.wait(vm="t1s"))
    addh(post, P0, lambda: publish(fg, WS_F0))
    addh(post, POLL0, lambda: fg.mark("poll0"))
    addh(pre, CHK0, lambda: (poll_check(fg, 62, 56, WS_F0, "p0"), ts(fg, 14)))
    addh(post, CHK0, lambda: fg.mark("f0ok"))
    if T1SEG < 0:
        for it in t1c:
            fg._add(it)
    tail = rec(build_copies) + rec(conv_addr)
    extra = {("b", 6): (tail, g("tailper", 4)), ("a", BSEG): (rec(bias_mfma), 5)}
    if T1SEG >= 0:
        extra[("b", T1SEG)] = (t1c, g("t1per", 5))
    g1_main(fg, bufs, pre, post, extra)
    ts(fg, 15)
    fg.period(g("p_ep", 32))
    g1_epilogue(fg)
    kv_write(fg)
    ts(fg, 16)
    conflicts("g1", fg.items, bg.items, ok=[("s", "m0"), ("v", 62, 62), ("v", 224, 255), ("v", 30, 47), ("s", 92, 93),
                                            ("v", 56, 58), ("s", 84, 91)])
    W.run(fg.items)
    nleft = len(W.bg)
    print("G1 path marks:", W.log, "bg left at JOIN:", nleft)
    for it in W.bg:
        assert all(x[2].startswith("wf") for x in flat([it]) if x[0] == "vm"), it
    if k.pend is not None:
        k("s_waitcnt lgkmcnt(0)")
    vm_join = list(k.vm)
    k("s_branch JOIN")
    k("GATE:")
    k.vm, k.lg = [], []
    if g("ts"):
        k.pend = 0
    w2f_addr(k)
    t1_addr(k)
    srd_consts(k)
    k("s_waitcnt lgkmcnt(0)")
    srd_ptrs(k, (SW2, SK, SV, SQ, SWS, SOUT))
    for it in rec(w2f_dma):
        emit(k, it)
    late_scalars(k)
    ts_setup(k, cfg)
    ts(k, 1)
    for it in rec(t1_loads):
        emit(k, it)
    h_setup(k)
    for it in rec(w2f_tr):
        emit(k, it)
    ts(k, 3)
    Wg = Weaver(k, 32)
    Wg.push(rec(w2f_stores))
    Wg.run(rec(t1_compute)[:-12])
    Wg.flush()
    for it in rec(t1_compute)[-12:]:
        emit(k, it)
    gate_loads(k)
    for it in rec(kv_zero):
        emit(k, it)
    flag_addrs(k)
    k("s_waitcnt lgkmcnt(0)")
    k.lg = []
    nonce(k)
    k.wait(vm=["t1s", "w2s"])
    k("s_barrier")
    publish(k, WS_F0)
    ts(k, 5)
    for it in rec(h_loads):
        emit(k, it)
    gate_compute(k)
    for it in rec(build_copies) + rec(conv_addr):
        emit(k, it)
    poll_issue(k, 62, 56, WS_F0, "p0")
    poll_check(k, 62, 56, WS_F0, "p0")
    k("s_barrier")
    ts(k, 14)
    for it in rec(kv_loads):
        emit(k, it)
    w2f_cons_setup(k)
    allw = rec(w2f_cons_loads)
    for it in allw[:len(allw) - nleft]:
        emit(k, it)
    kv_write(k)
    ts(k, 16)
    k.wait_all(vm=True, lg=True)
    k("JOIN:")
    k.vm = vm_join
    k.lg = ["x"]
    k.wait_all(vm=False, lg=True)
    k("s_barrier")
    ts(k, 17)
    PUB1 = g("pub1", 54)
    POLL1 = g("poll1", 100)
    CHK1 = g("chk1", -1)
    depth = 16
    fg = Rec()
    bg = Rec()
    g2_setup(fg)
    fg.period(g("p_cv", 32))

    def hook(n):
        if n == PUB1:
            fg.wait(vm="hs")
            fg("s_barrier")
            ts(fg, 18)
            publish(fg, WS_F1)
        if n == POLL1:
            poll_issue(fg, 62, 57, WS_F1, "p1")
        if n == CHK1:
            poll_check(fg, 62, 57, WS_F1, "p1")
            fg("s_barrier")
            fg.mark("f1ok")
            ts(fg, 20)
    conv_main(fg, hook)
    ts(fg, 19)

    def prebar():
        if CHK1 < 0:
            poll_check(fg, 62, 57, WS_F1, "p1")
            ts(fg, 20)
    fg.period(g("p_ce", 32))
    conv_epilogue(fg, prebar)
    ts(fg, 21)
    hf_loads(bg, depth, "cvbar" if CHK1 < 0 else "f1ok")
    epl = Rec()
    g2_ep_loads_plain(epl, after="epaddr")
    eps = Rec()
    g2_ep_loads_sc1(eps, after="f2ok")
    PUB2 = g("pub2", 4)
    POLL2 = g("poll2", 16)
    CHK2 = g("chk2", 22)
    EPQ = g("epq", 8)
    hfi = bg.items
    pos = min(2 * (EPQ + depth), len(hfi))
    bgall = hfi[:pos] + epl.items + hfi[pos:] + eps.items
    fg.period(g("p_g2", 32))

    def h_pub2():
        fg.wait(vm="ys")
        fg("s_barrier")
        ts(fg, 22)
        publish(fg, WS_F2)

    def h_chk2():
        poll_check(fg, 62, 61, WS_F2, "p2")
        fg("s_barrier")
        fg.mark("f2ok")
        ts(fg, 23)
    hooks = {}
    addh(hooks, 0, lambda: (g2_ep_addr(fg), fg.mark("epaddr")))
    addh(hooks, PUB2, h_pub2)
    addh(hooks, POLL2, lambda: poll_issue(fg, 62, 61, WS_F2, "p2"))
    addh(hooks, CHK2, h_chk2)
    g2_main(fg, depth, hooks)
    ts(fg, 24)
    g2_epilogue(fg)
    ts(fg, 26)
    conflicts("g2", fg.items, W.bg + bgall,
              ok=[("a", 0, 223), ("v", 128, 255), ("v", 62, 62), ("s", 80, 86), ("v", 8, 32), ("v", 45, 48), ("s", 94, 94)])
    W.push(bgall)
    W.log = []
    W.run(fg.items)
    print("JOIN path marks:", W.log, "bg left:", len(W.bg))
    assert not W.bg
    k("s_or_b32 s74, s2, s4")
    k("s_cmp_eq_u32 s74, 0")
    k("s_cbranch_scc0 NOEP")
    k("s_add_u32 s96, s96, 1")
    k("v_mov_b32 v62, s96")
    k(f"s_mov_b32 s97, {WS_EPOCH}")
    k("s_mov_b64 exec, 1")
    k(f"buffer_store_dword v62, off, {S(SWS)}, s97")
    k("s_mov_b64 exec, -1")
    k("NOEP:")
    k.wait_all()
    ts_final(k, cfg, 27)
    k("s_waitcnt vmcnt(0)")
    k(f"{END}:")
    k("s_endpgm")
    k("K_CODE_END:")
    return k


def build(cfg):
    hdr = open("cdna_kernels/" + NAME + ".s.ref").read().split("; Override")[0]
    out = [hdr.rstrip("\n")]
    out.append("; @launch grid=(256,1,1) block=(256,1,1) lds=163840")
    out.append('.amdgcn_target "amdgcn-amd-amdhsa--gfx950"\n.text')
    k = gen_full(cfg)
    lab = NAME + "_kernel"
    out.append(G.khead(lab) + k.text())
    out.append('.section .rodata,"a"\n.p2align 6')
    out.append(G.kdesc(lab))
    return "\n".join(out) + "\n"


if __name__ == "__main__":
    path = sys.argv[1]
    cfg = {}
    for a in sys.argv[2:]:
        kk, vv = a.split("=")
        cfg[kk] = int(vv)
    txt = build(cfg)
    open(path, "w").write(txt)
    print("bytes", len(txt))
```

```python
import sys
from asmlib import K
import gen as G
from gen import (S, V, A, srd, unpack_lo, unpack_hi, NAME, SQ, SK, SV, SW1, SW2, SOUT, SWS, STMP,
                 P_Q, P_K, P_V, P_SHIFT, P_SSMK, P_SSMD, P_W1, P_B1, P_W2, P_B2, P_GATE, P_OUT, P_WS,
                 COPY_O, COPY_STRIDE, CH_STRIDE, KV_STRIDE, conv_order, G1_ACC, G1_FR,
                 CV_ACC, CV_FA, CV_FB, G2_ACC)
from weave import Rec, Weaver, emit, flat, conflicts
import gen2
from gen2 import KT, Lbl, ts_setup, ts_final

WS_F0, WS_F1, WS_F2 = 0, 32768, 65536
WS_EPOCH = 98304
WS_F0B = 102400
WS_G = 0x20000
WS_KVR = 1 << 20
WS_W2F = 3 << 20
WS_HF = 5 << 20
WS_YT = 13 << 20
WS_TS = 15 << 20
WS_SIZE = 16 << 20

L_W2S = 73728
L_KV = 139264
L_H = 0
L_PART = 98304
L_RED = 0
L_YL = 49152

NONCE = 3
SPIN = 1 << 15
OOB = 0x40000000
SDMA = 22
SC_ST = 300
CFG = {}


def ts(k, idx):
    if not CFG.get("ts"):
        return
    if isinstance(k, Rec):
        k.fn(lambda kk: gen2.ts(kk, CFG, idx))
    else:
        gen2.ts(k, CFG, idx)


def vm(k, s, tag, cost=None):
    if isinstance(k, Rec):
        k.vmem(s, tag, cost)
    else:
        k.vmem(s, tag)


class nullatom:
    def __enter__(self):
        return self

    def __exit__(self, *a):
        return False


def atom(k, after=None, cost=None):
    return k.atom(after, cost) if isinstance(k, Rec) else nullatom()


def publish(k, wsoff, sub=0):
    l = Lbl.new("PUB")
    wsoff -= 128 * sub
    with atom(k):
        k("s_cmp_eq_u32 s4, 0")
        k(f"s_cbranch_scc0 {l}")
        k("s_lshl_b32 s97, s2, 7")
        k(f"s_add_u32 s97, s97, {wsoff}")
        k(f"v_mov_b32 v62, s{NONCE}")
        k("s_mov_b64 exec, 1")
        k(f"buffer_store_dword v62, off, {S(SWS)}, s97 sc1")
        k("s_mov_b64 exec, -1")
        k(f"{l}:")


def poll_issue(k, vreg, voff, wsoff, tag, after=None):
    with atom(k, after):
        k(f"s_mov_b32 s94, {wsoff}")
        vm(k, f"buffer_load_dword v{vreg}, v{voff}, {S(SWS)}, s94 offen sc1", tag, 40)


def poll_check(k, vreg, voff, wsoff, tag, half=None):
    ok, rt = Lbl.new("POK"), Lbl.new("PRT")

    def test():
        k(f"v_cmp_ne_u32 vcc, s{NONCE}, v{vreg}")
        if half is None:
            k(f"s_cbranch_vccz {ok}")
        else:
            k(f"s_cmp_eq_u32 vcc_{half}, 0")
            k(f"s_cbranch_scc1 {ok}")
    with atom(k):
        k.wait(vm=tag)
        k("s_cmp_eq_u32 s4, 0")
        k(f"s_cbranch_scc0 {ok}")
        test()
        k(f"s_mov_b32 s97, {wsoff}")
        k(f"s_mov_b32 s101, {SPIN}")
        k(f"{rt}:")
        k("s_sleep 1")
        k(f"buffer_load_dword v{vreg}, v{voff}, {S(SWS)}, s97 offen sc1")
        k("s_waitcnt vmcnt(0)")
        test()
        k("s_sub_u32 s101, s101, 1")
        k(f"s_cbranch_scc0 {rt}")
        k(f"{ok}:")


def prologue(k, endlabel):
    k("s_cmp_ge_u32 s2, 256")
    k(f"s_cbranch_scc1 {endlabel}")
    k("s_load_dwordx16 s[44:59], s[0:1], 0")
    k("s_load_dwordx8 s[60:67], s[0:1], 64")
    k("s_load_dwordx4 s[68:71], s[0:1], 96")
    k("s_load_dwordx2 s[72:73], s[0:1], 112")
    k("v_lshrrev_b32 v1, 6, v0")
    k("s_nop 0")
    k("v_readfirstlane_b32 s4, v1")


def code_prefetch(k):
    lab = NAME + "_kernel"
    k("s_getpc_b64 s[84:85]")
    k("PF_PC:")
    k(f"s_sub_u32 s84, s84, PF_PC-{lab}")
    k("s_subb_u32 s85, s85, 0")
    k(f"s_mov_b32 s86, K_CODE_END-{lab}")
    k("s_mov_b32 s87, 0x00020000")
    k("s_lshr_b32 s88, s2, 3")
    k("s_lshl_b32 s88, s88, 2")
    k("s_add_u32 s88, s88, s4")
    k(f"s_and_b32 s88, s88, {CFG.get('pfmask', 63)}")
    k("s_lshl_b32 s88, s88, 10")
    k("v_and_b32 v2, 63, v0")
    k("v_lshlrev_b32 v2, 4, v2")
    k("v_add_u32 v2, s88, v2")
    k.vmem("buffer_load_dwordx4 a[252:255], v2, s[84:87], 0 offen", "icpf")


SRDS = [(SQ, P_Q, 2 << 20), (SW1, P_W1, 512 * 1792 * 2), (SK, P_K, 2 << 20), (SV, P_V, 2 << 20),
        (SW2, P_W2, 512 * 1792 * 2), (SOUT, P_OUT, 2 << 20), (SWS, P_WS, WS_SIZE)]


def srd_consts(k):
    for d, p, n in SRDS:
        k(f"s_mov_b32 s{d+2}, {n}")
        k(f"s_mov_b32 s{d+3}, 0x00020000")
    k(f"s_mov_b32 s{STMP+3}, 0x00020000")


def srd_ptrs(k, which):
    for d, p, n in SRDS:
        if d in which:
            k(f"s_mov_b32 s{d}, s{p}")
            k(f"s_mov_b32 s{d+1}, s{p+1}")


def stmp(k, ptr, nbytes):
    k(f"s_mov_b32 s{STMP}, s{ptr}")
    k(f"s_mov_b32 s{STMP+1}, s{ptr+1}")
    k(f"s_mov_b32 s{STMP+2}, {nbytes}")


def nonce(k):
    k(f"s_mul_i32 s{NONCE}, s96, 0x9E3779B1")
    k(f"s_add_u32 s{NONCE}, s{NONCE}, 0x85EBCA6B")


T1_KR, T1_VR, T1_WR = 224, 235, 244
T1_K, T1_W, T1_A, T1_V, T1_O = 128, 150, 30, 128, 144


def t1_addr(k):
    k.c("---- T1 addresses ----")
    k("s_lshr_b32 s84, s2, 5")
    k("s_and_b32 s85, s2, 31")
    k("s_lshl_b32 s85, s85, 6")
    k("s_and_b32 s74, s4, 1")
    k("s_lshr_b32 s75, s4, 1")
    k("s_lshl_b32 s76, s74, 5")
    k("s_add_u32 s76, s76, s85")
    k("s_sub_u32 s77, s76, 3")
    k("s_lshl_b32 s77, s77, 10")
    k("s_lshl_b32 s78, s84, 7")
    k("s_add_u32 s77, s77, s78")
    k("s_lshl_b32 s78, s75, 6")
    k("s_add_u32 s77, s77, s78")
    k("v_and_b32 v15, 15, v0")
    k("v_bfe_u32 v16, v0, 4, 2")
    k("v_lshlrev_b32 v10, 13, v16")
    k("v_lshl_add_u32 v10, v15, 2, v10")
    k("v_add_u32 v10, s77, v10")
    k("v_add_u32 v11, 1024, v10")
    k("v_add_u32 v12, 2048, v10")
    k("v_add_u32 v13, 3072, v10")
    k("v_add_u32 v14, 7168, v10")
    k("v_lshlrev_b32 v17, 4, v15")
    k("s_lshl_b32 s78, s84, 9")
    k("s_lshl_b32 s79, s75, 8")
    k("s_add_u32 s7, s78, s79")
    k("v_sub_u32 v16, 3, v16")
    k("v_lshlrev_b32 v16, 4, v16")
    k("v_lshl_add_u32 v18, v15, 13, v16")
    k("s_lshl_b32 s78, s84, 18")
    k("s_lshl_b32 s79, s75, 17")
    k("s_add_u32 s78, s78, s79")
    k("s_sub_u32 s79, 2016, s76")
    k("s_lshl_b32 s79, s79, 1")
    k("s_add_u32 s78, s78, s79")
    k(f"s_add_u32 s95, s78, {WS_KVR}")


def t1_loads(k, cost=32):
    if CFG.get("x_not1"):
        return
    def ad(j):
        if j < 3:
            return 10 + j, 0
        if j < 7:
            return 13, (j - 3) * 1024
        return 14, (j - 7) * 1024
    with atom(k):
        stmp(k, P_SHIFT, 512 * 4 * 2)
        vm(k, f"buffer_load_dwordx4 {V(T1_WR,4)}, v17, {S(STMP)}, s7 offen", "t1", 64)
    for j in range(11):
        r, o = ad(j)
        vm(k, f"buffer_load_dword v{T1_KR+j}, v{r}, {S(SK)}, 0 offen offset:{o}", "t1", cost)
    for i in range(8):
        r, o = ad(i + 3)
        vm(k, f"buffer_load_dword v{T1_VR+i}, v{r}, {S(SV)}, 0 offen offset:{o}", "t1", cost)


def t1_compute(k):
    k.c("---- T1 compute ----")
    if CFG.get("x_not1"):
        for _ in range(16):
            k("s_nop 0")
        return
    k.wait(vm="t1")
    for m in range(4):
        up = unpack_hi if m & 1 else unpack_lo
        up(k, T1_W + 2 * m, T1_WR + (m >> 1))
        up(k, T1_W + 2 * m + 1, T1_WR + 2 + (m >> 1))
    for j in range(11):
        unpack_lo(k, T1_K + 2 * j, T1_KR + j)
        unpack_hi(k, T1_K + 2 * j + 1, T1_KR + j)
    for m in range(4):
        for i in range(8):
            d = T1_A + 2 * i
            a = T1_K + 2 * (i + 3 - m)
            w = T1_W + 2 * m
            if m == 0:
                k(f"v_pk_mul_f32 {V(d,2)}, {V(a,2)}, {V(w,2)}")
            else:
                k(f"v_pk_fma_f32 {V(d,2)}, {V(a,2)}, {V(w,2)}, {V(d,2)}")
    for i in range(8):
        unpack_lo(k, T1_V + 2 * i, T1_VR + i)
        unpack_hi(k, T1_V + 2 * i + 1, T1_VR + i)
    for i in range(8):
        d = T1_A + 2 * i
        k(f"v_pk_mul_f32 {V(d,2)}, {V(d,2)}, {V(T1_V+2*i,2)}")
    for c in range(2):
        for jj in range(4):
            k(f"v_cvt_pk_bf16_f32 v{T1_O+4*c+jj}, v{T1_A+2*(7-2*jj)+c}, v{T1_A+2*(6-2*jj)+c}")
        with atom(k):
            if c:
                k("s_add_u32 s95, s95, 4096")
            vm(k, f"buffer_store_dwordx4 {V(T1_O+4*c,4)}, v18, {S(SWS)}, s95 offen sc1", "t1s", SC_ST)


W2T = 64


def w2f_addr(k):
    k.c("---- W2F producer addresses ----")
    k("s_lshr_b32 s92, s2, 3")
    k("s_sub_u32 s92, s92, 28")
    k("s_mul_i32 s92, s92, 28")
    k("s_mul_i32 s93, s4, 7")
    k("s_add_u32 s92, s92, s93")
    k("s_and_b32 s93, s2, 7")
    k("s_lshl_b32 s21, s93, 7")
    k("s_add_u32 s21, s21, s92")
    k("s_lshl_b32 s21, s21, 11")
    k(f"s_add_u32 s21, s21, {WS_W2F}")
    k("s_lshl_b32 s93, s93, 7")
    k("s_lshl_b32 s92, s92, 14")
    k("s_add_u32 s93, s93, s92")
    k("v_and_b32 v23, 63, v0")
    k("v_lshrrev_b32 v19, 3, v23")
    k("v_and_b32 v20, 7, v23")
    k("v_bfe_u32 v21, v23, 4, 1")
    k("v_lshlrev_b32 v21, 2, v21")
    k("v_xor_b32 v20, v20, v21")
    k("v_lshlrev_b32 v20, 4, v20")
    k("v_lshl_add_u32 v19, v19, 10, v20")
    k("s_mul_i32 s92, s4, 14336")
    k(f"s_add_u32 s92, s92, {L_W2S}")
    k("v_and_b32 v20, 15, v23")
    k("v_lshrrev_b32 v21, 5, v23")
    k("v_lshrrev_b32 v22, 2, v20")
    k("v_lshl_add_u32 v21, v21, 2, v22")
    k("v_lshlrev_b32 v21, 7, v21")
    k("v_bfe_u32 v22, v23, 4, 1")
    k("v_lshlrev_b32 v22, 1, v22")
    k("v_bfe_u32 v24, v20, 1, 1")
    k("v_add_u32 v22, v22, v24")
    k("v_bfe_u32 v24, v20, 3, 1")
    k("v_lshl_add_u32 v22, v24, 2, v22")
    k("v_lshl_add_u32 v21, v22, 4, v21")
    k("v_and_b32 v24, 1, v20")
    k("v_lshl_add_u32 v20, v24, 3, v21")
    k("v_add_u32 v20, s92, v20")
    k("v_xor_b32 v21, 64, v20")
    k("v_lshlrev_b32 v22, 4, v23")


def w2f_dma(k):
    for j in range(7):
        for h in range(2):
            with atom(k):
                k(f"s_add_u32 m0, s92, {2048*j + 1024*h}")
                k(f"s_add_u32 s{SDMA}, s93, {16384*j + 8192*h}")
                vm(k, f"buffer_load_dwordx4 v19, {S(SW2)}, s{SDMA} offen lds", f"w2d{j}")


def w2f_tr(k):
    for j in range(7):
        k.wait(vm=f"w2d{j}")
        for nb in range(2):
            for hf in range(2):
                k.ds(f"ds_read_b64_tr_b16 {V(W2T + 8*j + 4*nb + 2*hf, 2)}, v{20+nb} offset:{2048*j + 1024*hf}", f"w2t{j}")


def w2f_stores(k):
    for j in range(7):
        for nb in range(2):
            with atom(k):
                if nb == 0:
                    k.wait(lg=f"w2t{j}")
                    if j and j % 2 == 0:
                        k("s_add_u32 s21, s21, 4096")
                vm(k, f"buffer_store_dwordx4 {V(W2T+8*j+4*nb,4)}, v22, {S(SWS)}, s21 offen offset:{1024*nb + 2048*(j&1)} sc1",
                   "w2s", 120)


def w2f_cons_setup(k):
    k("s_lshr_b32 s92, s2, 5")
    k("s_lshl_b32 s92, s92, 7")
    k("s_mul_i32 s93, s4, 28")
    k("s_add_u32 s92, s92, s93")
    k("s_lshl_b32 s92, s92, 11")
    k(f"s_add_u32 s92, s92, {WS_W2F}")
    k("s_and_b32 s93, s4, 1")
    k("s_lshl_b32 s93, s93, 10")
    k("s_add_u32 s92, s92, s93")
    k("s_xor_b32 s93, s92, 1024")


def w2f_cons_loads(k, after=None):
    for ii in range(28):
        for a in range(2):
            with atom(k, after):
                if ii and ii % 2 == 0:
                    k(f"s_add_u32 s{92+a}, s{92+a}, 4096")
                vm(k, f"buffer_load_dwordx4 {A(8*ii+4*a,4)}, v58, {S(SWS)}, s{92+a} offen offset:{2048*(ii%2)} sc1",
                   f"wf{ii}")


HW = 30


def h_setup(k):
    k("s_lshl_b32 s74, s2, 13")
    for ch in range(2):
        d = 84 + 4 * ch
        k(f"s_add_u32 s{d}, s{P_SSMK}, s74")
        k(f"s_addc_u32 s{d+1}, s{P_SSMK+1}, 0")
        k(f"s_mov_b32 s{d+2}, 4096")
        k(f"s_mov_b32 s{d+3}, 0x00020000")
        if ch == 0:
            k("s_add_u32 s74, s74, 4096")
    k("v_lshlrev_b32 v46, 4, v0")
    k("v_add_u32 v47, -16, v46")


def h_loads(k, after=None):
    for ch in range(2):
        with atom(k, after):
            vm(k, f"buffer_load_dwordx4 {V(HW+8*ch,4)}, v47, {S(84+4*ch)}, 0 offen", "hw")
        with atom(k, after):
            vm(k, f"buffer_load_dwordx4 {V(HW+4+8*ch,4)}, v46, {S(84+4*ch)}, 0 offen", "hw")


def kv_zero(k):
    for i in range(4):
        k(f"v_mov_b32 v{48+i}, 0")
    k(f"v_add_u32 v52, {L_KV + 4096}, v46")
    with atom(k):
        k("v_cmp_gt_u32 vcc, 32, v0")
        k("s_and_saveexec_b64 s[74:75], vcc")
        for ch in range(2):
            k.ds(f"ds_write_b128 v52, {V(48,4)} offset:{ch*KV_STRIDE}", "kvz")
        k("s_mov_b64 exec, s[74:75]")


def build_copies(k):
    k.wait(vm="hw")
    k(f"v_add_u32 v52, {L_H + 16}, v46")
    k(f"v_add_u32 v53, {L_H + 16 + CH_STRIDE}, v46")
    for ch in range(2):
        w = HW + 8 * ch
        t = (128, 224)[ch]
        R, P, Q = t, t + 6, t + 12
        src = {0: w, 4: w + 2, 2: R, 6: R + 2, 1: P, 5: P + 2, 3: Q, 7: Q + 2}

        def wr(s):
            k.ds(f"ds_write_b128 v{52+ch}, {V(src[s],4)} offset:{s*COPY_STRIDE + 16*COPY_O[s]}", "hwr")
        wr(0)
        wr(4)
        for j in range(6):
            k(f"v_mov_b32 v{R+j}, v{w+j+1}")
        wr(2)
        wr(6)
        for j in range(6):
            k(f"v_alignbyte_b32 v{P+j}, v{w+j+1}, v{w+j}, 2")
        wr(1)
        wr(5)
        for j in range(6):
            k(f"v_alignbyte_b32 v{Q+j}, v{w+j+2}, v{w+j+1}, 2")
        wr(3)
        wr(7)
    with atom(k):
        k("s_mov_b32 s76, 255")
        k("v_cmp_eq_u32 vcc, s76, v0")
        k("s_and_saveexec_b64 s[74:75], vcc")
        for ch in range(2):
            k.ds(f"ds_write_b128 v{52+ch}, {V(HW+8*ch+4,4)} offset:{16 + 16*COPY_O[0]}", "hwr")
        k("s_mov_b64 exec, s[74:75]")
    with atom(k):
        lut = sum(o << (4 * i) for i, o in enumerate(COPY_O))
        k(f"s_mov_b32 s76, {lut}")
        k("v_lshlrev_b32 v54, 2, v0")
        k("v_bfe_u32 v54, s76, v54, 4")
        k("v_lshlrev_b32 v54, 4, v54")
        k(f"v_mul_u32_u24 v55, {COPY_STRIDE}, v0")
        k("v_add_u32 v54, v54, v55")
        k(f"v_add_u32 v54, {L_H}, v54")
        k("v_cmp_gt_u32 vcc, 8, v0")
        k("s_and_saveexec_b64 s[74:75], vcc")
        k.ds(f"ds_write_b128 v54, {V(48,4)}", "hwr")
        k.ds(f"ds_write_b128 v54, {V(48,4)} offset:{CH_STRIDE}", "hwr")
        k("s_mov_b64 exec, s[74:75]")


KVR = 244


def kv_loads(k, after=None):
    with atom(k, after):
        k("s_lshl_b32 s94, s2, 13")
        k(f"s_add_u32 s94, s94, {WS_KVR}")
        vm(k, f"buffer_load_dwordx4 {V(KVR,4)}, v46, {S(SWS)}, s94 offen sc1", "kv")
    with atom(k, after):
        k("s_lshl_b32 s94, s2, 13")
        k(f"s_add_u32 s94, s94, {WS_KVR + 4096}")
        vm(k, f"buffer_load_dwordx4 {V(KVR+4,4)}, v46, {S(SWS)}, s94 offen sc1", "kv")


def kv_write(k):
    k(f"v_add_u32 v54, {L_KV}, v46")
    k.wait(vm="kv")
    for ch in range(2):
        k.ds(f"ds_write_b128 v54, {V(KVR+4*ch,4)} offset:{ch*KV_STRIDE}", "kvw")


def flag_addrs(k):
    k("v_and_b32 v58, 63, v0")
    k("s_lshr_b32 s75, s2, 5")
    k("s_lshl_b32 s74, s75, 5")
    k("v_and_b32 v59, 31, v58")
    k("v_add_u32 v61, s74, v59")
    k("v_and_b32 v60, 3, v58")
    k("v_lshlrev_b32 v60, 3, v60")
    k(f"s_add_u32 s75, s75, {(WS_F0B - WS_F0) // 128}")
    k("v_add_u32 v60, s75, v60")
    k("v_cmp_gt_u32 vcc, 32, v58")
    k("v_cndmask_b32 v56, v60, v61, vcc")
    k("v_lshlrev_b32 v56, 7, v56")
    k(f"v_add_u32 v61, {(WS_F2 - WS_F1) // 128}, v61")
    k("v_add_u32 v59, 224, v59")
    k("v_cndmask_b32 v61, v59, v61, vcc")
    k("v_lshlrev_b32 v61, 7, v61")
    k("s_and_b32 s74, s2, 7")
    k("s_lshl_b32 s74, s74, 2")
    k("s_lshr_b32 s75, s2, 3")
    k("s_and_b32 s75, s75, 3")
    k("s_add_u32 s74, s74, s75")
    k("s_lshr_b32 s75, s74, 1")
    k("s_lshr_b32 s76, s75, 2")
    k("s_lshl_b32 s76, s76, 1")
    k("s_and_b32 s77, s75, 3")
    k("s_lshl_b32 s77, s77, 3")
    k("s_add_u32 s76, s76, s77")
    k("v_cmp_lt_u32 vcc, 6, v58")
    k("v_cndmask_b32 v59, 0, 1, vcc")
    k("v_mul_u32_u24 v60, 7, v59")
    k("v_sub_u32 v60, v58, v60")
    k("v_lshlrev_b32 v60, 5, v60")
    k("v_add_u32 v60, v60, v59")
    k("v_cmp_gt_u32 vcc, 14, v58")
    k("v_cndmask_b32 v60, 0, v60, vcc")
    k("v_add_u32 v60, s76, v60")
    k("v_lshlrev_b32 v57, 7, v60")
    k("s_cmp_eq_u32 s4, 0")
    k(f"s_cselect_b32 s74, 0, {OOB}")
    k("v_or_b32 v56, s74, v56")
    k("v_or_b32 v57, s74, v57")
    k("v_or_b32 v61, s74, v61")
    k("v_lshlrev_b32 v58, 4, v58")


BA0, BB1 = 248, 20


def rot_setup(k):
    m = CFG.get("rot", 0)
    if not m:
        return
    k("s_lshr_b32 s20, s2, 3")
    if m == 1:
        k("s_and_b32 s20, s20, 7")
    elif m == 2:
        k("s_and_b32 s20, s20, 3")
        k("s_lshl_b32 s20, s20, 1")
    elif m == 3:
        k("s_lshr_b32 s20, s20, 2")
    elif m == 4:
        k("s_lshr_b32 s20, s20, 2")
        k("s_and_b32 s20, s20, 1")
        k("s_lshl_b32 s20, s20, 2")
    elif m == 5:
        k("s_and_b32 s20, s20, 1")
        k("s_lshl_b32 s20, s20, 2")
    elif m == 6:
        k("s_add_u32 s20, s5, s6")
        k("s_and_b32 s20, s20, 7")
    elif m == 7:
        k("s_lshl_b32 s20, s5, 1")
        k("s_add_u32 s20, s20, s6")
        k("s_and_b32 s20, s20, 7")
    elif m == 8:
        k("s_lshr_b32 s20, s5, 2")
        k("s_lshl_b32 s20, s20, 1")
        k("s_add_u32 s20, s20, s5")
        k("s_add_u32 s20, s20, s6")
        k("s_and_b32 s20, s20, 7")


def g1_dma(k, slab, buf, after=None):
    rot = CFG.get("rot", 0)
    for i in range(4):
        with atom(k, after):
            if rot and i == 0:
                k("s_lshl_b32 s56, s20, 7")
                k("s_add_u32 s56, s56, s80")
                k("s_mul_i32 s57, s20, 229376")
                k("s_add_u32 s57, s57, s81")
                k("s_add_u32 s20, s20, 1")
                k("s_and_b32 s20, s20, 7")
            k(f"s_add_u32 m0, s82, {buf + 1024*i}")
            if rot:
                k(f"s_add_u32 s{SDMA}, s56, {8192*i}")
            else:
                k(f"s_add_u32 s{SDMA}, s80, {8192*i + 128*slab}")
            vm(k, f"buffer_load_dwordx4 v{1 + (i&1)}, {S(SQ)}, s{SDMA} offen lds", f"slab{slab}")
    for i in range(4):
        with atom(k, after):
            k(f"s_add_u32 m0, s82, {buf + 16384 + 1024*i}")
            if rot:
                k(f"s_add_u32 s{SDMA}, s57, {4*i*3584}")
            else:
                k(f"s_add_u32 s{SDMA}, s81, {(64*slab + 4*i)*3584}")
            vm(k, f"buffer_load_dwordx4 v3, {S(SW1)}, s{SDMA} offen lds", f"slab{slab}")


def bias_addr(k):
    k("v_lshlrev_b32 v19, 1, v10")
    k("v_cmp_gt_u32 vcc, 32, v10")
    k(f"v_mov_b32 v20, {OOB}")
    k("v_cndmask_b32 v19, v20, v19, vcc")
    k("v_mov_b32 v20, 0")
    k("v_mov_b32 v21, 0x3f80")
    k(f"v_cndmask_b32 v{BB1}, v20, v21, vcc")
    for r in (BB1 + 1, BB1 + 2, BB1 + 3, BA0 + 1, BA0 + 2, BA0 + 3, BA0 + 5, BA0 + 6, BA0 + 7):
        k(f"v_mov_b32 v{r}, 0")
    k("s_lshl_b32 s76, s6, 8")
    k("s_and_b32 s77, s4, 1")
    k("s_lshl_b32 s77, s77, 7")
    k("s_add_u32 s83, s76, s77")


def bias_loads(k):
    with atom(k):
        stmp(k, P_B1, 1792 * 2)
        vm(k, f"buffer_load_ushort v{BA0}, v19, {S(STMP)}, s83 offen", "bias", 32)
    with atom(k):
        vm(k, f"buffer_load_ushort v{BA0+4}, v19, {S(STMP)}, s83 offen offset:64", "bias", 32)


def bias_mfma(k):
    k.wait(vm="bias")
    for fb in range(2):
        for mb in range(2):
            d = G1_ACC + 32 * fb + 16 * mb
            k(f"v_mfma_f32_32x32x16_bf16 {V(d,16)}, {V(BA0+4*fb,4)}, {V(BB1,4)}, {V(d,16)}")


def sprinkle(k, items, per):
    q = list(items)

    def hook(n=per):
        for _ in range(n):
            if q:
                k._add(q.pop(0))
    hook.q = q
    return hook


def g1_main(k, bufs, pre, post, extra):
    nb = len(bufs)
    k.c("---- G1 main ----")
    k.wait(vm="slab0")
    k("s_barrier")
    ts(k, 6)
    G.g1_reads(k, bufs[0], 0, "r0_0")
    G.g1_reads(k, bufs[0], 1, "r0_1")
    hooks = []

    def mf(ks, first):
        fr = G1_FR + 16 * ks
        for fb in range(2):
            for mb in range(2):
                d = G1_ACC + 32 * fb + 16 * mb
                c = "0" if first else V(d, 16)
                k(f"v_mfma_f32_32x32x16_bf16 {V(d,16)}, {V(fr + 4*fb, 4)}, {V(fr + 8 + 4*mb, 4)}, {c}")
                for h in hooks:
                    if h.q:
                        h()
                        break

    for s in range(8):
        buf = bufs[s % nb]
        if ("a", s) in extra:
            hooks.append(sprinkle(k, *extra[("a", s)]))
        G.g1_reads(k, buf, 2, f"r{s}_2")
        k.wait(lg=f"r{s}_0")
        mf(0, s == 0)
        G.g1_reads(k, buf, 3, f"r{s}_3")
        k.wait(lg=f"r{s}_1")
        mf(1, False)
        if s < 7:
            if s in pre:
                pre[s]()
            k.wait(vm=f"slab{s+1}", lg=f"r{s}_3")
            k("s_barrier")
            k.mark(f"bar{s}")
            ts(k, 7 + s)
            if s in post:
                post[s]()
            if ("b", s) in extra:
                hooks.append(sprinkle(k, *extra[("b", s)]))
            nbuf = bufs[(s + 1) % nb]
            G.g1_reads(k, nbuf, 0, f"r{s+1}_0")
            mf(2, False)
            G.g1_reads(k, nbuf, 1, f"r{s+1}_1")
            mf(3, False)
        else:
            k.wait(lg=f"r{s}_2")
            mf(2, False)
            k.wait(lg=f"r{s}_3")
            mf(3, False)
    for h in hooks:
        h(10000)


def g1_epilogue(k):
    k.c("---- G1 epilogue ----")
    k("s_lshl_b32 s74, s5, 2")
    k("s_lshr_b32 s75, s4, 1")
    k("s_lshl_b32 s75, s75, 1")
    k("s_add_u32 s74, s74, s75")
    k("s_mul_i32 s74, s74, 112")
    k("s_lshl_b32 s75, s6, 3")
    k("s_add_u32 s74, s74, s75")
    k("s_and_b32 s75, s4, 1")
    k("s_lshl_b32 s75, s75, 2")
    k("s_add_u32 s74, s74, s75")
    k("s_lshl_b32 s74, s74, 10")
    k(f"s_add_u32 s78, s74, {WS_HF}")
    k(f"s_add_u32 s79, s78, {112*1024}")
    tmp = 160
    ti = 0
    for mb in range(2):
        for fb in range(2):
            acc = G1_ACC + 32 * fb + 16 * mb
            for half in range(2):
                t = tmp + 4 * ti
                ti += 1
                for r in range(8 * half, 8 * half + 8):
                    k(f"v_max_f32 v{acc+r}, 0, v{acc+r}")
                for r in range(8 * half, 8 * half + 8, 2):
                    k(f"v_pk_mul_f32 {V(acc+r,2)}, {V(acc+r,2)}, {V(acc+r,2)}")
                for i in range(4):
                    r = acc + 8 * half + 2 * i
                    k(f"v_cvt_pk_bf16_f32 v{t+i}, v{r}, v{r+1}")
                vm(k, f"buffer_store_dwordx4 {V(t,4)}, v58, {S(SWS)}, s{78+mb} offen offset:{(2*fb+half)*1024} sc1", "hs",
                   CFG.get("hscost", 200))


CA, CB = 59, 60


def conv_addr(k):
    k.c("---- conv addresses ----")
    k("v_and_b32 v10, 63, v0")
    k("v_and_b32 v11, 15, v10")
    k("v_lshrrev_b32 v12, 4, v10")
    k("v_add_u32 v13, 1, v11")
    k("v_and_b32 v14, 7, v13")
    k("v_lshrrev_b32 v15, 3, v13")
    lut = sum(o << (4 * i) for i, o in enumerate(COPY_O))
    k(f"s_mov_b32 s74, {lut}")
    k("v_lshlrev_b32 v16, 2, v14")
    k("v_bfe_u32 v16, s74, v16, 4")
    k("v_add_u32 v16, v16, v15")
    k("v_add_u32 v16, v16, v12")
    k("v_lshlrev_b32 v16, 4, v16")
    k(f"v_mul_u32_u24 v17, {COPY_STRIDE}, v14")
    k("v_add_u32 v16, v16, v17")
    k("s_lshr_b32 s75, s4, 1")
    k(f"s_mul_i32 s76, s75, {CH_STRIDE}")
    k("s_and_b32 s77, s4, 1")
    k("s_lshl_b32 s77, s77, 8")
    k("s_add_u32 s76, s76, s77")
    k(f"s_add_u32 s76, s76, {L_H}")
    k(f"v_add_u32 v{CA}, s76, v16")
    k(f"s_mul_i32 s76, s75, {KV_STRIDE}")
    k("s_add_u32 s76, s76, s77")
    k(f"s_add_u32 s76, s76, {L_KV + 480}")
    k("v_lshlrev_b32 v16, 5, v11")
    k("v_lshlrev_b32 v17, 4, v12")
    k("v_sub_u32 v16, v17, v16")
    k(f"v_add_u32 v{CB}, s76, v16")


def conv_main(k, hook):
    k.c("---- conv main ----")
    order = conv_order()
    for i in range(8):
        k.ds(f"ds_read_b128 {V(CV_FA + 4*i, 4)}, v{CA} offset:{512*i}", f"ca0_{i}")
        k.ds(f"ds_read_b128 {V(CV_FB + 4*i, 4)}, v{CB} offset:{512*(7-i)}", f"cb0_{i}")
    touched = set()
    for c0i in range(4):
        st = c0i & 1
        nxt = []
        if c0i < 3:
            for i in range(8):
                nxt.append((f"ds_read_b128 {V(CV_FA + 32*(st^1) + 4*i, 4)}, v{CA} offset:{512*i + 64*(c0i+1)}", f"ca{c0i+1}_{i}"))
                nxt.append((f"ds_read_b128 {V(CV_FB + 32*(st^1) + 4*i, 4)}, v{CB} offset:{512*(7-i) + 64*(c0i+1)}", f"cb{c0i+1}_{i}"))
        waited = set()
        for n, (d, c1) in enumerate(order):
            tags = [t for t in (f"ca{c0i}_{c1}", f"cb{c0i}_{d}") if t not in waited]
            if tags:
                k.wait(lg=tags)
                waited.update(tags)
            j = d + c1
            acc = V(CV_ACC + 4 * j, 4)
            c = acc if j in touched else "0"
            touched.add(j)
            k(f"v_mfma_f32_16x16x32_bf16 {acc}, {V(CV_FA + 32*st + 4*c1, 4)}, {V(CV_FB + 32*st + 4*d, 4)}, {c}")
            if n >= 18 and nxt:
                t, tg = nxt.pop(0)
                k.ds(t, tg)
            hook(c0i * 36 + n)


def conv_epilogue(k, prebar):
    k.c("---- conv epilogue ----")
    k("v_and_b32 v10, 63, v0")
    k("v_and_b32 v11, 15, v10")
    k("v_lshrrev_b32 v12, 4, v10")
    k("v_lshlrev_b32 v11, 6, v11")
    k("v_lshl_add_u32 v11, v12, 4, v11")
    k("s_lshl_b32 s74, s4, 13")
    k(f"s_add_u32 s74, s74, {L_PART}")
    k("v_add_u32 v11, s74, v11")
    k("s_lshr_b32 s75, s4, 1")
    for j in range(8):
        k.ds(f"ds_write_b128 v11, {V(CV_ACC + 4*j, 4)} offset:{1024*j}", "pw")
    k("v_and_b32 v1, 127, v0")
    k("v_lshlrev_b32 v2, 5, v1")
    k("s_lshl_b32 s74, s75, 14")
    k(f"s_add_u32 s74, s74, {L_PART}")
    k("v_add_u32 v2, s74, v2")
    k(f"s_mul_i32 s74, s75, {KV_STRIDE}")
    k(f"s_add_u32 s74, s74, {L_KV + 4080 - 2048}")
    k("v_lshlrev_b32 v3, 4, v1")
    k("v_sub_u32 v3, s74, v3")
    k("s_lshl_b32 s79, s75, 4")
    k("s_lshr_b32 s77, s23, s79")
    k("s_lshl_b32 s77, s77, 16")
    k.wait(lg="pw")
    prebar()
    k("s_barrier")
    k.mark("cvbar")
    for seg in range(2):
        b = 8 + 24 * seg
        for p in range(2):
            for hh in range(2):
                k.ds(f"ds_read_b128 {V(b + 8*p + 4*hh, 4)}, v2 offset:{8192*p + 4096*seg + 16*hh}", f"pr{seg}")
        k.ds(f"ds_read_b128 {V(b + 16, 4)}, v3 offset:{2048*(1-seg)}", f"pr{seg}")
    k("s_lshl_b32 s74, s2, 13")
    k("s_lshl_b32 s79, s75, 12")
    k("s_add_u32 s74, s74, s79")
    k(f"s_add_u32 s74, s74, {WS_YT}")
    k("v_lshlrev_b32 v4, 4, v1")
    for seg in range(2):
        b = 8 + 24 * seg
        k.wait(lg=f"pr{seg}")
        for i in range(0, 8, 2):
            k(f"v_pk_add_f32 {V(b+i,2)}, {V(b+i,2)}, {V(b+8+i,2)}")
        for i in range(8):
            e = 7 - i
            (unpack_hi if e & 1 else unpack_lo)(k, 6 + (i & 1), b + 16 + (e >> 1))
            k(f"v_fmac_f32 v{b+i}, s77, v{6 + (i & 1)}")
        for i in range(4):
            k(f"v_cvt_pk_bf16_f32 v{b+20+i}, v{b+2*i}, v{b+2*i+1}")
    k.mark("ysready")
    for seg in range(2):
        b = 8 + 24 * seg
        vm(k, f"buffer_store_dwordx4 {V(b+20,4)}, v4, {S(SWS)}, s74 offen offset:{2048*seg} sc1", "ys", SC_ST)


FB = 128


def g2_setup(k):
    G.g2_ids(k)
    k("s_lshr_b32 s74, s4, 1")
    k("s_lshl_b32 s75, s5, 1")
    k("s_add_u32 s80, s75, s74")
    k("s_xor_b32 s81, s80, 1")
    k("s_mul_i32 s78, s4, 28")
    for b in range(2):
        k(f"s_mul_i32 s{80+b}, s{80+b}, 112")
        k(f"s_add_u32 s{80+b}, s{80+b}, s78")
        k(f"s_lshl_b32 s{80+b}, s{80+b}, 10")
        k(f"s_add_u32 s{80+b}, s{80+b}, {WS_HF}")


def hf_loads(k, depth, first_after):
    for i in range(28):
        for b in range(2):
            after = first_after if i < depth else f"g2_{i - depth}"
            with atom(k, after):
                if b == 0 and i and i % 4 == 0:
                    k("s_add_u32 s80, s80, 4096")
                    k("s_add_u32 s81, s81, 4096")
                r = FB + 8 * (i % depth) + 4 * b
                vm(k, f"buffer_load_dwordx4 {V(r,4)}, v58, {S(SWS)}, s{80+b} offen offset:{1024*(i%4)} sc1", f"hf{i}")


def g2_main(k, depth, hooks):
    k.c("---- G2 main ----")
    for i in range(28):
        k.wait(vm=[f"hf{i}", f"wf{i}"])
        for b in range(2):
            for a in range(2):
                d = G2_ACC + 16 * (a + 2 * b)
                c = V(d, 16) if i else "0"
                k(f"v_mfma_f32_32x32x16_bf16 {V(d,16)}, {A(8*i + 4*a, 4)}, {V(FB + 8*(i%depth) + 4*b, 4)}, {c}")
        k.mark(f"g2_{i}")
        if i in hooks:
            hooks[i]()


EQ, EB2, EY, EG = 8, 16, 24, 32


def g2_ep_addr(k):
    k("v_and_b32 v40, 63, v0")
    k("v_and_b32 v41, 31, v40")
    k("v_lshrrev_b32 v42, 5, v40")
    k("s_and_b32 s74, s4, 1")
    k("s_lshr_b32 s75, s4, 1")
    k("s_lshl_b32 s76, s5, 6")
    k("s_lshl_b32 s77, s75, 5")
    k("s_add_u32 s76, s76, s77")
    k("s_lshl_b32 s77, s6, 6")
    k("s_lshl_b32 s78, s74, 5")
    k("s_add_u32 s77, s77, s78")
    k("v_lshlrev_b32 v46, 10, v41")
    k("v_lshl_add_u32 v46, v42, 3, v46")
    k("s_lshl_b32 s82, s76, 10")
    k("s_lshl_b32 s83, s77, 1")
    k("s_add_u32 s82, s82, s83")
    k("v_lshlrev_b32 v47, 3, v42")
    k("v_lshrrev_b32 v43, 2, v40")
    k("v_and_b32 v44, 3, v40")
    k("v_lshlrev_b32 v45, 12, v43")
    k("v_lshl_add_u32 v45, v44, 4, v45")
    k("s_lshl_b32 s84, s77, 12")
    k("s_lshl_b32 s85, s76, 1")
    k("s_add_u32 s84, s84, s85")
    k(f"s_add_u32 s84, s84, {WS_YT}")
    k(f"s_add_u32 s85, s84, {16*4096}")
    k("v_lshlrev_b32 v48, 2, v41")
    k("s_lshl_b32 s86, s76, 2")
    k(f"s_add_u32 s86, s86, {WS_G}")


def g2_ep_loads_plain(k, after=None):
    for g in range(4):
        with atom(k, after):
            vm(k, f"buffer_load_dwordx2 {V(EQ+2*g,2)}, v46, {S(SQ)}, s82 offen offset:{16*g}", "q", 200)
    for g in range(4):
        with atom(k, after):
            if g == 0:
                stmp(k, P_B2, 1024)
            vm(k, f"buffer_load_dwordx2 {V(EB2+2*g,2)}, v47, {S(STMP)}, s83 offen offset:{16*g}", "b2", 64)


def g2_ep_loads_sc1(k, after=None):
    with atom(k, after):
        vm(k, f"buffer_load_dword v{EG}, v48, {S(SWS)}, s86 offen sc1", "g", 32)
    with atom(k, after):
        vm(k, f"buffer_load_dwordx4 {V(EY,4)}, v45, {S(SWS)}, s84 offen sc1", "yt", 81)
    with atom(k, after):
        vm(k, f"buffer_load_dwordx4 {V(EY+4,4)}, v45, {S(SWS)}, s85 offen sc1", "yt", 81)


def g2_epilogue(k):
    k.c("---- G2 epilogue ----")
    k("v_lshlrev_b32 v49, 4, v40")
    for sg in range(1, 4):
        k(f"s_xor_b32 s80, s4, {sg}")
        k("s_mul_i32 s80, s80, 12288")
        k(f"v_add_u32 v50, s80, v49")
        for g in range(4):
            k.ds(f"ds_write_b128 v50, {V(G2_ACC + 16*sg + 4*g, 4)} offset:{L_RED + (sg-1)*4096 + 1024*g}", "rw")
    k("s_lshl_b32 s80, s4, 11")
    k(f"s_add_u32 s80, s80, {L_YL}")
    k("v_add_u32 v51, s80, v49")
    k.wait(vm="yt")
    k.ds(f"ds_write_b128 v51, {V(EY,4)}", "yw")
    k.ds(f"ds_write_b128 v51, {V(EY+4,4)} offset:1024", "yw")
    k.wait(lg=["rw", "yw"])
    k("s_barrier")
    ts(k, 25)
    k("s_mul_i32 s80, s4, 12288")
    k("v_add_u32 v50, s80, v49")
    for sg in range(3):
        for g in range(4):
            k.ds(f"ds_read_b128 {V(160 + 16*sg + 4*g, 4)}, v50 offset:{L_RED + sg*4096 + 1024*g}", f"rr{sg}")
    k("v_and_b32 v52, 15, v40")
    k("v_lshrrev_b32 v53, 2, v52")
    k("v_lshl_add_u32 v53, v42, 2, v53")
    k("v_lshlrev_b32 v53, 6, v53")
    k("v_bfe_u32 v54, v40, 4, 1")
    k("v_lshl_add_u32 v53, v54, 5, v53")
    k("v_and_b32 v54, 3, v52")
    k("v_lshl_add_u32 v53, v54, 3, v53")
    k("s_lshl_b32 s80, s4, 11")
    k(f"s_add_u32 s80, s80, {L_YL}")
    k("v_add_u32 v53, s80, v53")
    for g in range(4):
        k.ds(f"ds_read_b64_tr_b16 {V(208+2*g,2)}, v53 offset:{512*g}", "yr")
    acc = G2_ACC
    for sg in range(3):
        k.wait(lg=f"rr{sg}")
        for r in range(0, 16, 2):
            k(f"v_pk_add_f32 {V(acc+r,2)}, {V(acc+r,2)}, {V(160+16*sg+r,2)}")
    k.wait(vm=["q", "b2", "g"], lg="yr")
    X = 224
    slot = {0: 0, 2: 2, 1: 4, 3: 6}
    for g in range(4):
        for i in range(4):
            up = unpack_hi if i & 1 else unpack_lo
            up(k, 128 + i, EB2 + 2 * g + (i >> 1))
            up(k, 132 + i, EQ + 2 * g + (i >> 1))
            up(k, 136 + i, 208 + 2 * g + (i >> 1))
        for i in range(4):
            r = acc + 4 * g + i
            k(f"v_add_f32 v{r}, v{r}, v{128+i}")
        for i in range(4):
            r = acc + 4 * g + i
            k(f"v_fma_f32 v{132+i}, v{132+i}, v{136+i}, -v{r}")
        for i in range(4):
            r = acc + 4 * g + i
            k(f"v_fmac_f32 v{r}, v{EG}, v{132+i}")
        for d in range(2):
            r = acc + 4 * g + 2 * d
            k(f"v_cvt_pk_bf16_f32 v{X + slot[g] + d}, v{r}, v{r+1}")
    for base in (0, 4):
        k(f"v_permlane32_swap_b32 v{X+base}, v{X+base+2}")
        k(f"v_permlane32_swap_b32 v{X+base+1}, v{X+base+3}")
    k("v_lshlrev_b32 v46, 10, v41")
    k("v_lshl_add_u32 v46, v42, 5, v46")
    osc = ["", " sc1", " nt", " sc0 sc1", " sc1 nt"][CFG.get("osc", 0)]
    vm(k, f"buffer_store_dwordx4 {V(X,4)}, v46, {S(SOUT)}, s82 offen{osc}", "os")
    vm(k, f"buffer_store_dwordx4 {V(X+4,4)}, v46, {S(SOUT)}, s82 offen offset:16{osc}", "os")


def gate_loads(k):
    k("s_and_b32 s5, s2, 7")
    k("s_lshl_b32 s5, s5, 2")
    k("s_lshr_b32 s6, s2, 3")
    k("s_sub_u32 s6, s6, 28")
    k("s_add_u32 s5, s5, s6")
    k("s_lshl_b32 s5, s5, 6")
    k("s_lshl_b32 s6, s4, 4")
    k("s_add_u32 s5, s5, s6")
    k("s_lshl_b32 s6, s5, 10")
    stmp(k, P_GATE, 1024)
    k.vmem(f"buffer_load_dwordx4 {V(4,4)}, v22, {S(STMP)}, 0 offen", "gw")
    for i in range(16):
        if i and i % 4 == 0:
            k("s_add_u32 s6, s6, 4096")
        k.vmem(f"buffer_load_dwordx4 {A(4*i,4)}, v22, {S(SQ)}, s6 offen offset:{1024*(i%4)}", f"gx{i}")


def gate_compute(k):
    k.c("---- gate compute ----")
    k.wait(vm="gw")
    for c in range(8):
        (unpack_hi if c & 1 else unpack_lo)(k, 8 + c, 4 + (c >> 1))
    R = 96
    for i in range(16):
        k.wait(vm=f"gx{i}")
        s = 64 + 4 * (i & 1)
        for c in range(4):
            k(f"v_accvgpr_read_b32 v{s+c}, a{4*i+c}")
        u = 72 + 8 * (i & 1)
        for c in range(8):
            (unpack_hi if c & 1 else unpack_lo)(k, u + c, s + (c >> 1))
        t = 88 + 2 * (i & 1)
        for cp in range(0, 8, 2):
            if cp == 0:
                k(f"v_pk_mul_f32 {V(t,2)}, {V(u,2)}, {V(8,2)}")
            else:
                k(f"v_pk_fma_f32 {V(t,2)}, {V(u+cp,2)}, {V(8+cp,2)}, {V(t,2)}")
        k(f"v_add_f32 v{R+i}, v{t}, v{t+1}")
    for mod in ["row_shr:1", "row_shr:2", "row_shr:4", "row_shr:8", "row_bcast:15 row_mask:0xa",
                "row_bcast:31 row_mask:0xc"]:
        for i in range(16):
            m = mod if "row_mask" in mod else mod + " row_mask:0xf"
            k(f"v_add_f32_dpp v{R+i}, v{R+i}, v{R+i} {m} bank_mask:0xf")
    k("v_mov_b32 v2, 0")
    for g in range(0, 16, 4):
        for i in range(g, g + 4):
            k(f"v_readlane_b32 s{76+i-g}, v{R+i}, 63")
        for i in range(g, g + 4):
            k(f"v_writelane_b32 v2, s{76+i-g}, {i}")
    k("v_mul_f32 v2, 0xbfb8aa3b, v2")
    k("v_exp_f32 v2, v2")
    k("v_add_f32 v2, 1.0, v2")
    k("v_rcp_f32 v2, v2")
    k("v_and_b32 v1, 63, v0")
    k("v_lshlrev_b32 v3, 2, v1")
    k("s_lshl_b32 s6, s5, 2")
    k(f"s_add_u32 s6, s6, {WS_G}")
    k("v_cmp_gt_u32 vcc, 16, v1")
    k("s_and_saveexec_b64 s[74:75], vcc")
    k.vmem(f"buffer_store_dword v2, v3, {S(SWS)}, s6 offen sc1", "gs")
    k("s_mov_b64 exec, s[74:75]")


def rec(f, *a, **kw):
    r = Rec()
    f(r, *a, **kw)
    return r.items


def late_scalars(k):
    k(f"s_load_dword s96, s[{P_WS}:{P_WS+1}], {WS_EPOCH}")
    k("s_lshl_b32 s74, s2, 2")
    k(f"s_load_dword s23, s[{P_SSMD}:{P_SSMD+1}], s74")


def gen_full(cfg):
    global CFG
    CFG = cfg
    if cfg.get("x_nords"):
        G.g1_reads = lambda *a, **kw: None
    g = cfg.get
    k = KT()
    END = "K_END"
    bufs = [0, 32768, 65536, 98304]
    prologue(k, END)
    if g("icpf"):
        code_prefetch(k)
    if g("ts"):
        k("v_mov_b32 v63, 0")
    ts(k, 0)
    k("s_lshr_b32 s74, s2, 3")
    k("s_cmp_ge_u32 s74, 28")
    k("s_cbranch_scc1 GATE")
    G.g1_setup(k, cfg)
    bias_addr(k)
    rot_setup(k)
    t1_addr(k)
    srd_consts(k)
    k("s_waitcnt lgkmcnt(0)")
    srd_ptrs(k, (SQ, SW1))
    ts_setup(k, cfg) if False else None
    if g("x_dma"):
        srd_ptrs(k, (SK, SV, SWS, SW2, SOUT))
        ts_setup(k, cfg)
        npass = g("x_dma")
        for p in range(npass):
            if p:
                k("s_barrier")
            ts(k, 1 + 10 * p)
            infl = g("x_infl", 8)

            def iss(sl):
                r = Rec()
                g1_dma(r, sl, bufs[sl % 4])
                for it in r.items:
                    emit(k, it)
            for sl in range(infl):
                iss(sl)
            for sl in range(8):
                k.wait(vm=f"slab{sl}")
                ts(k, 2 + sl + 10 * p)
                if sl + infl < 8:
                    iss(sl + infl)
        k.wait_all()
        ts_final(k, cfg, 27)
        k("s_waitcnt vmcnt(0)")
        k("s_endpgm")
        k("GATE:")
        srd_consts(k)
        k("s_waitcnt lgkmcnt(0)")
        srd_ptrs(k, (SK, SV, SWS, SW2, SOUT))
        ts_setup(k, cfg)
        ts_final(k, cfg, 27)
        k("s_waitcnt vmcnt(0)")
        k(f"{END}:")
        k("s_endpgm")
        return k
    T1POS = g("t1pos", 1)
    W = Weaver(k, g("p_g1", 32))
    W.t = W.ta = 8 * 88
    r = Rec()
    g1_dma(r, 0, bufs[0])
    for it in r.items:
        emit(k, it)
    srd_ptrs(k, (SK, SV, SWS, SW2, SOUT))
    late_scalars(k)
    ts_setup(k, cfg)
    ts(k, 1)
    bg = Rec()
    if T1POS == 0:
        t1_loads(bg)
    g1_dma(bg, 1, bufs[1])
    if T1POS == 1:
        t1_loads(bg)
    bias_loads(bg)
    g1_dma(bg, 2, bufs[2])
    if T1POS == 2:
        t1_loads(bg)
    g1_dma(bg, 3, bufs[3])
    for s in range(4, 8):
        g1_dma(bg, s, bufs[s - 4], after=f"bar{s-4}")
    h_loads(bg, after="t1done")
    w2f_cons_loads(bg, after="f0bok")
    W.push(bg.items)
    W.flush(g("ndirect", 0))
    fg = Rec()
    h_setup(fg)
    kv_zero(fg)
    flag_addrs(fg)
    fg("s_waitcnt lgkmcnt(0)")
    nonce(fg)
    w2f_cons_setup(fg)
    ts(fg, 5)
    t1c = rec(t1_compute)
    t1c.append(("m", "t1done"))
    P0 = g("pub0", 4)
    T1SEG = g("t1seg", 1)
    BSEG = g("bseg", 1)
    POLL0B = g("poll0b", 3)
    CHK0B = g("chk0b", 4)
    POLL0A = g("poll0a", 5)
    CHK0A = g("chk0a", 6)
    TAILPOS = g("tailpos", 1)
    pre = {}
    post = {}

    def addh(d, s, f):
        old = d.get(s)
        d[s] = (lambda: (old(), f())) if old else f
    addh(pre, P0, lambda: fg.wait(vm="t1s"))
    addh(post, P0, lambda: publish(fg, WS_F0))
    addh(pre, CHK0B, lambda: (poll_check(fg, 62, 56, WS_F0, "p0b", "hi"), ts(fg, 2)))
    addh(post, CHK0B, lambda: fg.mark("f0bok"))
    addh(post, POLL0B, lambda: poll_issue(fg, 62, 56, WS_F0, "p0b"))
    if CHK0A < 7:
        addh(pre, CHK0A, lambda: (poll_check(fg, 62, 56, WS_F0, "p0a", "lo"), ts(fg, 14)))
        addh(post, CHK0A, lambda: kv_loads(fg))
    if POLL0A < 7:
        addh(post, POLL0A, lambda: poll_issue(fg, 62, 56, WS_F0, "p0a"))
    if T1SEG < 0:
        for it in t1c:
            fg._add(it)
    tail = rec(build_copies) + rec(conv_addr)
    extra = {("a", BSEG): (rec(bias_mfma), 5)}
    if TAILPOS == 0:
        extra[("b", 6)] = (tail, g("tailper", 4))
    if T1SEG >= 0:
        extra[("b", T1SEG)] = (t1c, g("t1per", 5))
    g1_main(fg, bufs, pre, post, extra)
    ts(fg, 15)
    if CHK0A == 7:
        if POLL0A == 7:
            poll_issue(fg, 62, 56, WS_F0, "p0a")
        poll_check(fg, 62, 56, WS_F0, "p0a", "lo")
        fg("s_barrier")
        ts(fg, 14)
        kv_loads(fg)
    fg.period(g("p_ep", 32))
    g1_epilogue(fg)
    if CHK0A == 8:
        if POLL0A >= 7:
            poll_issue(fg, 62, 56, WS_F0, "p0a")
        poll_check(fg, 62, 56, WS_F0, "p0a", "lo")
        fg("s_barrier")
        ts(fg, 14)
        kv_loads(fg)
    ts(fg, 4)
    if TAILPOS == 1:
        for it in tail:
            fg._add(it)
    kv_write(fg)
    ts(fg, 16)
    conflicts("g1", fg.items, bg.items, ok=[("s", "m0"), ("v", 62, 62), ("v", 224, 255), ("v", 30, 47), ("s", 92, 93),
                                            ("v", 56, 58), ("s", 84, 91)])
    W.run(fg.items)
    nleft = len(W.bg)
    print("G1 path marks:", W.log, "bg left at JOIN:", nleft)
    for it in W.bg:
        assert all(x[2].startswith("wf") for x in flat([it]) if x[0] == "vm"), it
    if k.pend is not None:
        k("s_waitcnt lgkmcnt(0)")
    vm_join = list(k.vm)
    k("s_branch JOIN")
    k("GATE:")
    k.vm, k.lg = [], []
    if g("ts"):
        k.pend = 0
    w2f_addr(k)
    t1_addr(k)
    srd_consts(k)
    k("s_waitcnt lgkmcnt(0)")
    srd_ptrs(k, (SW2, SK, SV, SQ, SWS, SOUT))
    for it in rec(w2f_dma):
        emit(k, it)
    late_scalars(k)
    ts_setup(k, cfg)
    ts(k, 1)
    for it in rec(t1_loads):
        emit(k, it)
    h_setup(k)
    for it in rec(w2f_tr):
        emit(k, it)
    ts(k, 3)
    Wg = Weaver(k, g("p_gw", 32))
    Wg.push(rec(w2f_stores))
    if g("gw2first", 1):
        Wg.flush()
        ts(k, 2)
        for it in rec(t1_compute):
            emit(k, it)
    else:
        Wg.run(rec(t1_compute)[:-12])
        Wg.flush()
        for it in rec(t1_compute)[-12:]:
            emit(k, it)
    ts(k, 4)
    for it in rec(kv_zero):
        emit(k, it)
    flag_addrs(k)
    k("s_waitcnt lgkmcnt(0)")
    k.lg = []
    nonce(k)
    k.wait(vm="w2s")
    k("s_barrier")
    publish(k, WS_F0B, 224)
    ts(k, 6)
    gate_loads(k)
    k.wait(vm="t1s")
    k("s_barrier")
    publish(k, WS_F0)
    ts(k, 5)
    for it in rec(h_loads):
        emit(k, it)
    gate_compute(k)
    for it in rec(build_copies) + rec(conv_addr):
        emit(k, it)
    poll_issue(k, 62, 56, WS_F0, "p0")
    poll_check(k, 62, 56, WS_F0, "p0")
    k("s_barrier")
    ts(k, 14)
    for it in rec(kv_loads):
        emit(k, it)
    w2f_cons_setup(k)
    allw = rec(w2f_cons_loads)
    for it in allw[:len(allw) - nleft]:
        emit(k, it)
    kv_write(k)
    ts(k, 16)
    k.wait_all(vm=True, lg=True)
    k("JOIN:")
    k.vm = vm_join
    k.lg = ["x"]
    k.wait_all(vm=False, lg=True)
    PUB1 = g("pub1", 54)
    if PUB1 < 0:
        k.wait(vm="hs")
    k("s_barrier")
    ts(k, 17)
    if PUB1 < 0:
        publish(k, WS_F1)
    POLL1 = g("poll1", 100)
    CHK1 = g("chk1", -1)
    depth = 16
    fg = Rec()
    bg = Rec()
    g2_setup(fg)
    fg.period(g("p_cv", 32))

    def hook(n):
        if n == PUB1:
            fg.wait(vm="hs")
            fg("s_barrier")
            ts(fg, 18)
            publish(fg, WS_F1)
        if n == POLL1:
            poll_issue(fg, 62, 57, WS_F1, "p1")
        if n == CHK1:
            poll_check(fg, 62, 57, WS_F1, "p1")
            fg("s_barrier")
            fg.mark("f1ok")
            ts(fg, 20)
    conv_main(fg, hook)
    ts(fg, 19)

    def prebar():
        if CHK1 < 0:
            poll_check(fg, 62, 57, WS_F1, "p1")
            ts(fg, 20)
    fg.period(g("p_ce", 32))
    conv_epilogue(fg, prebar)
    ts(fg, 21)
    hf_loads(bg, depth, "cvbar" if CHK1 < 0 else "f1ok")
    epl = Rec()
    g2_ep_loads_plain(epl, after="epaddr")
    eps = Rec()
    g2_ep_loads_sc1(eps, after="f2ok")
    PUB2 = g("pub2", 4)
    POLL2 = g("poll2", 16)
    CHK2 = g("chk2", 22)
    EPQ = g("epq", 8)
    hfi = bg.items
    pos = min(2 * (EPQ + depth), len(hfi))
    bgall = hfi[:pos] + epl.items + hfi[pos:] + eps.items
    fg.period(g("p_g2", 32))

    def h_pub2():
        fg.wait(vm="ys")
        fg("s_barrier")
        ts(fg, 22)
        publish(fg, WS_F2)

    def h_chk2():
        poll_check(fg, 62, 61, WS_F1, "p2")
        fg("s_barrier")
        fg.mark("f2ok")
        ts(fg, 23)
    hooks = {}
    addh(hooks, 0, lambda: (g2_ep_addr(fg), fg.mark("epaddr")))
    addh(hooks, PUB2, h_pub2)
    addh(hooks, POLL2, lambda: poll_issue(fg, 62, 61, WS_F1, "p2"))
    addh(hooks, CHK2, h_chk2)
    g2_main(fg, depth, hooks)
    ts(fg, 24)
    g2_epilogue(fg)
    ts(fg, 26)
    conflicts("g2", fg.items, W.bg + bgall,
              ok=[("a", 0, 223), ("v", 128, 255), ("v", 62, 62), ("s", 80, 86), ("v", 8, 32), ("v", 45, 48), ("s", 94, 94)])
    W.push(bgall)
    W.log = []
    W.run(fg.items)
    print("JOIN path marks:", W.log, "bg left:", len(W.bg))
    assert not W.bg
    k("s_or_b32 s74, s2, s4")
    k("s_cmp_eq_u32 s74, 0")
    k("s_cbranch_scc0 NOEP")
    k("s_add_u32 s96, s96, 1")
    k("v_mov_b32 v62, s96")
    k(f"s_mov_b32 s97, {WS_EPOCH}")
    k("s_mov_b64 exec, 1")
    k(f"buffer_store_dword v62, off, {S(SWS)}, s97")
    k("s_mov_b64 exec, -1")
    k("NOEP:")
    k.wait_all()
    ts_final(k, cfg, 27)
    k("s_waitcnt vmcnt(0)")
    if g("ampn"):
        k(f"s_cmp_eq_u32 s2, {g('ampw', 0)}")
        k(f"s_cbranch_scc0 {END}")
        k("s_cmp_eq_u32 s4, 0")
        k(f"s_cbranch_scc0 {END}")
        k(f"v_readlane_b32 s10, v63, {g('ampa', 0)}")
        k(f"v_readlane_b32 s11, v63, {g('ampb', 27)}")
        k("s_sub_u32 s11, s11, s10")
        k("s_min_u32 s11, s11, 4000")
        k(f"s_mul_i32 s11, s11, {g('ampn')}")
        k("s_memrealtime s[12:13]")
        k("s_waitcnt lgkmcnt(0)")
        k("s_mov_b32 s14, s12")
        k("s_mov_b32 s15, 0x40000")
        k("AMPL:")
        k("s_memrealtime s[12:13]")
        k("s_waitcnt lgkmcnt(0)")
        k("s_sub_u32 s16, s12, s14")
        k("s_cmp_ge_u32 s16, s11")
        k(f"s_cbranch_scc1 {END}")
        k("s_sub_u32 s15, s15, 1")
        k("s_cbranch_scc0 AMPL")
    k(f"{END}:")
    k("s_endpgm")
    k("K_CODE_END:")
    return k


def build(cfg):
    hdr = open("cdna_kernels/" + NAME + ".s.ref").read().split("; Override")[0]
    out = [hdr.rstrip("\n")]
    out.append("; @launch grid=(256,1,1) block=(256,1,1) lds=163840")
    out.append('.amdgcn_target "amdgcn-amd-amdhsa--gfx950"\n.text')
    k = gen_full(cfg)
    lab = NAME + "_kernel"
    out.append(G.khead(lab) + k.text())
    out.append('.section .rodata,"a"\n.p2align 6')
    out.append(G.kdesc(lab))
    return "\n".join(out) + "\n"


if __name__ == "__main__":
    path = sys.argv[1]
    cfg = {}
    for a in sys.argv[2:]:
        kk, vv = a.split("=")
        cfg[kk] = int(vv)
    txt = build(cfg)
    open(path, "w").write(txt)
    print("bytes", len(txt))
```

```python
import sys, itertools
from asmlib import K

NAME = "gated_mix__ssm_conv_h3__dense_activation_squared_relu__prompt"

WS_KVR = 0
WS_HF = 2 << 20
WS_YT = 10 << 20
WS_G = 12 << 20
WS_FLAG = 13 << 20
WS_TS = 14 << 20
WS_SIZE = 16 << 20

SQ, SK, SV, SH, SW1, SW2, SOUT, SWS, STMP = 8, 12, 16, 20, 24, 28, 32, 36, 40
P_Q, P_K, P_V, P_SHIFT, P_SSMK, P_SSMD, P_BX, P_W1 = 44, 46, 48, 50, 52, 54, 56, 58
P_B1, P_W2, P_B2, P_GATE = 60, 62, 64, 66
P_OUT, P_DBG, P_WS = 68, 70, 72


def srd(k, dst, ptr, nbytes):
    k(f"s_mov_b32 s{dst}, s{ptr}")
    k(f"s_mov_b32 s{dst+1}, s{ptr+1}")
    k(f"s_mov_b32 s{dst+2}, {nbytes}")
    k(f"s_mov_b32 s{dst+3}, 0x00020000")


def S(r, n=4):
    return f"s[{r}:{r+n-1}]"


def V(r, n=1):
    return f"v{r}" if n == 1 else f"v[{r}:{r+n-1}]"


def A(r, n=1):
    return f"a{r}" if n == 1 else f"a[{r}:{r+n-1}]"


def prologue(k, endlabel):
    k("s_cmp_ge_u32 s2, 256")
    k(f"s_cbranch_scc1 {endlabel}")
    k("s_load_dwordx16 s[44:59], s[0:1], 0")
    k("s_load_dwordx8 s[60:67], s[0:1], 64")
    k("s_load_dwordx4 s[68:71], s[0:1], 96")
    k("s_load_dwordx2 s[72:73], s[0:1], 112")
    k("v_lshrrev_b32 v1, 6, v0")
    k("s_nop 0")
    k("v_readfirstlane_b32 s4, v1")
    k("s_waitcnt lgkmcnt(0)")
    srd(k, SQ, P_Q, 2 << 20)
    srd(k, SK, P_K, 2 << 20)
    srd(k, SV, P_V, 2 << 20)
    srd(k, SH, P_SSMK, 2 << 20)
    srd(k, SW1, P_W1, 512 * 1792 * 2)
    srd(k, SW2, P_W2, 512 * 1792 * 2)
    srd(k, SOUT, P_OUT, 2 << 20)
    srd(k, SWS, P_WS, WS_SIZE)


def ts_setup(k, cfg):
    if not cfg.get("ts"):
        return
    k("s_lshl_b32 s100, s2, 2")
    k("s_add_u32 s100, s100, s4")
    k("s_lshl_b32 s100, s100, 6")
    k(f"s_add_u32 s100, s100, {WS_TS}")


def ts(k, cfg, idx):
    if not cfg.get("ts"):
        return
    k("s_memrealtime s[98:99]")
    k("s_waitcnt lgkmcnt(0)")
    k.lg = []
    k("v_mov_b32 v63, s98")
    k.vmem(f"buffer_store_dword v63, off, {S(SWS)}, s100 offset:{4*idx}", "ts")


def unpack_lo(k, d, s):
    k(f"v_lshlrev_b32 v{d}, 16, v{s}")


def unpack_hi(k, d, s):
    k(f"v_and_b32 v{d}, 0xffff0000, v{s}")


def t1_issue(k, cfg):
    k.c("---- T1 issue ----")
    k("s_lshr_b32 s5, s2, 5")
    k("s_and_b32 s6, s2, 31")
    k("s_lshl_b32 s6, s6, 6")
    k("s_sub_u32 s7, s6, 3")
    k("s_lshl_b32 s7, s7, 10")
    k("s_lshl_b32 s74, s5, 7")
    k("s_add_u32 s7, s7, s74")
    k("v_lshrrev_b32 v6, 3, v0")
    k("v_and_b32 v7, 7, v0")
    k("v_lshlrev_b32 v1, 11, v6")
    k("v_lshl_add_u32 v1, v7, 4, v1")
    k("v_add_u32 v1, s7, v1")
    k("v_add_u32 v2, 1024, v1")
    k("v_add_u32 v3, 2048, v1")
    k("v_add_u32 v4, 3072, v1")
    k("v_add_u32 v5, 4096, v1")
    for j in range(5):
        k.vmem(f"buffer_load_dwordx4 {V(8+4*j,4)}, v{1+j}, {S(SK)}, 0 offen", "t1")
    k.vmem(f"buffer_load_dwordx4 {V(28,4)}, v4, {S(SV)}, 0 offen", "t1")
    k.vmem(f"buffer_load_dwordx4 {V(32,4)}, v5, {S(SV)}, 0 offen", "t1")
    srd(k, STMP, P_SHIFT, 512 * 4 * 2)
    k("v_lshlrev_b32 v52, 6, v7")
    k("s_lshl_b32 s74, s5, 9")
    for j in range(4):
        k.vmem(f"buffer_load_dwordx4 {V(36+4*j,4)}, v52, {S(STMP)}, s74 offen offset:{16*j}", "t1")


def t1_compute(k, cfg, lds_base):
    k.c("---- T1 compute ----")
    k.wait(vm="t1")
    for j in range(5):
        for c in range(8):
            (unpack_hi if c & 1 else unpack_lo)(k, 64 + 8 * j + c, 8 + 4 * j + (c >> 1))
    for j in range(2):
        for c in range(8):
            (unpack_hi if c & 1 else unpack_lo)(k, 104 + 8 * j + c, 28 + 4 * j + (c >> 1))
    for c in range(8):
        for m in range(4):
            (unpack_hi if m & 1 else unpack_lo)(k, 120 + 8 * m + c, 36 + 2 * c + (m >> 1))
    for tt in range(2):
        for cp in range(0, 8, 2):
            d = 152 + 8 * tt + cp
            for m in range(4):
                j = 3 + tt - m
                a = 64 + 8 * j + cp
                w = 120 + 8 * m + cp
                if m == 0:
                    k(f"v_pk_mul_f32 {V(d,2)}, {V(a,2)}, {V(w,2)}")
                else:
                    k(f"v_pk_fma_f32 {V(d,2)}, {V(a,2)}, {V(w,2)}, {V(d,2)}")
    for tt in range(2):
        for cp in range(0, 8, 2):
            d = 152 + 8 * tt + cp
            k(f"v_pk_mul_f32 {V(d,2)}, {V(d,2)}, {V(104+8*tt+cp,2)}")
    for c in range(8):
        k(f"v_cvt_pk_bf16_f32 v{8+c}, v{160+c}, v{152+c}")
    k("v_sub_u32 v1, 31, v6")
    k("v_lshlrev_b32 v2, 2, v7")
    k("v_xor_b32 v1, v1, v2")
    k("v_lshlrev_b32 v1, 2, v1")
    k("v_lshl_add_u32 v1, v7, 10, v1")
    k(f"v_add_u32 v1, {lds_base}, v1")
    for c in range(8):
        k.ds(f"ds_write_b32 v1, v{8+c} offset:{128*c}", "t1w")
    k("v_lshrrev_b32 v2, 3, v6")
    k("v_xor_b32 v2, v2, v7")
    k("v_lshlrev_b32 v2, 4, v2")
    k("v_lshl_add_u32 v2, v6, 7, v2")
    k("v_xor_b32 v3, 64, v2")
    k(f"v_add_u32 v2, {lds_base}, v2")
    k(f"v_add_u32 v3, {lds_base + 4096}, v3")
    k("v_lshlrev_b32 v4, 12, v6")
    k("v_lshl_add_u32 v4, v7, 4, v4")
    k("s_lshl_b32 s74, s5, 18")
    k("s_sub_u32 s75, 1984, s6")
    k("s_lshl_b32 s75, s75, 1")
    k("s_add_u32 s74, s74, s75")
    k(f"s_add_u32 s74, s74, {WS_KVR}")
    k("s_add_u32 s75, s74, 131072")
    k.wait(lg="t1w")
    k("s_barrier")
    k.ds(f"ds_read_b128 {V(16,4)}, v2", "t1r")
    k.ds(f"ds_read_b128 {V(20,4)}, v3", "t1r")
    k.wait(lg="t1r")
    sc = cfg["sc"]
    k.vmem(f"buffer_store_dwordx4 {V(16,4)}, v4, {S(SWS)}, s74 offen {sc}", "t1s")
    k.vmem(f"buffer_store_dwordx4 {V(20,4)}, v4, {S(SWS)}, s75 offen {sc}", "t1s")


def gate(k, cfg):
    k.c("---- gate ----")
    k("s_and_b32 s5, s2, 7")
    k("s_lshl_b32 s5, s5, 2")
    k("s_lshr_b32 s6, s2, 3")
    k("s_sub_u32 s6, s6, 28")
    k("s_add_u32 s5, s5, s6")
    k("s_lshl_b32 s5, s5, 6")
    k("s_lshl_b32 s6, s4, 4")
    k("s_add_u32 s5, s5, s6")
    k("s_lshl_b32 s6, s5, 10")
    k("v_and_b32 v1, 63, v0")
    k("v_lshlrev_b32 v1, 4, v1")
    srd(k, STMP, P_GATE, 1024)
    k.vmem(f"buffer_load_dwordx4 {V(4,4)}, v1, {S(STMP)}, 0 offen", "gw")
    for i in range(16):
        if i and i % 4 == 0:
            k("s_add_u32 s6, s6, 4096")
        k.vmem(f"buffer_load_dwordx4 {V(64+4*i,4)}, v1, {S(SQ)}, s6 offen offset:{1024*(i%4)}", f"gx{i}")
    k.wait(vm="gw")
    for c in range(8):
        (unpack_hi if c & 1 else unpack_lo)(k, 8 + c, 4 + (c >> 1))
    for i in range(16):
        k.wait(vm=f"gx{i}")
        s = 64 + 4 * i
        for c in range(8):
            (unpack_hi if c & 1 else unpack_lo)(k, 16 + c, s + (c >> 1))
        for cp in range(0, 8, 2):
            if cp == 0:
                k(f"v_pk_mul_f32 {V(24,2)}, {V(16,2)}, {V(8,2)}")
            else:
                k(f"v_pk_fma_f32 {V(24,2)}, {V(16+cp,2)}, {V(8+cp,2)}, {V(24,2)}")
        k(f"v_add_f32 v{32+i}, v24, v25")
    for mod in ["row_shr:1", "row_shr:2", "row_shr:4", "row_shr:8", "row_bcast:15 row_mask:0xa",
                "row_bcast:31 row_mask:0xc"]:
        for i in range(16):
            m = mod if "row_mask" in mod else mod + " row_mask:0xf"
            k(f"v_add_f32_dpp v{32+i}, v{32+i}, v{32+i} {m} bank_mask:0xf")
    for i in range(16):
        k(f"v_readlane_b32 s{76+i}, v{32+i}, 63")
    k("v_mov_b32 v2, 0")
    for i in range(16):
        k(f"v_writelane_b32 v2, s{76+i}, {i}")
    k("v_mul_f32 v2, 0xbfb8aa3b, v2")
    k("v_exp_f32 v2, v2")
    k("v_add_f32 v2, 1.0, v2")
    k("v_rcp_f32 v2, v2")
    k("v_and_b32 v1, 63, v0")
    k("v_lshlrev_b32 v3, 2, v1")
    k("s_lshl_b32 s6, s5, 2")
    k(f"s_add_u32 s6, s6, {WS_G}")
    k("v_cmp_gt_u32 vcc, 16, v1")
    k("s_and_saveexec_b64 s[74:75], vcc")
    k.vmem(f"buffer_store_dword v2, v3, {S(SWS)}, s6 offen {cfg['sc']}", "gs")
    k("s_mov_b64 exec, s[74:75]")


G1_ACC = 64
G1_BIAS = 128
G1_FR = 160


def g1_setup(k, cfg):
    k.c("---- G1 setup ----")
    k("s_and_b32 s74, s2, 7")
    k("s_lshr_b32 s75, s2, 3")
    if cfg.get("xm"):
        k("s_lshl_b32 s5, s74, 1")
        k("s_and_b32 s76, s75, 1")
        k("s_add_u32 s5, s5, s76")
        k("s_lshr_b32 s6, s75, 1")
    else:
        k("s_lshr_b32 s5, s74, 1")
        k("s_lshl_b32 s5, s5, 2")
        k("s_and_b32 s76, s75, 3")
        k("s_add_u32 s5, s5, s76")
        k("s_and_b32 s6, s74, 1")
        k("s_mul_i32 s6, s6, 7")
        k("s_lshr_b32 s76, s75, 2")
        k("s_add_u32 s6, s6, s76")
    k("s_lshl_b32 s80, s5, 17")
    k("s_lshl_b32 s76, s4, 15")
    k("s_add_u32 s80, s80, s76")
    k("s_mul_i32 s81, s4, 16*3584")
    k("s_lshl_b32 s76, s6, 8")
    k("s_add_u32 s81, s81, s76")
    k("s_lshl_b32 s82, s4, 12")
    k("v_and_b32 v10, 63, v0")
    k("v_lshrrev_b32 v11, 3, v10")
    k("v_and_b32 v12, 7, v10")
    k("v_lshrrev_b32 v13, 4, v10")
    k("v_xor_b32 v12, v12, v13")
    k("v_lshlrev_b32 v12, 4, v12")
    k("v_lshl_add_u32 v1, v11, 10, v12")
    k("v_xor_b32 v2, 64, v1")
    k("v_and_b32 v12, 15, v10")
    k("v_lshlrev_b32 v14, 2, v13")
    k("v_xor_b32 v12, v12, v14")
    k("v_lshlrev_b32 v12, 4, v12")
    k("v_mul_u32_u24 v14, 3584, v13")
    k("v_add_u32 v3, v12, v14")
    k("v_and_b32 v11, 31, v10")
    k("v_lshrrev_b32 v12, 5, v10")
    k("v_lshrrev_b32 v13, 1, v11")
    k("v_and_b32 v13, 7, v13")
    k("v_xor_b32 v13, v13, v12")
    k("s_lshr_b32 s76, s4, 1")
    k("s_lshl_b32 s76, s76, 13")
    k("v_lshlrev_b32 v14, 7, v11")
    k("v_add_u32 v14, s76, v14")
    for ks in range(4):
        k(f"v_xor_b32 v15, {2*ks}, v13")
        k(f"v_lshl_add_u32 v{4+ks}, v15, 4, v14")
    k("v_and_b32 v11, 15, v10")
    k("v_lshrrev_b32 v12, 4, v10")
    k("v_lshrrev_b32 v13, 2, v11")
    k("v_lshrrev_b32 v14, 1, v12")
    k("v_lshl_add_u32 v14, v14, 3, v13")
    k("v_lshlrev_b32 v14, 8, v14")
    k("v_and_b32 v15, 1, v12")
    k("v_lshlrev_b32 v15, 1, v15")
    k("v_bfe_u32 v16, v11, 1, 1")
    k("v_add_u32 v15, v15, v16")
    k("s_and_b32 s76, s4, 1")
    k("s_lshl_b32 s76, s76, 3")
    k("v_add_u32 v15, s76, v15")
    k("v_lshlrev_b32 v13, 2, v13")
    k("v_xor_b32 v15, v15, v13")
    k("v_and_b32 v16, 1, v11")
    k("v_lshlrev_b32 v16, 3, v16")
    k("v_add_u32 v14, v14, v16")
    k("v_lshl_add_u32 v8, v15, 4, v14")
    k("v_xor_b32 v9, 64, v8")
    for i in range(6):
        k(f"v_add_u32 v{24+i}, 65536, v{4+i}")


def g1_dma(k, slab, buf):
    for i in range(4):
        k(f"s_add_u32 m0, s82, {buf + 1024*i}")
        k(f"s_add_u32 s76, s80, {8192*i + 128*slab}")
        k.vmem(f"buffer_load_dwordx4 v{1 + (i&1)}, {S(SQ)}, s76 offen lds", f"slab{slab}")
    for i in range(4):
        k(f"s_add_u32 m0, s82, {buf + 16384 + 1024*i}")
        k(f"s_add_u32 s76, s81, {(64*slab + 4*i)*3584}")
        k.vmem(f"buffer_load_dwordx4 v3, {S(SW1)}, s76 offen lds", f"slab{slab}")


def g1_bias(k):
    srd(k, STMP, P_B1, 1792 * 2)
    k("v_lshrrev_b32 v11, 5, v10")
    k("v_lshlrev_b32 v11, 3, v11")
    k("s_lshl_b32 s76, s6, 8")
    k("s_and_b32 s77, s4, 1")
    k("s_lshl_b32 s77, s77, 7")
    k("s_add_u32 s76, s76, s77")
    for fb in range(2):
        for g in range(4):
            k.vmem(f"buffer_load_dwordx2 {V(224 + 8*fb + 2*g, 2)}, v11, {S(STMP)}, s76 offen offset:{64*fb + 16*g}",
                   "bias")


def g1_bias_unpack(k):
    k.wait(vm="bias")
    for fb in range(2):
        for g in range(4):
            for i in range(4):
                src = 224 + 8 * fb + 2 * g + (i >> 1)
                (unpack_hi if i & 1 else unpack_lo)(k, G1_BIAS + 16 * fb + 4 * g + i, src)


def g1_reads(k, buf, ks, tag):
    fr = G1_FR + 16 * ks
    hi = 20 if buf >= 65536 else 0
    buf &= 65535
    for fb in range(2):
        for half in range(2):
            k.ds(f"ds_read_b64_tr_b16 {V(fr + 4*fb + 2*half, 2)}, v{8+fb+hi} offset:{buf + 16384 + (16*ks + 4*half)*256}",
                 tag)
    for mb in range(2):
        k.ds(f"ds_read_b128 {V(fr + 8 + 4*mb, 4)}, v{4+ks+hi} offset:{buf + 4096*mb}", tag)


def g1_mfma(k, ks, first):
    fr = G1_FR + 16 * ks
    for fb in range(2):
        for mb in range(2):
            d = G1_ACC + 32 * fb + 16 * mb
            c = V(G1_BIAS + 16 * fb, 16) if first else V(d, 16)
            k(f"v_mfma_f32_32x32x16_bf16 {V(d,16)}, {V(fr + 4*fb, 4)}, {V(fr + 8 + 4*mb, 4)}, {c}")


def g1_main(k, cfg, bufs):
    nb = len(bufs)
    k.c("---- G1 main ----")
    k.wait(vm="slab0")
    k("s_barrier")
    g1_reads(k, bufs[0], 0, "r0_0")
    g1_reads(k, bufs[0], 1, "r0_1")
    for s in range(8):
        buf = bufs[s % nb]
        g1_reads(k, buf, 2, f"r{s}_2")
        k.wait(lg=f"r{s}_0")
        g1_mfma(k, 0, s == 0)
        g1_reads(k, buf, 3, f"r{s}_3")
        k.wait(lg=f"r{s}_1")
        g1_mfma(k, 1, False)
        if s < 7:
            k.wait(vm=f"slab{s+1}", lg=f"r{s}_3")
            k("s_barrier")
            if s + nb < 8:
                g1_dma(k, s + nb, buf)
            nbuf = bufs[(s + 1) % nb]
            g1_reads(k, nbuf, 0, f"r{s+1}_0")
            g1_mfma(k, 2, False)
            g1_reads(k, nbuf, 1, f"r{s+1}_1")
            g1_mfma(k, 3, False)
        else:
            k.wait(lg=f"r{s}_3")
            g1_mfma(k, 2, False)
            g1_mfma(k, 3, False)


def g1_epilogue(k, cfg):
    k.c("---- G1 epilogue ----")
    k("s_lshl_b32 s74, s5, 2")
    k("s_lshr_b32 s75, s4, 1")
    k("s_lshl_b32 s75, s75, 1")
    k("s_add_u32 s74, s74, s75")
    k("s_mul_i32 s74, s74, 112")
    k("s_lshl_b32 s75, s6, 3")
    k("s_add_u32 s74, s74, s75")
    k("s_and_b32 s75, s4, 1")
    k("s_lshl_b32 s75, s75, 2")
    k("s_add_u32 s74, s74, s75")
    k("s_lshl_b32 s74, s74, 10")
    k(f"s_add_u32 s74, s74, {WS_HF}")
    k(f"s_add_u32 s75, s74, {112*1024}")
    k("v_and_b32 v10, 63, v0")
    k("v_lshlrev_b32 v10, 4, v10")
    tmp = 160
    ti = 0
    for mb in range(2):
        for fb in range(2):
            acc = G1_ACC + 32 * fb + 16 * mb
            for r in range(16):
                k(f"v_max_f32 v{acc+r}, 0, v{acc+r}")
            for r in range(0, 16, 2):
                k(f"v_pk_mul_f32 {V(acc+r,2)}, {V(acc+r,2)}, {V(acc+r,2)}")
            for half in range(2):
                t = tmp + 4 * ti
                ti += 1
                for i in range(4):
                    r = acc + 8 * half + 2 * i
                    k(f"v_cvt_pk_bf16_f32 v{t+i}, v{r}, v{r+1}")
                k.vmem(f"buffer_store_dwordx4 {V(t,4)}, v10, {S(SWS)}, s{74+mb} offen offset:{(2*fb+half)*1024} {cfg['sc']}",
                       "hs")


def find_copy_offsets():
    groups = [[0, 1, 2, 3, 12, 13, 14, 15, 20, 21, 22, 23, 24, 25, 26, 27],
              [4, 5, 6, 7, 8, 9, 10, 11, 16, 17, 18, 19, 28, 29, 30, 31]]
    need = []
    for g in groups:
        st = set()
        for l in g:
            b, q = l & 15, l >> 4
            st.add(((b + 1) & 7, q + ((b + 1) >> 3)))
        need.append(st)

    def rec(o):
        if len(o) == 8:
            return o
        for cand in range(16):
            o2 = o + [cand]
            ok = True
            for st in need:
                seen = set()
                for (s, d) in st:
                    if s < len(o2):
                        sl = (o2[s] + d) & 15
                        if sl in seen:
                            ok = False
                            break
                        seen.add(sl)
                if not ok:
                    break
            if ok:
                r = rec(o2)
                if r:
                    return r
        return None
    return rec([])


COPY_O = find_copy_offsets()
COPY_STRIDE = 4352
CH_STRIDE = 8 * COPY_STRIDE + 256
KV_STRIDE = 4608


def conv_build_copies(k, cfg, hbase):
    k.c("---- conv: h copies ----")
    k("s_lshl_b32 s74, s2, 13")
    for ch in range(2):
        d = 84 + 4 * ch
        k(f"s_add_u32 s{d}, s{P_SSMK}, s74")
        k(f"s_addc_u32 s{d+1}, s{P_SSMK+1}, 0")
        k(f"s_mov_b32 s{d+2}, 4096")
        k(f"s_mov_b32 s{d+3}, 0x00020000")
        if ch == 0:
            k("s_add_u32 s74, s74, 4096")
    k("v_lshlrev_b32 v1, 4, v0")
    k("v_add_u32 v2, -32, v1")
    k("v_add_u32 v3, -16, v1")
    for ch in range(2):
        k.vmem(f"buffer_load_dwordx4 {V(8+40*ch,4)}, v2, {S(84+4*ch)}, 0 offen", f"h{ch}")
        k.vmem(f"buffer_load_dwordx4 {V(12+40*ch,4)}, v3, {S(84+4*ch)}, 0 offen", f"h{ch}")
    k("v_and_b32 v4, 1, v0")
    k("v_lshlrev_b32 v4, 4, v4")
    k("v_add_u32 v5, 4096, v4")
    k("v_add_u32 v6, 4064, v4")
    k("v_add_u32 v7, 4080, v4")
    for ch in range(2):
        k.vmem(f"buffer_load_dwordx4 {V(88+40*ch,4)}, v6, {S(84+4*ch)}, 0 offen", f"hx{ch}")
        k.vmem(f"buffer_load_dwordx4 {V(92+40*ch,4)}, v7, {S(84+4*ch)}, 0 offen", f"hx{ch}")

    def build(w, addr, base):
        R, P, Q = w + 8, w + 16, w + 24
        for j in range(6):
            k(f"v_mov_b32 v{R+j}, v{w+j+1}")
            k(f"v_alignbyte_b32 v{P+j}, v{w+j+1}, v{w+j}, 2")
            k(f"v_alignbyte_b32 v{Q+j}, v{w+j+2}, v{w+j+1}, 2")
        src = {0: w, 4: w + 2, 2: R, 6: R + 2, 1: P, 5: P + 2, 3: Q, 7: Q + 2}
        for s in range(8):
            k.ds(f"ds_write_b128 v{addr}, {V(src[s],4)} offset:{base + s*COPY_STRIDE + 16*COPY_O[s]}", "hw")

    k(f"v_add_u32 v1, {hbase}, v1")
    k(f"v_add_u32 v5, {hbase}, v5")
    for ch in range(2):
        k.wait(vm=f"h{ch}")
        if ch:
            k(f"v_add_u32 v1, {CH_STRIDE}, v1")
        build(8 + 40 * ch, 1, 0)
    k("v_cmp_gt_u32 vcc, 2, v0")
    k("s_and_saveexec_b64 s[74:75], vcc")
    k("s_cbranch_execz CONV_NOX")
    for ch in range(2):
        k.wait(vm=f"hx{ch}")
        if ch:
            k(f"v_add_u32 v5, {CH_STRIDE}, v5")
        build(88 + 40 * ch, 5, 0)
    k("CONV_NOX:")
    k("s_mov_b64 exec, s[74:75]")
    k.wait_all(vm=True, lg=False)


def conv_load_kv(k, cfg, kvbase):
    k.c("---- conv: kvR ----")
    k("s_lshl_b32 s74, s2, 13")
    k(f"s_add_u32 s74, s74, {WS_KVR}")
    k("v_lshlrev_b32 v1, 4, v0")
    for ch in range(2):
        k.vmem(f"buffer_load_dwordx4 {V(8+4*ch,4)}, v1, {S(SWS)}, s74 offen {cfg['scl']}", "kv")
        if ch == 0:
            k("s_add_u32 s74, s74, 4096")
    for i in range(4):
        k(f"v_mov_b32 v{16+i}, 0")
    k(f"v_add_u32 v2, {kvbase}, v1")
    k("v_cmp_gt_u32 vcc, 32, v0")
    k("s_and_saveexec_b64 s[74:75], vcc")
    for ch in range(2):
        k.ds(f"ds_write_b128 v2, {V(16,4)} offset:{ch*KV_STRIDE + 4096}", "kvw")
    k("s_mov_b64 exec, s[74:75]")
    k.wait(vm="kv")
    for ch in range(2):
        k.ds(f"ds_write_b128 v2, {V(8+4*ch,4)} offset:{ch*KV_STRIDE}", "kvw")


CV_ACC = 64
CV_FA = 96
CV_FB = 160


def conv_order():
    pairs = [(d, c1) for d in range(8) for c1 in range(8 - d)]
    best = None
    rem = sorted(pairs, key=lambda p: (max(p), p[0] + p[1]))
    out = []
    while rem:
        for i, p in enumerate(rem):
            j = p[0] + p[1]
            if len(out) >= 1 and out[-1][0] + out[-1][1] == j and len(rem) > 1:
                continue
            if len(out) >= 2 and out[-2][0] + out[-2][1] == j and len(rem) > 3:
                continue
            out.append(p)
            rem.pop(i)
            break
        else:
            out.append(rem.pop(0))
    return out


def conv_main(k, cfg, hbase, kvbase, hook=None):
    k.c("---- conv main ----")
    k("v_and_b32 v10, 63, v0")
    k("v_and_b32 v11, 15, v10")
    k("v_lshrrev_b32 v12, 4, v10")
    k("v_add_u32 v13, 1, v11")
    k("v_and_b32 v14, 7, v13")
    k("v_lshrrev_b32 v15, 3, v13")
    lut = sum(o << (4 * i) for i, o in enumerate(COPY_O))
    k(f"s_mov_b32 s74, {lut}")
    k("v_lshlrev_b32 v16, 2, v14")
    k("v_bfe_u32 v16, s74, v16, 4")
    k("v_add_u32 v16, v16, v15")
    k("v_add_u32 v16, v16, v12")
    k("v_lshlrev_b32 v16, 4, v16")
    k(f"v_mul_u32_u24 v17, {COPY_STRIDE}, v14")
    k("v_add_u32 v16, v16, v17")
    k("s_lshr_b32 s75, s4, 1")
    k(f"s_mul_i32 s76, s75, {CH_STRIDE}")
    k("s_and_b32 s77, s4, 1")
    k("s_lshl_b32 s77, s77, 8")
    k("s_add_u32 s76, s76, s77")
    k(f"s_add_u32 s76, s76, {hbase}")
    k("v_add_u32 v1, s76, v16")
    k(f"s_mul_i32 s76, s75, {KV_STRIDE}")
    k("s_add_u32 s76, s76, s77")
    k(f"s_add_u32 s76, s76, {kvbase + 480}")
    k("v_lshlrev_b32 v16, 5, v11")
    k("v_lshlrev_b32 v17, 4, v12")
    k("v_sub_u32 v16, v17, v16")
    k("v_add_u32 v2, s76, v16")
    order = conv_order()

    def reads(c0i, st):
        for i in range(8):
            k.ds(f"ds_read_b128 {V(CV_FA + 32*st + 4*i, 4)}, v1 offset:{512*i + 64*c0i}", f"ca{c0i}_{i}")
            k.ds(f"ds_read_b128 {V(CV_FB + 32*st + 4*i, 4)}, v2 offset:{512*(7-i) + 64*c0i}", f"cb{c0i}_{i}")

    reads(0, 0)
    touched = set()
    for c0i in range(4):
        st = c0i & 1
        nxt = []
        if c0i < 3:
            for i in range(8):
                nxt.append((f"ds_read_b128 {V(CV_FA + 32*(st^1) + 4*i, 4)}, v1 offset:{512*i + 64*(c0i+1)}", f"ca{c0i+1}_{i}"))
                nxt.append((f"ds_read_b128 {V(CV_FB + 32*(st^1) + 4*i, 4)}, v2 offset:{512*(7-i) + 64*(c0i+1)}", f"cb{c0i+1}_{i}"))
        waited = set()
        for n, (d, c1) in enumerate(order):
            tags = [t for t in (f"ca{c0i}_{c1}", f"cb{c0i}_{d}") if t not in waited]
            if tags:
                k.wait(lg=tags)
                waited.update(tags)
            j = d + c1
            acc = V(CV_ACC + 4 * j, 4)
            c = acc if j in touched else "0"
            touched.add(j)
            k(f"v_mfma_f32_16x16x32_bf16 {acc}, {V(CV_FA + 32*st + 4*c1, 4)}, {V(CV_FB + 32*st + 4*d, 4)}, {c}")
            if n >= 18 and nxt:
                t, tg = nxt.pop(0)
                k.ds(t, tg)
            if hook:
                hook(k, c0i * 36 + n)


def conv_epilogue(k, cfg, partbase, kvbase):
    k.c("---- conv epilogue ----")
    k("s_barrier")
    k("v_and_b32 v10, 63, v0")
    k("v_and_b32 v11, 15, v10")
    k("v_lshrrev_b32 v12, 4, v10")
    k("v_lshlrev_b32 v11, 6, v11")
    k("v_lshl_add_u32 v11, v12, 4, v11")
    k("s_lshl_b32 s74, s4, 13")
    k("v_add_u32 v11, s74, v11")
    for j in range(8):
        k.ds(f"ds_write_b128 v11, {V(CV_ACC + 4*j, 4)} offset:{partbase + 1024*j}", "pw")
    k("s_lshr_b32 s75, s4, 1")
    k("s_lshl_b32 s76, s2, 2")
    k(f"s_load_dword s77, s[{P_SSMD}:{P_SSMD+1}], s76")
    k.wait_all(vm=False, lg=True)
    k("s_cmp_eq_u32 s75, 0")
    k("s_cbranch_scc1 CONV_D_LO")
    k("s_lshr_b32 s77, s77, 16")
    k("CONV_D_LO:")
    k("s_lshl_b32 s77, s77, 16")
    k("s_barrier")
    k("v_and_b32 v1, 127, v0")
    k("v_lshlrev_b32 v2, 5, v1")
    k("s_lshl_b32 s74, s75, 14")
    k("v_add_u32 v2, s74, v2")
    k(f"s_mul_i32 s74, s75, {KV_STRIDE}")
    k(f"s_add_u32 s74, s74, {kvbase + 4080 - 2048}")
    k("v_lshlrev_b32 v3, 4, v1")
    k("v_sub_u32 v3, s74, v3")
    for seg in range(2):
        b = 8 + 24 * seg
        for p in range(2):
            for hh in range(2):
                k.ds(f"ds_read_b128 {V(b + 8*p + 4*hh, 4)}, v2 offset:{partbase + 8192*p + 4096*seg + 16*hh}", f"pr{seg}")
        k.ds(f"ds_read_b128 {V(b + 16, 4)}, v3 offset:{2048*(1-seg)}", f"pr{seg}")
    k("s_lshl_b32 s74, s2, 13")
    k("s_lshl_b32 s76, s75, 12")
    k("s_add_u32 s74, s74, s76")
    k(f"s_add_u32 s74, s74, {WS_YT}")
    k("v_lshlrev_b32 v4, 4, v1")
    for seg in range(2):
        b = 8 + 24 * seg
        k.wait(lg=f"pr{seg}")
        for i in range(0, 8, 2):
            k(f"v_pk_add_f32 {V(b+i,2)}, {V(b+i,2)}, {V(b+8+i,2)}")
        for i in range(8):
            e = 7 - i
            (unpack_hi if e & 1 else unpack_lo)(k, 60, b + 16 + (e >> 1))
            k(f"v_fmac_f32 v{b+i}, s77, v60")
        for i in range(4):
            k(f"v_cvt_pk_bf16_f32 v{b+20+i}, v{b+2*i}, v{b+2*i+1}")
        k.vmem(f"buffer_store_dwordx4 {V(b+20,4)}, v4, {S(SWS)}, s74 offen offset:{2048*seg} {cfg['sc']}", "ys")


G2_ACC = 64


def g2_ids(k):
    k("s_and_b32 s5, s2, 7")
    k("s_lshl_b32 s5, s5, 2")
    k("s_lshr_b32 s6, s2, 3")
    k("s_and_b32 s6, s6, 3")
    k("s_add_u32 s5, s5, s6")
    k("s_lshr_b32 s6, s2, 5")


def w2_setup(k):
    k.c("---- w2 staging setup ----")
    k("s_lshr_b32 s93, s2, 5")
    k("s_mul_i32 s92, s4, 448*1024")
    k("s_lshl_b32 s93, s93, 7")
    k("s_add_u32 s92, s92, s93")
    k("v_and_b32 v10, 63, v0")
    k("v_lshrrev_b32 v11, 3, v10")
    k("v_and_b32 v12, 7, v10")
    k("v_bfe_u32 v13, v10, 4, 1")
    k("v_lshlrev_b32 v13, 2, v13")
    k("v_xor_b32 v12, v12, v13")
    k("v_lshlrev_b32 v12, 4, v12")
    k("v_lshl_add_u32 v20, v11, 10, v12")
    k("v_and_b32 v11, 15, v10")
    k("v_lshrrev_b32 v12, 5, v10")
    k("v_lshrrev_b32 v13, 2, v11")
    k("v_lshl_add_u32 v12, v12, 2, v13")
    k("v_lshlrev_b32 v12, 7, v12")
    k("v_bfe_u32 v13, v10, 4, 1")
    k("v_lshlrev_b32 v13, 1, v13")
    k("v_bfe_u32 v14, v11, 1, 1")
    k("v_add_u32 v13, v13, v14")
    k("v_bfe_u32 v14, v11, 3, 1")
    k("s_and_b32 s93, s4, 1")
    k("v_xor_b32 v14, s93, v14")
    k("v_lshl_add_u32 v13, v14, 2, v13")
    k("v_lshl_add_u32 v12, v13, 4, v12")
    k("v_and_b32 v14, 1, v11")
    k("v_lshl_add_u32 v21, v14, 3, v12")
    k("v_xor_b32 v22, 64, v21")


def w2_dma(k, piece, lds):
    sreg, off = lds
    for i in range(4):
        k(f"s_add_u32 m0, s{sreg}, {off + 1024*i}")
        k(f"s_add_u32 s94, s92, {(32*piece + 8*i)*1024}")
        k.vmem(f"buffer_load_dwordx4 v20, {S(SW2)}, s94 offen lds", f"w2p{piece}")


def w2_tr(k, piece, vb0, vb1, off):
    for kc in range(2):
        for a in range(2):
            for hf in range(2):
                i = 2 * piece + kc
                k.ds(f"ds_read_b64_tr_b16 {A(8*i + 4*a + 2*hf, 2)}, v{(vb0, vb1)[a]} offset:{off + 2048*kc + 1024*hf}",
                     f"w2t{piece}")


def g2_w2_standalone(k, cfg):
    k("s_lshl_b32 s95, s4, 15")
    k("v_add_u32 v23, s95, v21")
    k("v_add_u32 v24, s95, v22")
    NP = 8
    for p in range(min(NP, 14)):
        w2_dma(k, p, (95, (p % NP) * 4096))
    for p in range(14):
        k.wait(vm=f"w2p{p}")
        w2_tr(k, p, 23, 24, (p % NP) * 4096)
        if p + NP < 14:
            k.wait(lg=f"w2t{p}")
            w2_dma(k, p + NP, (95, (p % NP) * 4096))
    k.wait_all(vm=False, lg=True)


def g2_main(k, cfg, depth=16):
    k.c("---- G2 main ----")
    k("s_lshr_b32 s74, s4, 1")
    k("s_lshl_b32 s75, s5, 1")
    k("s_add_u32 s76, s75, s74")
    k("s_xor_b32 s77, s76, 1")
    k("s_mul_i32 s78, s4, 28")
    for b in range(2):
        k(f"s_mul_i32 s{76+b}, s{76+b}, 112")
        k(f"s_add_u32 s{76+b}, s{76+b}, s78")
        k(f"s_lshl_b32 s{76+b}, s{76+b}, 10")
        k(f"s_add_u32 s{76+b}, s{76+b}, {WS_HF}")
    k("v_and_b32 v1, 63, v0")
    k("v_lshlrev_b32 v1, 4, v1")
    FB = 128
    assert FB + 8 * depth <= 256

    def load(i):
        if i and i % 4 == 0:
            k("s_add_u32 s76, s76, 4096")
            k("s_add_u32 s77, s77, 4096")
        for b in range(2):
            r = FB + 8 * (i % depth) + 4 * b
            k.vmem(f"buffer_load_dwordx4 {V(r,4)}, v1, {S(SWS)}, s{76+b} offen offset:{1024*(i%4)} {cfg['scl']}", f"hf{i}")

    for i in range(min(depth, 28)):
        load(i)
    for i in range(28):
        k.wait(vm=f"hf{i}")
        for b in range(2):
            for a in range(2):
                d = G2_ACC + 16 * (a + 2 * b)
                c = V(d, 16) if i else "0"
                k(f"v_mfma_f32_32x32x16_bf16 {V(d,16)}, {A(8*i + 4*a, 4)}, {V(FB + 8*(i%depth) + 4*b, 4)}, {c}")
        if i + depth < 28:
            load(i + depth)


def g2_epilogue(k, cfg, redbase, ylbase):
    k.c("---- G2 epilogue ----")
    k("v_and_b32 v10, 63, v0")
    k("v_and_b32 v11, 31, v10")
    k("v_lshrrev_b32 v12, 5, v10")
    k("s_and_b32 s74, s4, 1")
    k("s_lshr_b32 s75, s4, 1")
    k("s_lshl_b32 s76, s5, 6")
    k("s_lshl_b32 s77, s75, 5")
    k("s_add_u32 s76, s76, s77")
    k("s_lshl_b32 s77, s6, 6")
    k("s_lshl_b32 s78, s74, 5")
    k("s_add_u32 s77, s77, s78")
    k("v_lshrrev_b32 v13, 2, v10")
    k("v_and_b32 v14, 3, v10")
    k("v_lshlrev_b32 v15, 12, v13")
    k("v_lshl_add_u32 v15, v14, 4, v15")
    k("s_lshl_b32 s78, s77, 12")
    k("s_lshl_b32 s79, s76, 1")
    k("s_add_u32 s78, s78, s79")
    k(f"s_add_u32 s78, s78, {WS_YT}")
    k(f"s_add_u32 s79, s78, {16*4096}")
    k.vmem(f"buffer_load_dwordx4 {V(128,4)}, v15, {S(SWS)}, s78 offen {cfg['scl']}", "yt")
    k.vmem(f"buffer_load_dwordx4 {V(132,4)}, v15, {S(SWS)}, s79 offen {cfg['scl']}", "yt")
    k("v_lshlrev_b32 v16, 10, v11")
    k("v_lshl_add_u32 v16, v12, 3, v16")
    k("s_lshl_b32 s78, s76, 10")
    k("s_lshl_b32 s79, s77, 1")
    k("s_add_u32 s78, s78, s79")
    for g in range(4):
        k.vmem(f"buffer_load_dwordx2 {V(136+2*g,2)}, v16, {S(SQ)}, s78 offen offset:{16*g}", "q")
    srd(k, STMP, P_B2, 1024)
    k("v_lshlrev_b32 v17, 3, v12")
    for g in range(4):
        k.vmem(f"buffer_load_dwordx2 {V(144+2*g,2)}, v17, {S(STMP)}, s79 offen offset:{16*g}", "b2")
    k("v_lshlrev_b32 v18, 2, v11")
    k("s_lshl_b32 s80, s76, 2")
    k(f"s_add_u32 s80, s80, {WS_G}")
    k.vmem(f"buffer_load_dword v152, v18, {S(SWS)}, s80 offen {cfg['scl']}", "g")
    k("v_lshlrev_b32 v19, 4, v10")
    for sg in range(1, 4):
        k(f"s_xor_b32 s80, s4, {sg}")
        k("s_mul_i32 s80, s80, 12288")
        k(f"v_add_u32 v20, s80, v19")
        for g in range(4):
            k.ds(f"ds_write_b128 v20, {V(G2_ACC + 16*sg + 4*g, 4)} offset:{redbase + (sg-1)*4096 + 1024*g}", "rw")
    k("s_lshl_b32 s80, s4, 11")
    k("v_lshlrev_b32 v21, 4, v10")
    k(f"s_add_u32 s80, s80, {ylbase}")
    k("v_add_u32 v21, s80, v21")
    k.wait(vm="yt")
    k.ds(f"ds_write_b128 v21, {V(128,4)}", "yw")
    k.ds(f"ds_write_b128 v21, {V(132,4)} offset:1024", "yw")
    k.wait(lg=["rw", "yw"])
    k("s_barrier")
    k("s_mul_i32 s80, s4, 12288")
    k("v_add_u32 v20, s80, v19")
    for sg in range(3):
        for g in range(4):
            k.ds(f"ds_read_b128 {V(160 + 16*sg + 4*g, 4)}, v20 offset:{redbase + sg*4096 + 1024*g}", f"rr{sg}")
    k("v_and_b32 v22, 15, v10")
    k("v_lshrrev_b32 v23, 2, v22")
    k("v_lshl_add_u32 v23, v12, 2, v23")
    k("v_lshlrev_b32 v23, 6, v23")
    k("v_bfe_u32 v24, v10, 4, 1")
    k("v_lshl_add_u32 v23, v24, 5, v23")
    k("v_and_b32 v24, 3, v22")
    k("v_lshl_add_u32 v23, v24, 3, v23")
    k("s_lshl_b32 s80, s4, 11")
    k(f"s_add_u32 s80, s80, {ylbase}")
    k("v_add_u32 v23, s80, v23")
    for g in range(4):
        k.ds(f"ds_read_b64_tr_b16 {V(208+2*g,2)}, v23 offset:{512*g}", "yr")
    acc = G2_ACC
    for sg in range(3):
        k.wait(lg=f"rr{sg}")
        for r in range(0, 16, 2):
            k(f"v_pk_add_f32 {V(acc+r,2)}, {V(acc+r,2)}, {V(160+16*sg+r,2)}")
    k.wait(vm=["q", "b2", "g"], lg="yr")
    X = 224
    slot = {0: 0, 2: 2, 1: 4, 3: 6}
    for g in range(4):
        for i in range(4):
            up = unpack_hi if i & 1 else unpack_lo
            up(k, 24 + i, 144 + 2 * g + (i >> 1))
            up(k, 28 + i, 136 + 2 * g + (i >> 1))
            up(k, 32 + i, 208 + 2 * g + (i >> 1))
        for i in range(4):
            r = acc + 4 * g + i
            k(f"v_add_f32 v{r}, v{r}, v{24+i}")
        for i in range(4):
            r = acc + 4 * g + i
            k(f"v_fma_f32 v{28+i}, v{28+i}, v{32+i}, -v{r}")
        for i in range(4):
            r = acc + 4 * g + i
            k(f"v_fmac_f32 v{r}, v152, v{28+i}")
        for d in range(2):
            r = acc + 4 * g + 2 * d
            k(f"v_cvt_pk_bf16_f32 v{X + slot[g] + d}, v{r}, v{r+1}")
    for base in (0, 4):
        k(f"v_permlane32_swap_b32 v{X+base}, v{X+base+2}")
        k(f"v_permlane32_swap_b32 v{X+base+1}, v{X+base+3}")
    k("v_lshlrev_b32 v16, 10, v11")
    k("v_lshl_add_u32 v16, v12, 5, v16")
    k.vmem(f"buffer_store_dwordx4 {V(X,4)}, v16, {S(SOUT)}, s78 offen", "os")
    k.vmem(f"buffer_store_dwordx4 {V(X+4,4)}, v16, {S(SOUT)}, s78 offen offset:16", "os")


def kdesc(label, nv=512, acc=256):
    return f""".amdhsa_kernel {label}
  .amdhsa_next_free_vgpr {nv}
  .amdhsa_next_free_sgpr 102
  .amdhsa_accum_offset {acc}
  .amdhsa_group_segment_fixed_size 0
  .amdhsa_kernarg_size 120
  .amdhsa_user_sgpr_count 2
  .amdhsa_user_sgpr_kernarg_segment_ptr 1
  .amdhsa_system_sgpr_workgroup_id_x 1
.end_amdhsa_kernel
"""


def khead(label):
    return f""".globl {label}
.p2align 8
.type {label},@function
{label}:
"""


def gen_multi(tsflag=False):
    cfg = dict(sc="", scl="", ts=tsflag)
    hdr = open("cdna_kernels/" + NAME + ".s.ref").read().split("; Override")[0]
    out = [hdr.rstrip("\n")]
    out.append("; @launch kernel=k1_kernel grid=(256,1,1) block=(256,1,1) lds=163840")
    out.append("; @launch kernel=k2_kernel grid=(256,1,1) block=(256,1,1) lds=163840")
    out.append("; @launch kernel=k3_kernel grid=(256,1,1) block=(256,1,1) lds=163840")
    out.append('.amdgcn_target "amdgcn-amd-amdhsa--gfx950"\n.text')
    k = K()
    prologue(k, "K1_END")
    ts_setup(k, cfg)
    ts(k, cfg, 0)
    t1_issue(k, cfg)
    t1_compute(k, cfg, 131072)
    ts(k, cfg, 1)
    k("s_lshr_b32 s74, s2, 3")
    k("s_cmp_ge_u32 s74, 28")
    k("s_cbranch_scc1 K1_GATE")
    vm_save = list(k.vm)
    g1_setup(k, cfg)
    g1_bias(k)
    bufs = [0, 32768, 65536, 98304]
    for s in range(4):
        g1_dma(k, s, bufs[s])
    g1_bias_unpack(k)
    ts(k, cfg, 2)
    g1_main(k, cfg, bufs)
    ts(k, cfg, 3)
    g1_epilogue(k, cfg)
    k.wait_all()
    ts(k, cfg, 4)
    k.wait_all()
    k("s_endpgm")
    k("K1_GATE:")
    k.vm = vm_save
    gate(k, cfg)
    k.wait_all()
    ts(k, cfg, 4)
    k.wait_all()
    k("K1_END:")
    k("s_endpgm")
    out.append(khead("k1_kernel") + k.text())
    k = K()
    prologue(k, "K2_END")
    ts_setup(k, cfg)
    ts(k, cfg, 5)
    hbase, kvbase = 0, 2 * CH_STRIDE + 256
    kvbase = (kvbase + 255) // 256 * 256
    conv_build_copies(k, cfg, hbase)
    conv_load_kv(k, cfg, kvbase)
    k.wait_all()
    k("s_barrier")
    ts(k, cfg, 6)
    conv_main(k, cfg, hbase, kvbase)
    ts(k, cfg, 7)
    conv_epilogue(k, cfg, 0, kvbase)
    k.wait_all()
    ts(k, cfg, 8)
    k.wait_all()
    k("K2_END:")
    k("s_endpgm")
    out.append(khead("k2_kernel") + k.text())
    k = K()
    prologue(k, "K3_END")
    ts_setup(k, cfg)
    ts(k, cfg, 9)
    g2_ids(k)
    w2_setup(k)
    g2_w2_standalone(k, cfg)
    ts(k, cfg, 10)
    g2_main(k, cfg, depth=16)
    ts(k, cfg, 11)
    k("s_barrier")
    g2_epilogue(k, cfg, 0, 65536)
    k.wait_all()
    ts(k, cfg, 12)
    k.wait_all()
    k("K3_END:")
    k("s_endpgm")
    out.append(khead("k3_kernel") + k.text())
    out.append('.section .rodata,"a"\n.p2align 6')
    for l in ("k1_kernel", "k2_kernel", "k3_kernel"):
        out.append(kdesc(l))
        out.append(".p2align 6")
    return "\n".join(out) + "\n"


if __name__ == "__main__":
    mode = sys.argv[1] if len(sys.argv) > 1 else "multi"
    path = sys.argv[2] if len(sys.argv) > 2 else "multi.s"
    txt = gen_multi("ts" in mode)
    open(path, "w").write(txt)
    print("COPY_O", COPY_O, "order", conv_order()[:10], "bytes", len(txt))
```

```python
import sys
from asmlib import K
import gen as G
from gen import (S, V, A, srd, unpack_lo, unpack_hi, NAME, SQ, SK, SV, SW1, SW2, SOUT, SWS, STMP,
                 P_Q, P_K, P_V, P_SHIFT, P_SSMK, P_SSMD, P_W1, P_B1, P_W2, P_B2, P_GATE, P_OUT, P_WS,
                 COPY_O, COPY_STRIDE, CH_STRIDE, KV_STRIDE, conv_order, G1_ACC, G1_FR,
                 CV_ACC, CV_FA, CV_FB, G2_ACC)
from weave import Rec, Weaver, emit, flat, conflicts
import gen2
from gen2 import KT, Lbl, ts_setup, ts_final

WS_F0, WS_F1, WS_F2 = 0, 32768, 65536
WS_EPOCH = 98304
WS_F0B = 102400
WS_G = 0x20000
WS_KVR = 1 << 20
WS_W2F = 3 << 20
WS_HF = 5 << 20
WS_YT = 13 << 20
WS_TS = 15 << 20
WS_SIZE = 16 << 20

L_W2S = 73728
L_KV = 139264
L_H = 0
L_PART = 98304
L_RED = 0
L_YL = 49152

NONCE = 3
SPIN = 1 << 15
OOB = 0x40000000
SDMA = 22
SC_ST = 300
CFG = {}


def ts(k, idx):
    if not CFG.get("ts"):
        return
    if isinstance(k, Rec):
        k.fn(lambda kk: gen2.ts(kk, CFG, idx))
    else:
        gen2.ts(k, CFG, idx)


def vm(k, s, tag, cost=None):
    if isinstance(k, Rec):
        k.vmem(s, tag, cost)
    else:
        k.vmem(s, tag)


class nullatom:
    def __enter__(self):
        return self

    def __exit__(self, *a):
        return False


def atom(k, after=None, cost=None):
    return k.atom(after, cost) if isinstance(k, Rec) else nullatom()


def publish(k, wsoff, sub=0):
    l = Lbl.new("PUB")
    wsoff -= 128 * sub
    with atom(k):
        k("s_cmp_eq_u32 s4, 0")
        k(f"s_cbranch_scc0 {l}")
        k("s_lshl_b32 s97, s2, 7")
        k(f"s_add_u32 s97, s97, {wsoff}")
        k(f"v_mov_b32 v62, s{NONCE}")
        k("s_mov_b64 exec, 1")
        k(f"buffer_store_dword v62, off, {S(SWS)}, s97 sc1")
        k("s_mov_b64 exec, -1")
        k(f"{l}:")


def poll_issue(k, vreg, voff, wsoff, tag, after=None):
    with atom(k, after):
        k(f"s_mov_b32 s94, {wsoff}")
        vm(k, f"buffer_load_dword v{vreg}, v{voff}, {S(SWS)}, s94 offen sc1", tag, 40)


def poll_check(k, vreg, voff, wsoff, tag, half=None):
    ok, rt = Lbl.new("POK"), Lbl.new("PRT")

    def test():
        k(f"v_cmp_ne_u32 vcc, s{NONCE}, v{vreg}")
        if half is None:
            k(f"s_cbranch_vccz {ok}")
        else:
            k(f"s_cmp_eq_u32 vcc_{half}, 0")
            k(f"s_cbranch_scc1 {ok}")
    with atom(k):
        k.wait(vm=tag)
        k("s_cmp_eq_u32 s4, 0")
        k(f"s_cbranch_scc0 {ok}")
        test()
        k(f"s_mov_b32 s97, {wsoff}")
        k(f"s_mov_b32 s101, {SPIN}")
        k(f"{rt}:")
        k("s_sleep 1")
        k(f"buffer_load_dword v{vreg}, v{voff}, {S(SWS)}, s97 offen sc1")
        k("s_waitcnt vmcnt(0)")
        test()
        k("s_sub_u32 s101, s101, 1")
        k(f"s_cbranch_scc0 {rt}")
        k(f"{ok}:")


def prologue(k, endlabel):
    k("s_cmp_ge_u32 s2, 256")
    k(f"s_cbranch_scc1 {endlabel}")
    k("s_load_dwordx16 s[44:59], s[0:1], 0")
    k("s_load_dwordx8 s[60:67], s[0:1], 64")
    k("s_load_dwordx4 s[68:71], s[0:1], 96")
    k("s_load_dwordx2 s[72:73], s[0:1], 112")
    k("v_lshrrev_b32 v1, 6, v0")
    k("s_nop 0")
    k("v_readfirstlane_b32 s4, v1")


def code_prefetch(k):
    lab = NAME + "_kernel"
    k("s_getpc_b64 s[84:85]")
    k("PF_PC:")
    k(f"s_sub_u32 s84, s84, PF_PC-{lab}")
    k("s_subb_u32 s85, s85, 0")
    k(f"s_mov_b32 s86, K_CODE_END-{lab}")
    k("s_mov_b32 s87, 0x00020000")
    k("s_lshr_b32 s88, s2, 3")
    k("s_lshl_b32 s88, s88, 2")
    k("s_add_u32 s88, s88, s4")
    k(f"s_and_b32 s88, s88, {CFG.get('pfmask', 63)}")
    k("s_lshl_b32 s88, s88, 10")
    k("v_and_b32 v2, 63, v0")
    k("v_lshlrev_b32 v2, 4, v2")
    k("v_add_u32 v2, s88, v2")
    k.vmem("buffer_load_dwordx4 a[252:255], v2, s[84:87], 0 offen", "icpf")


SRDS = [(SQ, P_Q, 2 << 20), (SW1, P_W1, 512 * 1792 * 2), (SK, P_K, 2 << 20), (SV, P_V, 2 << 20),
        (SW2, P_W2, 512 * 1792 * 2), (SOUT, P_OUT, 2 << 20), (SWS, P_WS, WS_SIZE)]


def srd_consts(k):
    for d, p, n in SRDS:
        k(f"s_mov_b32 s{d+2}, {n}")
        k(f"s_mov_b32 s{d+3}, 0x00020000")
    k(f"s_mov_b32 s{STMP+3}, 0x00020000")


def srd_ptrs(k, which):
    for d, p, n in SRDS:
        if d in which:
            k(f"s_mov_b32 s{d}, s{p}")
            k(f"s_mov_b32 s{d+1}, s{p+1}")


def stmp(k, ptr, nbytes):
    k(f"s_mov_b32 s{STMP}, s{ptr}")
    k(f"s_mov_b32 s{STMP+1}, s{ptr+1}")
    k(f"s_mov_b32 s{STMP+2}, {nbytes}")


def nonce(k):
    k(f"s_mul_i32 s{NONCE}, s96, 0x9E3779B1")
    k(f"s_add_u32 s{NONCE}, s{NONCE}, 0x85EBCA6B")


T1_KR, T1_VR, T1_WR = 224, 235, 244
T1_K, T1_W, T1_A, T1_V, T1_O = 128, 150, 30, 128, 144


def t1_addr(k):
    k.c("---- T1 addresses ----")
    k("s_lshr_b32 s84, s2, 5")
    k("s_and_b32 s85, s2, 31")
    k("s_lshl_b32 s85, s85, 6")
    k("s_and_b32 s74, s4, 1")
    k("s_lshr_b32 s75, s4, 1")
    k("s_lshl_b32 s76, s74, 5")
    k("s_add_u32 s76, s76, s85")
    k("s_sub_u32 s77, s76, 3")
    k("s_lshl_b32 s77, s77, 10")
    k("s_lshl_b32 s78, s84, 7")
    k("s_add_u32 s77, s77, s78")
    k("s_lshl_b32 s78, s75, 6")
    k("s_add_u32 s77, s77, s78")
    k("v_and_b32 v15, 15, v0")
    k("v_bfe_u32 v16, v0, 4, 2")
    k("v_lshlrev_b32 v10, 13, v16")
    k("v_lshl_add_u32 v10, v15, 2, v10")
    k("v_add_u32 v10, s77, v10")
    k("v_add_u32 v11, 1024, v10")
    k("v_add_u32 v12, 2048, v10")
    k("v_add_u32 v13, 3072, v10")
    k("v_add_u32 v14, 7168, v10")
    k("v_lshlrev_b32 v17, 4, v15")
    k("s_lshl_b32 s78, s84, 9")
    k("s_lshl_b32 s79, s75, 8")
    k("s_add_u32 s7, s78, s79")
    k("v_sub_u32 v16, 3, v16")
    k("v_lshlrev_b32 v16, 4, v16")
    k("v_lshl_add_u32 v18, v15, 13, v16")
    k("s_lshl_b32 s78, s84, 18")
    k("s_lshl_b32 s79, s75, 17")
    k("s_add_u32 s78, s78, s79")
    k("s_sub_u32 s79, 2016, s76")
    k("s_lshl_b32 s79, s79, 1")
    k("s_add_u32 s78, s78, s79")
    k(f"s_add_u32 s95, s78, {WS_KVR}")


def t1_loads(k, cost=32):
    if CFG.get("x_not1"):
        return
    def ad(j):
        if j < 3:
            return 10 + j, 0
        if j < 7:
            return 13, (j - 3) * 1024
        return 14, (j - 7) * 1024
    with atom(k):
        stmp(k, P_SHIFT, 512 * 4 * 2)
        vm(k, f"buffer_load_dwordx4 {V(T1_WR,4)}, v17, {S(STMP)}, s7 offen", "t1", 64)
    for j in range(11):
        r, o = ad(j)
        vm(k, f"buffer_load_dword v{T1_KR+j}, v{r}, {S(SK)}, 0 offen offset:{o}", "t1", cost)
    for i in range(8):
        r, o = ad(i + 3)
        vm(k, f"buffer_load_dword v{T1_VR+i}, v{r}, {S(SV)}, 0 offen offset:{o}", "t1", cost)


def t1_compute(k):
    k.c("---- T1 compute ----")
    if CFG.get("x_not1"):
        for _ in range(16):
            k("s_nop 0")
        return
    k.wait(vm="t1")
    for m in range(4):
        up = unpack_hi if m & 1 else unpack_lo
        up(k, T1_W + 2 * m, T1_WR + (m >> 1))
        up(k, T1_W + 2 * m + 1, T1_WR + 2 + (m >> 1))
    for j in range(11):
        unpack_lo(k, T1_K + 2 * j, T1_KR + j)
        unpack_hi(k, T1_K + 2 * j + 1, T1_KR + j)
    for m in range(4):
        for i in range(8):
            d = T1_A + 2 * i
            a = T1_K + 2 * (i + 3 - m)
            w = T1_W + 2 * m
            if m == 0:
                k(f"v_pk_mul_f32 {V(d,2)}, {V(a,2)}, {V(w,2)}")
            else:
                k(f"v_pk_fma_f32 {V(d,2)}, {V(a,2)}, {V(w,2)}, {V(d,2)}")
    for i in range(8):
        unpack_lo(k, T1_V + 2 * i, T1_VR + i)
        unpack_hi(k, T1_V + 2 * i + 1, T1_VR + i)
    for i in range(8):
        d = T1_A + 2 * i
        k(f"v_pk_mul_f32 {V(d,2)}, {V(d,2)}, {V(T1_V+2*i,2)}")
    for c in range(2):
        for jj in range(4):
            k(f"v_cvt_pk_bf16_f32 v{T1_O+4*c+jj}, v{T1_A+2*(7-2*jj)+c}, v{T1_A+2*(6-2*jj)+c}")
        with atom(k):
            if c:
                k("s_add_u32 s95, s95, 4096")
            vm(k, f"buffer_store_dwordx4 {V(T1_O+4*c,4)}, v18, {S(SWS)}, s95 offen sc1", "t1s", SC_ST)


W2T = 64


def w2f_addr(k):
    k.c("---- W2F producer addresses ----")
    k("s_lshr_b32 s92, s2, 3")
    k("s_sub_u32 s92, s92, 28")
    k("s_mul_i32 s92, s92, 28")
    k("s_mul_i32 s93, s4, 7")
    k("s_add_u32 s92, s92, s93")
    k("s_and_b32 s93, s2, 7")
    k("s_lshl_b32 s21, s93, 7")
    k("s_add_u32 s21, s21, s92")
    k("s_lshl_b32 s21, s21, 11")
    k(f"s_add_u32 s21, s21, {WS_W2F}")
    k("s_lshl_b32 s93, s93, 7")
    k("s_lshl_b32 s92, s92, 14")
    k("s_add_u32 s93, s93, s92")
    k("v_and_b32 v23, 63, v0")
    k("v_lshrrev_b32 v19, 3, v23")
    k("v_and_b32 v20, 7, v23")
    k("v_bfe_u32 v21, v23, 4, 1")
    k("v_lshlrev_b32 v21, 2, v21")
    k("v_xor_b32 v20, v20, v21")
    k("v_lshlrev_b32 v20, 4, v20")
    k("v_lshl_add_u32 v19, v19, 10, v20")
    k("s_mul_i32 s92, s4, 14336")
    k(f"s_add_u32 s92, s92, {L_W2S}")
    k("v_and_b32 v20, 15, v23")
    k("v_lshrrev_b32 v21, 5, v23")
    k("v_lshrrev_b32 v22, 2, v20")
    k("v_lshl_add_u32 v21, v21, 2, v22")
    k("v_lshlrev_b32 v21, 7, v21")
    k("v_bfe_u32 v22, v23, 4, 1")
    k("v_lshlrev_b32 v22, 1, v22")
    k("v_bfe_u32 v24, v20, 1, 1")
    k("v_add_u32 v22, v22, v24")
    k("v_bfe_u32 v24, v20, 3, 1")
    k("v_lshl_add_u32 v22, v24, 2, v22")
    k("v_lshl_add_u32 v21, v22, 4, v21")
    k("v_and_b32 v24, 1, v20")
    k("v_lshl_add_u32 v20, v24, 3, v21")
    k("v_add_u32 v20, s92, v20")
    k("v_xor_b32 v21, 64, v20")
    k("v_lshlrev_b32 v22, 4, v23")


def w2f_dma(k):
    for j in range(7):
        for h in range(2):
            with atom(k):
                k(f"s_add_u32 m0, s92, {2048*j + 1024*h}")
                k(f"s_add_u32 s{SDMA}, s93, {16384*j + 8192*h}")
                vm(k, f"buffer_load_dwordx4 v19, {S(SW2)}, s{SDMA} offen lds", f"w2d{j}")


def w2f_tr(k):
    for j in range(7):
        k.wait(vm=f"w2d{j}")
        for nb in range(2):
            for hf in range(2):
                k.ds(f"ds_read_b64_tr_b16 {V(W2T + 8*j + 4*nb + 2*hf, 2)}, v{20+nb} offset:{2048*j + 1024*hf}", f"w2t{j}")


def w2f_stores(k):
    for j in range(7):
        for nb in range(2):
            with atom(k):
                if nb == 0:
                    k.wait(lg=f"w2t{j}")
                    if j and j % 2 == 0:
                        k("s_add_u32 s21, s21, 4096")
                vm(k, f"buffer_store_dwordx4 {V(W2T+8*j+4*nb,4)}, v22, {S(SWS)}, s21 offen offset:{1024*nb + 2048*(j&1)} sc1",
                   "w2s", 120)


def w2f_cons_setup(k):
    k("s_lshr_b32 s92, s2, 5")
    k("s_lshl_b32 s92, s92, 7")
    k("s_mul_i32 s93, s4, 28")
    k("s_add_u32 s92, s92, s93")
    k("s_lshl_b32 s92, s92, 11")
    k(f"s_add_u32 s92, s92, {WS_W2F}")
    k("s_and_b32 s93, s4, 1")
    k("s_lshl_b32 s93, s93, 10")
    k("s_add_u32 s92, s92, s93")
    k("s_xor_b32 s93, s92, 1024")


def w2f_cons_loads(k, after=None):
    for ii in range(28):
        for a in range(2):
            with atom(k, after):
                if ii and ii % 2 == 0:
                    k(f"s_add_u32 s{92+a}, s{92+a}, 4096")
                vm(k, f"buffer_load_dwordx4 {A(8*ii+4*a,4)}, v58, {S(SWS)}, s{92+a} offen offset:{2048*(ii%2)} sc1",
                   f"wf{ii}")


HW = 30


def h_setup(k):
    k("s_lshl_b32 s74, s2, 13")
    for ch in range(2):
        d = 84 + 4 * ch
        k(f"s_add_u32 s{d}, s{P_SSMK}, s74")
        k(f"s_addc_u32 s{d+1}, s{P_SSMK+1}, 0")
        k(f"s_mov_b32 s{d+2}, 4096")
        k(f"s_mov_b32 s{d+3}, 0x00020000")
        if ch == 0:
            k("s_add_u32 s74, s74, 4096")
    k("v_lshlrev_b32 v46, 4, v0")
    k("v_add_u32 v47, -16, v46")


def h_loads(k, after=None):
    for ch in range(2):
        with atom(k, after):
            vm(k, f"buffer_load_dwordx4 {V(HW+8*ch,4)}, v47, {S(84+4*ch)}, 0 offen", "hw")
        with atom(k, after):
            vm(k, f"buffer_load_dwordx4 {V(HW+4+8*ch,4)}, v46, {S(84+4*ch)}, 0 offen", "hw")


def kv_zero(k):
    for i in range(4):
        k(f"v_mov_b32 v{48+i}, 0")
    k(f"v_add_u32 v52, {L_KV + 4096}, v46")
    with atom(k):
        k("v_cmp_gt_u32 vcc, 32, v0")
        k("s_and_saveexec_b64 s[74:75], vcc")
        for ch in range(2):
            k.ds(f"ds_write_b128 v52, {V(48,4)} offset:{ch*KV_STRIDE}", "kvz")
        k("s_mov_b64 exec, s[74:75]")


def build_copies(k):
    k.wait(vm="hw")
    k(f"v_add_u32 v52, {L_H + 16}, v46")
    k(f"v_add_u32 v53, {L_H + 16 + CH_STRIDE}, v46")
    for ch in range(2):
        w = HW + 8 * ch
        t = (128, 224)[ch]
        R, P, Q = t, t + 6, t + 12
        src = {0: w, 4: w + 2, 2: R, 6: R + 2, 1: P, 5: P + 2, 3: Q, 7: Q + 2}

        def wr(s):
            k.ds(f"ds_write_b128 v{52+ch}, {V(src[s],4)} offset:{s*COPY_STRIDE + 16*COPY_O[s]}", "hwr")
        wr(0)
        wr(4)
        for j in range(6):
            k(f"v_mov_b32 v{R+j}, v{w+j+1}")
        wr(2)
        wr(6)
        for j in range(6):
            k(f"v_alignbyte_b32 v{P+j}, v{w+j+1}, v{w+j}, 2")
        wr(1)
        wr(5)
        for j in range(6):
            k(f"v_alignbyte_b32 v{Q+j}, v{w+j+2}, v{w+j+1}, 2")
        wr(3)
        wr(7)
    with atom(k):
        k("s_mov_b32 s76, 255")
        k("v_cmp_eq_u32 vcc, s76, v0")
        k("s_and_saveexec_b64 s[74:75], vcc")
        for ch in range(2):
            k.ds(f"ds_write_b128 v{52+ch}, {V(HW+8*ch+4,4)} offset:{16 + 16*COPY_O[0]}", "hwr")
        k("s_mov_b64 exec, s[74:75]")
    with atom(k):
        lut = sum(o << (4 * i) for i, o in enumerate(COPY_O))
        k(f"s_mov_b32 s76, {lut}")
        k("v_lshlrev_b32 v54, 2, v0")
        k("v_bfe_u32 v54, s76, v54, 4")
        k("v_lshlrev_b32 v54, 4, v54")
        k(f"v_mul_u32_u24 v55, {COPY_STRIDE}, v0")
        k("v_add_u32 v54, v54, v55")
        k(f"v_add_u32 v54, {L_H}, v54")
        k("v_cmp_gt_u32 vcc, 8, v0")
        k("s_and_saveexec_b64 s[74:75], vcc")
        k.ds(f"ds_write_b128 v54, {V(48,4)}", "hwr")
        k.ds(f"ds_write_b128 v54, {V(48,4)} offset:{CH_STRIDE}", "hwr")
        k("s_mov_b64 exec, s[74:75]")


KVR = 244


def kv_loads(k, after=None):
    with atom(k, after):
        k("s_lshl_b32 s94, s2, 13")
        k(f"s_add_u32 s94, s94, {WS_KVR}")
        vm(k, f"buffer_load_dwordx4 {V(KVR,4)}, v46, {S(SWS)}, s94 offen sc1", "kv")
    with atom(k, after):
        k("s_lshl_b32 s94, s2, 13")
        k(f"s_add_u32 s94, s94, {WS_KVR + 4096}")
        vm(k, f"buffer_load_dwordx4 {V(KVR+4,4)}, v46, {S(SWS)}, s94 offen sc1", "kv")


def kv_write(k):
    k(f"v_add_u32 v54, {L_KV}, v46")
    k.wait(vm="kv")
    for ch in range(2):
        k.ds(f"ds_write_b128 v54, {V(KVR+4*ch,4)} offset:{ch*KV_STRIDE}", "kvw")


def flag_addrs(k):
    k("v_and_b32 v58, 63, v0")
    k("s_lshr_b32 s75, s2, 5")
    k("s_lshl_b32 s74, s75, 5")
    k("v_and_b32 v59, 31, v58")
    k("v_add_u32 v61, s74, v59")
    k("v_and_b32 v60, 3, v58")
    k("v_lshlrev_b32 v60, 3, v60")
    k(f"s_add_u32 s75, s75, {(WS_F0B - WS_F0) // 128}")
    k("v_add_u32 v60, s75, v60")
    k("v_cmp_gt_u32 vcc, 32, v58")
    k("v_cndmask_b32 v56, v60, v61, vcc")
    k("v_lshlrev_b32 v56, 7, v56")
    k(f"v_add_u32 v61, {(WS_F2 - WS_F1) // 128}, v61")
    k("v_add_u32 v59, 224, v59")
    k("v_cndmask_b32 v61, v59, v61, vcc")
    k("v_lshlrev_b32 v61, 7, v61")
    k("s_and_b32 s74, s2, 7")
    k("s_lshl_b32 s74, s74, 2")
    k("s_lshr_b32 s75, s2, 3")
    k("s_and_b32 s75, s75, 3")
    k("s_add_u32 s74, s74, s75")
    k("s_lshr_b32 s75, s74, 1")
    if CFG.get("xm"):
        k("s_lshr_b32 s76, s75, 1")
        k("s_and_b32 s77, s75, 1")
        k("s_lshl_b32 s77, s77, 3")
        k("s_add_u32 s76, s76, s77")
        k("v_lshlrev_b32 v60, 4, v58")
    else:
        k("s_lshr_b32 s76, s75, 2")
        k("s_lshl_b32 s76, s76, 1")
        k("s_and_b32 s77, s75, 3")
        k("s_lshl_b32 s77, s77, 3")
        k("s_add_u32 s76, s76, s77")
        k("v_cmp_lt_u32 vcc, 6, v58")
        k("v_cndmask_b32 v59, 0, 1, vcc")
        k("v_mul_u32_u24 v60, 7, v59")
        k("v_sub_u32 v60, v58, v60")
        k("v_lshlrev_b32 v60, 5, v60")
        k("v_add_u32 v60, v60, v59")
    k("v_cmp_gt_u32 vcc, 14, v58")
    k("v_cndmask_b32 v60, 0, v60, vcc")
    k("v_add_u32 v60, s76, v60")
    k("v_lshlrev_b32 v57, 7, v60")
    k("s_cmp_eq_u32 s4, 0")
    k(f"s_cselect_b32 s74, 0, {OOB}")
    k("v_or_b32 v56, s74, v56")
    k("v_or_b32 v57, s74, v57")
    k("v_or_b32 v61, s74, v61")
    k("v_lshlrev_b32 v58, 4, v58")


BA0, BB1 = 248, 20


def rot_setup(k):
    m = CFG.get("rot", 0)
    if not m:
        return
    k("s_lshr_b32 s20, s2, 3")
    if m == 1:
        k("s_and_b32 s20, s20, 7")
    elif m == 2:
        k("s_and_b32 s20, s20, 3")
        k("s_lshl_b32 s20, s20, 1")
    elif m == 3:
        k("s_lshr_b32 s20, s20, 2")
    elif m == 4:
        k("s_lshr_b32 s20, s20, 2")
        k("s_and_b32 s20, s20, 1")
        k("s_lshl_b32 s20, s20, 2")
    elif m == 5:
        k("s_and_b32 s20, s20, 1")
        k("s_lshl_b32 s20, s20, 2")
    elif m == 6:
        k("s_add_u32 s20, s5, s6")
        k("s_and_b32 s20, s20, 7")
    elif m == 7:
        k("s_lshl_b32 s20, s5, 1")
        k("s_add_u32 s20, s20, s6")
        k("s_and_b32 s20, s20, 7")
    elif m == 8:
        k("s_lshr_b32 s20, s5, 2")
        k("s_lshl_b32 s20, s20, 1")
        k("s_add_u32 s20, s20, s5")
        k("s_add_u32 s20, s20, s6")
        k("s_and_b32 s20, s20, 7")


def g1_dma(k, slab, buf, after=None):
    rot = CFG.get("rot", 0)
    for i in range(4):
        with atom(k, after):
            if rot and i == 0:
                k("s_lshl_b32 s56, s20, 7")
                k("s_add_u32 s56, s56, s80")
                k("s_mul_i32 s57, s20, 229376")
                k("s_add_u32 s57, s57, s81")
                k("s_add_u32 s20, s20, 1")
                k("s_and_b32 s20, s20, 7")
            k(f"s_add_u32 m0, s82, {buf + 1024*i}")
            if rot:
                k(f"s_add_u32 s{SDMA}, s56, {8192*i}")
            else:
                k(f"s_add_u32 s{SDMA}, s80, {8192*i + 128*slab}")
            vm(k, f"buffer_load_dwordx4 v{1 + (i&1)}, {S(SQ)}, s{SDMA} offen lds", f"slab{slab}")
    for i in range(4):
        with atom(k, after):
            k(f"s_add_u32 m0, s82, {buf + 16384 + 1024*i}")
            if rot:
                k(f"s_add_u32 s{SDMA}, s57, {4*i*3584}")
            else:
                k(f"s_add_u32 s{SDMA}, s81, {(64*slab + 4*i)*3584}")
            vm(k, f"buffer_load_dwordx4 v3, {S(SW1)}, s{SDMA} offen lds", f"slab{slab}")


def bias_addr(k):
    k("v_lshlrev_b32 v19, 1, v10")
    k("v_cmp_gt_u32 vcc, 32, v10")
    k(f"v_mov_b32 v20, {OOB}")
    k("v_cndmask_b32 v19, v20, v19, vcc")
    k("v_mov_b32 v20, 0")
    k("v_mov_b32 v21, 0x3f80")
    k(f"v_cndmask_b32 v{BB1}, v20, v21, vcc")
    for r in (BB1 + 1, BB1 + 2, BB1 + 3, BA0 + 1, BA0 + 2, BA0 + 3, BA0 + 5, BA0 + 6, BA0 + 7):
        k(f"v_mov_b32 v{r}, 0")
    k("s_lshl_b32 s76, s6, 8")
    k("s_and_b32 s77, s4, 1")
    k("s_lshl_b32 s77, s77, 7")
    k("s_add_u32 s83, s76, s77")


def bias_loads(k):
    with atom(k):
        stmp(k, P_B1, 1792 * 2)
        vm(k, f"buffer_load_ushort v{BA0}, v19, {S(STMP)}, s83 offen", "bias", 32)
    with atom(k):
        vm(k, f"buffer_load_ushort v{BA0+4}, v19, {S(STMP)}, s83 offen offset:64", "bias", 32)


def bias_mfma(k):
    k.wait(vm="bias")
    for fb in range(2):
        for mb in range(2):
            d = G1_ACC + 32 * fb + 16 * mb
            k(f"v_mfma_f32_32x32x16_bf16 {V(d,16)}, {V(BA0+4*fb,4)}, {V(BB1,4)}, {V(d,16)}")


def sprinkle(k, items, per):
    q = list(items)

    def hook(n=per):
        for _ in range(n):
            if q:
                k._add(q.pop(0))
    hook.q = q
    return hook


def g1_main(k, bufs, pre, post, extra):
    nb = len(bufs)
    k.c("---- G1 main ----")
    k.wait(vm="slab0")
    k("s_barrier")
    ts(k, 6)
    G.g1_reads(k, bufs[0], 0, "r0_0")
    G.g1_reads(k, bufs[0], 1, "r0_1")
    hooks = []

    def mf(ks, first):
        fr = G1_FR + 16 * ks
        for fb in range(2):
            for mb in range(2):
                d = G1_ACC + 32 * fb + 16 * mb
                c = "0" if first else V(d, 16)
                k(f"v_mfma_f32_32x32x16_bf16 {V(d,16)}, {V(fr + 4*fb, 4)}, {V(fr + 8 + 4*mb, 4)}, {c}")
                for h in hooks:
                    if h.q:
                        h()
                        break

    for s in range(8):
        buf = bufs[s % nb]
        if ("a", s) in extra:
            hooks.append(sprinkle(k, *extra[("a", s)]))
        G.g1_reads(k, buf, 2, f"r{s}_2")
        k.wait(lg=f"r{s}_0")
        mf(0, s == 0)
        G.g1_reads(k, buf, 3, f"r{s}_3")
        k.wait(lg=f"r{s}_1")
        mf(1, False)
        if s < 7:
            if s in pre:
                pre[s]()
            k.wait(vm=f"slab{s+1}", lg=f"r{s}_3")
            k("s_barrier")
            k.mark(f"bar{s}")
            ts(k, 7 + s)
            if s in post:
                post[s]()
            if ("b", s) in extra:
                hooks.append(sprinkle(k, *extra[("b", s)]))
            nbuf = bufs[(s + 1) % nb]
            G.g1_reads(k, nbuf, 0, f"r{s+1}_0")
            mf(2, False)
            G.g1_reads(k, nbuf, 1, f"r{s+1}_1")
            mf(3, False)
        else:
            k.wait(lg=f"r{s}_2")
            mf(2, False)
            k.wait(lg=f"r{s}_3")
            mf(3, False)
    for h in hooks:
        h(10000)


def g1_epilogue(k):
    k.c("---- G1 epilogue ----")
    k("s_lshl_b32 s74, s5, 2")
    k("s_lshr_b32 s75, s4, 1")
    k("s_lshl_b32 s75, s75, 1")
    k("s_add_u32 s74, s74, s75")
    k("s_mul_i32 s74, s74, 112")
    k("s_lshl_b32 s75, s6, 3")
    k("s_add_u32 s74, s74, s75")
    k("s_and_b32 s75, s4, 1")
    k("s_lshl_b32 s75, s75, 2")
    k("s_add_u32 s74, s74, s75")
    k("s_lshl_b32 s74, s74, 10")
    k(f"s_add_u32 s78, s74, {WS_HF}")
    k(f"s_add_u32 s79, s78, {112*1024}")
    tmp = 160
    ti = 0
    for mb in range(2):
        for fb in range(2):
            acc = G1_ACC + 32 * fb + 16 * mb
            for half in range(2):
                t = tmp + 4 * ti
                ti += 1
                for r in range(8 * half, 8 * half + 8):
                    k(f"v_max_f32 v{acc+r}, 0, v{acc+r}")
                for r in range(8 * half, 8 * half + 8, 2):
                    k(f"v_pk_mul_f32 {V(acc+r,2)}, {V(acc+r,2)}, {V(acc+r,2)}")
                for i in range(4):
                    r = acc + 8 * half + 2 * i
                    k(f"v_cvt_pk_bf16_f32 v{t+i}, v{r}, v{r+1}")
                vm(k, f"buffer_store_dwordx4 {V(t,4)}, v58, {S(SWS)}, s{78+mb} offen offset:{(2*fb+half)*1024} sc1", "hs",
                   CFG.get("hscost", 200))


CA, CB = 59, 60


def conv_addr(k):
    k.c("---- conv addresses ----")
    k("v_and_b32 v10, 63, v0")
    k("v_and_b32 v11, 15, v10")
    k("v_lshrrev_b32 v12, 4, v10")
    k("v_add_u32 v13, 1, v11")
    k("v_and_b32 v14, 7, v13")
    k("v_lshrrev_b32 v15, 3, v13")
    lut = sum(o << (4 * i) for i, o in enumerate(COPY_O))
    k(f"s_mov_b32 s74, {lut}")
    k("v_lshlrev_b32 v16, 2, v14")
    k("v_bfe_u32 v16, s74, v16, 4")
    k("v_add_u32 v16, v16, v15")
    k("v_add_u32 v16, v16, v12")
    k("v_lshlrev_b32 v16, 4, v16")
    k(f"v_mul_u32_u24 v17, {COPY_STRIDE}, v14")
    k("v_add_u32 v16, v16, v17")
    k("s_lshr_b32 s75, s4, 1")
    k(f"s_mul_i32 s76, s75, {CH_STRIDE}")
    k("s_and_b32 s77, s4, 1")
    k("s_lshl_b32 s77, s77, 8")
    k("s_add_u32 s76, s76, s77")
    k(f"s_add_u32 s76, s76, {L_H}")
    k(f"v_add_u32 v{CA}, s76, v16")
    k(f"s_mul_i32 s76, s75, {KV_STRIDE}")
    k("s_add_u32 s76, s76, s77")
    k(f"s_add_u32 s76, s76, {L_KV + 480}")
    k("v_lshlrev_b32 v16, 5, v11")
    k("v_lshlrev_b32 v17, 4, v12")
    k("v_sub_u32 v16, v17, v16")
    k(f"v_add_u32 v{CB}, s76, v16")


def conv_main(k, hook):
    k.c("---- conv main ----")
    order = conv_order()
    for i in range(8):
        k.ds(f"ds_read_b128 {V(CV_FA + 4*i, 4)}, v{CA} offset:{512*i}", f"ca0_{i}")
        k.ds(f"ds_read_b128 {V(CV_FB + 4*i, 4)}, v{CB} offset:{512*(7-i)}", f"cb0_{i}")
    touched = set()
    for c0i in range(4):
        st = c0i & 1
        nxt = []
        if c0i < 3:
            for i in range(8):
                nxt.append((f"ds_read_b128 {V(CV_FA + 32*(st^1) + 4*i, 4)}, v{CA} offset:{512*i + 64*(c0i+1)}", f"ca{c0i+1}_{i}"))
                nxt.append((f"ds_read_b128 {V(CV_FB + 32*(st^1) + 4*i, 4)}, v{CB} offset:{512*(7-i) + 64*(c0i+1)}", f"cb{c0i+1}_{i}"))
        waited = set()
        for n, (d, c1) in enumerate(order):
            tags = [t for t in (f"ca{c0i}_{c1}", f"cb{c0i}_{d}") if t not in waited]
            if tags:
                k.wait(lg=tags)
                waited.update(tags)
            j = d + c1
            acc = V(CV_ACC + 4 * j, 4)
            c = acc if j in touched else "0"
            touched.add(j)
            k(f"v_mfma_f32_16x16x32_bf16 {acc}, {V(CV_FA + 32*st + 4*c1, 4)}, {V(CV_FB + 32*st + 4*d, 4)}, {c}")
            if n >= 18 and nxt:
                t, tg = nxt.pop(0)
                k.ds(t, tg)
            hook(c0i * 36 + n)


def conv_epilogue(k, prebar):
    k.c("---- conv epilogue ----")
    k("v_and_b32 v10, 63, v0")
    k("v_and_b32 v11, 15, v10")
    k("v_lshrrev_b32 v12, 4, v10")
    k("v_lshlrev_b32 v11, 6, v11")
    k("v_lshl_add_u32 v11, v12, 4, v11")
    k("s_lshl_b32 s74, s4, 13")
    k(f"s_add_u32 s74, s74, {L_PART}")
    k("v_add_u32 v11, s74, v11")
    k("s_lshr_b32 s75, s4, 1")
    for j in range(8):
        k.ds(f"ds_write_b128 v11, {V(CV_ACC + 4*j, 4)} offset:{1024*j}", "pw")
    k("v_and_b32 v1, 127, v0")
    k("v_lshlrev_b32 v2, 5, v1")
    k("s_lshl_b32 s74, s75, 14")
    k(f"s_add_u32 s74, s74, {L_PART}")
    k("v_add_u32 v2, s74, v2")
    k(f"s_mul_i32 s74, s75, {KV_STRIDE}")
    k(f"s_add_u32 s74, s74, {L_KV + 4080 - 2048}")
    k("v_lshlrev_b32 v3, 4, v1")
    k("v_sub_u32 v3, s74, v3")
    k("s_lshl_b32 s79, s75, 4")
    k("s_lshr_b32 s77, s23, s79")
    k("s_lshl_b32 s77, s77, 16")
    k.wait(lg="pw")
    prebar()
    k("s_barrier")
    k.mark("cvbar")
    for seg in range(2):
        b = 8 + 24 * seg
        for p in range(2):
            for hh in range(2):
                k.ds(f"ds_read_b128 {V(b + 8*p + 4*hh, 4)}, v2 offset:{8192*p + 4096*seg + 16*hh}", f"pr{seg}")
        k.ds(f"ds_read_b128 {V(b + 16, 4)}, v3 offset:{2048*(1-seg)}", f"pr{seg}")
    k("s_lshl_b32 s74, s2, 13")
    k("s_lshl_b32 s79, s75, 12")
    k("s_add_u32 s74, s74, s79")
    k(f"s_add_u32 s74, s74, {WS_YT}")
    k("v_lshlrev_b32 v4, 4, v1")
    for seg in range(2):
        b = 8 + 24 * seg
        k.wait(lg=f"pr{seg}")
        for i in range(0, 8, 2):
            k(f"v_pk_add_f32 {V(b+i,2)}, {V(b+i,2)}, {V(b+8+i,2)}")
        for i in range(8):
            e = 7 - i
            (unpack_hi if e & 1 else unpack_lo)(k, 6 + (i & 1), b + 16 + (e >> 1))
            k(f"v_fmac_f32 v{b+i}, s77, v{6 + (i & 1)}")
        for i in range(4):
            k(f"v_cvt_pk_bf16_f32 v{b+20+i}, v{b+2*i}, v{b+2*i+1}")
    k.mark("ysready")
    for seg in range(2):
        b = 8 + 24 * seg
        vm(k, f"buffer_store_dwordx4 {V(b+20,4)}, v4, {S(SWS)}, s74 offen offset:{2048*seg} sc1", "ys", SC_ST)


FB = 128


def g2_setup(k):
    G.g2_ids(k)
    k("s_lshr_b32 s74, s4, 1")
    k("s_lshl_b32 s75, s5, 1")
    k("s_add_u32 s80, s75, s74")
    k("s_xor_b32 s81, s80, 1")
    k("s_mul_i32 s78, s4, 28")
    for b in range(2):
        k(f"s_mul_i32 s{80+b}, s{80+b}, 112")
        k(f"s_add_u32 s{80+b}, s{80+b}, s78")
        k(f"s_lshl_b32 s{80+b}, s{80+b}, 10")
        k(f"s_add_u32 s{80+b}, s{80+b}, {WS_HF}")


def hf_loads(k, depth, first_after):
    for i in range(28):
        for b in range(2):
            after = first_after if i < depth else f"g2_{i - depth}"
            with atom(k, after):
                if b == 0 and i and i % 4 == 0:
                    k("s_add_u32 s80, s80, 4096")
                    k("s_add_u32 s81, s81, 4096")
                r = FB + 8 * (i % depth) + 4 * b
                vm(k, f"buffer_load_dwordx4 {V(r,4)}, v58, {S(SWS)}, s{80+b} offen offset:{1024*(i%4)} sc1", f"hf{i}")


def g2_main(k, depth, hooks):
    k.c("---- G2 main ----")
    for i in range(28):
        k.wait(vm=[f"hf{i}", f"wf{i}"])
        for b in range(2):
            for a in range(2):
                d = G2_ACC + 16 * (a + 2 * b)
                c = V(d, 16) if i else "0"
                k(f"v_mfma_f32_32x32x16_bf16 {V(d,16)}, {A(8*i + 4*a, 4)}, {V(FB + 8*(i%depth) + 4*b, 4)}, {c}")
        k.mark(f"g2_{i}")
        if i in hooks:
            hooks[i]()


EQ, EB2, EY, EG = 8, 16, 24, 32


def g2_ep_addr(k):
    k("v_and_b32 v40, 63, v0")
    k("v_and_b32 v41, 31, v40")
    k("v_lshrrev_b32 v42, 5, v40")
    k("s_and_b32 s74, s4, 1")
    k("s_lshr_b32 s75, s4, 1")
    k("s_lshl_b32 s76, s5, 6")
    k("s_lshl_b32 s77, s75, 5")
    k("s_add_u32 s76, s76, s77")
    k("s_lshl_b32 s77, s6, 6")
    k("s_lshl_b32 s78, s74, 5")
    k("s_add_u32 s77, s77, s78")
    k("v_lshlrev_b32 v46, 10, v41")
    k("v_lshl_add_u32 v46, v42, 3, v46")
    k("s_lshl_b32 s82, s76, 10")
    k("s_lshl_b32 s83, s77, 1")
    k("s_add_u32 s82, s82, s83")
    k("v_lshlrev_b32 v47, 3, v42")
    k("v_lshrrev_b32 v43, 2, v40")
    k("v_and_b32 v44, 3, v40")
    k("v_lshlrev_b32 v45, 12, v43")
    k("v_lshl_add_u32 v45, v44, 4, v45")
    k("s_lshl_b32 s84, s77, 12")
    k("s_lshl_b32 s85, s76, 1")
    k("s_add_u32 s84, s84, s85")
    k(f"s_add_u32 s84, s84, {WS_YT}")
    k(f"s_add_u32 s85, s84, {16*4096}")
    k("v_lshlrev_b32 v48, 2, v41")
    k("s_lshl_b32 s86, s76, 2")
    k(f"s_add_u32 s86, s86, {WS_G}")


def g2_ep_loads_plain(k, after=None):
    for g in range(4):
        with atom(k, after):
            vm(k, f"buffer_load_dwordx2 {V(EQ+2*g,2)}, v46, {S(SQ)}, s82 offen offset:{16*g}", "q", 200)
    for g in range(4):
        with atom(k, after):
            if g == 0:
                stmp(k, P_B2, 1024)
            vm(k, f"buffer_load_dwordx2 {V(EB2+2*g,2)}, v47, {S(STMP)}, s83 offen offset:{16*g}", "b2", 64)


def g2_ep_loads_sc1(k, after=None):
    with atom(k, after):
        vm(k, f"buffer_load_dword v{EG}, v48, {S(SWS)}, s86 offen sc1", "g", 32)
    with atom(k, after):
        vm(k, f"buffer_load_dwordx4 {V(EY,4)}, v45, {S(SWS)}, s84 offen sc1", "yt", 81)
    with atom(k, after):
        vm(k, f"buffer_load_dwordx4 {V(EY+4,4)}, v45, {S(SWS)}, s85 offen sc1", "yt", 81)


def g2_epilogue(k):
    k.c("---- G2 epilogue ----")
    k("v_lshlrev_b32 v49, 4, v40")
    for sg in range(1, 4):
        k(f"s_xor_b32 s80, s4, {sg}")
        k("s_mul_i32 s80, s80, 12288")
        k(f"v_add_u32 v50, s80, v49")
        for g in range(4):
            k.ds(f"ds_write_b128 v50, {V(G2_ACC + 16*sg + 4*g, 4)} offset:{L_RED + (sg-1)*4096 + 1024*g}", "rw")
    k("s_lshl_b32 s80, s4, 11")
    k(f"s_add_u32 s80, s80, {L_YL}")
    k("v_add_u32 v51, s80, v49")
    k.wait(vm="yt")
    k.ds(f"ds_write_b128 v51, {V(EY,4)}", "yw")
    k.ds(f"ds_write_b128 v51, {V(EY+4,4)} offset:1024", "yw")
    k.wait(lg=["rw", "yw"])
    k("s_barrier")
    ts(k, 25)
    k("s_mul_i32 s80, s4, 12288")
    k("v_add_u32 v50, s80, v49")
    for sg in range(3):
        for g in range(4):
            k.ds(f"ds_read_b128 {V(160 + 16*sg + 4*g, 4)}, v50 offset:{L_RED + sg*4096 + 1024*g}", f"rr{sg}")
    k("v_and_b32 v52, 15, v40")
    k("v_lshrrev_b32 v53, 2, v52")
    k("v_lshl_add_u32 v53, v42, 2, v53")
    k("v_lshlrev_b32 v53, 6, v53")
    k("v_bfe_u32 v54, v40, 4, 1")
    k("v_lshl_add_u32 v53, v54, 5, v53")
    k("v_and_b32 v54, 3, v52")
    k("v_lshl_add_u32 v53, v54, 3, v53")
    k("s_lshl_b32 s80, s4, 11")
    k(f"s_add_u32 s80, s80, {L_YL}")
    k("v_add_u32 v53, s80, v53")
    for g in range(4):
        k.ds(f"ds_read_b64_tr_b16 {V(208+2*g,2)}, v53 offset:{512*g}", "yr")
    acc = G2_ACC
    for sg in range(3):
        k.wait(lg=f"rr{sg}")
        for r in range(0, 16, 2):
            k(f"v_pk_add_f32 {V(acc+r,2)}, {V(acc+r,2)}, {V(160+16*sg+r,2)}")
    k.wait(vm=["q", "b2", "g"], lg="yr")
    X = 224
    slot = {0: 0, 2: 2, 1: 4, 3: 6}
    for g in range(4):
        for i in range(4):
            up = unpack_hi if i & 1 else unpack_lo
            up(k, 128 + i, EB2 + 2 * g + (i >> 1))
            up(k, 132 + i, EQ + 2 * g + (i >> 1))
            up(k, 136 + i, 208 + 2 * g + (i >> 1))
        for i in range(4):
            r = acc + 4 * g + i
            k(f"v_add_f32 v{r}, v{r}, v{128+i}")
        for i in range(4):
            r = acc + 4 * g + i
            k(f"v_fma_f32 v{132+i}, v{132+i}, v{136+i}, -v{r}")
        for i in range(4):
            r = acc + 4 * g + i
            k(f"v_fmac_f32 v{r}, v{EG}, v{132+i}")
        for d in range(2):
            r = acc + 4 * g + 2 * d
            k(f"v_cvt_pk_bf16_f32 v{X + slot[g] + d}, v{r}, v{r+1}")
    for base in (0, 4):
        k(f"v_permlane32_swap_b32 v{X+base}, v{X+base+2}")
        k(f"v_permlane32_swap_b32 v{X+base+1}, v{X+base+3}")
    k("v_lshlrev_b32 v46, 10, v41")
    k("v_lshl_add_u32 v46, v42, 5, v46")
    osc = ["", " sc1", " nt", " sc0 sc1", " sc1 nt"][CFG.get("osc", 0)]
    vm(k, f"buffer_store_dwordx4 {V(X,4)}, v46, {S(SOUT)}, s82 offen{osc}", "os")
    vm(k, f"buffer_store_dwordx4 {V(X+4,4)}, v46, {S(SOUT)}, s82 offen offset:16{osc}", "os")


def gate_loads(k):
    k("s_and_b32 s5, s2, 7")
    k("s_lshl_b32 s5, s5, 2")
    k("s_lshr_b32 s6, s2, 3")
    k("s_sub_u32 s6, s6, 28")
    k("s_add_u32 s5, s5, s6")
    k("s_lshl_b32 s5, s5, 6")
    k("s_lshl_b32 s6, s4, 4")
    k("s_add_u32 s5, s5, s6")
    k("s_lshl_b32 s6, s5, 10")
    stmp(k, P_GATE, 1024)
    k.vmem(f"buffer_load_dwordx4 {V(4,4)}, v22, {S(STMP)}, 0 offen", "gw")
    for i in range(16):
        if i and i % 4 == 0:
            k("s_add_u32 s6, s6, 4096")
        k.vmem(f"buffer_load_dwordx4 {A(4*i,4)}, v22, {S(SQ)}, s6 offen offset:{1024*(i%4)}", f"gx{i}")


def gate_compute(k):
    k.c("---- gate compute ----")
    k.wait(vm="gw")
    for c in range(8):
        (unpack_hi if c & 1 else unpack_lo)(k, 8 + c, 4 + (c >> 1))
    R = 96
    for i in range(16):
        k.wait(vm=f"gx{i}")
        s = 64 + 4 * (i & 1)
        for c in range(4):
            k(f"v_accvgpr_read_b32 v{s+c}, a{4*i+c}")
        u = 72 + 8 * (i & 1)
        for c in range(8):
            (unpack_hi if c & 1 else unpack_lo)(k, u + c, s + (c >> 1))
        t = 88 + 2 * (i & 1)
        for cp in range(0, 8, 2):
            if cp == 0:
                k(f"v_pk_mul_f32 {V(t,2)}, {V(u,2)}, {V(8,2)}")
            else:
                k(f"v_pk_fma_f32 {V(t,2)}, {V(u+cp,2)}, {V(8+cp,2)}, {V(t,2)}")
        k(f"v_add_f32 v{R+i}, v{t}, v{t+1}")
    for mod in ["row_shr:1", "row_shr:2", "row_shr:4", "row_shr:8", "row_bcast:15 row_mask:0xa",
                "row_bcast:31 row_mask:0xc"]:
        for i in range(16):
            m = mod if "row_mask" in mod else mod + " row_mask:0xf"
            k(f"v_add_f32_dpp v{R+i}, v{R+i}, v{R+i} {m} bank_mask:0xf")
    k("v_mov_b32 v2, 0")
    for g in range(0, 16, 4):
        for i in range(g, g + 4):
            k(f"v_readlane_b32 s{76+i-g}, v{R+i}, 63")
        for i in range(g, g + 4):
            k(f"v_writelane_b32 v2, s{76+i-g}, {i}")
    k("v_mul_f32 v2, 0xbfb8aa3b, v2")
    k("v_exp_f32 v2, v2")
    k("v_add_f32 v2, 1.0, v2")
    k("v_rcp_f32 v2, v2")
    k("v_and_b32 v1, 63, v0")
    k("v_lshlrev_b32 v3, 2, v1")
    k("s_lshl_b32 s6, s5, 2")
    k(f"s_add_u32 s6, s6, {WS_G}")
    k("v_cmp_gt_u32 vcc, 16, v1")
    k("s_and_saveexec_b64 s[74:75], vcc")
    k.vmem(f"buffer_store_dword v2, v3, {S(SWS)}, s6 offen sc1", "gs")
    k("s_mov_b64 exec, s[74:75]")


def rec(f, *a, **kw):
    r = Rec()
    f(r, *a, **kw)
    return r.items


def late_scalars(k):
    k(f"s_load_dword s96, s[{P_WS}:{P_WS+1}], {WS_EPOCH}")
    k("s_lshl_b32 s74, s2, 2")
    k(f"s_load_dword s23, s[{P_SSMD}:{P_SSMD+1}], s74")


def gen_full(cfg):
    global CFG
    CFG = cfg
    if cfg.get("x_nords"):
        G.g1_reads = lambda *a, **kw: None
    g = cfg.get
    k = KT()
    END = "K_END"
    bufs = [0, 32768, 65536, 98304]
    prologue(k, END)
    if g("icpf"):
        code_prefetch(k)
    if g("ts"):
        k("v_mov_b32 v63, 0")
    ts(k, 0)
    k("s_lshr_b32 s74, s2, 3")
    k("s_cmp_ge_u32 s74, 28")
    k("s_cbranch_scc1 GATE")
    G.g1_setup(k, cfg)
    bias_addr(k)
    rot_setup(k)
    t1_addr(k)
    srd_consts(k)
    k("s_waitcnt lgkmcnt(0)")
    srd_ptrs(k, (SQ, SW1))
    ts_setup(k, cfg) if False else None
    if g("x_dma"):
        srd_ptrs(k, (SK, SV, SWS, SW2, SOUT))
        ts_setup(k, cfg)
        npass = g("x_dma")
        for p in range(npass):
            if p:
                k("s_barrier")
            ts(k, 1 + 10 * p)
            infl = g("x_infl", 8)

            def iss(sl):
                r = Rec()
                g1_dma(r, sl, bufs[sl % 4])
                for it in r.items:
                    emit(k, it)
            for sl in range(infl):
                iss(sl)
            for sl in range(8):
                k.wait(vm=f"slab{sl}")
                ts(k, 2 + sl + 10 * p)
                if sl + infl < 8:
                    iss(sl + infl)
        k.wait_all()
        ts_final(k, cfg, 27)
        k("s_waitcnt vmcnt(0)")
        k("s_endpgm")
        k("GATE:")
        srd_consts(k)
        k("s_waitcnt lgkmcnt(0)")
        srd_ptrs(k, (SK, SV, SWS, SW2, SOUT))
        ts_setup(k, cfg)
        ts_final(k, cfg, 27)
        k("s_waitcnt vmcnt(0)")
        k(f"{END}:")
        k("s_endpgm")
        return k
    T1POS = g("t1pos", 1)
    W = Weaver(k, g("p_g1", 32))
    W.t = W.ta = 8 * 88
    r = Rec()
    g1_dma(r, 0, bufs[0])
    for it in r.items:
        emit(k, it)
    srd_ptrs(k, (SK, SV, SWS, SW2, SOUT))
    late_scalars(k)
    ts_setup(k, cfg)
    ts(k, 1)
    bg = Rec()
    if T1POS == 0:
        t1_loads(bg)
    g1_dma(bg, 1, bufs[1])
    if T1POS == 1:
        t1_loads(bg)
    bias_loads(bg)
    g1_dma(bg, 2, bufs[2])
    if T1POS == 2:
        t1_loads(bg)
    g1_dma(bg, 3, bufs[3])
    for s in range(4, 8):
        g1_dma(bg, s, bufs[s - 4], after=f"bar{s-4}")
    h_loads(bg, after="t1done")
    w2f_cons_loads(bg, after="f0bok")
    W.push(bg.items)
    W.flush(g("ndirect", 0))
    fg = Rec()
    h_setup(fg)
    kv_zero(fg)
    flag_addrs(fg)
    fg("s_waitcnt lgkmcnt(0)")
    nonce(fg)
    w2f_cons_setup(fg)
    ts(fg, 5)
    t1c = rec(t1_compute)
    t1c.append(("m", "t1done"))
    P0 = g("pub0", 4)
    T1SEG = g("t1seg", 1)
    BSEG = g("bseg", 1)
    POLL0B = g("poll0b", 3)
    CHK0B = g("chk0b", 4)
    POLL0A = g("poll0a", 5)
    CHK0A = g("chk0a", 6)
    TAILPOS = g("tailpos", 1)
    pre = {}
    post = {}

    def addh(d, s, f):
        old = d.get(s)
        d[s] = (lambda: (old(), f())) if old else f
    addh(pre, P0, lambda: fg.wait(vm="t1s"))
    addh(post, P0, lambda: publish(fg, WS_F0))
    addh(pre, CHK0B, lambda: (poll_check(fg, 62, 56, WS_F0, "p0b", "hi"), ts(fg, 2)))
    addh(post, CHK0B, lambda: fg.mark("f0bok"))
    addh(post, POLL0B, lambda: poll_issue(fg, 62, 56, WS_F0, "p0b"))
    if CHK0A < 7:
        addh(pre, CHK0A, lambda: (poll_check(fg, 62, 56, WS_F0, "p0a", "lo"), ts(fg, 14)))
        addh(post, CHK0A, lambda: kv_loads(fg))
    if POLL0A < 7:
        addh(post, POLL0A, lambda: poll_issue(fg, 62, 56, WS_F0, "p0a"))
    if T1SEG < 0:
        for it in t1c:
            fg._add(it)
    tail = rec(build_copies) + rec(conv_addr)
    extra = {("a", BSEG): (rec(bias_mfma), 5)}
    if TAILPOS == 0:
        extra[("b", 6)] = (tail, g("tailper", 4))
    if T1SEG >= 0:
        extra[("b", T1SEG)] = (t1c, g("t1per", 5))
    g1_main(fg, bufs, pre, post, extra)
    ts(fg, 15)
    if CHK0A == 7:
        if POLL0A == 7:
            poll_issue(fg, 62, 56, WS_F0, "p0a")
        poll_check(fg, 62, 56, WS_F0, "p0a", "lo")
        fg("s_barrier")
        ts(fg, 14)
        kv_loads(fg)
    fg.period(g("p_ep", 32))
    g1_epilogue(fg)
    if CHK0A == 8:
        if POLL0A >= 7:
            poll_issue(fg, 62, 56, WS_F0, "p0a")
        poll_check(fg, 62, 56, WS_F0, "p0a", "lo")
        fg("s_barrier")
        ts(fg, 14)
        kv_loads(fg)
    ts(fg, 4)
    if TAILPOS == 1:
        for it in tail:
            fg._add(it)
    kv_write(fg)
    ts(fg, 16)
    conflicts("g1", fg.items, bg.items, ok=[("s", "m0"), ("v", 62, 62), ("v", 224, 255), ("v", 30, 47), ("s", 92, 93),
                                            ("v", 56, 58), ("s", 84, 91)])
    W.run(fg.items)
    nleft = len(W.bg)
    print("G1 path marks:", W.log, "bg left at JOIN:", nleft)
    for it in W.bg:
        assert all(x[2].startswith("wf") for x in flat([it]) if x[0] == "vm"), it
    if k.pend is not None:
        k("s_waitcnt lgkmcnt(0)")
    vm_join = list(k.vm)
    k("s_branch JOIN")
    k("GATE:")
    k.vm, k.lg = [], []
    if g("ts"):
        k.pend = 0
    w2f_addr(k)
    t1_addr(k)
    srd_consts(k)
    k("s_waitcnt lgkmcnt(0)")
    srd_ptrs(k, (SW2, SK, SV, SQ, SWS, SOUT))
    for it in rec(w2f_dma):
        emit(k, it)
    late_scalars(k)
    ts_setup(k, cfg)
    ts(k, 1)
    for it in rec(t1_loads):
        emit(k, it)
    h_setup(k)
    for it in rec(w2f_tr):
        emit(k, it)
    ts(k, 3)
    Wg = Weaver(k, g("p_gw", 32))
    Wg.push(rec(w2f_stores))
    if g("gw2first", 1):
        Wg.flush()
        ts(k, 2)
        for it in rec(t1_compute):
            emit(k, it)
    else:
        Wg.run(rec(t1_compute)[:-12])
        Wg.flush()
        for it in rec(t1_compute)[-12:]:
            emit(k, it)
    ts(k, 4)
    for it in rec(kv_zero):
        emit(k, it)
    flag_addrs(k)
    k("s_waitcnt lgkmcnt(0)")
    k.lg = []
    nonce(k)
    k.wait(vm="w2s")
    k("s_barrier")
    publish(k, WS_F0B, 224)
    ts(k, 6)
    gate_loads(k)
    k.wait(vm="t1s")
    k("s_barrier")
    publish(k, WS_F0)
    ts(k, 5)
    for it in rec(h_loads):
        emit(k, it)
    gate_compute(k)
    for it in rec(build_copies) + rec(conv_addr):
        emit(k, it)
    poll_issue(k, 62, 56, WS_F0, "p0")
    poll_check(k, 62, 56, WS_F0, "p0")
    k("s_barrier")
    ts(k, 14)
    for it in rec(kv_loads):
        emit(k, it)
    w2f_cons_setup(k)
    allw = rec(w2f_cons_loads)
    for it in allw[:len(allw) - nleft]:
        emit(k, it)
    kv_write(k)
    ts(k, 16)
    k.wait_all(vm=True, lg=True)
    k("JOIN:")
    k.vm = vm_join
    k.lg = ["x"]
    k.wait_all(vm=False, lg=True)
    PUB1 = g("pub1", 54)
    if PUB1 < 0:
        k.wait(vm="hs")
    k("s_barrier")
    ts(k, 17)
    if PUB1 < 0:
        publish(k, WS_F1)
    POLL1 = g("poll1", 100)
    CHK1 = g("chk1", -1)
    depth = 16
    fg = Rec()
    bg = Rec()
    g2_setup(fg)
    fg.period(g("p_cv", 32))

    def hook(n):
        if n == PUB1:
            fg.wait(vm="hs")
            fg("s_barrier")
            ts(fg, 18)
            publish(fg, WS_F1)
        if n == POLL1:
            poll_issue(fg, 62, 57, WS_F1, "p1")
        if n == CHK1:
            poll_check(fg, 62, 57, WS_F1, "p1")
            fg("s_barrier")
            fg.mark("f1ok")
            ts(fg, 20)
    conv_main(fg, hook)
    ts(fg, 19)

    def prebar():
        if CHK1 < 0:
            poll_check(fg, 62, 57, WS_F1, "p1")
            ts(fg, 20)
    fg.period(g("p_ce", 32))
    conv_epilogue(fg, prebar)
    ts(fg, 21)
    hf_loads(bg, depth, "cvbar" if CHK1 < 0 else "f1ok")
    epl = Rec()
    g2_ep_loads_plain(epl, after="epaddr")
    eps = Rec()
    g2_ep_loads_sc1(eps, after="f2ok")
    PUB2 = g("pub2", 4)
    POLL2 = g("poll2", 16)
    CHK2 = g("chk2", 22)
    EPQ = g("epq", 8)
    hfi = bg.items
    pos = min(2 * (EPQ + depth), len(hfi))
    bgall = hfi[:pos] + epl.items + hfi[pos:] + eps.items
    fg.period(g("p_g2", 32))

    def h_pub2():
        fg.wait(vm="ys")
        fg("s_barrier")
        ts(fg, 22)
        publish(fg, WS_F2)

    def h_chk2():
        poll_check(fg, 62, 61, WS_F1, "p2")
        fg("s_barrier")
        fg.mark("f2ok")
        ts(fg, 23)
    hooks = {}
    addh(hooks, 0, lambda: (g2_ep_addr(fg), fg.mark("epaddr")))
    addh(hooks, PUB2, h_pub2)
    addh(hooks, POLL2, lambda: poll_issue(fg, 62, 61, WS_F1, "p2"))
    addh(hooks, CHK2, h_chk2)
    g2_main(fg, depth, hooks)
    ts(fg, 24)
    g2_epilogue(fg)
    ts(fg, 26)
    conflicts("g2", fg.items, W.bg + bgall,
              ok=[("a", 0, 223), ("v", 128, 255), ("v", 62, 62), ("s", 80, 86), ("v", 8, 32), ("v", 45, 48), ("s", 94, 94)])
    W.push(bgall)
    W.log = []
    W.run(fg.items)
    print("JOIN path marks:", W.log, "bg left:", len(W.bg))
    assert not W.bg
    k("s_or_b32 s74, s2, s4")
    k("s_cmp_eq_u32 s74, 0")
    k("s_cbranch_scc0 NOEP")
    k("s_add_u32 s96, s96, 1")
    k("v_mov_b32 v62, s96")
    k(f"s_mov_b32 s97, {WS_EPOCH}")
    k("s_mov_b64 exec, 1")
    k(f"buffer_store_dword v62, off, {S(SWS)}, s97")
    k("s_mov_b64 exec, -1")
    k("NOEP:")
    k.wait_all()
    ts_final(k, cfg, 27)
    k("s_waitcnt vmcnt(0)")
    if g("ampn"):
        k(f"s_cmp_eq_u32 s2, {g('ampw', 0)}")
        k(f"s_cbranch_scc0 {END}")
        k("s_cmp_eq_u32 s4, 0")
        k(f"s_cbranch_scc0 {END}")
        k(f"v_readlane_b32 s10, v63, {g('ampa', 0)}")
        k(f"v_readlane_b32 s11, v63, {g('ampb', 27)}")
        k("s_sub_u32 s11, s11, s10")
        k("s_min_u32 s11, s11, 4000")
        k(f"s_mul_i32 s11, s11, {g('ampn')}")
        k("s_memrealtime s[12:13]")
        k("s_waitcnt lgkmcnt(0)")
        k("s_mov_b32 s14, s12")
        k("s_mov_b32 s15, 0x40000")
        k("AMPL:")
        k("s_memrealtime s[12:13]")
        k("s_waitcnt lgkmcnt(0)")
        k("s_sub_u32 s16, s12, s14")
        k("s_cmp_ge_u32 s16, s11")
        k(f"s_cbranch_scc1 {END}")
        k("s_sub_u32 s15, s15, 1")
        k("s_cbranch_scc0 AMPL")
    k(f"{END}:")
    k("s_endpgm")
    k("K_CODE_END:")
    return k


def build(cfg):
    hdr = open("cdna_kernels/" + NAME + ".s.ref").read().split("; Override")[0]
    out = [hdr.rstrip("\n")]
    out.append("; @launch grid=(256,1,1) block=(256,1,1) lds=163840")
    out.append('.amdgcn_target "amdgcn-amd-amdhsa--gfx950"\n.text')
    k = gen_full(cfg)
    lab = NAME + "_kernel"
    out.append(G.khead(lab) + k.text())
    out.append('.section .rodata,"a"\n.p2align 6')
    out.append(G.kdesc(lab))
    return "\n".join(out) + "\n"


if __name__ == "__main__":
    path = sys.argv[1]
    cfg = {}
    for a in sys.argv[2:]:
        kk, vv = a.split("=")
        cfg[kk] = int(vv)
    txt = build(cfg)
    open(path, "w").write(txt)
    print("bytes", len(txt))
```

```python
import sys
from asmlib import K
import gen as G
from gen import (S, V, A, srd, unpack_lo, unpack_hi, NAME, SQ, SK, SV, SW1, SW2, SOUT, SWS, STMP,
                 P_Q, P_K, P_V, P_SHIFT, P_SSMK, P_SSMD, P_W1, P_B1, P_W2, P_B2, P_GATE, P_OUT, P_WS,
                 COPY_O, COPY_STRIDE, CH_STRIDE, KV_STRIDE, conv_order, G1_ACC, G1_FR,
                 CV_ACC, CV_FA, CV_FB, G2_ACC)
from weave import Rec, Weaver, emit, flat, conflicts
import gen2
from gen2 import KT, Lbl, ts_setup, ts_final

WS_F0, WS_F1, WS_F2 = 0, 32768, 65536
WS_EPOCH = 98304
WS_F0B = 102400
WS_G = 0x20000
WS_KVR = 1 << 20
WS_W2F = 3 << 20
WS_HF = 5 << 20
WS_YT = 13 << 20
WS_TS = 15 << 20
WS_SIZE = 16 << 20

L_W2S = 73728
L_KV = 139264
L_H = 0
L_PART = 98304
L_RED = 0
L_YL = 49152

NONCE = 3
SPIN = 1 << 15
OOB = 0x40000000
SDMA = 22
SC_ST = 300
CFG = {}


def ts(k, idx):
    if not CFG.get("ts"):
        return
    if isinstance(k, Rec):
        k.fn(lambda kk: gen2.ts(kk, CFG, idx))
    else:
        gen2.ts(k, CFG, idx)


def vm(k, s, tag, cost=None):
    if isinstance(k, Rec):
        k.vmem(s, tag, cost)
    else:
        k.vmem(s, tag)


class nullatom:
    def __enter__(self):
        return self

    def __exit__(self, *a):
        return False


def atom(k, after=None, cost=None):
    return k.atom(after, cost) if isinstance(k, Rec) else nullatom()


def publish(k, wsoff, sub=0):
    l = Lbl.new("PUB")
    wsoff -= 128 * sub
    with atom(k):
        k("s_cmp_eq_u32 s4, 0")
        k(f"s_cbranch_scc0 {l}")
        k("s_lshl_b32 s97, s2, 7")
        k(f"s_add_u32 s97, s97, {wsoff}")
        k(f"v_mov_b32 v62, s{NONCE}")
        k("s_mov_b64 exec, 1")
        k(f"buffer_store_dword v62, off, {S(SWS)}, s97 sc1")
        k("s_mov_b64 exec, -1")
        k(f"{l}:")


def poll_issue(k, vreg, voff, wsoff, tag, after=None):
    with atom(k, after):
        k(f"s_mov_b32 s94, {wsoff}")
        vm(k, f"buffer_load_dword v{vreg}, v{voff}, {S(SWS)}, s94 offen sc1", tag, 40)


def poll_check(k, vreg, voff, wsoff, tag, half=None):
    ok, rt = Lbl.new("POK"), Lbl.new("PRT")

    def test():
        k(f"v_cmp_ne_u32 vcc, s{NONCE}, v{vreg}")
        if half is None:
            k(f"s_cbranch_vccz {ok}")
        else:
            k(f"s_cmp_eq_u32 vcc_{half}, 0")
            k(f"s_cbranch_scc1 {ok}")
    with atom(k):
        k.wait(vm=tag)
        k("s_cmp_eq_u32 s4, 0")
        k(f"s_cbranch_scc0 {ok}")
        test()
        k(f"s_mov_b32 s97, {wsoff}")
        k(f"s_mov_b32 s101, {SPIN}")
        k(f"{rt}:")
        k("s_sleep 1")
        k(f"buffer_load_dword v{vreg}, v{voff}, {S(SWS)}, s97 offen sc1")
        k("s_waitcnt vmcnt(0)")
        test()
        k("s_sub_u32 s101, s101, 1")
        k(f"s_cbranch_scc0 {rt}")
        k(f"{ok}:")


def prologue(k, endlabel):
    k("s_cmp_ge_u32 s2, 256")
    k(f"s_cbranch_scc1 {endlabel}")
    k("s_load_dwordx16 s[44:59], s[0:1], 0")
    k("s_load_dwordx8 s[60:67], s[0:1], 64")
    k("s_load_dwordx4 s[68:71], s[0:1], 96")
    k("s_load_dwordx2 s[72:73], s[0:1], 112")
    k("v_lshrrev_b32 v1, 6, v0")
    k("s_nop 0")
    k("v_readfirstlane_b32 s4, v1")


def code_prefetch(k):
    lab = NAME + "_kernel"
    k("s_getpc_b64 s[84:85]")
    k("PF_PC:")
    k(f"s_sub_u32 s84, s84, PF_PC-{lab}")
    k("s_subb_u32 s85, s85, 0")
    k(f"s_mov_b32 s86, K_CODE_END-{lab}")
    k("s_mov_b32 s87, 0x00020000")
    k("s_lshr_b32 s88, s2, 3")
    k("s_lshl_b32 s88, s88, 2")
    k("s_add_u32 s88, s88, s4")
    k(f"s_and_b32 s88, s88, {CFG.get('pfmask', 63)}")
    k("s_lshl_b32 s88, s88, 10")
    k("v_and_b32 v2, 63, v0")
    k("v_lshlrev_b32 v2, 4, v2")
    k("v_add_u32 v2, s88, v2")
    k.vmem("buffer_load_dwordx4 a[252:255], v2, s[84:87], 0 offen", "icpf")


SRDS = [(SQ, P_Q, 2 << 20), (SW1, P_W1, 512 * 1792 * 2), (SK, P_K, 2 << 20), (SV, P_V, 2 << 20),
        (SW2, P_W2, 512 * 1792 * 2), (SOUT, P_OUT, 2 << 20), (SWS, P_WS, WS_SIZE)]


def srd_consts(k):
    for d, p, n in SRDS:
        k(f"s_mov_b32 s{d+2}, {n}")
        k(f"s_mov_b32 s{d+3}, 0x00020000")
    k(f"s_mov_b32 s{STMP+3}, 0x00020000")


def srd_ptrs(k, which):
    for d, p, n in SRDS:
        if d in which:
            k(f"s_mov_b32 s{d}, s{p}")
            k(f"s_mov_b32 s{d+1}, s{p+1}")


def stmp(k, ptr, nbytes):
    k(f"s_mov_b32 s{STMP}, s{ptr}")
    k(f"s_mov_b32 s{STMP+1}, s{ptr+1}")
    k(f"s_mov_b32 s{STMP+2}, {nbytes}")


def nonce(k):
    k(f"s_mul_i32 s{NONCE}, s96, 0x9E3779B1")
    k(f"s_add_u32 s{NONCE}, s{NONCE}, 0x85EBCA6B")


T1_KR, T1_VR, T1_WR = 224, 235, 244
T1_K, T1_W, T1_A, T1_V, T1_O = 128, 150, 30, 128, 144


def t1_addr(k):
    k.c("---- T1 addresses ----")
    k("s_lshr_b32 s84, s2, 5")
    k("s_and_b32 s85, s2, 31")
    k("s_lshl_b32 s85, s85, 6")
    k("s_and_b32 s74, s4, 1")
    k("s_lshr_b32 s75, s4, 1")
    k("s_lshl_b32 s76, s74, 5")
    k("s_add_u32 s76, s76, s85")
    k("s_sub_u32 s77, s76, 3")
    k("s_lshl_b32 s77, s77, 10")
    k("s_lshl_b32 s78, s84, 7")
    k("s_add_u32 s77, s77, s78")
    k("s_lshl_b32 s78, s75, 6")
    k("s_add_u32 s77, s77, s78")
    k("v_and_b32 v15, 15, v0")
    k("v_bfe_u32 v16, v0, 4, 2")
    k("v_lshlrev_b32 v10, 13, v16")
    k("v_lshl_add_u32 v10, v15, 2, v10")
    k("v_add_u32 v10, s77, v10")
    k("v_add_u32 v11, 1024, v10")
    k("v_add_u32 v12, 2048, v10")
    k("v_add_u32 v13, 3072, v10")
    k("v_add_u32 v14, 7168, v10")
    k("v_lshlrev_b32 v17, 4, v15")
    k("s_lshl_b32 s78, s84, 9")
    k("s_lshl_b32 s79, s75, 8")
    k("s_add_u32 s7, s78, s79")
    k("v_sub_u32 v16, 3, v16")
    k("v_lshlrev_b32 v16, 4, v16")
    k("v_lshl_add_u32 v18, v15, 13, v16")
    k("s_lshl_b32 s78, s84, 18")
    k("s_lshl_b32 s79, s75, 17")
    k("s_add_u32 s78, s78, s79")
    k("s_sub_u32 s79, 2016, s76")
    k("s_lshl_b32 s79, s79, 1")
    k("s_add_u32 s78, s78, s79")
    k(f"s_add_u32 s95, s78, {WS_KVR}")


def t1_loads(k, cost=32):
    if CFG.get("x_not1"):
        return
    def ad(j):
        if j < 3:
            return 10 + j, 0
        if j < 7:
            return 13, (j - 3) * 1024
        return 14, (j - 7) * 1024
    with atom(k):
        stmp(k, P_SHIFT, 512 * 4 * 2)
        vm(k, f"buffer_load_dwordx4 {V(T1_WR,4)}, v17, {S(STMP)}, s7 offen", "t1", 64)
    for j in range(11):
        r, o = ad(j)
        vm(k, f"buffer_load_dword v{T1_KR+j}, v{r}, {S(SK)}, 0 offen offset:{o}", "t1", cost)
    for i in range(8):
        r, o = ad(i + 3)
        vm(k, f"buffer_load_dword v{T1_VR+i}, v{r}, {S(SV)}, 0 offen offset:{o}", "t1", cost)


def t1_compute(k):
    k.c("---- T1 compute ----")
    if CFG.get("x_not1"):
        for _ in range(16):
            k("s_nop 0")
        return
    k.wait(vm="t1")
    for m in range(4):
        up = unpack_hi if m & 1 else unpack_lo
        up(k, T1_W + 2 * m, T1_WR + (m >> 1))
        up(k, T1_W + 2 * m + 1, T1_WR + 2 + (m >> 1))
    for j in range(11):
        unpack_lo(k, T1_K + 2 * j, T1_KR + j)
        unpack_hi(k, T1_K + 2 * j + 1, T1_KR + j)
    for m in range(4):
        for i in range(8):
            d = T1_A + 2 * i
            a = T1_K + 2 * (i + 3 - m)
            w = T1_W + 2 * m
            if m == 0:
                k(f"v_pk_mul_f32 {V(d,2)}, {V(a,2)}, {V(w,2)}")
            else:
                k(f"v_pk_fma_f32 {V(d,2)}, {V(a,2)}, {V(w,2)}, {V(d,2)}")
    for i in range(8):
        unpack_lo(k, T1_V + 2 * i, T1_VR + i)
        unpack_hi(k, T1_V + 2 * i + 1, T1_VR + i)
    for i in range(8):
        d = T1_A + 2 * i
        k(f"v_pk_mul_f32 {V(d,2)}, {V(d,2)}, {V(T1_V+2*i,2)}")
    for c in range(2):
        for jj in range(4):
            k(f"v_cvt_pk_bf16_f32 v{T1_O+4*c+jj}, v{T1_A+2*(7-2*jj)+c}, v{T1_A+2*(6-2*jj)+c}")
        with atom(k):
            if c:
                k("s_add_u32 s95, s95, 4096")
            vm(k, f"buffer_store_dwordx4 {V(T1_O+4*c,4)}, v18, {S(SWS)}, s95 offen sc1", "t1s", SC_ST)


W2T = 64


def w2f_addr(k):
    k.c("---- W2F producer addresses ----")
    k("s_lshr_b32 s92, s2, 3")
    k("s_sub_u32 s92, s92, 28")
    k("s_mul_i32 s92, s92, 28")
    k("s_mul_i32 s93, s4, 7")
    k("s_add_u32 s92, s92, s93")
    k("s_and_b32 s93, s2, 7")
    k("s_lshl_b32 s21, s93, 7")
    k("s_add_u32 s21, s21, s92")
    k("s_lshl_b32 s21, s21, 11")
    k(f"s_add_u32 s21, s21, {WS_W2F}")
    k("s_lshl_b32 s93, s93, 7")
    k("s_lshl_b32 s92, s92, 14")
    k("s_add_u32 s93, s93, s92")
    k("v_and_b32 v23, 63, v0")
    k("v_lshrrev_b32 v19, 3, v23")
    k("v_and_b32 v20, 7, v23")
    k("v_bfe_u32 v21, v23, 4, 1")
    k("v_lshlrev_b32 v21, 2, v21")
    k("v_xor_b32 v20, v20, v21")
    k("v_lshlrev_b32 v20, 4, v20")
    k("v_lshl_add_u32 v19, v19, 10, v20")
    k("s_mul_i32 s92, s4, 14336")
    k(f"s_add_u32 s92, s92, {L_W2S}")
    k("v_and_b32 v20, 15, v23")
    k("v_lshrrev_b32 v21, 5, v23")
    k("v_lshrrev_b32 v22, 2, v20")
    k("v_lshl_add_u32 v21, v21, 2, v22")
    k("v_lshlrev_b32 v21, 7, v21")
    k("v_bfe_u32 v22, v23, 4, 1")
    k("v_lshlrev_b32 v22, 1, v22")
    k("v_bfe_u32 v24, v20, 1, 1")
    k("v_add_u32 v22, v22, v24")
    k("v_bfe_u32 v24, v20, 3, 1")
    k("v_lshl_add_u32 v22, v24, 2, v22")
    k("v_lshl_add_u32 v21, v22, 4, v21")
    k("v_and_b32 v24, 1, v20")
    k("v_lshl_add_u32 v20, v24, 3, v21")
    k("v_add_u32 v20, s92, v20")
    k("v_xor_b32 v21, 64, v20")
    k("v_lshlrev_b32 v22, 4, v23")


def w2f_dma(k):
    for j in range(7):
        for h in range(2):
            with atom(k):
                k(f"s_add_u32 m0, s92, {2048*j + 1024*h}")
                k(f"s_add_u32 s{SDMA}, s93, {16384*j + 8192*h}")
                vm(k, f"buffer_load_dwordx4 v19, {S(SW2)}, s{SDMA} offen lds", f"w2d{j}")


def w2f_tr(k):
    for j in range(7):
        k.wait(vm=f"w2d{j}")
        for nb in range(2):
            for hf in range(2):
                k.ds(f"ds_read_b64_tr_b16 {V(W2T + 8*j + 4*nb + 2*hf, 2)}, v{20+nb} offset:{2048*j + 1024*hf}", f"w2t{j}")


def w2f_stores(k):
    for j in range(7):
        for nb in range(2):
            with atom(k):
                if nb == 0:
                    k.wait(lg=f"w2t{j}")
                    if j and j % 2 == 0:
                        k("s_add_u32 s21, s21, 4096")
                vm(k, f"buffer_store_dwordx4 {V(W2T+8*j+4*nb,4)}, v22, {S(SWS)}, s21 offen offset:{1024*nb + 2048*(j&1)} sc1",
                   "w2s", 120)


def w2f_cons_setup(k):
    k("s_lshr_b32 s92, s2, 5")
    k("s_lshl_b32 s92, s92, 7")
    k("s_mul_i32 s93, s4, 28")
    k("s_add_u32 s92, s92, s93")
    k("s_lshl_b32 s92, s92, 11")
    k(f"s_add_u32 s92, s92, {WS_W2F}")
    k("s_and_b32 s93, s4, 1")
    k("s_lshl_b32 s93, s93, 10")
    k("s_add_u32 s92, s92, s93")
    k("s_xor_b32 s93, s92, 1024")


def w2f_cons_loads(k, after=None):
    for ii in range(28):
        for a in range(2):
            with atom(k, after):
                if ii and ii % 2 == 0:
                    k(f"s_add_u32 s{92+a}, s{92+a}, 4096")
                vm(k, f"buffer_load_dwordx4 {A(8*ii+4*a,4)}, v58, {S(SWS)}, s{92+a} offen offset:{2048*(ii%2)} sc1",
                   f"wf{ii}")


HW = 30


def h_setup(k):
    k("s_lshl_b32 s74, s2, 13")
    for ch in range(2):
        d = 84 + 4 * ch
        k(f"s_add_u32 s{d}, s{P_SSMK}, s74")
        k(f"s_addc_u32 s{d+1}, s{P_SSMK+1}, 0")
        k(f"s_mov_b32 s{d+2}, 4096")
        k(f"s_mov_b32 s{d+3}, 0x00020000")
        if ch == 0:
            k("s_add_u32 s74, s74, 4096")
    k("v_lshlrev_b32 v46, 4, v0")
    k("v_add_u32 v47, -16, v46")


def h_loads(k, after=None):
    for ch in range(2):
        with atom(k, after):
            vm(k, f"buffer_load_dwordx4 {V(HW+8*ch,4)}, v47, {S(84+4*ch)}, 0 offen", "hw")
        with atom(k, after):
            vm(k, f"buffer_load_dwordx4 {V(HW+4+8*ch,4)}, v46, {S(84+4*ch)}, 0 offen", "hw")


def kv_zero(k):
    for i in range(4):
        k(f"v_mov_b32 v{48+i}, 0")
    k(f"v_add_u32 v52, {L_KV + 4096}, v46")
    with atom(k):
        k("v_cmp_gt_u32 vcc, 32, v0")
        k("s_and_saveexec_b64 s[74:75], vcc")
        for ch in range(2):
            k.ds(f"ds_write_b128 v52, {V(48,4)} offset:{ch*KV_STRIDE}", "kvz")
        k("s_mov_b64 exec, s[74:75]")


def build_copies(k):
    k.wait(vm="hw")
    k(f"v_add_u32 v52, {L_H + 16}, v46")
    k(f"v_add_u32 v53, {L_H + 16 + CH_STRIDE}, v46")
    for ch in range(2):
        w = HW + 8 * ch
        t = (128, 224)[ch]
        R, P, Q = t, t + 6, t + 12
        src = {0: w, 4: w + 2, 2: R, 6: R + 2, 1: P, 5: P + 2, 3: Q, 7: Q + 2}

        def wr(s):
            k.ds(f"ds_write_b128 v{52+ch}, {V(src[s],4)} offset:{s*COPY_STRIDE + 16*COPY_O[s]}", "hwr")
        wr(0)
        wr(4)
        for j in range(6):
            k(f"v_mov_b32 v{R+j}, v{w+j+1}")
        wr(2)
        wr(6)
        for j in range(6):
            k(f"v_alignbyte_b32 v{P+j}, v{w+j+1}, v{w+j}, 2")
        wr(1)
        wr(5)
        for j in range(6):
            k(f"v_alignbyte_b32 v{Q+j}, v{w+j+2}, v{w+j+1}, 2")
        wr(3)
        wr(7)
    with atom(k):
        k("s_mov_b32 s76, 255")
        k("v_cmp_eq_u32 vcc, s76, v0")
        k("s_and_saveexec_b64 s[74:75], vcc")
        for ch in range(2):
            k.ds(f"ds_write_b128 v{52+ch}, {V(HW+8*ch+4,4)} offset:{16 + 16*COPY_O[0]}", "hwr")
        k("s_mov_b64 exec, s[74:75]")
    with atom(k):
        lut = sum(o << (4 * i) for i, o in enumerate(COPY_O))
        k(f"s_mov_b32 s76, {lut}")
        k("v_lshlrev_b32 v54, 2, v0")
        k("v_bfe_u32 v54, s76, v54, 4")
        k("v_lshlrev_b32 v54, 4, v54")
        k(f"v_mul_u32_u24 v55, {COPY_STRIDE}, v0")
        k("v_add_u32 v54, v54, v55")
        k(f"v_add_u32 v54, {L_H}, v54")
        k("v_cmp_gt_u32 vcc, 8, v0")
        k("s_and_saveexec_b64 s[74:75], vcc")
        k.ds(f"ds_write_b128 v54, {V(48,4)}", "hwr")
        k.ds(f"ds_write_b128 v54, {V(48,4)} offset:{CH_STRIDE}", "hwr")
        k("s_mov_b64 exec, s[74:75]")


KVR = 244


def kv_loads(k, after=None):
    with atom(k, after):
        k("s_lshl_b32 s94, s2, 13")
        k(f"s_add_u32 s94, s94, {WS_KVR}")
        vm(k, f"buffer_load_dwordx4 {V(KVR,4)}, v46, {S(SWS)}, s94 offen sc1", "kv")
    with atom(k, after):
        k("s_lshl_b32 s94, s2, 13")
        k(f"s_add_u32 s94, s94, {WS_KVR + 4096}")
        vm(k, f"buffer_load_dwordx4 {V(KVR+4,4)}, v46, {S(SWS)}, s94 offen sc1", "kv")


def kv_write(k):
    k(f"v_add_u32 v54, {L_KV}, v46")
    k.wait(vm="kv")
    for ch in range(2):
        k.ds(f"ds_write_b128 v54, {V(KVR+4*ch,4)} offset:{ch*KV_STRIDE}", "kvw")


def flag_addrs(k):
    k("v_and_b32 v58, 63, v0")
    k("s_lshr_b32 s75, s2, 5")
    k("s_lshl_b32 s74, s75, 5")
    k("v_and_b32 v59, 31, v58")
    k("v_add_u32 v61, s74, v59")
    k("v_and_b32 v60, 3, v58")
    k("v_lshlrev_b32 v60, 3, v60")
    k(f"s_add_u32 s75, s75, {(WS_F0B - WS_F0) // 128}")
    k("v_add_u32 v60, s75, v60")
    k("v_cmp_gt_u32 vcc, 32, v58")
    k("v_cndmask_b32 v56, v60, v61, vcc")
    k("v_lshlrev_b32 v56, 7, v56")
    k(f"v_add_u32 v61, {(WS_F2 - WS_F1) // 128}, v61")
    k("v_add_u32 v59, 224, v59")
    k("v_cndmask_b32 v61, v59, v61, vcc")
    k("v_lshlrev_b32 v61, 7, v61")
    k("s_and_b32 s74, s2, 7")
    k("s_lshl_b32 s74, s74, 2")
    k("s_lshr_b32 s75, s2, 3")
    k("s_and_b32 s75, s75, 3")
    k("s_add_u32 s74, s74, s75")
    k("s_lshr_b32 s75, s74, 1")
    if CFG.get("xm"):
        k("s_lshr_b32 s76, s75, 1")
        k("s_and_b32 s77, s75, 1")
        k("s_lshl_b32 s77, s77, 3")
        k("s_add_u32 s76, s76, s77")
        k("v_lshlrev_b32 v60, 4, v58")
    else:
        k("s_lshr_b32 s76, s75, 2")
        k("s_lshl_b32 s76, s76, 1")
        k("s_and_b32 s77, s75, 3")
        k("s_lshl_b32 s77, s77, 3")
        k("s_add_u32 s76, s76, s77")
        k("v_cmp_lt_u32 vcc, 6, v58")
        k("v_cndmask_b32 v59, 0, 1, vcc")
        k("v_mul_u32_u24 v60, 7, v59")
        k("v_sub_u32 v60, v58, v60")
        k("v_lshlrev_b32 v60, 5, v60")
        k("v_add_u32 v60, v60, v59")
    k("v_cmp_gt_u32 vcc, 14, v58")
    k("v_cndmask_b32 v60, 0, v60, vcc")
    k("v_add_u32 v60, s76, v60")
    k("v_lshlrev_b32 v57, 7, v60")
    k("s_cmp_eq_u32 s4, 0")
    k(f"s_cselect_b32 s74, 0, {OOB}")
    k("v_or_b32 v56, s74, v56")
    k("v_or_b32 v57, s74, v57")
    k("v_or_b32 v61, s74, v61")
    k("v_lshlrev_b32 v58, 4, v58")


BA0, BB1 = 248, 20


def rot_setup(k):
    m = CFG.get("rot", 0)
    if not m:
        return
    k("s_lshr_b32 s20, s2, 3")
    if m == 1:
        k("s_and_b32 s20, s20, 7")
    elif m == 2:
        k("s_and_b32 s20, s20, 3")
        k("s_lshl_b32 s20, s20, 1")
    elif m == 3:
        k("s_lshr_b32 s20, s20, 2")
    elif m == 4:
        k("s_lshr_b32 s20, s20, 2")
        k("s_and_b32 s20, s20, 1")
        k("s_lshl_b32 s20, s20, 2")
    elif m == 5:
        k("s_and_b32 s20, s20, 1")
        k("s_lshl_b32 s20, s20, 2")
    elif m == 6:
        k("s_add_u32 s20, s5, s6")
        k("s_and_b32 s20, s20, 7")
    elif m == 7:
        k("s_lshl_b32 s20, s5, 1")
        k("s_add_u32 s20, s20, s6")
        k("s_and_b32 s20, s20, 7")
    elif m == 8:
        k("s_lshr_b32 s20, s5, 2")
        k("s_lshl_b32 s20, s20, 1")
        k("s_add_u32 s20, s20, s5")
        k("s_add_u32 s20, s20, s6")
        k("s_and_b32 s20, s20, 7")


def g1_dma(k, slab, buf, after=None):
    rot = CFG.get("rot", 0)
    for i in range(4):
        with atom(k, after):
            if rot and i == 0:
                k("s_lshl_b32 s56, s20, 7")
                k("s_add_u32 s56, s56, s80")
                k("s_mul_i32 s57, s20, 229376")
                k("s_add_u32 s57, s57, s81")
                k("s_add_u32 s20, s20, 1")
                k("s_and_b32 s20, s20, 7")
            k(f"s_add_u32 m0, s82, {buf + 1024*i}")
            if rot:
                k(f"s_add_u32 s{SDMA}, s56, {8192*i}")
            else:
                k(f"s_add_u32 s{SDMA}, s80, {8192*i + 128*slab}")
            vm(k, f"buffer_load_dwordx4 v{1 + (i&1)}, {S(SQ)}, s{SDMA} offen lds", f"slab{slab}")
    for i in range(4):
        with atom(k, after):
            k(f"s_add_u32 m0, s82, {buf + 16384 + 1024*i}")
            if rot:
                k(f"s_add_u32 s{SDMA}, s57, {4*i*3584}")
            else:
                k(f"s_add_u32 s{SDMA}, s81, {(64*slab + 4*i)*3584}")
            vm(k, f"buffer_load_dwordx4 v3, {S(SW1)}, s{SDMA} offen lds", f"slab{slab}")


def bias_addr(k):
    k("v_lshlrev_b32 v19, 1, v10")
    k("v_cmp_gt_u32 vcc, 32, v10")
    k(f"v_mov_b32 v20, {OOB}")
    k("v_cndmask_b32 v19, v20, v19, vcc")
    k("v_mov_b32 v20, 0")
    k("v_mov_b32 v21, 0x3f80")
    k(f"v_cndmask_b32 v{BB1}, v20, v21, vcc")
    for r in (BB1 + 1, BB1 + 2, BB1 + 3, BA0 + 1, BA0 + 2, BA0 + 3, BA0 + 5, BA0 + 6, BA0 + 7):
        k(f"v_mov_b32 v{r}, 0")
    k("s_lshl_b32 s76, s6, 8")
    k("s_and_b32 s77, s4, 1")
    k("s_lshl_b32 s77, s77, 7")
    k("s_add_u32 s83, s76, s77")


def bias_loads(k):
    with atom(k):
        stmp(k, P_B1, 1792 * 2)
        vm(k, f"buffer_load_ushort v{BA0}, v19, {S(STMP)}, s83 offen", "bias", 32)
    with atom(k):
        vm(k, f"buffer_load_ushort v{BA0+4}, v19, {S(STMP)}, s83 offen offset:64", "bias", 32)


def bias_mfma(k):
    k.wait(vm="bias")
    for fb in range(2):
        for mb in range(2):
            d = G1_ACC + 32 * fb + 16 * mb
            k(f"v_mfma_f32_32x32x16_bf16 {V(d,16)}, {V(BA0+4*fb,4)}, {V(BB1,4)}, {V(d,16)}")


def sprinkle(k, items, per):
    q = list(items)

    def hook(n=per):
        for _ in range(n):
            if q:
                k._add(q.pop(0))
    hook.q = q
    return hook


def g1_main(k, bufs, pre, post, extra):
    nb = len(bufs)
    k.c("---- G1 main ----")
    k.wait(vm="slab0")
    k("s_barrier")
    ts(k, 6)
    G.g1_reads(k, bufs[0], 0, "r0_0")
    G.g1_reads(k, bufs[0], 1, "r0_1")
    hooks = []

    def mf(ks, first):
        fr = G1_FR + 16 * ks
        for fb in range(2):
            for mb in range(2):
                d = G1_ACC + 32 * fb + 16 * mb
                c = "0" if first else V(d, 16)
                k(f"v_mfma_f32_32x32x16_bf16 {V(d,16)}, {V(fr + 4*fb, 4)}, {V(fr + 8 + 4*mb, 4)}, {c}")
                for h in hooks:
                    if h.q:
                        h()
                        break

    for s in range(8):
        buf = bufs[s % nb]
        if ("a", s) in extra:
            hooks.append(sprinkle(k, *extra[("a", s)]))
        G.g1_reads(k, buf, 2, f"r{s}_2")
        k.wait(lg=f"r{s}_0")
        mf(0, s == 0)
        G.g1_reads(k, buf, 3, f"r{s}_3")
        k.wait(lg=f"r{s}_1")
        mf(1, False)
        if s < 7:
            if s in pre:
                pre[s]()
            k.wait(vm=f"slab{s+1}", lg=f"r{s}_3")
            k("s_barrier")
            k.mark(f"bar{s}")
            ts(k, 7 + s)
            if s in post:
                post[s]()
            if ("b", s) in extra:
                hooks.append(sprinkle(k, *extra[("b", s)]))
            nbuf = bufs[(s + 1) % nb]
            G.g1_reads(k, nbuf, 0, f"r{s+1}_0")
            mf(2, False)
            G.g1_reads(k, nbuf, 1, f"r{s+1}_1")
            mf(3, False)
        else:
            k.wait(lg=f"r{s}_2")
            mf(2, False)
            k.wait(lg=f"r{s}_3")
            mf(3, False)
    for h in hooks:
        h(10000)


def g1_epilogue(k):
    k.c("---- G1 epilogue ----")
    k("s_lshl_b32 s74, s5, 2")
    k("s_lshr_b32 s75, s4, 1")
    k("s_lshl_b32 s75, s75, 1")
    k("s_add_u32 s74, s74, s75")
    k("s_mul_i32 s74, s74, 112")
    k("s_lshl_b32 s75, s6, 3")
    k("s_add_u32 s74, s74, s75")
    k("s_and_b32 s75, s4, 1")
    k("s_lshl_b32 s75, s75, 2")
    k("s_add_u32 s74, s74, s75")
    k("s_lshl_b32 s74, s74, 10")
    k(f"s_add_u32 s78, s74, {WS_HF}")
    k(f"s_add_u32 s79, s78, {112*1024}")
    tmp = 160
    ti = 0
    for mb in range(2):
        for fb in range(2):
            acc = G1_ACC + 32 * fb + 16 * mb
            for half in range(2):
                t = tmp + 4 * ti
                ti += 1
                for r in range(8 * half, 8 * half + 8):
                    k(f"v_max_f32 v{acc+r}, 0, v{acc+r}")
                for r in range(8 * half, 8 * half + 8, 2):
                    k(f"v_pk_mul_f32 {V(acc+r,2)}, {V(acc+r,2)}, {V(acc+r,2)}")
                for i in range(4):
                    r = acc + 8 * half + 2 * i
                    k(f"v_cvt_pk_bf16_f32 v{t+i}, v{r}, v{r+1}")
                vm(k, f"buffer_store_dwordx4 {V(t,4)}, v58, {S(SWS)}, s{78+mb} offen offset:{(2*fb+half)*1024} sc1", "hs",
                   CFG.get("hscost", 200))


CA, CB = 59, 60


def conv_addr(k):
    k.c("---- conv addresses ----")
    k("v_and_b32 v10, 63, v0")
    k("v_and_b32 v11, 15, v10")
    k("v_lshrrev_b32 v12, 4, v10")
    k("v_add_u32 v13, 1, v11")
    k("v_and_b32 v14, 7, v13")
    k("v_lshrrev_b32 v15, 3, v13")
    lut = sum(o << (4 * i) for i, o in enumerate(COPY_O))
    k(f"s_mov_b32 s74, {lut}")
    k("v_lshlrev_b32 v16, 2, v14")
    k("v_bfe_u32 v16, s74, v16, 4")
    k("v_add_u32 v16, v16, v15")
    k("v_add_u32 v16, v16, v12")
    k("v_lshlrev_b32 v16, 4, v16")
    k(f"v_mul_u32_u24 v17, {COPY_STRIDE}, v14")
    k("v_add_u32 v16, v16, v17")
    k("s_lshr_b32 s75, s4, 1")
    k(f"s_mul_i32 s76, s75, {CH_STRIDE}")
    k("s_and_b32 s77, s4, 1")
    k("s_lshl_b32 s77, s77, 8")
    k("s_add_u32 s76, s76, s77")
    k(f"s_add_u32 s76, s76, {L_H}")
    k(f"v_add_u32 v{CA}, s76, v16")
    k(f"s_mul_i32 s76, s75, {KV_STRIDE}")
    k("s_add_u32 s76, s76, s77")
    k(f"s_add_u32 s76, s76, {L_KV + 480}")
    k("v_lshlrev_b32 v16, 5, v11")
    k("v_lshlrev_b32 v17, 4, v12")
    k("v_sub_u32 v16, v17, v16")
    k(f"v_add_u32 v{CB}, s76, v16")


def conv_main(k, hook):
    k.c("---- conv main ----")
    order = conv_order()
    for i in range(8):
        k.ds(f"ds_read_b128 {V(CV_FA + 4*i, 4)}, v{CA} offset:{512*i}", f"ca0_{i}")
        k.ds(f"ds_read_b128 {V(CV_FB + 4*i, 4)}, v{CB} offset:{512*(7-i)}", f"cb0_{i}")
    touched = set()
    for c0i in range(4):
        st = c0i & 1
        nxt = []
        if c0i < 3:
            for i in range(8):
                nxt.append((f"ds_read_b128 {V(CV_FA + 32*(st^1) + 4*i, 4)}, v{CA} offset:{512*i + 64*(c0i+1)}", f"ca{c0i+1}_{i}"))
                nxt.append((f"ds_read_b128 {V(CV_FB + 32*(st^1) + 4*i, 4)}, v{CB} offset:{512*(7-i) + 64*(c0i+1)}", f"cb{c0i+1}_{i}"))
        waited = set()
        for n, (d, c1) in enumerate(order):
            tags = [t for t in (f"ca{c0i}_{c1}", f"cb{c0i}_{d}") if t not in waited]
            if tags:
                k.wait(lg=tags)
                waited.update(tags)
            j = d + c1
            acc = V(CV_ACC + 4 * j, 4)
            c = acc if j in touched else "0"
            touched.add(j)
            k(f"v_mfma_f32_16x16x32_bf16 {acc}, {V(CV_FA + 32*st + 4*c1, 4)}, {V(CV_FB + 32*st + 4*d, 4)}, {c}")
            if n >= 18 and nxt:
                t, tg = nxt.pop(0)
                k.ds(t, tg)
            hook(c0i * 36 + n)


def conv_epilogue(k, prebar):
    k.c("---- conv epilogue ----")
    k("v_and_b32 v10, 63, v0")
    k("v_and_b32 v11, 15, v10")
    k("v_lshrrev_b32 v12, 4, v10")
    k("v_lshlrev_b32 v11, 6, v11")
    k("v_lshl_add_u32 v11, v12, 4, v11")
    k("s_lshl_b32 s74, s4, 13")
    k(f"s_add_u32 s74, s74, {L_PART}")
    k("v_add_u32 v11, s74, v11")
    k("s_lshr_b32 s75, s4, 1")
    for j in range(8):
        k.ds(f"ds_write_b128 v11, {V(CV_ACC + 4*j, 4)} offset:{1024*j}", "pw")
    k("v_and_b32 v1, 127, v0")
    k("v_lshlrev_b32 v2, 5, v1")
    k("s_lshl_b32 s74, s75, 14")
    k(f"s_add_u32 s74, s74, {L_PART}")
    k("v_add_u32 v2, s74, v2")
    k(f"s_mul_i32 s74, s75, {KV_STRIDE}")
    k(f"s_add_u32 s74, s74, {L_KV + 4080 - 2048}")
    k("v_lshlrev_b32 v3, 4, v1")
    k("v_sub_u32 v3, s74, v3")
    k("s_lshl_b32 s79, s75, 4")
    k("s_lshr_b32 s77, s23, s79")
    k("s_lshl_b32 s77, s77, 16")
    k.wait(lg="pw")
    prebar()
    k("s_barrier")
    k.mark("cvbar")
    for seg in range(2):
        b = 8 + 24 * seg
        for p in range(2):
            for hh in range(2):
                k.ds(f"ds_read_b128 {V(b + 8*p + 4*hh, 4)}, v2 offset:{8192*p + 4096*seg + 16*hh}", f"pr{seg}")
        k.ds(f"ds_read_b128 {V(b + 16, 4)}, v3 offset:{2048*(1-seg)}", f"pr{seg}")
    k("s_lshl_b32 s74, s2, 13")
    k("s_lshl_b32 s79, s75, 12")
    k("s_add_u32 s74, s74, s79")
    k(f"s_add_u32 s74, s74, {WS_YT}")
    k("v_lshlrev_b32 v4, 4, v1")
    for seg in range(2):
        b = 8 + 24 * seg
        k.wait(lg=f"pr{seg}")
        for i in range(0, 8, 2):
            k(f"v_pk_add_f32 {V(b+i,2)}, {V(b+i,2)}, {V(b+8+i,2)}")
        for i in range(8):
            e = 7 - i
            (unpack_hi if e & 1 else unpack_lo)(k, 6 + (i & 1), b + 16 + (e >> 1))
            k(f"v_fmac_f32 v{b+i}, s77, v{6 + (i & 1)}")
        for i in range(4):
            k(f"v_cvt_pk_bf16_f32 v{b+20+i}, v{b+2*i}, v{b+2*i+1}")
    k.mark("ysready")
    for seg in range(2):
        b = 8 + 24 * seg
        vm(k, f"buffer_store_dwordx4 {V(b+20,4)}, v4, {S(SWS)}, s74 offen offset:{2048*seg} sc1", "ys", SC_ST)


FB = 128


def g2_setup(k):
    G.g2_ids(k)
    k("s_lshr_b32 s74, s4, 1")
    k("s_lshl_b32 s75, s5, 1")
    k("s_add_u32 s80, s75, s74")
    k("s_xor_b32 s81, s80, 1")
    k("s_mul_i32 s78, s4, 28")
    for b in range(2):
        k(f"s_mul_i32 s{80+b}, s{80+b}, 112")
        k(f"s_add_u32 s{80+b}, s{80+b}, s78")
        k(f"s_lshl_b32 s{80+b}, s{80+b}, 10")
        k(f"s_add_u32 s{80+b}, s{80+b}, {WS_HF}")


def hf_loads(k, depth, first_after):
    for i in range(28):
        for b in range(2):
            after = first_after if i < depth else f"g2_{i - depth}"
            with atom(k, after):
                if b == 0 and i and i % 4 == 0:
                    k("s_add_u32 s80, s80, 4096")
                    k("s_add_u32 s81, s81, 4096")
                r = FB + 8 * (i % depth) + 4 * b
                vm(k, f"buffer_load_dwordx4 {V(r,4)}, v58, {S(SWS)}, s{80+b} offen offset:{1024*(i%4)} sc1", f"hf{i}")


def g2_main(k, depth, hooks):
    k.c("---- G2 main ----")
    for i in range(28):
        k.wait(vm=[f"hf{i}", f"wf{i}"])
        for b in range(2):
            for a in range(2):
                d = G2_ACC + 16 * (a + 2 * b)
                c = V(d, 16) if i else "0"
                k(f"v_mfma_f32_32x32x16_bf16 {V(d,16)}, {A(8*i + 4*a, 4)}, {V(FB + 8*(i%depth) + 4*b, 4)}, {c}")
        k.mark(f"g2_{i}")
        if i in hooks:
            hooks[i]()


EQ, EB2, EY, EG = 8, 16, 24, 32


def g2_ep_addr(k):
    k("v_and_b32 v40, 63, v0")
    k("v_and_b32 v41, 31, v40")
    k("v_lshrrev_b32 v42, 5, v40")
    k("s_and_b32 s74, s4, 1")
    k("s_lshr_b32 s75, s4, 1")
    k("s_lshl_b32 s76, s5, 6")
    k("s_lshl_b32 s77, s75, 5")
    k("s_add_u32 s76, s76, s77")
    k("s_lshl_b32 s77, s6, 6")
    k("s_lshl_b32 s78, s74, 5")
    k("s_add_u32 s77, s77, s78")
    k("v_lshlrev_b32 v46, 10, v41")
    k("v_lshl_add_u32 v46, v42, 3, v46")
    k("s_lshl_b32 s82, s76, 10")
    k("s_lshl_b32 s83, s77, 1")
    k("s_add_u32 s82, s82, s83")
    k("v_lshlrev_b32 v47, 3, v42")
    k("v_lshrrev_b32 v43, 2, v40")
    k("v_and_b32 v44, 3, v40")
    k("v_lshlrev_b32 v45, 12, v43")
    k("v_lshl_add_u32 v45, v44, 4, v45")
    k("s_lshl_b32 s84, s77, 12")
    k("s_lshl_b32 s85, s76, 1")
    k("s_add_u32 s84, s84, s85")
    k(f"s_add_u32 s84, s84, {WS_YT}")
    k(f"s_add_u32 s85, s84, {16*4096}")
    k("v_lshlrev_b32 v48, 2, v41")
    k("s_lshl_b32 s86, s76, 2")
    k(f"s_add_u32 s86, s86, {WS_G}")


def g2_ep_loads_plain(k, after=None):
    for g in range(4):
        with atom(k, after):
            vm(k, f"buffer_load_dwordx2 {V(EQ+2*g,2)}, v46, {S(SQ)}, s82 offen offset:{16*g}", "q", 200)
    for g in range(4):
        with atom(k, after):
            if g == 0:
                stmp(k, P_B2, 1024)
            vm(k, f"buffer_load_dwordx2 {V(EB2+2*g,2)}, v47, {S(STMP)}, s83 offen offset:{16*g}", "b2", 64)


def g2_ep_loads_sc1(k, after=None):
    with atom(k, after):
        vm(k, f"buffer_load_dword v{EG}, v48, {S(SWS)}, s86 offen sc1", "g", 32)
    with atom(k, after):
        vm(k, f"buffer_load_dwordx4 {V(EY,4)}, v45, {S(SWS)}, s84 offen sc1", "yt", 81)
    with atom(k, after):
        vm(k, f"buffer_load_dwordx4 {V(EY+4,4)}, v45, {S(SWS)}, s85 offen sc1", "yt", 81)


def g2_epilogue(k):
    k.c("---- G2 epilogue ----")
    k("v_lshlrev_b32 v49, 4, v40")
    for sg in range(1, 4):
        k(f"s_xor_b32 s80, s4, {sg}")
        k("s_mul_i32 s80, s80, 12288")
        k(f"v_add_u32 v50, s80, v49")
        for g in range(4):
            k.ds(f"ds_write_b128 v50, {V(G2_ACC + 16*sg + 4*g, 4)} offset:{L_RED + (sg-1)*4096 + 1024*g}", "rw")
    k("s_lshl_b32 s80, s4, 11")
    k(f"s_add_u32 s80, s80, {L_YL}")
    k("v_add_u32 v51, s80, v49")
    k.wait(vm="yt")
    k.ds(f"ds_write_b128 v51, {V(EY,4)}", "yw")
    k.ds(f"ds_write_b128 v51, {V(EY+4,4)} offset:1024", "yw")
    k.wait(lg=["rw", "yw"])
    k("s_barrier")
    ts(k, 25)
    k("s_mul_i32 s80, s4, 12288")
    k("v_add_u32 v50, s80, v49")
    for sg in range(3):
        for g in range(4):
            k.ds(f"ds_read_b128 {V(160 + 16*sg + 4*g, 4)}, v50 offset:{L_RED + sg*4096 + 1024*g}", f"rr{sg}")
    k("v_and_b32 v52, 15, v40")
    k("v_lshrrev_b32 v53, 2, v52")
    k("v_lshl_add_u32 v53, v42, 2, v53")
    k("v_lshlrev_b32 v53, 6, v53")
    k("v_bfe_u32 v54, v40, 4, 1")
    k("v_lshl_add_u32 v53, v54, 5, v53")
    k("v_and_b32 v54, 3, v52")
    k("v_lshl_add_u32 v53, v54, 3, v53")
    k("s_lshl_b32 s80, s4, 11")
    k(f"s_add_u32 s80, s80, {L_YL}")
    k("v_add_u32 v53, s80, v53")
    for g in range(4):
        k.ds(f"ds_read_b64_tr_b16 {V(208+2*g,2)}, v53 offset:{512*g}", "yr")
    acc = G2_ACC
    for sg in range(3):
        k.wait(lg=f"rr{sg}")
        for r in range(0, 16, 2):
            k(f"v_pk_add_f32 {V(acc+r,2)}, {V(acc+r,2)}, {V(160+16*sg+r,2)}")
    k.wait(vm=["q", "b2", "g"], lg="yr")
    X = 224
    slot = {0: 0, 2: 2, 1: 4, 3: 6}
    for g in range(4):
        for i in range(4):
            up = unpack_hi if i & 1 else unpack_lo
            up(k, 128 + i, EB2 + 2 * g + (i >> 1))
            up(k, 132 + i, EQ + 2 * g + (i >> 1))
            up(k, 136 + i, 208 + 2 * g + (i >> 1))
        for i in range(4):
            r = acc + 4 * g + i
            k(f"v_add_f32 v{r}, v{r}, v{128+i}")
        for i in range(4):
            r = acc + 4 * g + i
            k(f"v_fma_f32 v{132+i}, v{132+i}, v{136+i}, -v{r}")
        for i in range(4):
            r = acc + 4 * g + i
            k(f"v_fmac_f32 v{r}, v{EG}, v{132+i}")
        for d in range(2):
            r = acc + 4 * g + 2 * d
            k(f"v_cvt_pk_bf16_f32 v{X + slot[g] + d}, v{r}, v{r+1}")
    for base in (0, 4):
        k(f"v_permlane32_swap_b32 v{X+base}, v{X+base+2}")
        k(f"v_permlane32_swap_b32 v{X+base+1}, v{X+base+3}")
    k("v_lshlrev_b32 v46, 10, v41")
    k("v_lshl_add_u32 v46, v42, 5, v46")
    osc = ["", " sc1", " nt", " sc0 sc1", " sc1 nt"][CFG.get("osc", 0)]
    vm(k, f"buffer_store_dwordx4 {V(X,4)}, v46, {S(SOUT)}, s82 offen{osc}", "os")
    vm(k, f"buffer_store_dwordx4 {V(X+4,4)}, v46, {S(SOUT)}, s82 offen offset:16{osc}", "os")


def gate_loads(k):
    k("s_and_b32 s5, s2, 7")
    k("s_lshl_b32 s5, s5, 2")
    k("s_lshr_b32 s6, s2, 3")
    k("s_sub_u32 s6, s6, 28")
    k("s_add_u32 s5, s5, s6")
    k("s_lshl_b32 s5, s5, 6")
    k("s_lshl_b32 s6, s4, 4")
    k("s_add_u32 s5, s5, s6")
    k("s_lshl_b32 s6, s5, 10")
    stmp(k, P_GATE, 1024)
    k.vmem(f"buffer_load_dwordx4 {V(4,4)}, v22, {S(STMP)}, 0 offen", "gw")
    for i in range(16):
        if i and i % 4 == 0:
            k("s_add_u32 s6, s6, 4096")
        k.vmem(f"buffer_load_dwordx4 {A(4*i,4)}, v22, {S(SQ)}, s6 offen offset:{1024*(i%4)}", f"gx{i}")


def gate_compute(k):
    k.c("---- gate compute ----")
    k.wait(vm="gw")
    for c in range(8):
        (unpack_hi if c & 1 else unpack_lo)(k, 8 + c, 4 + (c >> 1))
    R = 96
    for i in range(16):
        k.wait(vm=f"gx{i}")
        s = 64 + 4 * (i & 1)
        for c in range(4):
            k(f"v_accvgpr_read_b32 v{s+c}, a{4*i+c}")
        u = 72 + 8 * (i & 1)
        for c in range(8):
            (unpack_hi if c & 1 else unpack_lo)(k, u + c, s + (c >> 1))
        t = 88 + 2 * (i & 1)
        for cp in range(0, 8, 2):
            if cp == 0:
                k(f"v_pk_mul_f32 {V(t,2)}, {V(u,2)}, {V(8,2)}")
            else:
                k(f"v_pk_fma_f32 {V(t,2)}, {V(u+cp,2)}, {V(8+cp,2)}, {V(t,2)}")
        k(f"v_add_f32 v{R+i}, v{t}, v{t+1}")
    for mod in ["row_shr:1", "row_shr:2", "row_shr:4", "row_shr:8", "row_bcast:15 row_mask:0xa",
                "row_bcast:31 row_mask:0xc"]:
        for i in range(16):
            m = mod if "row_mask" in mod else mod + " row_mask:0xf"
            k(f"v_add_f32_dpp v{R+i}, v{R+i}, v{R+i} {m} bank_mask:0xf")
    k("v_mov_b32 v2, 0")
    for g in range(0, 16, 4):
        for i in range(g, g + 4):
            k(f"v_readlane_b32 s{76+i-g}, v{R+i}, 63")
        for i in range(g, g + 4):
            k(f"v_writelane_b32 v2, s{76+i-g}, {i}")
    k("v_mul_f32 v2, 0xbfb8aa3b, v2")
    k("v_exp_f32 v2, v2")
    k("v_add_f32 v2, 1.0, v2")
    k("v_rcp_f32 v2, v2")
    k("v_and_b32 v1, 63, v0")
    k("v_lshlrev_b32 v3, 2, v1")
    k("s_lshl_b32 s6, s5, 2")
    k(f"s_add_u32 s6, s6, {WS_G}")
    k("v_cmp_gt_u32 vcc, 16, v1")
    k("s_and_saveexec_b64 s[74:75], vcc")
    k.vmem(f"buffer_store_dword v2, v3, {S(SWS)}, s6 offen sc1", "gs")
    k("s_mov_b64 exec, s[74:75]")


def rec(f, *a, **kw):
    r = Rec()
    f(r, *a, **kw)
    return r.items


def late_scalars(k):
    k(f"s_load_dword s96, s[{P_WS}:{P_WS+1}], {WS_EPOCH}")
    k("s_lshl_b32 s74, s2, 2")
    k(f"s_load_dword s23, s[{P_SSMD}:{P_SSMD+1}], s74")


def gen_full(cfg):
    global CFG
    CFG = cfg
    if cfg.get("x_nords"):
        G.g1_reads = lambda *a, **kw: None
    g = cfg.get
    k = KT()
    END = "K_END"
    bufs = [0, 32768, 65536, 98304]
    prologue(k, END)
    if g("icpf"):
        code_prefetch(k)
    if g("ts"):
        k("v_mov_b32 v63, 0")
    ts(k, 0)
    k("s_lshr_b32 s74, s2, 3")
    k("s_cmp_ge_u32 s74, 28")
    k("s_cbranch_scc1 GATE")
    G.g1_setup(k, cfg)
    bias_addr(k)
    rot_setup(k)
    t1_addr(k)
    srd_consts(k)
    k("s_waitcnt lgkmcnt(0)")
    srd_ptrs(k, (SQ, SW1))
    ts_setup(k, cfg) if False else None
    if g("x_dma"):
        srd_ptrs(k, (SK, SV, SWS, SW2, SOUT))
        ts_setup(k, cfg)
        npass = g("x_dma")
        for p in range(npass):
            if p:
                k("s_barrier")
            ts(k, 1 + 10 * p)
            infl = g("x_infl", 8)

            def iss(sl):
                r = Rec()
                g1_dma(r, sl, bufs[sl % 4])
                for it in r.items:
                    emit(k, it)
            for sl in range(infl):
                iss(sl)
            for sl in range(8):
                k.wait(vm=f"slab{sl}")
                ts(k, 2 + sl + 10 * p)
                if sl + infl < 8:
                    iss(sl + infl)
        k.wait_all()
        ts_final(k, cfg, 27)
        k("s_waitcnt vmcnt(0)")
        k("s_endpgm")
        k("GATE:")
        srd_consts(k)
        k("s_waitcnt lgkmcnt(0)")
        srd_ptrs(k, (SK, SV, SWS, SW2, SOUT))
        ts_setup(k, cfg)
        ts_final(k, cfg, 27)
        k("s_waitcnt vmcnt(0)")
        k(f"{END}:")
        k("s_endpgm")
        return k
    T1POS = g("t1pos", 1)
    W = Weaver(k, g("p_g1", 32))
    W.t = W.ta = 8 * 88
    r = Rec()
    g1_dma(r, 0, bufs[0])
    for it in r.items:
        emit(k, it)
    srd_ptrs(k, (SK, SV, SWS, SW2, SOUT))
    late_scalars(k)
    ts_setup(k, cfg)
    ts(k, 1)
    bg = Rec()
    if T1POS == 0:
        t1_loads(bg)
    g1_dma(bg, 1, bufs[1])
    if T1POS == 1:
        t1_loads(bg)
    bias_loads(bg)
    g1_dma(bg, 2, bufs[2])
    if T1POS == 2:
        t1_loads(bg)
    g1_dma(bg, 3, bufs[3])
    for s in range(4, 8):
        g1_dma(bg, s, bufs[s - 4], after=f"bar{s-4}")
    h_loads(bg, after="t1done")
    w2f_cons_loads(bg, after="f0bok")
    W.push(bg.items)
    W.flush(g("ndirect", 0))
    fg = Rec()
    h_setup(fg)
    kv_zero(fg)
    flag_addrs(fg)
    fg("s_waitcnt lgkmcnt(0)")
    nonce(fg)
    w2f_cons_setup(fg)
    ts(fg, 5)
    t1c = rec(t1_compute)
    t1c.append(("m", "t1done"))
    P0 = g("pub0", 4)
    T1SEG = g("t1seg", 1)
    BSEG = g("bseg", 1)
    POLL0B = g("poll0b", 3)
    CHK0B = g("chk0b", 4)
    POLL0A = g("poll0a", 5)
    CHK0A = g("chk0a", 6)
    TAILPOS = g("tailpos", 1)
    pre = {}
    post = {}

    def addh(d, s, f):
        old = d.get(s)
        d[s] = (lambda: (old(), f())) if old else f
    addh(pre, P0, lambda: fg.wait(vm="t1s"))
    addh(post, P0, lambda: publish(fg, WS_F0))
    addh(pre, CHK0B, lambda: (poll_check(fg, 62, 56, WS_F0, "p0b", "hi"), ts(fg, 2)))
    addh(post, CHK0B, lambda: fg.mark("f0bok"))
    addh(post, POLL0B, lambda: poll_issue(fg, 62, 56, WS_F0, "p0b"))
    if CHK0A < 7:
        addh(pre, CHK0A, lambda: (poll_check(fg, 62, 56, WS_F0, "p0a", "lo"), ts(fg, 14)))
        addh(post, CHK0A, lambda: kv_loads(fg))
    if POLL0A < 7:
        addh(post, POLL0A, lambda: poll_issue(fg, 62, 56, WS_F0, "p0a"))
    if T1SEG < 0:
        for it in t1c:
            fg._add(it)
    tail = rec(build_copies) + rec(conv_addr)
    extra = {("a", BSEG): (rec(bias_mfma), 5)}
    if TAILPOS == 0:
        extra[("b", 6)] = (tail, g("tailper", 4))
    if T1SEG >= 0:
        extra[("b", T1SEG)] = (t1c, g("t1per", 5))
    g1_main(fg, bufs, pre, post, extra)
    ts(fg, 15)
    if CHK0A == 7:
        if POLL0A == 7:
            poll_issue(fg, 62, 56, WS_F0, "p0a")
        poll_check(fg, 62, 56, WS_F0, "p0a", "lo")
        fg("s_barrier")
        ts(fg, 14)
        kv_loads(fg)
    fg.period(g("p_ep", 32))
    g1_epilogue(fg)
    if CHK0A == 8:
        if POLL0A >= 7:
            poll_issue(fg, 62, 56, WS_F0, "p0a")
        poll_check(fg, 62, 56, WS_F0, "p0a", "lo")
        fg("s_barrier")
        ts(fg, 14)
        kv_loads(fg)
    ts(fg, 4)
    if TAILPOS == 1:
        for it in tail:
            fg._add(it)
    kv_write(fg)
    ts(fg, 16)
    conflicts("g1", fg.items, bg.items, ok=[("s", "m0"), ("v", 62, 62), ("v", 224, 255), ("v", 30, 47), ("s", 92, 93),
                                            ("v", 56, 58), ("s", 84, 91)])
    W.run(fg.items)
    nleft = len(W.bg)
    print("G1 path marks:", W.log, "bg left at JOIN:", nleft)
    for it in W.bg:
        assert all(x[2].startswith("wf") for x in flat([it]) if x[0] == "vm"), it
    if k.pend is not None:
        k("s_waitcnt lgkmcnt(0)")
    vm_join = list(k.vm)
    k("s_branch JOIN")
    k("GATE:")
    k.vm, k.lg = [], []
    if g("ts"):
        k.pend = 0
    w2f_addr(k)
    t1_addr(k)
    srd_consts(k)
    k("s_waitcnt lgkmcnt(0)")
    srd_ptrs(k, (SW2, SK, SV, SQ, SWS, SOUT))
    for it in rec(w2f_dma):
        emit(k, it)
    late_scalars(k)
    ts_setup(k, cfg)
    ts(k, 1)
    GORD = g("gord", 0)
    for it in rec(t1_loads):
        emit(k, it)
    h_setup(k)
    if GORD == 0:
        for it in rec(w2f_tr):
            emit(k, it)
        ts(k, 3)
        Wg = Weaver(k, g("p_gw", 32))
        Wg.push(rec(w2f_stores))
        if g("gw2first", 1):
            Wg.flush()
            ts(k, 2)
            for it in rec(t1_compute):
                emit(k, it)
        else:
            Wg.run(rec(t1_compute)[:-12])
            Wg.flush()
            for it in rec(t1_compute)[-12:]:
                emit(k, it)
        ts(k, 4)
        for it in rec(kv_zero):
            emit(k, it)
        flag_addrs(k)
        k("s_waitcnt lgkmcnt(0)")
        k.lg = []
        nonce(k)
        k.wait(vm="w2s")
        k("s_barrier")
        publish(k, WS_F0B, 224)
        ts(k, 6)
        if not g("gswap", 0):
            gate_loads(k)
        k.wait(vm="t1s")
        k("s_barrier")
        publish(k, WS_F0)
        ts(k, 5)
        if g("gswap", 0):
            gate_loads(k)
        for it in rec(h_loads):
            emit(k, it)
        gate_compute(k)
        for it in rec(build_copies) + rec(conv_addr):
            emit(k, it)
        poll_issue(k, 62, 56, WS_F0, "p0")
        poll_check(k, 62, 56, WS_F0, "p0")
        k("s_barrier")
        ts(k, 14)
        for it in rec(kv_loads):
            emit(k, it)
        w2f_cons_setup(k)
        allw = rec(w2f_cons_loads)
        for it in allw[:len(allw) - nleft]:
            emit(k, it)
    else:
        for it in rec(kv_zero):
            emit(k, it)
        flag_addrs(k)
        k("s_waitcnt lgkmcnt(0)")
        k.lg = []
        nonce(k)
        for it in rec(t1_compute):
            emit(k, it)
        ts(k, 4)
        for it in rec(w2f_tr):
            emit(k, it)
        ts(k, 3)
        ws_items = rec(w2f_stores)
        nfirst = g("gsplit", 0)
        for it in ws_items[:nfirst]:
            emit(k, it)
        k.wait(vm="t1s")
        k("s_barrier")
        publish(k, WS_F0)
        ts(k, 5)
        for it in ws_items[nfirst:]:
            emit(k, it)
        ts(k, 2)
        for it in rec(h_loads):
            emit(k, it)
        k.wait(vm="w2s")
        k("s_barrier")
        publish(k, WS_F0B, 224)
        ts(k, 6)
        gate_loads(k)
        for it in rec(build_copies) + rec(conv_addr):
            emit(k, it)
        poll_issue(k, 62, 56, WS_F0, "p0b")
        gate_compute(k)
        poll_check(k, 62, 56, WS_F0, "p0b", "hi")
        k("s_barrier")
        w2f_cons_setup(k)
        allw = rec(w2f_cons_loads)
        for it in allw[:len(allw) - nleft]:
            emit(k, it)
        poll_issue(k, 62, 56, WS_F0, "p0")
        poll_check(k, 62, 56, WS_F0, "p0", "lo")
        k("s_barrier")
        ts(k, 14)
        for it in rec(kv_loads):
            emit(k, it)
    kv_write(k)
    ts(k, 16)
    k.wait_all(vm=True, lg=True)
    k("JOIN:")
    k.vm = vm_join
    k.lg = ["x"]
    k.wait_all(vm=False, lg=True)
    PUB1 = g("pub1", 54)
    if PUB1 < 0:
        k.wait(vm="hs")
    k("s_barrier")
    ts(k, 17)
    if PUB1 < 0:
        publish(k, WS_F1)
    POLL1 = g("poll1", 100)
    CHK1 = g("chk1", -1)
    depth = 16
    fg = Rec()
    bg = Rec()
    g2_setup(fg)
    fg.period(g("p_cv", 32))

    def hook(n):
        if n == PUB1:
            fg.wait(vm="hs")
            fg("s_barrier")
            ts(fg, 18)
            publish(fg, WS_F1)
        if n == POLL1:
            poll_issue(fg, 62, 57, WS_F1, "p1")
        if n == CHK1:
            poll_check(fg, 62, 57, WS_F1, "p1")
            fg("s_barrier")
            fg.mark("f1ok")
            ts(fg, 20)
    conv_main(fg, hook)
    ts(fg, 19)

    def prebar():
        if CHK1 < 0:
            poll_check(fg, 62, 57, WS_F1, "p1")
            ts(fg, 20)
    fg.period(g("p_ce", 32))
    conv_epilogue(fg, prebar)
    ts(fg, 21)
    hf_loads(bg, depth, "cvbar" if CHK1 < 0 else "f1ok")
    epl = Rec()
    g2_ep_loads_plain(epl, after="epaddr")
    eps = Rec()
    g2_ep_loads_sc1(eps, after="f2ok")
    PUB2 = g("pub2", 4)
    POLL2 = g("poll2", 16)
    CHK2 = g("chk2", 22)
    EPQ = g("epq", 8)
    hfi = bg.items
    pos = min(2 * (EPQ + depth), len(hfi))
    bgall = hfi[:pos] + epl.items + hfi[pos:] + eps.items
    fg.period(g("p_g2", 32))

    def h_pub2():
        fg.wait(vm="ys")
        fg("s_barrier")
        ts(fg, 22)
        publish(fg, WS_F2)

    def h_chk2():
        poll_check(fg, 62, 61, WS_F1, "p2")
        fg("s_barrier")
        fg.mark("f2ok")
        ts(fg, 23)
    hooks = {}
    addh(hooks, 0, lambda: (g2_ep_addr(fg), fg.mark("epaddr")))
    addh(hooks, PUB2, h_pub2)
    addh(hooks, POLL2, lambda: poll_issue(fg, 62, 61, WS_F1, "p2"))
    addh(hooks, CHK2, h_chk2)
    g2_main(fg, depth, hooks)
    ts(fg, 24)
    g2_epilogue(fg)
    ts(fg, 26)
    conflicts("g2", fg.items, W.bg + bgall,
              ok=[("a", 0, 223), ("v", 128, 255), ("v", 62, 62), ("s", 80, 86), ("v", 8, 32), ("v", 45, 48), ("s", 94, 94)])
    W.push(bgall)
    W.log = []
    W.run(fg.items)
    print("JOIN path marks:", W.log, "bg left:", len(W.bg))
    assert not W.bg
    k("s_or_b32 s74, s2, s4")
    k("s_cmp_eq_u32 s74, 0")
    k("s_cbranch_scc0 NOEP")
    k("s_add_u32 s96, s96, 1")
    k("v_mov_b32 v62, s96")
    k(f"s_mov_b32 s97, {WS_EPOCH}")
    k("s_mov_b64 exec, 1")
    k(f"buffer_store_dword v62, off, {S(SWS)}, s97")
    k("s_mov_b64 exec, -1")
    k("NOEP:")
    k.wait_all()
    ts_final(k, cfg, 27)
    k("s_waitcnt vmcnt(0)")
    if g("ampn"):
        k(f"s_cmp_eq_u32 s2, {g('ampw', 0)}")
        k(f"s_cbranch_scc0 {END}")
        k("s_cmp_eq_u32 s4, 0")
        k(f"s_cbranch_scc0 {END}")
        k(f"v_readlane_b32 s10, v63, {g('ampa', 0)}")
        k(f"v_readlane_b32 s11, v63, {g('ampb', 27)}")
        k("s_sub_u32 s11, s11, s10")
        k("s_min_u32 s11, s11, 4000")
        k(f"s_mul_i32 s11, s11, {g('ampn')}")
        k("s_memrealtime s[12:13]")
        k("s_waitcnt lgkmcnt(0)")
        k("s_mov_b32 s14, s12")
        k("s_mov_b32 s15, 0x40000")
        k("AMPL:")
        k("s_memrealtime s[12:13]")
        k("s_waitcnt lgkmcnt(0)")
        k("s_sub_u32 s16, s12, s14")
        k("s_cmp_ge_u32 s16, s11")
        k(f"s_cbranch_scc1 {END}")
        k("s_sub_u32 s15, s15, 1")
        k("s_cbranch_scc0 AMPL")
    k(f"{END}:")
    k("s_endpgm")
    k("K_CODE_END:")
    return k


def build(cfg):
    hdr = open("cdna_kernels/" + NAME + ".s.ref").read().split("; Override")[0]
    out = [hdr.rstrip("\n")]
    out.append("; @launch grid=(256,1,1) block=(256,1,1) lds=163840")
    out.append('.amdgcn_target "amdgcn-amd-amdhsa--gfx950"\n.text')
    k = gen_full(cfg)
    lab = NAME + "_kernel"
    out.append(G.khead(lab) + k.text())
    out.append('.section .rodata,"a"\n.p2align 6')
    out.append(G.kdesc(lab))
    return "\n".join(out) + "\n"


if __name__ == "__main__":
    path = sys.argv[1]
    cfg = {}
    for a in sys.argv[2:]:
        kk, vv = a.split("=")
        cfg[kk] = int(vv)
    txt = build(cfg)
    open(path, "w").write(txt)
    print("bytes", len(txt))
```

```python
import sys
from asmlib import K
import gen as G
from gen import (S, V, A, srd, unpack_lo, unpack_hi, NAME, SQ, SK, SV, SW1, SW2, SOUT, SWS, STMP,
                 P_Q, P_K, P_V, P_SHIFT, P_SSMK, P_SSMD, P_W1, P_B1, P_W2, P_B2, P_GATE, P_OUT, P_WS,
                 COPY_O, COPY_STRIDE, CH_STRIDE, KV_STRIDE, conv_order, G1_ACC, G1_FR,
                 CV_ACC, CV_FA, CV_FB, G2_ACC)
from weave import Rec, Weaver, emit, flat, conflicts
import gen2
from gen2 import KT, Lbl, ts_setup, ts_final

WS_F0, WS_F1, WS_F2 = 0, 32768, 65536
WS_EPOCH = 98304
WS_F0B = 102400
WS_G = 0x20000
WS_KVR = 1 << 20
WS_W2F = 3 << 20
WS_HF = 5 << 20
WS_YT = 13 << 20
WS_TS = 15 << 20
WS_SIZE = 16 << 20

L_W2S = 73728
L_KV = 139264
L_H = 0
L_PART = 98304
L_RED = 0
L_YL = 49152

NONCE = 3
SPIN = 1 << 15
OOB = 0x40000000
SDMA = 22
SC_ST = 300
CFG = {}


def ts(k, idx):
    if not CFG.get("ts"):
        return
    if isinstance(k, Rec):
        k.fn(lambda kk: gen2.ts(kk, CFG, idx))
    else:
        gen2.ts(k, CFG, idx)


def vm(k, s, tag, cost=None):
    if isinstance(k, Rec):
        k.vmem(s, tag, cost)
    else:
        k.vmem(s, tag)


class nullatom:
    def __enter__(self):
        return self

    def __exit__(self, *a):
        return False


def atom(k, after=None, cost=None):
    return k.atom(after, cost) if isinstance(k, Rec) else nullatom()


def publish(k, wsoff, sub=0):
    l = Lbl.new("PUB")
    wsoff -= 128 * sub
    with atom(k):
        k("s_cmp_eq_u32 s4, 0")
        k(f"s_cbranch_scc0 {l}")
        k("s_lshl_b32 s97, s2, 7")
        k(f"s_add_u32 s97, s97, {wsoff}")
        k(f"v_mov_b32 v62, s{NONCE}")
        k("s_mov_b64 exec, 1")
        k(f"buffer_store_dword v62, off, {S(SWS)}, s97 sc1")
        k("s_mov_b64 exec, -1")
        k(f"{l}:")


def poll_issue(k, vreg, voff, wsoff, tag, after=None):
    with atom(k, after):
        k(f"s_mov_b32 s94, {wsoff}")
        vm(k, f"buffer_load_dword v{vreg}, v{voff}, {S(SWS)}, s94 offen sc1", tag, 40)


def poll_check(k, vreg, voff, wsoff, tag, half=None):
    ok, rt = Lbl.new("POK"), Lbl.new("PRT")

    def test():
        k(f"v_cmp_ne_u32 vcc, s{NONCE}, v{vreg}")
        if half is None:
            k(f"s_cbranch_vccz {ok}")
        else:
            k(f"s_cmp_eq_u32 vcc_{half}, 0")
            k(f"s_cbranch_scc1 {ok}")
    with atom(k):
        k.wait(vm=tag)
        k("s_cmp_eq_u32 s4, 0")
        k(f"s_cbranch_scc0 {ok}")
        test()
        k(f"s_mov_b32 s97, {wsoff}")
        k(f"s_mov_b32 s101, {SPIN}")
        k(f"{rt}:")
        k("s_sleep 1")
        k(f"buffer_load_dword v{vreg}, v{voff}, {S(SWS)}, s97 offen sc1")
        k("s_waitcnt vmcnt(0)")
        test()
        k("s_sub_u32 s101, s101, 1")
        k(f"s_cbranch_scc0 {rt}")
        k(f"{ok}:")


def prologue(k, endlabel):
    k("s_cmp_ge_u32 s2, 256")
    k(f"s_cbranch_scc1 {endlabel}")
    k("s_load_dwordx16 s[44:59], s[0:1], 0")
    k("s_load_dwordx8 s[60:67], s[0:1], 64")
    k("s_load_dwordx4 s[68:71], s[0:1], 96")
    k("s_load_dwordx2 s[72:73], s[0:1], 112")
    k("v_lshrrev_b32 v1, 6, v0")
    k("s_nop 0")
    k("v_readfirstlane_b32 s4, v1")


def code_prefetch(k):
    lab = NAME + "_kernel"
    k("s_getpc_b64 s[84:85]")
    k("PF_PC:")
    k(f"s_sub_u32 s84, s84, PF_PC-{lab}")
    k("s_subb_u32 s85, s85, 0")
    k(f"s_mov_b32 s86, K_CODE_END-{lab}")
    k("s_mov_b32 s87, 0x00020000")
    k("s_lshr_b32 s88, s2, 3")
    k("s_lshl_b32 s88, s88, 2")
    k("s_add_u32 s88, s88, s4")
    k(f"s_and_b32 s88, s88, {CFG.get('pfmask', 63)}")
    k("s_lshl_b32 s88, s88, 10")
    k("v_and_b32 v2, 63, v0")
    k("v_lshlrev_b32 v2, 4, v2")
    k("v_add_u32 v2, s88, v2")
    k.vmem("buffer_load_dwordx4 a[252:255], v2, s[84:87], 0 offen", "icpf")


SRDS = [(SQ, P_Q, 2 << 20), (SW1, P_W1, 512 * 1792 * 2), (SK, P_K, 2 << 20), (SV, P_V, 2 << 20),
        (SW2, P_W2, 512 * 1792 * 2), (SOUT, P_OUT, 2 << 20), (SWS, P_WS, WS_SIZE)]


def srd_consts(k):
    for d, p, n in SRDS:
        k(f"s_mov_b32 s{d+2}, {n}")
        k(f"s_mov_b32 s{d+3}, 0x00020000")
    k(f"s_mov_b32 s{STMP+3}, 0x00020000")


def srd_ptrs(k, which):
    for d, p, n in SRDS:
        if d in which:
            k(f"s_mov_b32 s{d}, s{p}")
            k(f"s_mov_b32 s{d+1}, s{p+1}")


def stmp(k, ptr, nbytes):
    k(f"s_mov_b32 s{STMP}, s{ptr}")
    k(f"s_mov_b32 s{STMP+1}, s{ptr+1}")
    k(f"s_mov_b32 s{STMP+2}, {nbytes}")


def nonce(k):
    k(f"s_mul_i32 s{NONCE}, s96, 0x9E3779B1")
    k(f"s_add_u32 s{NONCE}, s{NONCE}, 0x85EBCA6B")


T1_KR, T1_VR, T1_WR = 224, 235, 244
T1_K, T1_W, T1_A, T1_V, T1_O = 128, 150, 30, 128, 144


def t1_addr(k):
    k.c("---- T1 addresses ----")
    k("s_lshr_b32 s84, s2, 5")
    k("s_and_b32 s85, s2, 31")
    k("s_lshl_b32 s85, s85, 6")
    k("s_and_b32 s74, s4, 1")
    k("s_lshr_b32 s75, s4, 1")
    k("s_lshl_b32 s76, s74, 5")
    k("s_add_u32 s76, s76, s85")
    k("s_sub_u32 s77, s76, 3")
    k("s_lshl_b32 s77, s77, 10")
    k("s_lshl_b32 s78, s84, 7")
    k("s_add_u32 s77, s77, s78")
    k("s_lshl_b32 s78, s75, 6")
    k("s_add_u32 s77, s77, s78")
    k("v_and_b32 v15, 15, v0")
    k("v_bfe_u32 v16, v0, 4, 2")
    k("v_lshlrev_b32 v10, 13, v16")
    k("v_lshl_add_u32 v10, v15, 2, v10")
    k("v_add_u32 v10, s77, v10")
    k("v_add_u32 v11, 1024, v10")
    k("v_add_u32 v12, 2048, v10")
    k("v_add_u32 v13, 3072, v10")
    k("v_add_u32 v14, 7168, v10")
    k("v_lshlrev_b32 v17, 4, v15")
    k("s_lshl_b32 s78, s84, 9")
    k("s_lshl_b32 s79, s75, 8")
    k("s_add_u32 s7, s78, s79")
    k("v_sub_u32 v16, 3, v16")
    k("v_lshlrev_b32 v16, 4, v16")
    k("v_lshl_add_u32 v18, v15, 13, v16")
    k("s_lshl_b32 s78, s84, 18")
    k("s_lshl_b32 s79, s75, 17")
    k("s_add_u32 s78, s78, s79")
    k("s_sub_u32 s79, 2016, s76")
    k("s_lshl_b32 s79, s79, 1")
    k("s_add_u32 s78, s78, s79")
    k(f"s_add_u32 s95, s78, {WS_KVR}")


def t1_loads(k, cost=32):
    if CFG.get("x_not1"):
        return
    def ad(j):
        if j < 3:
            return 10 + j, 0
        if j < 7:
            return 13, (j - 3) * 1024
        return 14, (j - 7) * 1024
    with atom(k):
        stmp(k, P_SHIFT, 512 * 4 * 2)
        vm(k, f"buffer_load_dwordx4 {V(T1_WR,4)}, v17, {S(STMP)}, s7 offen", "t1", 64)
    for j in range(11):
        r, o = ad(j)
        vm(k, f"buffer_load_dword v{T1_KR+j}, v{r}, {S(SK)}, 0 offen offset:{o}", "t1", cost)
    for i in range(8):
        r, o = ad(i + 3)
        vm(k, f"buffer_load_dword v{T1_VR+i}, v{r}, {S(SV)}, 0 offen offset:{o}", "t1", cost)


def t1_compute(k):
    k.c("---- T1 compute ----")
    if CFG.get("x_not1"):
        for _ in range(16):
            k("s_nop 0")
        return
    k.wait(vm="t1")
    for m in range(4):
        up = unpack_hi if m & 1 else unpack_lo
        up(k, T1_W + 2 * m, T1_WR + (m >> 1))
        up(k, T1_W + 2 * m + 1, T1_WR + 2 + (m >> 1))
    for j in range(11):
        unpack_lo(k, T1_K + 2 * j, T1_KR + j)
        unpack_hi(k, T1_K + 2 * j + 1, T1_KR + j)
    for m in range(4):
        for i in range(8):
            d = T1_A + 2 * i
            a = T1_K + 2 * (i + 3 - m)
            w = T1_W + 2 * m
            if m == 0:
                k(f"v_pk_mul_f32 {V(d,2)}, {V(a,2)}, {V(w,2)}")
            else:
                k(f"v_pk_fma_f32 {V(d,2)}, {V(a,2)}, {V(w,2)}, {V(d,2)}")
    for i in range(8):
        unpack_lo(k, T1_V + 2 * i, T1_VR + i)
        unpack_hi(k, T1_V + 2 * i + 1, T1_VR + i)
    for i in range(8):
        d = T1_A + 2 * i
        k(f"v_pk_mul_f32 {V(d,2)}, {V(d,2)}, {V(T1_V+2*i,2)}")
    for c in range(2):
        for jj in range(4):
            k(f"v_cvt_pk_bf16_f32 v{T1_O+4*c+jj}, v{T1_A+2*(7-2*jj)+c}, v{T1_A+2*(6-2*jj)+c}")
        with atom(k):
            if c:
                k("s_add_u32 s95, s95, 4096")
            vm(k, f"buffer_store_dwordx4 {V(T1_O+4*c,4)}, v18, {S(SWS)}, s95 offen sc1", "t1s", SC_ST)


W2T = 64


def w2f_addr(k):
    k.c("---- W2F producer addresses ----")
    k("s_lshr_b32 s92, s2, 3")
    k("s_sub_u32 s92, s92, 28")
    k("s_mul_i32 s92, s92, 28")
    k("s_mul_i32 s93, s4, 7")
    k("s_add_u32 s92, s92, s93")
    k("s_and_b32 s93, s2, 7")
    k("s_lshl_b32 s21, s93, 7")
    k("s_add_u32 s21, s21, s92")
    k("s_lshl_b32 s21, s21, 11")
    k(f"s_add_u32 s21, s21, {WS_W2F}")
    k("s_lshl_b32 s93, s93, 7")
    k("s_lshl_b32 s92, s92, 14")
    k("s_add_u32 s93, s93, s92")
    k("v_and_b32 v23, 63, v0")
    k("v_lshrrev_b32 v19, 3, v23")
    k("v_and_b32 v20, 7, v23")
    k("v_bfe_u32 v21, v23, 4, 1")
    k("v_lshlrev_b32 v21, 2, v21")
    k("v_xor_b32 v20, v20, v21")
    k("v_lshlrev_b32 v20, 4, v20")
    k("v_lshl_add_u32 v19, v19, 10, v20")
    k("s_mul_i32 s92, s4, 14336")
    k(f"s_add_u32 s92, s92, {L_W2S}")
    k("v_and_b32 v20, 15, v23")
    k("v_lshrrev_b32 v21, 5, v23")
    k("v_lshrrev_b32 v22, 2, v20")
    k("v_lshl_add_u32 v21, v21, 2, v22")
    k("v_lshlrev_b32 v21, 7, v21")
    k("v_bfe_u32 v22, v23, 4, 1")
    k("v_lshlrev_b32 v22, 1, v22")
    k("v_bfe_u32 v24, v20, 1, 1")
    k("v_add_u32 v22, v22, v24")
    k("v_bfe_u32 v24, v20, 3, 1")
    k("v_lshl_add_u32 v22, v24, 2, v22")
    k("v_lshl_add_u32 v21, v22, 4, v21")
    k("v_and_b32 v24, 1, v20")
    k("v_lshl_add_u32 v20, v24, 3, v21")
    k("v_add_u32 v20, s92, v20")
    k("v_xor_b32 v21, 64, v20")
    k("v_lshlrev_b32 v22, 4, v23")


def w2f_dma(k):
    for j in range(7):
        for h in range(2):
            with atom(k):
                k(f"s_add_u32 m0, s92, {2048*j + 1024*h}")
                k(f"s_add_u32 s{SDMA}, s93, {16384*j + 8192*h}")
                vm(k, f"buffer_load_dwordx4 v19, {S(SW2)}, s{SDMA} offen lds", f"w2d{j}")


def w2f_tr(k):
    for j in range(7):
        k.wait(vm=f"w2d{j}")
        for nb in range(2):
            for hf in range(2):
                k.ds(f"ds_read_b64_tr_b16 {V(W2T + 8*j + 4*nb + 2*hf, 2)}, v{20+nb} offset:{2048*j + 1024*hf}", f"w2t{j}")


def w2f_stores(k):
    for j in range(7):
        for nb in range(2):
            with atom(k):
                if nb == 0:
                    k.wait(lg=f"w2t{j}")
                    if j and j % 2 == 0:
                        k("s_add_u32 s21, s21, 4096")
                vm(k, f"buffer_store_dwordx4 {V(W2T+8*j+4*nb,4)}, v22, {S(SWS)}, s21 offen offset:{1024*nb + 2048*(j&1)} sc1",
                   "w2s", 120)


L_STG = 131072
W2P = 128


def w2p_vaddr(k):
    k("v_and_b32 v135, 63, v0")
    k(f"v_lshrrev_b32 v{W2P}, 3, v135")
    k("v_and_b32 v132, 7, v135")
    k("v_bfe_u32 v133, v135, 4, 1")
    k("v_lshlrev_b32 v133, 2, v133")
    k("v_xor_b32 v132, v132, v133")
    k("v_lshlrev_b32 v132, 4, v132")
    k(f"v_lshl_add_u32 v{W2P}, v{W2P}, 10, v132")
    k("s_lshl_b32 s74, s4, 11")
    k(f"s_add_u32 s74, s74, {L_STG}")
    k("v_and_b32 v132, 15, v135")
    k("v_lshrrev_b32 v133, 5, v135")
    k("v_lshrrev_b32 v134, 2, v132")
    k("v_lshl_add_u32 v133, v133, 2, v134")
    k("v_lshlrev_b32 v133, 7, v133")
    k("v_bfe_u32 v134, v135, 4, 1")
    k("v_lshlrev_b32 v134, 1, v134")
    k("v_bfe_u32 v136, v132, 1, 1")
    k("v_add_u32 v134, v134, v136")
    k("v_bfe_u32 v136, v132, 3, 1")
    k("v_lshl_add_u32 v134, v136, 2, v134")
    k("v_lshl_add_u32 v133, v134, 4, v133")
    k("v_and_b32 v136, 1, v132")
    k("v_lshl_add_u32 v133, v136, 3, v133")
    k(f"v_add_u32 v{W2P+1}, s74, v133")
    k(f"v_xor_b32 v{W2P+2}, 64, v{W2P+1}")
    k(f"v_lshlrev_b32 v{W2P+3}, 4, v135")


def w2p_dma(k):
    k("s_lshr_b32 s70, s2, 3")
    k("s_lshl_b32 s70, s70, 2")
    k("s_add_u32 s70, s70, s4")
    k("s_and_b32 s71, s2, 7")
    k("s_lshl_b32 s21, s71, 7")
    k("s_add_u32 s21, s21, s70")
    k("s_lshl_b32 s21, s21, 11")
    k(f"s_add_u32 s21, s21, {WS_W2F}")
    k("s_lshl_b32 s71, s71, 7")
    k("s_lshl_b32 s70, s70, 14")
    k("s_add_u32 s71, s71, s70")
    k("s_lshl_b32 s70, s4, 11")
    k(f"s_add_u32 s70, s70, {L_STG}")
    for h in range(2):
        k(f"s_add_u32 m0, s70, {1024*h}")
        k(f"s_add_u32 s{SDMA}, s71, {8192*h}")
        k.vmem(f"buffer_load_dwordx4 v{W2P}, {S(SW2)}, s{SDMA} offen lds", "w2d")


def w2p_out(k):
    k.wait(vm="w2d")
    for nb in range(2):
        for hf in range(2):
            k.ds(f"ds_read_b64_tr_b16 {V(W2P + 4 + 4*nb + 2*hf, 2)}, v{W2P+1+nb} offset:{1024*hf}", f"w2t{nb}")
    for nb in range(2):
        k.wait(lg=f"w2t{nb}")
        vm(k, f"buffer_store_dwordx4 {V(W2P+4+4*nb,4)}, v{W2P+3}, {S(SWS)}, s21 offen offset:{1024*nb} sc1", "w2s", 120)


def w2f_cons_setup(k):
    k("s_lshr_b32 s92, s2, 5")
    k("s_lshl_b32 s92, s92, 7")
    k("s_mul_i32 s93, s4, 28")
    k("s_add_u32 s92, s92, s93")
    k("s_lshl_b32 s92, s92, 11")
    k(f"s_add_u32 s92, s92, {WS_W2F}")
    k("s_and_b32 s93, s4, 1")
    k("s_lshl_b32 s93, s93, 10")
    k("s_add_u32 s92, s92, s93")
    k("s_xor_b32 s93, s92, 1024")


def w2f_cons_loads(k, after=None):
    for ii in range(28):
        for a in range(2):
            with atom(k, after):
                if ii and ii % 2 == 0:
                    k(f"s_add_u32 s{92+a}, s{92+a}, 4096")
                vm(k, f"buffer_load_dwordx4 {A(8*ii+4*a,4)}, v58, {S(SWS)}, s{92+a} offen offset:{2048*(ii%2)} sc1",
                   f"wf{ii}")


HW = 30


def h_setup(k):
    k("s_lshl_b32 s74, s2, 13")
    for ch in range(2):
        d = 84 + 4 * ch
        k(f"s_add_u32 s{d}, s{P_SSMK}, s74")
        k(f"s_addc_u32 s{d+1}, s{P_SSMK+1}, 0")
        k(f"s_mov_b32 s{d+2}, 4096")
        k(f"s_mov_b32 s{d+3}, 0x00020000")
        if ch == 0:
            k("s_add_u32 s74, s74, 4096")
    k("v_lshlrev_b32 v46, 4, v0")
    k("v_add_u32 v47, -16, v46")


def h_loads(k, after=None):
    for ch in range(2):
        with atom(k, after):
            vm(k, f"buffer_load_dwordx4 {V(HW+8*ch,4)}, v47, {S(84+4*ch)}, 0 offen", "hw")
        with atom(k, after):
            vm(k, f"buffer_load_dwordx4 {V(HW+4+8*ch,4)}, v46, {S(84+4*ch)}, 0 offen", "hw")


def kv_zero(k):
    for i in range(4):
        k(f"v_mov_b32 v{48+i}, 0")
    k(f"v_add_u32 v52, {L_KV + 4096}, v46")
    with atom(k):
        k("v_cmp_gt_u32 vcc, 32, v0")
        k("s_and_saveexec_b64 s[74:75], vcc")
        for ch in range(2):
            k.ds(f"ds_write_b128 v52, {V(48,4)} offset:{ch*KV_STRIDE}", "kvz")
        k("s_mov_b64 exec, s[74:75]")


def build_copies(k):
    k.wait(vm="hw")
    k(f"v_add_u32 v52, {L_H + 16}, v46")
    k(f"v_add_u32 v53, {L_H + 16 + CH_STRIDE}, v46")
    for ch in range(2):
        w = HW + 8 * ch
        t = (128, 224)[ch]
        R, P, Q = t, t + 6, t + 12
        src = {0: w, 4: w + 2, 2: R, 6: R + 2, 1: P, 5: P + 2, 3: Q, 7: Q + 2}

        def wr(s):
            k.ds(f"ds_write_b128 v{52+ch}, {V(src[s],4)} offset:{s*COPY_STRIDE + 16*COPY_O[s]}", "hwr")
        wr(0)
        wr(4)
        for j in range(6):
            k(f"v_mov_b32 v{R+j}, v{w+j+1}")
        wr(2)
        wr(6)
        for j in range(6):
            k(f"v_alignbyte_b32 v{P+j}, v{w+j+1}, v{w+j}, 2")
        wr(1)
        wr(5)
        for j in range(6):
            k(f"v_alignbyte_b32 v{Q+j}, v{w+j+2}, v{w+j+1}, 2")
        wr(3)
        wr(7)
    with atom(k):
        k("s_mov_b32 s76, 255")
        k("v_cmp_eq_u32 vcc, s76, v0")
        k("s_and_saveexec_b64 s[74:75], vcc")
        for ch in range(2):
            k.ds(f"ds_write_b128 v{52+ch}, {V(HW+8*ch+4,4)} offset:{16 + 16*COPY_O[0]}", "hwr")
        k("s_mov_b64 exec, s[74:75]")
    with atom(k):
        lut = sum(o << (4 * i) for i, o in enumerate(COPY_O))
        k(f"s_mov_b32 s76, {lut}")
        k("v_lshlrev_b32 v54, 2, v0")
        k("v_bfe_u32 v54, s76, v54, 4")
        k("v_lshlrev_b32 v54, 4, v54")
        k(f"v_mul_u32_u24 v55, {COPY_STRIDE}, v0")
        k("v_add_u32 v54, v54, v55")
        k(f"v_add_u32 v54, {L_H}, v54")
        k("v_cmp_gt_u32 vcc, 8, v0")
        k("s_and_saveexec_b64 s[74:75], vcc")
        k.ds(f"ds_write_b128 v54, {V(48,4)}", "hwr")
        k.ds(f"ds_write_b128 v54, {V(48,4)} offset:{CH_STRIDE}", "hwr")
        k("s_mov_b64 exec, s[74:75]")


KVR = 244


def kv_loads(k, after=None):
    with atom(k, after):
        k("s_lshl_b32 s94, s2, 13")
        k(f"s_add_u32 s94, s94, {WS_KVR}")
        vm(k, f"buffer_load_dwordx4 {V(KVR,4)}, v46, {S(SWS)}, s94 offen sc1", "kv")
    with atom(k, after):
        k("s_lshl_b32 s94, s2, 13")
        k(f"s_add_u32 s94, s94, {WS_KVR + 4096}")
        vm(k, f"buffer_load_dwordx4 {V(KVR+4,4)}, v46, {S(SWS)}, s94 offen sc1", "kv")


def kv_write(k):
    k(f"v_add_u32 v54, {L_KV}, v46")
    k.wait(vm="kv")
    for ch in range(2):
        k.ds(f"ds_write_b128 v54, {V(KVR+4*ch,4)} offset:{ch*KV_STRIDE}", "kvw")


def flag_addrs(k):
    k("v_and_b32 v58, 63, v0")
    k("s_lshr_b32 s75, s2, 5")
    k("s_lshl_b32 s74, s75, 5")
    k("v_and_b32 v59, 31, v58")
    k("v_add_u32 v61, s74, v59")
    if CFG.get("dist"):
        k("v_min_u32 v60, 27, v59")
    else:
        k("v_and_b32 v60, 3, v58")
    k("v_lshlrev_b32 v60, 3, v60")
    k(f"s_add_u32 s75, s75, {(WS_F0B - WS_F0) // 128}")
    k("v_add_u32 v60, s75, v60")
    k("v_cmp_gt_u32 vcc, 32, v58")
    k("v_cndmask_b32 v56, v60, v61, vcc")
    k("v_lshlrev_b32 v56, 7, v56")
    k(f"v_add_u32 v61, {(WS_F2 - WS_F1) // 128}, v61")
    k("v_add_u32 v59, 224, v59")
    k("v_cndmask_b32 v61, v59, v61, vcc")
    k("v_lshlrev_b32 v61, 7, v61")
    k("s_and_b32 s74, s2, 7")
    k("s_lshl_b32 s74, s74, 2")
    k("s_lshr_b32 s75, s2, 3")
    k("s_and_b32 s75, s75, 3")
    k("s_add_u32 s74, s74, s75")
    k("s_lshr_b32 s75, s74, 1")
    if CFG.get("xm"):
        k("s_lshr_b32 s76, s75, 1")
        k("s_and_b32 s77, s75, 1")
        k("s_lshl_b32 s77, s77, 3")
        k("s_add_u32 s76, s76, s77")
        k("v_lshlrev_b32 v60, 4, v58")
    else:
        k("s_lshr_b32 s76, s75, 2")
        k("s_lshl_b32 s76, s76, 1")
        k("s_and_b32 s77, s75, 3")
        k("s_lshl_b32 s77, s77, 3")
        k("s_add_u32 s76, s76, s77")
        k("v_cmp_lt_u32 vcc, 6, v58")
        k("v_cndmask_b32 v59, 0, 1, vcc")
        k("v_mul_u32_u24 v60, 7, v59")
        k("v_sub_u32 v60, v58, v60")
        k("v_lshlrev_b32 v60, 5, v60")
        k("v_add_u32 v60, v60, v59")
    k("v_cmp_gt_u32 vcc, 14, v58")
    k("v_cndmask_b32 v60, 0, v60, vcc")
    k("v_add_u32 v60, s76, v60")
    k("v_lshlrev_b32 v57, 7, v60")
    k("s_cmp_eq_u32 s4, 0")
    k(f"s_cselect_b32 s74, 0, {OOB}")
    k("v_or_b32 v56, s74, v56")
    k("v_or_b32 v57, s74, v57")
    k("v_or_b32 v61, s74, v61")
    k("v_lshlrev_b32 v58, 4, v58")


BA0, BB1 = 248, 20


def rot_setup(k):
    m = CFG.get("rot", 0)
    if not m:
        return
    k("s_lshr_b32 s20, s2, 3")
    if m == 1:
        k("s_and_b32 s20, s20, 7")
    elif m == 2:
        k("s_and_b32 s20, s20, 3")
        k("s_lshl_b32 s20, s20, 1")
    elif m == 3:
        k("s_lshr_b32 s20, s20, 2")
    elif m == 4:
        k("s_lshr_b32 s20, s20, 2")
        k("s_and_b32 s20, s20, 1")
        k("s_lshl_b32 s20, s20, 2")
    elif m == 5:
        k("s_and_b32 s20, s20, 1")
        k("s_lshl_b32 s20, s20, 2")
    elif m == 6:
        k("s_add_u32 s20, s5, s6")
        k("s_and_b32 s20, s20, 7")
    elif m == 7:
        k("s_lshl_b32 s20, s5, 1")
        k("s_add_u32 s20, s20, s6")
        k("s_and_b32 s20, s20, 7")
    elif m == 8:
        k("s_lshr_b32 s20, s5, 2")
        k("s_lshl_b32 s20, s20, 1")
        k("s_add_u32 s20, s20, s5")
        k("s_add_u32 s20, s20, s6")
        k("s_and_b32 s20, s20, 7")


def g1_dma(k, slab, buf, after=None):
    rot = CFG.get("rot", 0)
    for i in range(4):
        with atom(k, after):
            if rot and i == 0:
                k("s_lshl_b32 s56, s20, 7")
                k("s_add_u32 s56, s56, s80")
                k("s_mul_i32 s57, s20, 229376")
                k("s_add_u32 s57, s57, s81")
                k("s_add_u32 s20, s20, 1")
                k("s_and_b32 s20, s20, 7")
            k(f"s_add_u32 m0, s82, {buf + 1024*i}")
            if rot:
                k(f"s_add_u32 s{SDMA}, s56, {8192*i}")
            else:
                k(f"s_add_u32 s{SDMA}, s80, {8192*i + 128*slab}")
            vm(k, f"buffer_load_dwordx4 v{1 + (i&1)}, {S(SQ)}, s{SDMA} offen lds", f"slab{slab}")
    for i in range(4):
        with atom(k, after):
            k(f"s_add_u32 m0, s82, {buf + 16384 + 1024*i}")
            if rot:
                k(f"s_add_u32 s{SDMA}, s57, {4*i*3584}")
            else:
                k(f"s_add_u32 s{SDMA}, s81, {(64*slab + 4*i)*3584}")
            vm(k, f"buffer_load_dwordx4 v3, {S(SW1)}, s{SDMA} offen lds", f"slab{slab}")


def bias_addr(k):
    k("v_lshlrev_b32 v19, 1, v10")
    k("v_cmp_gt_u32 vcc, 32, v10")
    k(f"v_mov_b32 v20, {OOB}")
    k("v_cndmask_b32 v19, v20, v19, vcc")
    k("v_mov_b32 v20, 0")
    k("v_mov_b32 v21, 0x3f80")
    k(f"v_cndmask_b32 v{BB1}, v20, v21, vcc")
    for r in (BB1 + 1, BB1 + 2, BB1 + 3, BA0 + 1, BA0 + 2, BA0 + 3, BA0 + 5, BA0 + 6, BA0 + 7):
        k(f"v_mov_b32 v{r}, 0")
    k("s_lshl_b32 s76, s6, 8")
    k("s_and_b32 s77, s4, 1")
    k("s_lshl_b32 s77, s77, 7")
    k("s_add_u32 s83, s76, s77")


def bias_loads(k):
    with atom(k):
        stmp(k, P_B1, 1792 * 2)
        vm(k, f"buffer_load_ushort v{BA0}, v19, {S(STMP)}, s83 offen", "bias", 32)
    with atom(k):
        vm(k, f"buffer_load_ushort v{BA0+4}, v19, {S(STMP)}, s83 offen offset:64", "bias", 32)


def bias_mfma(k):
    k.wait(vm="bias")
    for fb in range(2):
        for mb in range(2):
            d = G1_ACC + 32 * fb + 16 * mb
            k(f"v_mfma_f32_32x32x16_bf16 {V(d,16)}, {V(BA0+4*fb,4)}, {V(BB1,4)}, {V(d,16)}")


def sprinkle(k, items, per):
    q = list(items)

    def hook(n=per):
        for _ in range(n):
            if q:
                k._add(q.pop(0))
    hook.q = q
    return hook


def g1_main(k, bufs, pre, post, extra):
    nb = len(bufs)
    k.c("---- G1 main ----")
    k.wait(vm="slab0")
    k("s_barrier")
    ts(k, 6)
    G.g1_reads(k, bufs[0], 0, "r0_0")
    G.g1_reads(k, bufs[0], 1, "r0_1")
    hooks = []

    def mf(ks, first):
        fr = G1_FR + 16 * ks
        for fb in range(2):
            for mb in range(2):
                d = G1_ACC + 32 * fb + 16 * mb
                c = "0" if first else V(d, 16)
                k(f"v_mfma_f32_32x32x16_bf16 {V(d,16)}, {V(fr + 4*fb, 4)}, {V(fr + 8 + 4*mb, 4)}, {c}")
                for h in hooks:
                    if h.q:
                        h()
                        break

    for s in range(8):
        buf = bufs[s % nb]
        if ("a", s) in extra:
            hooks.append(sprinkle(k, *extra[("a", s)]))
        G.g1_reads(k, buf, 2, f"r{s}_2")
        k.wait(lg=f"r{s}_0")
        mf(0, s == 0)
        G.g1_reads(k, buf, 3, f"r{s}_3")
        k.wait(lg=f"r{s}_1")
        mf(1, False)
        if s < 7:
            if s in pre:
                pre[s]()
            k.wait(vm=f"slab{s+1}", lg=f"r{s}_3")
            k("s_barrier")
            k.mark(f"bar{s}")
            ts(k, 7 + s)
            if s in post:
                post[s]()
            if ("b", s) in extra:
                hooks.append(sprinkle(k, *extra[("b", s)]))
            nbuf = bufs[(s + 1) % nb]
            G.g1_reads(k, nbuf, 0, f"r{s+1}_0")
            mf(2, False)
            G.g1_reads(k, nbuf, 1, f"r{s+1}_1")
            mf(3, False)
        else:
            k.wait(lg=f"r{s}_2")
            mf(2, False)
            k.wait(lg=f"r{s}_3")
            mf(3, False)
    for h in hooks:
        h(10000)


def g1_epilogue(k):
    k.c("---- G1 epilogue ----")
    k("s_lshl_b32 s74, s5, 2")
    k("s_lshr_b32 s75, s4, 1")
    k("s_lshl_b32 s75, s75, 1")
    k("s_add_u32 s74, s74, s75")
    k("s_mul_i32 s74, s74, 112")
    k("s_lshl_b32 s75, s6, 3")
    k("s_add_u32 s74, s74, s75")
    k("s_and_b32 s75, s4, 1")
    k("s_lshl_b32 s75, s75, 2")
    k("s_add_u32 s74, s74, s75")
    k("s_lshl_b32 s74, s74, 10")
    k(f"s_add_u32 s78, s74, {WS_HF}")
    k(f"s_add_u32 s79, s78, {112*1024}")
    tmp = 160
    ti = 0
    for mb in range(2):
        for fb in range(2):
            acc = G1_ACC + 32 * fb + 16 * mb
            for half in range(2):
                t = tmp + 4 * ti
                ti += 1
                for r in range(8 * half, 8 * half + 8):
                    k(f"v_max_f32 v{acc+r}, 0, v{acc+r}")
                for r in range(8 * half, 8 * half + 8, 2):
                    k(f"v_pk_mul_f32 {V(acc+r,2)}, {V(acc+r,2)}, {V(acc+r,2)}")
                for i in range(4):
                    r = acc + 8 * half + 2 * i
                    k(f"v_cvt_pk_bf16_f32 v{t+i}, v{r}, v{r+1}")
                vm(k, f"buffer_store_dwordx4 {V(t,4)}, v58, {S(SWS)}, s{78+mb} offen offset:{(2*fb+half)*1024} sc1", "hs",
                   CFG.get("hscost", 200))


CA, CB = 59, 60


def conv_addr(k):
    k.c("---- conv addresses ----")
    k("v_and_b32 v10, 63, v0")
    k("v_and_b32 v11, 15, v10")
    k("v_lshrrev_b32 v12, 4, v10")
    k("v_add_u32 v13, 1, v11")
    k("v_and_b32 v14, 7, v13")
    k("v_lshrrev_b32 v15, 3, v13")
    lut = sum(o << (4 * i) for i, o in enumerate(COPY_O))
    k(f"s_mov_b32 s74, {lut}")
    k("v_lshlrev_b32 v16, 2, v14")
    k("v_bfe_u32 v16, s74, v16, 4")
    k("v_add_u32 v16, v16, v15")
    k("v_add_u32 v16, v16, v12")
    k("v_lshlrev_b32 v16, 4, v16")
    k(f"v_mul_u32_u24 v17, {COPY_STRIDE}, v14")
    k("v_add_u32 v16, v16, v17")
    k("s_lshr_b32 s75, s4, 1")
    k(f"s_mul_i32 s76, s75, {CH_STRIDE}")
    k("s_and_b32 s77, s4, 1")
    k("s_lshl_b32 s77, s77, 8")
    k("s_add_u32 s76, s76, s77")
    k(f"s_add_u32 s76, s76, {L_H}")
    k(f"v_add_u32 v{CA}, s76, v16")
    k(f"s_mul_i32 s76, s75, {KV_STRIDE}")
    k("s_add_u32 s76, s76, s77")
    k(f"s_add_u32 s76, s76, {L_KV + 480}")
    k("v_lshlrev_b32 v16, 5, v11")
    k("v_lshlrev_b32 v17, 4, v12")
    k("v_sub_u32 v16, v17, v16")
    k(f"v_add_u32 v{CB}, s76, v16")


def conv_main(k, hook):
    k.c("---- conv main ----")
    order = conv_order()
    for i in range(8):
        k.ds(f"ds_read_b128 {V(CV_FA + 4*i, 4)}, v{CA} offset:{512*i}", f"ca0_{i}")
        k.ds(f"ds_read_b128 {V(CV_FB + 4*i, 4)}, v{CB} offset:{512*(7-i)}", f"cb0_{i}")
    touched = set()
    for c0i in range(4):
        st = c0i & 1
        nxt = []
        if c0i < 3:
            for i in range(8):
                nxt.append((f"ds_read_b128 {V(CV_FA + 32*(st^1) + 4*i, 4)}, v{CA} offset:{512*i + 64*(c0i+1)}", f"ca{c0i+1}_{i}"))
                nxt.append((f"ds_read_b128 {V(CV_FB + 32*(st^1) + 4*i, 4)}, v{CB} offset:{512*(7-i) + 64*(c0i+1)}", f"cb{c0i+1}_{i}"))
        waited = set()
        for n, (d, c1) in enumerate(order):
            tags = [t for t in (f"ca{c0i}_{c1}", f"cb{c0i}_{d}") if t not in waited]
            if tags:
                k.wait(lg=tags)
                waited.update(tags)
            j = d + c1
            acc = V(CV_ACC + 4 * j, 4)
            c = acc if j in touched else "0"
            touched.add(j)
            k(f"v_mfma_f32_16x16x32_bf16 {acc}, {V(CV_FA + 32*st + 4*c1, 4)}, {V(CV_FB + 32*st + 4*d, 4)}, {c}")
            if n >= 18 and nxt:
                t, tg = nxt.pop(0)
                k.ds(t, tg)
            hook(c0i * 36 + n)


def conv_epilogue(k, prebar):
    k.c("---- conv epilogue ----")
    k("v_and_b32 v10, 63, v0")
    k("v_and_b32 v11, 15, v10")
    k("v_lshrrev_b32 v12, 4, v10")
    k("v_lshlrev_b32 v11, 6, v11")
    k("v_lshl_add_u32 v11, v12, 4, v11")
    k("s_lshl_b32 s74, s4, 13")
    k(f"s_add_u32 s74, s74, {L_PART}")
    k("v_add_u32 v11, s74, v11")
    k("s_lshr_b32 s75, s4, 1")
    for j in range(8):
        k.ds(f"ds_write_b128 v11, {V(CV_ACC + 4*j, 4)} offset:{1024*j}", "pw")
    k("v_and_b32 v1, 127, v0")
    k("v_lshlrev_b32 v2, 5, v1")
    k("s_lshl_b32 s74, s75, 14")
    k(f"s_add_u32 s74, s74, {L_PART}")
    k("v_add_u32 v2, s74, v2")
    k(f"s_mul_i32 s74, s75, {KV_STRIDE}")
    k(f"s_add_u32 s74, s74, {L_KV + 4080 - 2048}")
    k("v_lshlrev_b32 v3, 4, v1")
    k("v_sub_u32 v3, s74, v3")
    k("s_lshl_b32 s79, s75, 4")
    k("s_lshr_b32 s77, s23, s79")
    k("s_lshl_b32 s77, s77, 16")
    k.wait(lg="pw")
    prebar()
    k("s_barrier")
    k.mark("cvbar")
    for seg in range(2):
        b = 8 + 24 * seg
        for p in range(2):
            for hh in range(2):
                k.ds(f"ds_read_b128 {V(b + 8*p + 4*hh, 4)}, v2 offset:{8192*p + 4096*seg + 16*hh}", f"pr{seg}")
        k.ds(f"ds_read_b128 {V(b + 16, 4)}, v3 offset:{2048*(1-seg)}", f"pr{seg}")
    k("s_lshl_b32 s74, s2, 13")
    k("s_lshl_b32 s79, s75, 12")
    k("s_add_u32 s74, s74, s79")
    k(f"s_add_u32 s74, s74, {WS_YT}")
    k("v_lshlrev_b32 v4, 4, v1")
    for seg in range(2):
        b = 8 + 24 * seg
        k.wait(lg=f"pr{seg}")
        for i in range(0, 8, 2):
            k(f"v_pk_add_f32 {V(b+i,2)}, {V(b+i,2)}, {V(b+8+i,2)}")
        for i in range(8):
            e = 7 - i
            (unpack_hi if e & 1 else unpack_lo)(k, 6 + (i & 1), b + 16 + (e >> 1))
            k(f"v_fmac_f32 v{b+i}, s77, v{6 + (i & 1)}")
        for i in range(4):
            k(f"v_cvt_pk_bf16_f32 v{b+20+i}, v{b+2*i}, v{b+2*i+1}")
    k.mark("ysready")
    for seg in range(2):
        b = 8 + 24 * seg
        vm(k, f"buffer_store_dwordx4 {V(b+20,4)}, v4, {S(SWS)}, s74 offen offset:{2048*seg} sc1", "ys", SC_ST)


FB = 128


def g2_setup(k):
    G.g2_ids(k)
    k("s_lshr_b32 s74, s4, 1")
    k("s_lshl_b32 s75, s5, 1")
    k("s_add_u32 s80, s75, s74")
    k("s_xor_b32 s81, s80, 1")
    k("s_mul_i32 s78, s4, 28")
    for b in range(2):
        k(f"s_mul_i32 s{80+b}, s{80+b}, 112")
        k(f"s_add_u32 s{80+b}, s{80+b}, s78")
        k(f"s_lshl_b32 s{80+b}, s{80+b}, 10")
        k(f"s_add_u32 s{80+b}, s{80+b}, {WS_HF}")


def hf_loads(k, depth, first_after):
    for i in range(28):
        for b in range(2):
            after = first_after if i < depth else f"g2_{i - depth}"
            with atom(k, after):
                if b == 0 and i and i % 4 == 0:
                    k("s_add_u32 s80, s80, 4096")
                    k("s_add_u32 s81, s81, 4096")
                r = FB + 8 * (i % depth) + 4 * b
                vm(k, f"buffer_load_dwordx4 {V(r,4)}, v58, {S(SWS)}, s{80+b} offen offset:{1024*(i%4)} sc1", f"hf{i}")


def g2_main(k, depth, hooks):
    k.c("---- G2 main ----")
    for i in range(28):
        k.wait(vm=[f"hf{i}", f"wf{i}"])
        for b in range(2):
            for a in range(2):
                d = G2_ACC + 16 * (a + 2 * b)
                c = V(d, 16) if i else "0"
                k(f"v_mfma_f32_32x32x16_bf16 {V(d,16)}, {A(8*i + 4*a, 4)}, {V(FB + 8*(i%depth) + 4*b, 4)}, {c}")
        k.mark(f"g2_{i}")
        if i in hooks:
            hooks[i]()


EQ, EB2, EY, EG = 8, 16, 24, 32


def g2_ep_addr(k):
    k("v_and_b32 v40, 63, v0")
    k("v_and_b32 v41, 31, v40")
    k("v_lshrrev_b32 v42, 5, v40")
    k("s_and_b32 s74, s4, 1")
    k("s_lshr_b32 s75, s4, 1")
    k("s_lshl_b32 s76, s5, 6")
    k("s_lshl_b32 s77, s75, 5")
    k("s_add_u32 s76, s76, s77")
    k("s_lshl_b32 s77, s6, 6")
    k("s_lshl_b32 s78, s74, 5")
    k("s_add_u32 s77, s77, s78")
    k("v_lshlrev_b32 v46, 10, v41")
    k("v_lshl_add_u32 v46, v42, 3, v46")
    k("s_lshl_b32 s82, s76, 10")
    k("s_lshl_b32 s83, s77, 1")
    k("s_add_u32 s82, s82, s83")
    k("v_lshlrev_b32 v47, 3, v42")
    k("v_lshrrev_b32 v43, 2, v40")
    k("v_and_b32 v44, 3, v40")
    k("v_lshlrev_b32 v45, 12, v43")
    k("v_lshl_add_u32 v45, v44, 4, v45")
    k("s_lshl_b32 s84, s77, 12")
    k("s_lshl_b32 s85, s76, 1")
    k("s_add_u32 s84, s84, s85")
    k(f"s_add_u32 s84, s84, {WS_YT}")
    k(f"s_add_u32 s85, s84, {16*4096}")
    k("v_lshlrev_b32 v48, 2, v41")
    k("s_lshl_b32 s86, s76, 2")
    k(f"s_add_u32 s86, s86, {WS_G}")


def g2_ep_loads_plain(k, after=None):
    for g in range(4):
        with atom(k, after):
            vm(k, f"buffer_load_dwordx2 {V(EQ+2*g,2)}, v46, {S(SQ)}, s82 offen offset:{16*g}", "q", 200)
    for g in range(4):
        with atom(k, after):
            if g == 0:
                stmp(k, P_B2, 1024)
            vm(k, f"buffer_load_dwordx2 {V(EB2+2*g,2)}, v47, {S(STMP)}, s83 offen offset:{16*g}", "b2", 64)


def g2_ep_loads_sc1(k, after=None):
    with atom(k, after):
        vm(k, f"buffer_load_dword v{EG}, v48, {S(SWS)}, s86 offen sc1", "g", 32)
    with atom(k, after):
        vm(k, f"buffer_load_dwordx4 {V(EY,4)}, v45, {S(SWS)}, s84 offen sc1", "yt", 81)
    with atom(k, after):
        vm(k, f"buffer_load_dwordx4 {V(EY+4,4)}, v45, {S(SWS)}, s85 offen sc1", "yt", 81)


def g2_epilogue(k):
    k.c("---- G2 epilogue ----")
    k("v_lshlrev_b32 v49, 4, v40")
    for sg in range(1, 4):
        k(f"s_xor_b32 s80, s4, {sg}")
        k("s_mul_i32 s80, s80, 12288")
        k(f"v_add_u32 v50, s80, v49")
        for g in range(4):
            k.ds(f"ds_write_b128 v50, {V(G2_ACC + 16*sg + 4*g, 4)} offset:{L_RED + (sg-1)*4096 + 1024*g}", "rw")
    k("s_lshl_b32 s80, s4, 11")
    k(f"s_add_u32 s80, s80, {L_YL}")
    k("v_add_u32 v51, s80, v49")
    k.wait(vm="yt")
    k.ds(f"ds_write_b128 v51, {V(EY,4)}", "yw")
    k.ds(f"ds_write_b128 v51, {V(EY+4,4)} offset:1024", "yw")
    k.wait(lg=["rw", "yw"])
    k("s_barrier")
    ts(k, 25)
    k("s_mul_i32 s80, s4, 12288")
    k("v_add_u32 v50, s80, v49")
    for sg in range(3):
        for g in range(4):
            k.ds(f"ds_read_b128 {V(160 + 16*sg + 4*g, 4)}, v50 offset:{L_RED + sg*4096 + 1024*g}", f"rr{sg}")
    k("v_and_b32 v52, 15, v40")
    k("v_lshrrev_b32 v53, 2, v52")
    k("v_lshl_add_u32 v53, v42, 2, v53")
    k("v_lshlrev_b32 v53, 6, v53")
    k("v_bfe_u32 v54, v40, 4, 1")
    k("v_lshl_add_u32 v53, v54, 5, v53")
    k("v_and_b32 v54, 3, v52")
    k("v_lshl_add_u32 v53, v54, 3, v53")
    k("s_lshl_b32 s80, s4, 11")
    k(f"s_add_u32 s80, s80, {L_YL}")
    k("v_add_u32 v53, s80, v53")
    for g in range(4):
        k.ds(f"ds_read_b64_tr_b16 {V(208+2*g,2)}, v53 offset:{512*g}", "yr")
    acc = G2_ACC
    for sg in range(3):
        k.wait(lg=f"rr{sg}")
        for r in range(0, 16, 2):
            k(f"v_pk_add_f32 {V(acc+r,2)}, {V(acc+r,2)}, {V(160+16*sg+r,2)}")
    k.wait(vm=["q", "b2", "g"], lg="yr")
    X = 224
    slot = {0: 0, 2: 2, 1: 4, 3: 6}
    for g in range(4):
        for i in range(4):
            up = unpack_hi if i & 1 else unpack_lo
            up(k, 128 + i, EB2 + 2 * g + (i >> 1))
            up(k, 132 + i, EQ + 2 * g + (i >> 1))
            up(k, 136 + i, 208 + 2 * g + (i >> 1))
        for i in range(4):
            r = acc + 4 * g + i
            k(f"v_add_f32 v{r}, v{r}, v{128+i}")
        for i in range(4):
            r = acc + 4 * g + i
            k(f"v_fma_f32 v{132+i}, v{132+i}, v{136+i}, -v{r}")
        for i in range(4):
            r = acc + 4 * g + i
            k(f"v_fmac_f32 v{r}, v{EG}, v{132+i}")
        for d in range(2):
            r = acc + 4 * g + 2 * d
            k(f"v_cvt_pk_bf16_f32 v{X + slot[g] + d}, v{r}, v{r+1}")
    for base in (0, 4):
        k(f"v_permlane32_swap_b32 v{X+base}, v{X+base+2}")
        k(f"v_permlane32_swap_b32 v{X+base+1}, v{X+base+3}")
    k("v_lshlrev_b32 v46, 10, v41")
    k("v_lshl_add_u32 v46, v42, 5, v46")
    osc = ["", " sc1", " nt", " sc0 sc1", " sc1 nt"][CFG.get("osc", 0)]
    vm(k, f"buffer_store_dwordx4 {V(X,4)}, v46, {S(SOUT)}, s82 offen{osc}", "os")
    vm(k, f"buffer_store_dwordx4 {V(X+4,4)}, v46, {S(SOUT)}, s82 offen offset:16{osc}", "os")


def gate_loads(k):
    k("s_and_b32 s5, s2, 7")
    k("s_lshl_b32 s5, s5, 2")
    k("s_lshr_b32 s6, s2, 3")
    k("s_sub_u32 s6, s6, 28")
    k("s_add_u32 s5, s5, s6")
    k("s_lshl_b32 s5, s5, 6")
    k("s_lshl_b32 s6, s4, 4")
    k("s_add_u32 s5, s5, s6")
    k("s_lshl_b32 s6, s5, 10")
    stmp(k, P_GATE, 1024)
    k.vmem(f"buffer_load_dwordx4 {V(4,4)}, v22, {S(STMP)}, 0 offen", "gw")
    for i in range(16):
        if i and i % 4 == 0:
            k("s_add_u32 s6, s6, 4096")
        k.vmem(f"buffer_load_dwordx4 {A(4*i,4)}, v22, {S(SQ)}, s6 offen offset:{1024*(i%4)}", f"gx{i}")


def gate_compute(k):
    k.c("---- gate compute ----")
    k.wait(vm="gw")
    for c in range(8):
        (unpack_hi if c & 1 else unpack_lo)(k, 8 + c, 4 + (c >> 1))
    R = 96
    for i in range(16):
        k.wait(vm=f"gx{i}")
        s = 64 + 4 * (i & 1)
        for c in range(4):
            k(f"v_accvgpr_read_b32 v{s+c}, a{4*i+c}")
        u = 72 + 8 * (i & 1)
        for c in range(8):
            (unpack_hi if c & 1 else unpack_lo)(k, u + c, s + (c >> 1))
        t = 88 + 2 * (i & 1)
        for cp in range(0, 8, 2):
            if cp == 0:
                k(f"v_pk_mul_f32 {V(t,2)}, {V(u,2)}, {V(8,2)}")
            else:
                k(f"v_pk_fma_f32 {V(t,2)}, {V(u+cp,2)}, {V(8+cp,2)}, {V(t,2)}")
        k(f"v_add_f32 v{R+i}, v{t}, v{t+1}")
    for mod in ["row_shr:1", "row_shr:2", "row_shr:4", "row_shr:8", "row_bcast:15 row_mask:0xa",
                "row_bcast:31 row_mask:0xc"]:
        for i in range(16):
            m = mod if "row_mask" in mod else mod + " row_mask:0xf"
            k(f"v_add_f32_dpp v{R+i}, v{R+i}, v{R+i} {m} bank_mask:0xf")
    k("v_mov_b32 v2, 0")
    for g in range(0, 16, 4):
        for i in range(g, g + 4):
            k(f"v_readlane_b32 s{76+i-g}, v{R+i}, 63")
        for i in range(g, g + 4):
            k(f"v_writelane_b32 v2, s{76+i-g}, {i}")
    k("v_mul_f32 v2, 0xbfb8aa3b, v2")
    k("v_exp_f32 v2, v2")
    k("v_add_f32 v2, 1.0, v2")
    k("v_rcp_f32 v2, v2")
    k("v_and_b32 v1, 63, v0")
    k("v_lshlrev_b32 v3, 2, v1")
    k("s_lshl_b32 s6, s5, 2")
    k(f"s_add_u32 s6, s6, {WS_G}")
    k("v_cmp_gt_u32 vcc, 16, v1")
    k("s_and_saveexec_b64 s[74:75], vcc")
    k.vmem(f"buffer_store_dword v2, v3, {S(SWS)}, s6 offen sc1", "gs")
    k("s_mov_b64 exec, s[74:75]")


def rec(f, *a, **kw):
    r = Rec()
    f(r, *a, **kw)
    return r.items


def late_scalars(k):
    k(f"s_load_dword s96, s[{P_WS}:{P_WS+1}], {WS_EPOCH}")
    k("s_lshl_b32 s74, s2, 2")
    k(f"s_load_dword s23, s[{P_SSMD}:{P_SSMD+1}], s74")


def gen_full(cfg):
    global CFG
    CFG = cfg
    if cfg.get("x_nords"):
        G.g1_reads = lambda *a, **kw: None
    g = cfg.get
    k = KT()
    END = "K_END"
    bufs = [0, 32768, 65536, 98304]
    prologue(k, END)
    if g("icpf"):
        code_prefetch(k)
    if g("ts"):
        k("v_mov_b32 v63, 0")
    ts(k, 0)
    k("s_lshr_b32 s74, s2, 3")
    k("s_cmp_ge_u32 s74, 28")
    k("s_cbranch_scc1 GATE")
    G.g1_setup(k, cfg)
    bias_addr(k)
    rot_setup(k)
    t1_addr(k)
    DIST = g("dist", 0)
    if DIST:
        w2p_vaddr(k)
    srd_consts(k)
    k("s_waitcnt lgkmcnt(0)")
    srd_ptrs(k, (SQ, SW1))
    ts_setup(k, cfg) if False else None
    if g("x_dma"):
        srd_ptrs(k, (SK, SV, SWS, SW2, SOUT))
        ts_setup(k, cfg)
        npass = g("x_dma")
        for p in range(npass):
            if p:
                k("s_barrier")
            ts(k, 1 + 10 * p)
            infl = g("x_infl", 8)

            def iss(sl):
                r = Rec()
                g1_dma(r, sl, bufs[sl % 4])
                for it in r.items:
                    emit(k, it)
            for sl in range(infl):
                iss(sl)
            for sl in range(8):
                k.wait(vm=f"slab{sl}")
                ts(k, 2 + sl + 10 * p)
                if sl + infl < 8:
                    iss(sl + infl)
        k.wait_all()
        ts_final(k, cfg, 27)
        k("s_waitcnt vmcnt(0)")
        k("s_endpgm")
        k("GATE:")
        srd_consts(k)
        k("s_waitcnt lgkmcnt(0)")
        srd_ptrs(k, (SK, SV, SWS, SW2, SOUT))
        ts_setup(k, cfg)
        ts_final(k, cfg, 27)
        k("s_waitcnt vmcnt(0)")
        k(f"{END}:")
        k("s_endpgm")
        return k
    T1POS = g("t1pos", 1)
    W = Weaver(k, g("p_g1", 32))
    W.t = W.ta = 8 * 88
    r = Rec()
    g1_dma(r, 0, bufs[0])
    for it in r.items:
        emit(k, it)
    srd_ptrs(k, (SK, SV, SWS, SW2, SOUT))
    if DIST:
        w2p_dma(k)
    late_scalars(k)
    ts_setup(k, cfg)
    ts(k, 1)
    bg = Rec()
    if DIST == 1:
        g1_dma(bg, 1, bufs[1])
        g1_dma(bg, 2, bufs[2])
        r = Rec()
        t1_loads(r)
        first = r.items[0]
        bg.items.append(("a", first[1], "w2st", first[3]))
        bg.items.extend(r.items[1:])
        bias_loads(bg)
        g1_dma(bg, 3, bufs[3])
    elif DIST == 3:
        g1_dma(bg, 1, bufs[1])
        bias_loads(bg)
        g1_dma(bg, 2, bufs[2])
        r = Rec()
        t1_loads(r)
        first = r.items[0]
        bg.items.append(("a", first[1], "w2st", first[3]))
        bg.items.extend(r.items[1:])
        g1_dma(bg, 3, bufs[3])
    else:
        if T1POS == 0:
            t1_loads(bg)
        g1_dma(bg, 1, bufs[1])
        if T1POS == 1:
            t1_loads(bg)
        bias_loads(bg)
        g1_dma(bg, 2, bufs[2])
        if T1POS == 2:
            t1_loads(bg)
        g1_dma(bg, 3, bufs[3])
    for s in range(4, 8):
        g1_dma(bg, s, bufs[s - 4], after=f"bar{s-4}")
    h_loads(bg, after="t1done")
    w2f_cons_loads(bg, after="f0bok")
    W.push(bg.items)
    W.flush(g("ndirect", 0))
    fg = Rec()
    h_setup(fg)
    kv_zero(fg)
    flag_addrs(fg)
    fg("s_waitcnt lgkmcnt(0)")
    nonce(fg)
    w2f_cons_setup(fg)
    ts(fg, 5)
    t1c = rec(t1_compute)
    t1c.append(("m", "t1done"))
    P0 = g("pub0", 4)
    T1SEG = g("t1seg", 1)
    BSEG = g("bseg", 1)
    POLL0B = g("poll0b", 3)
    CHK0B = g("chk0b", 4)
    POLL0A = g("poll0a", 5)
    CHK0A = g("chk0a", 6)
    TAILPOS = g("tailpos", 1)
    pre = {}
    post = {}

    def addh(d, s, f):
        old = d.get(s)
        d[s] = (lambda: (old(), f())) if old else f
    addh(pre, P0, lambda: fg.wait(vm="t1s"))
    addh(post, P0, lambda: publish(fg, WS_F0))
    addh(pre, CHK0B, lambda: (poll_check(fg, 62, 56, WS_F0, "p0b", "hi"), ts(fg, 2)))
    addh(post, CHK0B, lambda: (fg.mark("f0bok"), fg.period(g("p_wf")) if g("p_wf") else None))
    if not g("pollbm", 0):
        addh(post, POLL0B, lambda: poll_issue(fg, 62, 56, WS_F0, "p0b"))
    if DIST:
        PUBB = g("pubb", 1)
        addh(pre, PUBB, lambda: fg.wait(vm="w2s"))
        addh(post, PUBB, lambda: publish(fg, WS_F0B))
    if CHK0A < 7:
        addh(pre, CHK0A, lambda: (poll_check(fg, 62, 56, WS_F0, "p0a", "lo"), ts(fg, 14)))
        addh(post, CHK0A, lambda: kv_loads(fg))
    if POLL0A < 7:
        addh(post, POLL0A, lambda: poll_issue(fg, 62, 56, WS_F0, "p0a"))
    if T1SEG < 0:
        for it in t1c:
            fg._add(it)
    tail = rec(build_copies) + rec(conv_addr)
    extra = {("a", BSEG): (rec(bias_mfma), 5)}
    if TAILPOS == 0:
        extra[("b", 6)] = (tail, g("tailper", 4))
    if T1SEG >= 0:
        extra[("b", T1SEG)] = (t1c, g("t1per", 5))
    if DIST:
        w2o = rec(w2p_out) + [("m", "w2st")]
        if g("w2pre", 0):
            for it in w2o:
                fg._add(it)
        else:
            extra[("a", 0)] = (w2o, g("w2per", 2))
    if g("pollbm", 0):
        nop = [("c", "poll slot")] * g("pollbm", 0)
        extra[("a", CHK0B)] = (nop + rec(poll_issue, 62, 56, WS_F0, "p0b"), 1)
    g1_main(fg, bufs, pre, post, extra)
    ts(fg, 15)
    if CHK0A == 7:
        if POLL0A == 7:
            poll_issue(fg, 62, 56, WS_F0, "p0a")
        poll_check(fg, 62, 56, WS_F0, "p0a", "lo")
        fg("s_barrier")
        ts(fg, 14)
        kv_loads(fg)
    fg.period(g("p_ep", 32))
    g1_epilogue(fg)
    if CHK0A == 8:
        if POLL0A >= 7:
            poll_issue(fg, 62, 56, WS_F0, "p0a")
        poll_check(fg, 62, 56, WS_F0, "p0a", "lo")
        fg("s_barrier")
        ts(fg, 14)
        kv_loads(fg)
    ts(fg, 4)
    if TAILPOS == 1:
        for it in tail:
            fg._add(it)
    kv_write(fg)
    ts(fg, 16)
    conflicts("g1", fg.items, bg.items, ok=[("s", "m0"), ("v", 62, 62), ("v", 224, 255), ("v", 30, 47), ("s", 92, 93),
                                            ("v", 56, 58), ("s", 84, 91)])
    W.run(fg.items)
    nleft = len(W.bg)
    print("G1 path marks:", W.log, "bg left at JOIN:", nleft)
    for it in W.bg:
        assert all(x[2].startswith("wf") for x in flat([it]) if x[0] == "vm"), it
    if k.pend is not None:
        k("s_waitcnt lgkmcnt(0)")
    vm_join = list(k.vm)
    k("s_branch JOIN")
    k("GATE:")
    k.vm, k.lg = [], []
    if g("ts"):
        k.pend = 0
    if DIST:
        k("v_and_b32 v22, 63, v0")
        k("v_lshlrev_b32 v22, 4, v22")
    else:
        w2f_addr(k)
    t1_addr(k)
    srd_consts(k)
    k("s_waitcnt lgkmcnt(0)")
    srd_ptrs(k, (SW2, SK, SV, SQ, SWS, SOUT))
    if not DIST:
        for it in rec(w2f_dma):
            emit(k, it)
    late_scalars(k)
    ts_setup(k, cfg)
    ts(k, 1)
    GORD = g("gord", 0)
    for it in rec(t1_loads):
        emit(k, it)
    h_setup(k)
    if DIST:
        if g("gearly", 1):
            gate_loads(k)
        for it in rec(kv_zero):
            emit(k, it)
        flag_addrs(k)
        k("s_waitcnt lgkmcnt(0)")
        k.lg = []
        nonce(k)
        for it in rec(t1_compute):
            emit(k, it)
        ts(k, 4)
        if g("gearly", 1):
            for it in rec(h_loads):
                emit(k, it)
        k.wait(vm="t1s")
        k("s_barrier")
        publish(k, WS_F0)
        ts(k, 5)
        if not g("gearly", 1):
            gate_loads(k)
            for it in rec(h_loads):
                emit(k, it)
        gate_compute(k)
        for it in rec(build_copies) + rec(conv_addr):
            emit(k, it)
        poll_issue(k, 62, 56, WS_F0, "p0b")
        poll_check(k, 62, 56, WS_F0, "p0b", "hi")
        k("s_barrier")
        ts(k, 2)
        w2f_cons_setup(k)
        allw = rec(w2f_cons_loads)
        for it in allw[:len(allw) - nleft]:
            emit(k, it)
        poll_issue(k, 62, 56, WS_F0, "p0")
        poll_check(k, 62, 56, WS_F0, "p0", "lo")
        k("s_barrier")
        ts(k, 14)
        for it in rec(kv_loads):
            emit(k, it)
    elif GORD == 0:
        for it in rec(w2f_tr):
            emit(k, it)
        ts(k, 3)
        Wg = Weaver(k, g("p_gw", 32))
        Wg.push(rec(w2f_stores))
        if g("gw2first", 1):
            Wg.flush()
            ts(k, 2)
            for it in rec(t1_compute):
                emit(k, it)
        else:
            Wg.run(rec(t1_compute)[:-12])
            Wg.flush()
            for it in rec(t1_compute)[-12:]:
                emit(k, it)
        ts(k, 4)
        for it in rec(kv_zero):
            emit(k, it)
        flag_addrs(k)
        k("s_waitcnt lgkmcnt(0)")
        k.lg = []
        nonce(k)
        k.wait(vm="w2s")
        k("s_barrier")
        publish(k, WS_F0B, 224)
        ts(k, 6)
        if not g("gswap", 0):
            gate_loads(k)
        k.wait(vm="t1s")
        k("s_barrier")
        publish(k, WS_F0)
        ts(k, 5)
        if g("gswap", 0):
            gate_loads(k)
        for it in rec(h_loads):
            emit(k, it)
        gate_compute(k)
        for it in rec(build_copies) + rec(conv_addr):
            emit(k, it)
        poll_issue(k, 62, 56, WS_F0, "p0")
        poll_check(k, 62, 56, WS_F0, "p0")
        k("s_barrier")
        ts(k, 14)
        for it in rec(kv_loads):
            emit(k, it)
        w2f_cons_setup(k)
        allw = rec(w2f_cons_loads)
        for it in allw[:len(allw) - nleft]:
            emit(k, it)
    else:
        for it in rec(kv_zero):
            emit(k, it)
        flag_addrs(k)
        k("s_waitcnt lgkmcnt(0)")
        k.lg = []
        nonce(k)
        for it in rec(t1_compute):
            emit(k, it)
        ts(k, 4)
        for it in rec(w2f_tr):
            emit(k, it)
        ts(k, 3)
        ws_items = rec(w2f_stores)
        nfirst = g("gsplit", 0)
        for it in ws_items[:nfirst]:
            emit(k, it)
        k.wait(vm="t1s")
        k("s_barrier")
        publish(k, WS_F0)
        ts(k, 5)
        for it in ws_items[nfirst:]:
            emit(k, it)
        ts(k, 2)
        for it in rec(h_loads):
            emit(k, it)
        k.wait(vm="w2s")
        k("s_barrier")
        publish(k, WS_F0B, 224)
        ts(k, 6)
        gate_loads(k)
        for it in rec(build_copies) + rec(conv_addr):
            emit(k, it)
        poll_issue(k, 62, 56, WS_F0, "p0b")
        gate_compute(k)
        poll_check(k, 62, 56, WS_F0, "p0b", "hi")
        k("s_barrier")
        w2f_cons_setup(k)
        allw = rec(w2f_cons_loads)
        for it in allw[:len(allw) - nleft]:
            emit(k, it)
        poll_issue(k, 62, 56, WS_F0, "p0")
        poll_check(k, 62, 56, WS_F0, "p0", "lo")
        k("s_barrier")
        ts(k, 14)
        for it in rec(kv_loads):
            emit(k, it)
    kv_write(k)
    ts(k, 16)
    k.wait_all(vm=True, lg=True)
    k("JOIN:")
    k.vm = vm_join
    k.lg = ["x"]
    k.wait_all(vm=False, lg=True)
    PUB1 = g("pub1", 54)
    if PUB1 < 0:
        k.wait(vm="hs")
    k("s_barrier")
    ts(k, 17)
    if PUB1 < 0:
        publish(k, WS_F1)
    POLL1 = g("poll1", 100)
    CHK1 = g("chk1", -1)
    depth = 16
    fg = Rec()
    bg = Rec()
    g2_setup(fg)
    fg.period(g("p_cv", 32))

    def hook(n):
        if n == PUB1:
            fg.wait(vm="hs")
            fg("s_barrier")
            ts(fg, 18)
            publish(fg, WS_F1)
        if n == POLL1:
            poll_issue(fg, 62, 57, WS_F1, "p1")
        if n == CHK1:
            poll_check(fg, 62, 57, WS_F1, "p1")
            fg("s_barrier")
            fg.mark("f1ok")
            ts(fg, 20)
    conv_main(fg, hook)
    ts(fg, 19)

    def prebar():
        if CHK1 < 0:
            poll_check(fg, 62, 57, WS_F1, "p1")
            ts(fg, 20)
    fg.period(g("p_ce", 32))
    conv_epilogue(fg, prebar)
    ts(fg, 21)
    hf_loads(bg, depth, "cvbar" if CHK1 < 0 else "f1ok")
    epl = Rec()
    g2_ep_loads_plain(epl, after="epaddr")
    eps = Rec()
    g2_ep_loads_sc1(eps, after="f2ok")
    PUB2 = g("pub2", 4)
    POLL2 = g("poll2", 16)
    CHK2 = g("chk2", 22)
    EPQ = g("epq", 8)
    hfi = bg.items
    pos = min(2 * (EPQ + depth), len(hfi))
    bgall = hfi[:pos] + epl.items + hfi[pos:] + eps.items
    fg.period(g("p_g2", 32))

    def h_pub2():
        fg.wait(vm="ys")
        fg("s_barrier")
        ts(fg, 22)
        publish(fg, WS_F2)

    def h_chk2():
        poll_check(fg, 62, 61, WS_F1, "p2")
        fg("s_barrier")
        fg.mark("f2ok")
        ts(fg, 23)
    hooks = {}
    addh(hooks, 0, lambda: (g2_ep_addr(fg), fg.mark("epaddr")))
    addh(hooks, PUB2, h_pub2)
    addh(hooks, POLL2, lambda: poll_issue(fg, 62, 61, WS_F1, "p2"))
    addh(hooks, CHK2, h_chk2)
    g2_main(fg, depth, hooks)
    ts(fg, 24)
    g2_epilogue(fg)
    ts(fg, 26)
    conflicts("g2", fg.items, W.bg + bgall,
              ok=[("a", 0, 223), ("v", 128, 255), ("v", 62, 62), ("s", 80, 86), ("v", 8, 32), ("v", 45, 48), ("s", 94, 94)])
    W.push(bgall)
    W.log = []
    W.run(fg.items)
    print("JOIN path marks:", W.log, "bg left:", len(W.bg))
    assert not W.bg
    k("s_or_b32 s74, s2, s4")
    k("s_cmp_eq_u32 s74, 0")
    k("s_cbranch_scc0 NOEP")
    k("s_add_u32 s96, s96, 1")
    k("v_mov_b32 v62, s96")
    k(f"s_mov_b32 s97, {WS_EPOCH}")
    k("s_mov_b64 exec, 1")
    k(f"buffer_store_dword v62, off, {S(SWS)}, s97")
    k("s_mov_b64 exec, -1")
    k("NOEP:")
    k.wait_all()
    ts_final(k, cfg, 27)
    k("s_waitcnt vmcnt(0)")
    if g("ampn"):
        k(f"s_cmp_eq_u32 s2, {g('ampw', 0)}")
        k(f"s_cbranch_scc0 {END}")
        k("s_cmp_eq_u32 s4, 0")
        k(f"s_cbranch_scc0 {END}")
        k(f"v_readlane_b32 s10, v63, {g('ampa', 0)}")
        k(f"v_readlane_b32 s11, v63, {g('ampb', 27)}")
        k("s_sub_u32 s11, s11, s10")
        k("s_min_u32 s11, s11, 4000")
        k(f"s_mul_i32 s11, s11, {g('ampn')}")
        k("s_memrealtime s[12:13]")
        k("s_waitcnt lgkmcnt(0)")
        k("s_mov_b32 s14, s12")
        k("s_mov_b32 s15, 0x40000")
        k("AMPL:")
        k("s_memrealtime s[12:13]")
        k("s_waitcnt lgkmcnt(0)")
        k("s_sub_u32 s16, s12, s14")
        k("s_cmp_ge_u32 s16, s11")
        k(f"s_cbranch_scc1 {END}")
        k("s_sub_u32 s15, s15, 1")
        k("s_cbranch_scc0 AMPL")
    k(f"{END}:")
    k("s_endpgm")
    k("K_CODE_END:")
    return k


def build(cfg):
    hdr = open("cdna_kernels/" + NAME + ".s.ref").read().split("; Override")[0]
    out = [hdr.rstrip("\n")]
    out.append("; @launch grid=(256,1,1) block=(256,1,1) lds=163840")
    out.append('.amdgcn_target "amdgcn-amd-amdhsa--gfx950"\n.text')
    k = gen_full(cfg)
    lab = NAME + "_kernel"
    out.append(G.khead(lab) + k.text())
    out.append('.section .rodata,"a"\n.p2align 6')
    out.append(G.kdesc(lab))
    return "\n".join(out) + "\n"


if __name__ == "__main__":
    path = sys.argv[1]
    cfg = {}
    for a in sys.argv[2:]:
        kk, vv = a.split("=")
        cfg[kk] = int(vv)
    txt = build(cfg)
    open(path, "w").write(txt)
    print("bytes", len(txt))
```

```python
import sys
from asmlib import K
import gen as G
from gen import (S, V, A, srd, unpack_lo, unpack_hi, NAME, SQ, SK, SV, SW1, SW2, SOUT, SWS, STMP,
                 P_Q, P_K, P_V, P_SHIFT, P_SSMK, P_SSMD, P_W1, P_B1, P_W2, P_B2, P_GATE, P_OUT, P_WS,
                 COPY_O, COPY_STRIDE, CH_STRIDE, KV_STRIDE, conv_order, G1_ACC, G1_FR,
                 CV_ACC, CV_FA, CV_FB, G2_ACC)
from weave import Rec, Weaver, emit, flat, conflicts
import gen2
from gen2 import KT, Lbl, ts_setup, ts_final

WS_F0, WS_F1, WS_F2 = 0, 32768, 65536
WS_EPOCH = 98304
WS_F0B = 102400
WS_G = 0x20000
WS_KVR = 1 << 20
WS_W2F = 3 << 20
WS_HF = 5 << 20
WS_YT = 13 << 20
WS_TS = 15 << 20
WS_SIZE = 16 << 20

L_W2S = 73728
L_KV = 139264
L_H = 0
L_PART = 98304
L_RED = 0
L_YL = 49152

NONCE = 3
SPIN = 1 << 15
OOB = 0x40000000
SDMA = 22
SC_ST = 300
CFG = {}


def ts(k, idx):
    if not CFG.get("ts"):
        return
    if isinstance(k, Rec):
        k.fn(lambda kk: gen2.ts(kk, CFG, idx))
    else:
        gen2.ts(k, CFG, idx)


def vm(k, s, tag, cost=None):
    if isinstance(k, Rec):
        k.vmem(s, tag, cost)
    else:
        k.vmem(s, tag)


class nullatom:
    def __enter__(self):
        return self

    def __exit__(self, *a):
        return False


def atom(k, after=None, cost=None):
    return k.atom(after, cost) if isinstance(k, Rec) else nullatom()


def publish(k, wsoff, sub=0):
    l = Lbl.new("PUB")
    wsoff -= 128 * sub
    with atom(k):
        k("s_cmp_eq_u32 s4, 0")
        k(f"s_cbranch_scc0 {l}")
        k("s_lshl_b32 s97, s2, 7")
        k(f"s_add_u32 s97, s97, {wsoff}")
        k(f"v_mov_b32 v62, s{NONCE}")
        k("s_mov_b64 exec, 1")
        k(f"buffer_store_dword v62, off, {S(SWS)}, s97 sc1")
        k("s_mov_b64 exec, -1")
        k(f"{l}:")


def poll_issue(k, vreg, voff, wsoff, tag, after=None):
    with atom(k, after):
        k(f"s_mov_b32 s94, {wsoff}")
        vm(k, f"buffer_load_dword v{vreg}, v{voff}, {S(SWS)}, s94 offen sc1", tag, 40)


def poll_check(k, vreg, voff, wsoff, tag, half=None):
    ok, rt = Lbl.new("POK"), Lbl.new("PRT")

    def test():
        k(f"v_cmp_ne_u32 vcc, s{NONCE}, v{vreg}")
        if half is None:
            k(f"s_cbranch_vccz {ok}")
        else:
            k(f"s_cmp_eq_u32 vcc_{half}, 0")
            k(f"s_cbranch_scc1 {ok}")
    with atom(k):
        k.wait(vm=tag)
        k("s_cmp_eq_u32 s4, 0")
        k(f"s_cbranch_scc0 {ok}")
        test()
        k(f"s_mov_b32 s97, {wsoff}")
        k(f"s_mov_b32 s101, {SPIN}")
        k(f"{rt}:")
        k("s_sleep 1")
        k(f"buffer_load_dword v{vreg}, v{voff}, {S(SWS)}, s97 offen sc1")
        k("s_waitcnt vmcnt(0)")
        test()
        k("s_sub_u32 s101, s101, 1")
        k(f"s_cbranch_scc0 {rt}")
        k(f"{ok}:")


def prologue(k, endlabel):
    k("s_cmp_ge_u32 s2, 256")
    k(f"s_cbranch_scc1 {endlabel}")
    k("s_load_dwordx16 s[44:59], s[0:1], 0")
    k("s_load_dwordx8 s[60:67], s[0:1], 64")
    k("s_load_dwordx4 s[68:71], s[0:1], 96")
    k("s_load_dwordx2 s[72:73], s[0:1], 112")
    k("v_lshrrev_b32 v1, 6, v0")
    k("s_nop 0")
    k("v_readfirstlane_b32 s4, v1")


def code_prefetch(k):
    lab = NAME + "_kernel"
    k("s_getpc_b64 s[84:85]")
    k("PF_PC:")
    k(f"s_sub_u32 s84, s84, PF_PC-{lab}")
    k("s_subb_u32 s85, s85, 0")
    k(f"s_mov_b32 s86, K_CODE_END-{lab}")
    k("s_mov_b32 s87, 0x00020000")
    k("s_lshr_b32 s88, s2, 3")
    k("s_lshl_b32 s88, s88, 2")
    k("s_add_u32 s88, s88, s4")
    k(f"s_and_b32 s88, s88, {CFG.get('pfmask', 63)}")
    k("s_lshl_b32 s88, s88, 10")
    k("v_and_b32 v2, 63, v0")
    k("v_lshlrev_b32 v2, 4, v2")
    k("v_add_u32 v2, s88, v2")
    k.vmem("buffer_load_dwordx4 a[252:255], v2, s[84:87], 0 offen", "icpf")


SRDS = [(SQ, P_Q, 2 << 20), (SW1, P_W1, 512 * 1792 * 2), (SK, P_K, 2 << 20), (SV, P_V, 2 << 20),
        (SW2, P_W2, 512 * 1792 * 2), (SOUT, P_OUT, 2 << 20), (SWS, P_WS, WS_SIZE)]


def srd_consts(k):
    for d, p, n in SRDS:
        k(f"s_mov_b32 s{d+2}, {n}")
        k(f"s_mov_b32 s{d+3}, 0x00020000")
    k(f"s_mov_b32 s{STMP+3}, 0x00020000")


def srd_ptrs(k, which):
    for d, p, n in SRDS:
        if d in which:
            k(f"s_mov_b32 s{d}, s{p}")
            k(f"s_mov_b32 s{d+1}, s{p+1}")


def stmp(k, ptr, nbytes):
    k(f"s_mov_b32 s{STMP}, s{ptr}")
    k(f"s_mov_b32 s{STMP+1}, s{ptr+1}")
    k(f"s_mov_b32 s{STMP+2}, {nbytes}")


def nonce(k):
    k(f"s_mul_i32 s{NONCE}, s96, 0x9E3779B1")
    k(f"s_add_u32 s{NONCE}, s{NONCE}, 0x85EBCA6B")


T1_KR, T1_VR, T1_WR = 224, 235, 244
T1_K, T1_W, T1_A, T1_V, T1_O = 128, 150, 30, 128, 144


def t1_addr(k):
    k.c("---- T1 addresses ----")
    k("s_lshr_b32 s84, s2, 5")
    k("s_and_b32 s85, s2, 31")
    k("s_lshl_b32 s85, s85, 6")
    k("s_and_b32 s74, s4, 1")
    k("s_lshr_b32 s75, s4, 1")
    k("s_lshl_b32 s76, s74, 5")
    k("s_add_u32 s76, s76, s85")
    k("s_sub_u32 s77, s76, 3")
    k("s_lshl_b32 s77, s77, 10")
    k("s_lshl_b32 s78, s84, 7")
    k("s_add_u32 s77, s77, s78")
    k("s_lshl_b32 s78, s75, 6")
    k("s_add_u32 s77, s77, s78")
    k("v_and_b32 v15, 15, v0")
    k("v_bfe_u32 v16, v0, 4, 2")
    k("v_lshlrev_b32 v10, 13, v16")
    k("v_lshl_add_u32 v10, v15, 2, v10")
    k("v_add_u32 v10, s77, v10")
    k("v_add_u32 v11, 1024, v10")
    k("v_add_u32 v12, 2048, v10")
    k("v_add_u32 v13, 3072, v10")
    k("v_add_u32 v14, 7168, v10")
    k("v_lshlrev_b32 v17, 4, v15")
    k("s_lshl_b32 s78, s84, 9")
    k("s_lshl_b32 s79, s75, 8")
    k("s_add_u32 s7, s78, s79")
    k("v_sub_u32 v16, 3, v16")
    k("v_lshlrev_b32 v16, 4, v16")
    k("v_lshl_add_u32 v18, v15, 13, v16")
    k("s_lshl_b32 s78, s84, 18")
    k("s_lshl_b32 s79, s75, 17")
    k("s_add_u32 s78, s78, s79")
    k("s_sub_u32 s79, 2016, s76")
    k("s_lshl_b32 s79, s79, 1")
    k("s_add_u32 s78, s78, s79")
    k(f"s_add_u32 s95, s78, {WS_KVR}")


def t1_loads(k, cost=32):
    if CFG.get("x_not1"):
        return
    def ad(j):
        if j < 3:
            return 10 + j, 0
        if j < 7:
            return 13, (j - 3) * 1024
        return 14, (j - 7) * 1024
    with atom(k):
        stmp(k, P_SHIFT, 512 * 4 * 2)
        vm(k, f"buffer_load_dwordx4 {V(T1_WR,4)}, v17, {S(STMP)}, s7 offen", "t1", 64)
    for j in range(11):
        r, o = ad(j)
        vm(k, f"buffer_load_dword v{T1_KR+j}, v{r}, {S(SK)}, 0 offen offset:{o}", "t1", cost)
    for i in range(8):
        r, o = ad(i + 3)
        vm(k, f"buffer_load_dword v{T1_VR+i}, v{r}, {S(SV)}, 0 offen offset:{o}", "t1", cost)


def t1_compute(k):
    k.c("---- T1 compute ----")
    if CFG.get("x_not1"):
        for _ in range(16):
            k("s_nop 0")
        return
    k.wait(vm="t1")
    for m in range(4):
        up = unpack_hi if m & 1 else unpack_lo
        up(k, T1_W + 2 * m, T1_WR + (m >> 1))
        up(k, T1_W + 2 * m + 1, T1_WR + 2 + (m >> 1))
    for j in range(11):
        unpack_lo(k, T1_K + 2 * j, T1_KR + j)
        unpack_hi(k, T1_K + 2 * j + 1, T1_KR + j)
    for m in range(4):
        for i in range(8):
            d = T1_A + 2 * i
            a = T1_K + 2 * (i + 3 - m)
            w = T1_W + 2 * m
            if m == 0:
                k(f"v_pk_mul_f32 {V(d,2)}, {V(a,2)}, {V(w,2)}")
            else:
                k(f"v_pk_fma_f32 {V(d,2)}, {V(a,2)}, {V(w,2)}, {V(d,2)}")
    for i in range(8):
        unpack_lo(k, T1_V + 2 * i, T1_VR + i)
        unpack_hi(k, T1_V + 2 * i + 1, T1_VR + i)
    for i in range(8):
        d = T1_A + 2 * i
        k(f"v_pk_mul_f32 {V(d,2)}, {V(d,2)}, {V(T1_V+2*i,2)}")
    for c in range(2):
        for jj in range(4):
            k(f"v_cvt_pk_bf16_f32 v{T1_O+4*c+jj}, v{T1_A+2*(7-2*jj)+c}, v{T1_A+2*(6-2*jj)+c}")
        with atom(k):
            if c:
                k("s_add_u32 s95, s95, 4096")
            vm(k, f"buffer_store_dwordx4 {V(T1_O+4*c,4)}, v18, {S(SWS)}, s95 offen sc1", "t1s", SC_ST)


W2T = 64


def w2f_addr(k):
    k.c("---- W2F producer addresses ----")
    k("s_lshr_b32 s92, s2, 3")
    k("s_sub_u32 s92, s92, 28")
    k("s_mul_i32 s92, s92, 28")
    k("s_mul_i32 s93, s4, 7")
    k("s_add_u32 s92, s92, s93")
    k("s_and_b32 s93, s2, 7")
    k("s_lshl_b32 s21, s93, 7")
    k("s_add_u32 s21, s21, s92")
    k("s_lshl_b32 s21, s21, 11")
    k(f"s_add_u32 s21, s21, {WS_W2F}")
    k("s_lshl_b32 s93, s93, 7")
    k("s_lshl_b32 s92, s92, 14")
    k("s_add_u32 s93, s93, s92")
    k("v_and_b32 v23, 63, v0")
    k("v_lshrrev_b32 v19, 3, v23")
    k("v_and_b32 v20, 7, v23")
    k("v_bfe_u32 v21, v23, 4, 1")
    k("v_lshlrev_b32 v21, 2, v21")
    k("v_xor_b32 v20, v20, v21")
    k("v_lshlrev_b32 v20, 4, v20")
    k("v_lshl_add_u32 v19, v19, 10, v20")
    k("s_mul_i32 s92, s4, 14336")
    k(f"s_add_u32 s92, s92, {L_W2S}")
    k("v_and_b32 v20, 15, v23")
    k("v_lshrrev_b32 v21, 5, v23")
    k("v_lshrrev_b32 v22, 2, v20")
    k("v_lshl_add_u32 v21, v21, 2, v22")
    k("v_lshlrev_b32 v21, 7, v21")
    k("v_bfe_u32 v22, v23, 4, 1")
    k("v_lshlrev_b32 v22, 1, v22")
    k("v_bfe_u32 v24, v20, 1, 1")
    k("v_add_u32 v22, v22, v24")
    k("v_bfe_u32 v24, v20, 3, 1")
    k("v_lshl_add_u32 v22, v24, 2, v22")
    k("v_lshl_add_u32 v21, v22, 4, v21")
    k("v_and_b32 v24, 1, v20")
    k("v_lshl_add_u32 v20, v24, 3, v21")
    k("v_add_u32 v20, s92, v20")
    k("v_xor_b32 v21, 64, v20")
    k("v_lshlrev_b32 v22, 4, v23")


def w2f_dma(k):
    for j in range(7):
        for h in range(2):
            with atom(k):
                k(f"s_add_u32 m0, s92, {2048*j + 1024*h}")
                k(f"s_add_u32 s{SDMA}, s93, {16384*j + 8192*h}")
                vm(k, f"buffer_load_dwordx4 v19, {S(SW2)}, s{SDMA} offen lds", f"w2d{j}")


def w2f_tr(k):
    for j in range(7):
        k.wait(vm=f"w2d{j}")
        for nb in range(2):
            for hf in range(2):
                k.ds(f"ds_read_b64_tr_b16 {V(W2T + 8*j + 4*nb + 2*hf, 2)}, v{20+nb} offset:{2048*j + 1024*hf}", f"w2t{j}")


def w2f_stores(k):
    for j in range(7):
        for nb in range(2):
            with atom(k):
                if nb == 0:
                    k.wait(lg=f"w2t{j}")
                    if j and j % 2 == 0:
                        k("s_add_u32 s21, s21, 4096")
                vm(k, f"buffer_store_dwordx4 {V(W2T+8*j+4*nb,4)}, v22, {S(SWS)}, s21 offen offset:{1024*nb + 2048*(j&1)} sc1",
                   "w2s", 120)


L_STG = 131072
W2P = 128


def w2p_vaddr(k):
    k("v_and_b32 v135, 63, v0")
    k(f"v_lshrrev_b32 v{W2P}, 3, v135")
    k("v_and_b32 v132, 7, v135")
    k("v_bfe_u32 v133, v135, 4, 1")
    k("v_lshlrev_b32 v133, 2, v133")
    k("v_xor_b32 v132, v132, v133")
    k("v_lshlrev_b32 v132, 4, v132")
    k(f"v_lshl_add_u32 v{W2P}, v{W2P}, 10, v132")
    k("s_lshl_b32 s74, s4, 11")
    k(f"s_add_u32 s74, s74, {L_STG}")
    k("v_and_b32 v132, 15, v135")
    k("v_lshrrev_b32 v133, 5, v135")
    k("v_lshrrev_b32 v134, 2, v132")
    k("v_lshl_add_u32 v133, v133, 2, v134")
    k("v_lshlrev_b32 v133, 7, v133")
    k("v_bfe_u32 v134, v135, 4, 1")
    k("v_lshlrev_b32 v134, 1, v134")
    k("v_bfe_u32 v136, v132, 1, 1")
    k("v_add_u32 v134, v134, v136")
    k("v_bfe_u32 v136, v132, 3, 1")
    k("v_lshl_add_u32 v134, v136, 2, v134")
    k("v_lshl_add_u32 v133, v134, 4, v133")
    k("v_and_b32 v136, 1, v132")
    k("v_lshl_add_u32 v133, v136, 3, v133")
    k(f"v_add_u32 v{W2P+1}, s74, v133")
    k(f"v_xor_b32 v{W2P+2}, 64, v{W2P+1}")
    k(f"v_lshlrev_b32 v{W2P+3}, 4, v135")


def w2p_dma(k):
    k("s_lshr_b32 s70, s2, 3")
    k("s_lshl_b32 s70, s70, 2")
    k("s_add_u32 s70, s70, s4")
    k("s_and_b32 s71, s2, 7")
    k("s_lshl_b32 s21, s71, 7")
    k("s_add_u32 s21, s21, s70")
    k("s_lshl_b32 s21, s21, 11")
    k(f"s_add_u32 s21, s21, {WS_W2F}")
    k("s_lshl_b32 s71, s71, 7")
    k("s_lshl_b32 s70, s70, 14")
    k("s_add_u32 s71, s71, s70")
    k("s_lshl_b32 s70, s4, 11")
    k(f"s_add_u32 s70, s70, {L_STG}")
    for h in range(2):
        k(f"s_add_u32 m0, s70, {1024*h}")
        k(f"s_add_u32 s{SDMA}, s71, {8192*h}")
        k.vmem(f"buffer_load_dwordx4 v{W2P}, {S(SW2)}, s{SDMA} offen lds", "w2d")


def w2p_out(k):
    k.wait(vm="w2d")
    for nb in range(2):
        for hf in range(2):
            k.ds(f"ds_read_b64_tr_b16 {V(W2P + 4 + 4*nb + 2*hf, 2)}, v{W2P+1+nb} offset:{1024*hf}", f"w2t{nb}")
    for nb in range(2):
        k.wait(lg=f"w2t{nb}")
        vm(k, f"buffer_store_dwordx4 {V(W2P+4+4*nb,4)}, v{W2P+3}, {S(SWS)}, s21 offen offset:{1024*nb} sc1", "w2s", 120)


def w2f_cons_setup(k):
    k("s_lshr_b32 s92, s2, 5")
    k("s_lshl_b32 s92, s92, 7")
    k("s_mul_i32 s93, s4, 28")
    k("s_add_u32 s92, s92, s93")
    k("s_lshl_b32 s92, s92, 11")
    k(f"s_add_u32 s92, s92, {WS_W2F}")
    k("s_and_b32 s93, s4, 1")
    k("s_lshl_b32 s93, s93, 10")
    k("s_add_u32 s92, s92, s93")
    kr = CFG.get("krot", 0)
    if kr:
        k("s_lshr_b32 s70, s2, 5")
        if kr == 1:
            k("s_bfe_u32 s93, s2, 0x20003")
            k("s_lshl_b32 s93, s93, 1")
            k("s_add_u32 s70, s70, s93")
        elif kr == 3:
            k("s_bfe_u32 s93, s2, 0x20003")
            k("s_add_u32 s70, s70, s93")
        k("s_cmp_ge_u32 s70, 7")
        k("s_cselect_b32 s93, 7, 0")
        k("s_sub_u32 s70, s70, s93")
        k("s_lshl_b32 s93, s70, 13")
        k("s_add_u32 s92, s92, s93")
    k("s_xor_b32 s93, s92, 1024")


def w2f_cons_loads(k, after=None):
    for ii in range(28):
        for a in range(2):
            with atom(k, after):
                if CFG.get("krot") and ii and ii % 4 == 0:
                    if a == 0:
                        k(f"s_cmp_eq_u32 s70, {7 - ii//4}")
                        k(f"s_cselect_b32 s21, {(-7*8192) & 0xffffffff}, 0")
                        k("s_add_u32 s21, s21, 4096")
                        k("s_add_u32 s92, s92, s21")
                        k("s_add_u32 s93, s93, s21")
                elif ii and ii % 2 == 0:
                    k(f"s_add_u32 s{92+a}, s{92+a}, 4096")
                vm(k, f"buffer_load_dwordx4 {A(8*ii+4*a,4)}, v58, {S(SWS)}, s{92+a} offen offset:{2048*(ii%2)} sc1",
                   f"wf{ii}")


HW = 30


def h_setup(k):
    k("s_lshl_b32 s74, s2, 13")
    for ch in range(2):
        d = 84 + 4 * ch
        k(f"s_add_u32 s{d}, s{P_SSMK}, s74")
        k(f"s_addc_u32 s{d+1}, s{P_SSMK+1}, 0")
        k(f"s_mov_b32 s{d+2}, 4096")
        k(f"s_mov_b32 s{d+3}, 0x00020000")
        if ch == 0:
            k("s_add_u32 s74, s74, 4096")
    k("v_lshlrev_b32 v46, 4, v0")
    k("v_add_u32 v47, -16, v46")


def h_loads(k, after=None):
    for ch in range(2):
        with atom(k, after):
            vm(k, f"buffer_load_dwordx4 {V(HW+8*ch,4)}, v47, {S(84+4*ch)}, 0 offen", "hw")
        with atom(k, after):
            vm(k, f"buffer_load_dwordx4 {V(HW+4+8*ch,4)}, v46, {S(84+4*ch)}, 0 offen", "hw")


def kv_zero(k):
    for i in range(4):
        k(f"v_mov_b32 v{48+i}, 0")
    k(f"v_add_u32 v52, {L_KV + 4096}, v46")
    with atom(k):
        k("v_cmp_gt_u32 vcc, 32, v0")
        k("s_and_saveexec_b64 s[74:75], vcc")
        for ch in range(2):
            k.ds(f"ds_write_b128 v52, {V(48,4)} offset:{ch*KV_STRIDE}", "kvz")
        k("s_mov_b64 exec, s[74:75]")


def build_copies(k):
    k.wait(vm="hw")
    k(f"v_add_u32 v52, {L_H + 16}, v46")
    k(f"v_add_u32 v53, {L_H + 16 + CH_STRIDE}, v46")
    for ch in range(2):
        w = HW + 8 * ch
        t = (128, 224)[ch]
        R, P, Q = t, t + 6, t + 12
        src = {0: w, 4: w + 2, 2: R, 6: R + 2, 1: P, 5: P + 2, 3: Q, 7: Q + 2}

        def wr(s):
            k.ds(f"ds_write_b128 v{52+ch}, {V(src[s],4)} offset:{s*COPY_STRIDE + 16*COPY_O[s]}", "hwr")
        wr(0)
        wr(4)
        for j in range(6):
            k(f"v_mov_b32 v{R+j}, v{w+j+1}")
        wr(2)
        wr(6)
        for j in range(6):
            k(f"v_alignbyte_b32 v{P+j}, v{w+j+1}, v{w+j}, 2")
        wr(1)
        wr(5)
        for j in range(6):
            k(f"v_alignbyte_b32 v{Q+j}, v{w+j+2}, v{w+j+1}, 2")
        wr(3)
        wr(7)
    with atom(k):
        k("s_mov_b32 s76, 255")
        k("v_cmp_eq_u32 vcc, s76, v0")
        k("s_and_saveexec_b64 s[74:75], vcc")
        for ch in range(2):
            k.ds(f"ds_write_b128 v{52+ch}, {V(HW+8*ch+4,4)} offset:{16 + 16*COPY_O[0]}", "hwr")
        k("s_mov_b64 exec, s[74:75]")
    with atom(k):
        lut = sum(o << (4 * i) for i, o in enumerate(COPY_O))
        k(f"s_mov_b32 s76, {lut}")
        k("v_lshlrev_b32 v54, 2, v0")
        k("v_bfe_u32 v54, s76, v54, 4")
        k("v_lshlrev_b32 v54, 4, v54")
        k(f"v_mul_u32_u24 v55, {COPY_STRIDE}, v0")
        k("v_add_u32 v54, v54, v55")
        k(f"v_add_u32 v54, {L_H}, v54")
        k("v_cmp_gt_u32 vcc, 8, v0")
        k("s_and_saveexec_b64 s[74:75], vcc")
        k.ds(f"ds_write_b128 v54, {V(48,4)}", "hwr")
        k.ds(f"ds_write_b128 v54, {V(48,4)} offset:{CH_STRIDE}", "hwr")
        k("s_mov_b64 exec, s[74:75]")


KVR = 244


def kv_loads(k, after=None):
    with atom(k, after):
        k("s_lshl_b32 s94, s2, 13")
        k(f"s_add_u32 s94, s94, {WS_KVR}")
        vm(k, f"buffer_load_dwordx4 {V(KVR,4)}, v46, {S(SWS)}, s94 offen sc1", "kv")
    with atom(k, after):
        k("s_lshl_b32 s94, s2, 13")
        k(f"s_add_u32 s94, s94, {WS_KVR + 4096}")
        vm(k, f"buffer_load_dwordx4 {V(KVR+4,4)}, v46, {S(SWS)}, s94 offen sc1", "kv")


def kv_write(k):
    k(f"v_add_u32 v54, {L_KV}, v46")
    k.wait(vm="kv")
    for ch in range(2):
        k.ds(f"ds_write_b128 v54, {V(KVR+4*ch,4)} offset:{ch*KV_STRIDE}", "kvw")


def flag_addrs(k):
    k("v_and_b32 v58, 63, v0")
    k("s_lshr_b32 s75, s2, 5")
    k("s_lshl_b32 s74, s75, 5")
    k("v_and_b32 v59, 31, v58")
    k("v_add_u32 v61, s74, v59")
    if CFG.get("dist"):
        k("v_min_u32 v60, 27, v59")
    else:
        k("v_and_b32 v60, 3, v58")
    k("v_lshlrev_b32 v60, 3, v60")
    k(f"s_add_u32 s75, s75, {(WS_F0B - WS_F0) // 128}")
    k("v_add_u32 v60, s75, v60")
    k("v_cmp_gt_u32 vcc, 32, v58")
    k("v_cndmask_b32 v56, v60, v61, vcc")
    k("v_lshlrev_b32 v56, 7, v56")
    k(f"v_add_u32 v61, {(WS_F2 - WS_F1) // 128}, v61")
    k("v_add_u32 v59, 224, v59")
    k("v_cndmask_b32 v61, v59, v61, vcc")
    k("v_lshlrev_b32 v61, 7, v61")
    k("s_and_b32 s74, s2, 7")
    k("s_lshl_b32 s74, s74, 2")
    k("s_lshr_b32 s75, s2, 3")
    k("s_and_b32 s75, s75, 3")
    k("s_add_u32 s74, s74, s75")
    k("s_lshr_b32 s75, s74, 1")
    if CFG.get("xm"):
        k("s_lshr_b32 s76, s75, 1")
        k("s_and_b32 s77, s75, 1")
        k("s_lshl_b32 s77, s77, 3")
        k("s_add_u32 s76, s76, s77")
        k("v_lshlrev_b32 v60, 4, v58")
    else:
        k("s_lshr_b32 s76, s75, 2")
        k("s_lshl_b32 s76, s76, 1")
        k("s_and_b32 s77, s75, 3")
        k("s_lshl_b32 s77, s77, 3")
        k("s_add_u32 s76, s76, s77")
        k("v_cmp_lt_u32 vcc, 6, v58")
        k("v_cndmask_b32 v59, 0, 1, vcc")
        k("v_mul_u32_u24 v60, 7, v59")
        k("v_sub_u32 v60, v58, v60")
        k("v_lshlrev_b32 v60, 5, v60")
        k("v_add_u32 v60, v60, v59")
    k("v_cmp_gt_u32 vcc, 14, v58")
    k("v_cndmask_b32 v60, 0, v60, vcc")
    k("v_add_u32 v60, s76, v60")
    k("v_lshlrev_b32 v57, 7, v60")
    k("s_cmp_eq_u32 s4, 0")
    k(f"s_cselect_b32 s74, 0, {OOB}")
    k("v_or_b32 v56, s74, v56")
    k("v_or_b32 v57, s74, v57")
    k("v_or_b32 v61, s74, v61")
    k("v_lshlrev_b32 v58, 4, v58")


BA0, BB1 = 248, 20


def rot_setup(k):
    m = CFG.get("rot", 0)
    if not m:
        return
    k("s_lshr_b32 s20, s2, 3")
    if m == 1:
        k("s_and_b32 s20, s20, 7")
    elif m == 2:
        k("s_and_b32 s20, s20, 3")
        k("s_lshl_b32 s20, s20, 1")
    elif m == 3:
        k("s_lshr_b32 s20, s20, 2")
    elif m == 4:
        k("s_lshr_b32 s20, s20, 2")
        k("s_and_b32 s20, s20, 1")
        k("s_lshl_b32 s20, s20, 2")
    elif m == 5:
        k("s_and_b32 s20, s20, 1")
        k("s_lshl_b32 s20, s20, 2")
    elif m == 6:
        k("s_add_u32 s20, s5, s6")
        k("s_and_b32 s20, s20, 7")
    elif m == 7:
        k("s_lshl_b32 s20, s5, 1")
        k("s_add_u32 s20, s20, s6")
        k("s_and_b32 s20, s20, 7")
    elif m == 8:
        k("s_lshr_b32 s20, s5, 2")
        k("s_lshl_b32 s20, s20, 1")
        k("s_add_u32 s20, s20, s5")
        k("s_add_u32 s20, s20, s6")
        k("s_and_b32 s20, s20, 7")


def g1_dma(k, slab, buf, after=None):
    rot = CFG.get("rot", 0)
    for i in range(4):
        with atom(k, after):
            if rot and i == 0:
                k("s_lshl_b32 s56, s20, 7")
                k("s_add_u32 s56, s56, s80")
                k("s_mul_i32 s57, s20, 229376")
                k("s_add_u32 s57, s57, s81")
                k("s_add_u32 s20, s20, 1")
                k("s_and_b32 s20, s20, 7")
            k(f"s_add_u32 m0, s82, {buf + 1024*i}")
            if rot:
                k(f"s_add_u32 s{SDMA}, s56, {8192*i}")
            else:
                k(f"s_add_u32 s{SDMA}, s80, {8192*i + 128*slab}")
            vm(k, f"buffer_load_dwordx4 v{1 + (i&1)}, {S(SQ)}, s{SDMA} offen lds", f"slab{slab}")
    for i in range(4):
        with atom(k, after):
            k(f"s_add_u32 m0, s82, {buf + 16384 + 1024*i}")
            if rot:
                k(f"s_add_u32 s{SDMA}, s57, {4*i*3584}")
            else:
                k(f"s_add_u32 s{SDMA}, s81, {(64*slab + 4*i)*3584}")
            vm(k, f"buffer_load_dwordx4 v3, {S(SW1)}, s{SDMA} offen lds", f"slab{slab}")


def bias_addr(k):
    k("v_lshlrev_b32 v19, 1, v10")
    k("v_cmp_gt_u32 vcc, 32, v10")
    k(f"v_mov_b32 v20, {OOB}")
    k("v_cndmask_b32 v19, v20, v19, vcc")
    k("v_mov_b32 v20, 0")
    k("v_mov_b32 v21, 0x3f80")
    k(f"v_cndmask_b32 v{BB1}, v20, v21, vcc")
    for r in (BB1 + 1, BB1 + 2, BB1 + 3, BA0 + 1, BA0 + 2, BA0 + 3, BA0 + 5, BA0 + 6, BA0 + 7):
        k(f"v_mov_b32 v{r}, 0")
    k("s_lshl_b32 s76, s6, 8")
    k("s_and_b32 s77, s4, 1")
    k("s_lshl_b32 s77, s77, 7")
    k("s_add_u32 s83, s76, s77")


def bias_loads(k):
    with atom(k):
        stmp(k, P_B1, 1792 * 2)
        vm(k, f"buffer_load_ushort v{BA0}, v19, {S(STMP)}, s83 offen", "bias", 32)
    with atom(k):
        vm(k, f"buffer_load_ushort v{BA0+4}, v19, {S(STMP)}, s83 offen offset:64", "bias", 32)


def bias_mfma(k):
    k.wait(vm="bias")
    for fb in range(2):
        for mb in range(2):
            d = G1_ACC + 32 * fb + 16 * mb
            k(f"v_mfma_f32_32x32x16_bf16 {V(d,16)}, {V(BA0+4*fb,4)}, {V(BB1,4)}, {V(d,16)}")


def sprinkle(k, items, per):
    q = list(items)

    def hook(n=per):
        for _ in range(n):
            if q:
                k._add(q.pop(0))
    hook.q = q
    return hook


def g1_main(k, bufs, pre, post, extra):
    nb = len(bufs)
    k.c("---- G1 main ----")
    k.wait(vm="slab0")
    k("s_barrier")
    ts(k, 6)
    G.g1_reads(k, bufs[0], 0, "r0_0")
    G.g1_reads(k, bufs[0], 1, "r0_1")
    hooks = []

    def mf(ks, first):
        fr = G1_FR + 16 * ks
        for fb in range(2):
            for mb in range(2):
                d = G1_ACC + 32 * fb + 16 * mb
                c = "0" if first else V(d, 16)
                k(f"v_mfma_f32_32x32x16_bf16 {V(d,16)}, {V(fr + 4*fb, 4)}, {V(fr + 8 + 4*mb, 4)}, {c}")
                for h in hooks:
                    if h.q:
                        h()
                        break

    for s in range(8):
        buf = bufs[s % nb]
        if ("a", s) in extra:
            hooks.append(sprinkle(k, *extra[("a", s)]))
        G.g1_reads(k, buf, 2, f"r{s}_2")
        k.wait(lg=f"r{s}_0")
        mf(0, s == 0)
        G.g1_reads(k, buf, 3, f"r{s}_3")
        k.wait(lg=f"r{s}_1")
        mf(1, False)
        if s < 7:
            if s in pre:
                pre[s]()
            k.wait(vm=f"slab{s+1}", lg=f"r{s}_3")
            k("s_barrier")
            k.mark(f"bar{s}")
            ts(k, 7 + s)
            if s in post:
                post[s]()
            if ("b", s) in extra:
                hooks.append(sprinkle(k, *extra[("b", s)]))
            nbuf = bufs[(s + 1) % nb]
            G.g1_reads(k, nbuf, 0, f"r{s+1}_0")
            mf(2, False)
            G.g1_reads(k, nbuf, 1, f"r{s+1}_1")
            mf(3, False)
        else:
            k.wait(lg=f"r{s}_2")
            mf(2, False)
            k.wait(lg=f"r{s}_3")
            mf(3, False)
    for h in hooks:
        h(10000)


def g1_epilogue(k):
    k.c("---- G1 epilogue ----")
    k("s_lshl_b32 s74, s5, 2")
    k("s_lshr_b32 s75, s4, 1")
    k("s_lshl_b32 s75, s75, 1")
    k("s_add_u32 s74, s74, s75")
    k("s_mul_i32 s74, s74, 112")
    k("s_lshl_b32 s75, s6, 3")
    k("s_add_u32 s74, s74, s75")
    k("s_and_b32 s75, s4, 1")
    k("s_lshl_b32 s75, s75, 2")
    k("s_add_u32 s74, s74, s75")
    k("s_lshl_b32 s74, s74, 10")
    k(f"s_add_u32 s78, s74, {WS_HF}")
    k(f"s_add_u32 s79, s78, {112*1024}")
    tmp = 160
    ti = 0
    for mb in range(2):
        for fb in range(2):
            acc = G1_ACC + 32 * fb + 16 * mb
            for half in range(2):
                t = tmp + 4 * ti
                ti += 1
                for r in range(8 * half, 8 * half + 8):
                    k(f"v_max_f32 v{acc+r}, 0, v{acc+r}")
                for r in range(8 * half, 8 * half + 8, 2):
                    k(f"v_pk_mul_f32 {V(acc+r,2)}, {V(acc+r,2)}, {V(acc+r,2)}")
                for i in range(4):
                    r = acc + 8 * half + 2 * i
                    k(f"v_cvt_pk_bf16_f32 v{t+i}, v{r}, v{r+1}")
                vm(k, f"buffer_store_dwordx4 {V(t,4)}, v58, {S(SWS)}, s{78+mb} offen offset:{(2*fb+half)*1024} sc1", "hs",
                   CFG.get("hscost", 200))


CA, CB = 59, 60


def conv_addr(k):
    k.c("---- conv addresses ----")
    k("v_and_b32 v10, 63, v0")
    k("v_and_b32 v11, 15, v10")
    k("v_lshrrev_b32 v12, 4, v10")
    k("v_add_u32 v13, 1, v11")
    k("v_and_b32 v14, 7, v13")
    k("v_lshrrev_b32 v15, 3, v13")
    lut = sum(o << (4 * i) for i, o in enumerate(COPY_O))
    k(f"s_mov_b32 s74, {lut}")
    k("v_lshlrev_b32 v16, 2, v14")
    k("v_bfe_u32 v16, s74, v16, 4")
    k("v_add_u32 v16, v16, v15")
    k("v_add_u32 v16, v16, v12")
    k("v_lshlrev_b32 v16, 4, v16")
    k(f"v_mul_u32_u24 v17, {COPY_STRIDE}, v14")
    k("v_add_u32 v16, v16, v17")
    k("s_lshr_b32 s75, s4, 1")
    k(f"s_mul_i32 s76, s75, {CH_STRIDE}")
    k("s_and_b32 s77, s4, 1")
    k("s_lshl_b32 s77, s77, 8")
    k("s_add_u32 s76, s76, s77")
    k(f"s_add_u32 s76, s76, {L_H}")
    k(f"v_add_u32 v{CA}, s76, v16")
    k(f"s_mul_i32 s76, s75, {KV_STRIDE}")
    k("s_add_u32 s76, s76, s77")
    k(f"s_add_u32 s76, s76, {L_KV + 480}")
    k("v_lshlrev_b32 v16, 5, v11")
    k("v_lshlrev_b32 v17, 4, v12")
    k("v_sub_u32 v16, v17, v16")
    k(f"v_add_u32 v{CB}, s76, v16")


def conv_main(k, hook):
    k.c("---- conv main ----")
    order = conv_order()
    for i in range(8):
        k.ds(f"ds_read_b128 {V(CV_FA + 4*i, 4)}, v{CA} offset:{512*i}", f"ca0_{i}")
        k.ds(f"ds_read_b128 {V(CV_FB + 4*i, 4)}, v{CB} offset:{512*(7-i)}", f"cb0_{i}")
    touched = set()
    for c0i in range(4):
        st = c0i & 1
        nxt = []
        if c0i < 3:
            for i in range(8):
                nxt.append((f"ds_read_b128 {V(CV_FA + 32*(st^1) + 4*i, 4)}, v{CA} offset:{512*i + 64*(c0i+1)}", f"ca{c0i+1}_{i}"))
                nxt.append((f"ds_read_b128 {V(CV_FB + 32*(st^1) + 4*i, 4)}, v{CB} offset:{512*(7-i) + 64*(c0i+1)}", f"cb{c0i+1}_{i}"))
        waited = set()
        for n, (d, c1) in enumerate(order):
            tags = [t for t in (f"ca{c0i}_{c1}", f"cb{c0i}_{d}") if t not in waited]
            if tags:
                k.wait(lg=tags)
                waited.update(tags)
            j = d + c1
            acc = V(CV_ACC + 4 * j, 4)
            c = acc if j in touched else "0"
            touched.add(j)
            k(f"v_mfma_f32_16x16x32_bf16 {acc}, {V(CV_FA + 32*st + 4*c1, 4)}, {V(CV_FB + 32*st + 4*d, 4)}, {c}")
            if n >= 18 and nxt:
                t, tg = nxt.pop(0)
                k.ds(t, tg)
            hook(c0i * 36 + n)


def conv_epilogue(k, prebar):
    k.c("---- conv epilogue ----")
    k("v_and_b32 v10, 63, v0")
    k("v_and_b32 v11, 15, v10")
    k("v_lshrrev_b32 v12, 4, v10")
    k("v_lshlrev_b32 v11, 6, v11")
    k("v_lshl_add_u32 v11, v12, 4, v11")
    k("s_lshl_b32 s74, s4, 13")
    k(f"s_add_u32 s74, s74, {L_PART}")
    k("v_add_u32 v11, s74, v11")
    k("s_lshr_b32 s75, s4, 1")
    for j in range(8):
        k.ds(f"ds_write_b128 v11, {V(CV_ACC + 4*j, 4)} offset:{1024*j}", "pw")
    k("v_and_b32 v1, 127, v0")
    k("v_lshlrev_b32 v2, 5, v1")
    k("s_lshl_b32 s74, s75, 14")
    k(f"s_add_u32 s74, s74, {L_PART}")
    k("v_add_u32 v2, s74, v2")
    k(f"s_mul_i32 s74, s75, {KV_STRIDE}")
    k(f"s_add_u32 s74, s74, {L_KV + 4080 - 2048}")
    k("v_lshlrev_b32 v3, 4, v1")
    k("v_sub_u32 v3, s74, v3")
    k("s_lshl_b32 s79, s75, 4")
    k("s_lshr_b32 s77, s23, s79")
    k("s_lshl_b32 s77, s77, 16")
    k.wait(lg="pw")
    prebar()
    k("s_barrier")
    k.mark("cvbar")
    for seg in range(2):
        b = 8 + 24 * seg
        for p in range(2):
            for hh in range(2):
                k.ds(f"ds_read_b128 {V(b + 8*p + 4*hh, 4)}, v2 offset:{8192*p + 4096*seg + 16*hh}", f"pr{seg}")
        k.ds(f"ds_read_b128 {V(b + 16, 4)}, v3 offset:{2048*(1-seg)}", f"pr{seg}")
    k("s_lshl_b32 s74, s2, 13")
    k("s_lshl_b32 s79, s75, 12")
    k("s_add_u32 s74, s74, s79")
    k(f"s_add_u32 s74, s74, {WS_YT}")
    k("v_lshlrev_b32 v4, 4, v1")
    for seg in range(2):
        b = 8 + 24 * seg
        k.wait(lg=f"pr{seg}")
        for i in range(0, 8, 2):
            k(f"v_pk_add_f32 {V(b+i,2)}, {V(b+i,2)}, {V(b+8+i,2)}")
        for i in range(8):
            e = 7 - i
            (unpack_hi if e & 1 else unpack_lo)(k, 6 + (i & 1), b + 16 + (e >> 1))
            k(f"v_fmac_f32 v{b+i}, s77, v{6 + (i & 1)}")
        for i in range(4):
            k(f"v_cvt_pk_bf16_f32 v{b+20+i}, v{b+2*i}, v{b+2*i+1}")
    k.mark("ysready")
    for seg in range(2):
        b = 8 + 24 * seg
        vm(k, f"buffer_store_dwordx4 {V(b+20,4)}, v4, {S(SWS)}, s74 offen offset:{2048*seg} sc1", "ys", SC_ST)


FB = 128


def g2_setup(k):
    G.g2_ids(k)
    k("s_lshr_b32 s74, s4, 1")
    k("s_lshl_b32 s75, s5, 1")
    k("s_add_u32 s80, s75, s74")
    k("s_xor_b32 s81, s80, 1")
    k("s_mul_i32 s78, s4, 28")
    for b in range(2):
        k(f"s_mul_i32 s{80+b}, s{80+b}, 112")
        k(f"s_add_u32 s{80+b}, s{80+b}, s78")
        k(f"s_lshl_b32 s{80+b}, s{80+b}, 10")
        k(f"s_add_u32 s{80+b}, s{80+b}, {WS_HF}")
    if CFG.get("krot"):
        k("s_lshl_b32 s78, s70, 12")
        k("s_add_u32 s80, s80, s78")
        k("s_add_u32 s81, s81, s78")


def hf_loads(k, depth, first_after):
    for i in range(28):
        for b in range(2):
            after = first_after if i < depth else f"g2_{i - depth}"
            with atom(k, after):
                if b == 0 and i and i % 4 == 0:
                    if CFG.get("krot"):
                        k(f"s_cmp_eq_u32 s70, {7 - i//4}")
                        k(f"s_cselect_b32 s21, {(-7*4096) & 0xffffffff}, 0")
                        k("s_add_u32 s21, s21, 4096")
                        k("s_add_u32 s80, s80, s21")
                        k("s_add_u32 s81, s81, s21")
                    else:
                        k("s_add_u32 s80, s80, 4096")
                        k("s_add_u32 s81, s81, 4096")
                r = FB + 8 * (i % depth) + 4 * b
                vm(k, f"buffer_load_dwordx4 {V(r,4)}, v58, {S(SWS)}, s{80+b} offen offset:{1024*(i%4)} sc1", f"hf{i}")


def g2_main(k, depth, hooks):
    k.c("---- G2 main ----")
    for i in range(28):
        k.wait(vm=[f"hf{i}", f"wf{i}"])
        for b in range(2):
            for a in range(2):
                d = G2_ACC + 16 * (a + 2 * b)
                c = V(d, 16) if i else "0"
                k(f"v_mfma_f32_32x32x16_bf16 {V(d,16)}, {A(8*i + 4*a, 4)}, {V(FB + 8*(i%depth) + 4*b, 4)}, {c}")
        k.mark(f"g2_{i}")
        if i in hooks:
            hooks[i]()


EQ, EB2, EY, EG = 8, 16, 24, 32


def g2_ep_addr(k):
    k("v_and_b32 v40, 63, v0")
    k("v_and_b32 v41, 31, v40")
    k("v_lshrrev_b32 v42, 5, v40")
    k("s_and_b32 s74, s4, 1")
    k("s_lshr_b32 s75, s4, 1")
    k("s_lshl_b32 s76, s5, 6")
    k("s_lshl_b32 s77, s75, 5")
    k("s_add_u32 s76, s76, s77")
    k("s_lshl_b32 s77, s6, 6")
    k("s_lshl_b32 s78, s74, 5")
    k("s_add_u32 s77, s77, s78")
    k("v_lshlrev_b32 v46, 10, v41")
    k("v_lshl_add_u32 v46, v42, 3, v46")
    k("s_lshl_b32 s82, s76, 10")
    k("s_lshl_b32 s83, s77, 1")
    k("s_add_u32 s82, s82, s83")
    k("v_lshlrev_b32 v47, 3, v42")
    k("v_lshrrev_b32 v43, 2, v40")
    k("v_and_b32 v44, 3, v40")
    k("v_lshlrev_b32 v45, 12, v43")
    k("v_lshl_add_u32 v45, v44, 4, v45")
    k("s_lshl_b32 s84, s77, 12")
    k("s_lshl_b32 s85, s76, 1")
    k("s_add_u32 s84, s84, s85")
    k(f"s_add_u32 s84, s84, {WS_YT}")
    k(f"s_add_u32 s85, s84, {16*4096}")
    k("v_lshlrev_b32 v48, 2, v41")
    k("s_lshl_b32 s86, s76, 2")
    k(f"s_add_u32 s86, s86, {WS_G}")


def g2_ep_loads_plain(k, after=None):
    for g in range(4):
        with atom(k, after):
            vm(k, f"buffer_load_dwordx2 {V(EQ+2*g,2)}, v46, {S(SQ)}, s82 offen offset:{16*g}", "q", 200)
    for g in range(4):
        with atom(k, after):
            if g == 0:
                stmp(k, P_B2, 1024)
            vm(k, f"buffer_load_dwordx2 {V(EB2+2*g,2)}, v47, {S(STMP)}, s83 offen offset:{16*g}", "b2", 64)


def g2_ep_loads_sc1(k, after=None):
    with atom(k, after):
        vm(k, f"buffer_load_dword v{EG}, v48, {S(SWS)}, s86 offen sc1", "g", 32)
    with atom(k, after):
        vm(k, f"buffer_load_dwordx4 {V(EY,4)}, v45, {S(SWS)}, s84 offen sc1", "yt", 81)
    with atom(k, after):
        vm(k, f"buffer_load_dwordx4 {V(EY+4,4)}, v45, {S(SWS)}, s85 offen sc1", "yt", 81)


def g2_epilogue(k):
    k.c("---- G2 epilogue ----")
    k("v_lshlrev_b32 v49, 4, v40")
    for sg in range(1, 4):
        k(f"s_xor_b32 s80, s4, {sg}")
        k("s_mul_i32 s80, s80, 12288")
        k(f"v_add_u32 v50, s80, v49")
        for g in range(4):
            k.ds(f"ds_write_b128 v50, {V(G2_ACC + 16*sg + 4*g, 4)} offset:{L_RED + (sg-1)*4096 + 1024*g}", "rw")
    k("s_lshl_b32 s80, s4, 11")
    k(f"s_add_u32 s80, s80, {L_YL}")
    k("v_add_u32 v51, s80, v49")
    k.wait(vm="yt")
    k.ds(f"ds_write_b128 v51, {V(EY,4)}", "yw")
    k.ds(f"ds_write_b128 v51, {V(EY+4,4)} offset:1024", "yw")
    k.wait(lg=["rw", "yw"])
    k("s_barrier")
    ts(k, 25)
    k("s_mul_i32 s80, s4, 12288")
    k("v_add_u32 v50, s80, v49")
    for sg in range(3):
        for g in range(4):
            k.ds(f"ds_read_b128 {V(160 + 16*sg + 4*g, 4)}, v50 offset:{L_RED + sg*4096 + 1024*g}", f"rr{sg}")
    k("v_and_b32 v52, 15, v40")
    k("v_lshrrev_b32 v53, 2, v52")
    k("v_lshl_add_u32 v53, v42, 2, v53")
    k("v_lshlrev_b32 v53, 6, v53")
    k("v_bfe_u32 v54, v40, 4, 1")
    k("v_lshl_add_u32 v53, v54, 5, v53")
    k("v_and_b32 v54, 3, v52")
    k("v_lshl_add_u32 v53, v54, 3, v53")
    k("s_lshl_b32 s80, s4, 11")
    k(f"s_add_u32 s80, s80, {L_YL}")
    k("v_add_u32 v53, s80, v53")
    for g in range(4):
        k.ds(f"ds_read_b64_tr_b16 {V(208+2*g,2)}, v53 offset:{512*g}", "yr")
    acc = G2_ACC
    for sg in range(3):
        k.wait(lg=f"rr{sg}")
        for r in range(0, 16, 2):
            k(f"v_pk_add_f32 {V(acc+r,2)}, {V(acc+r,2)}, {V(160+16*sg+r,2)}")
    k.wait(vm=["q", "b2", "g"], lg="yr")
    X = 224
    slot = {0: 0, 2: 2, 1: 4, 3: 6}
    for g in range(4):
        for i in range(4):
            up = unpack_hi if i & 1 else unpack_lo
            up(k, 128 + i, EB2 + 2 * g + (i >> 1))
            up(k, 132 + i, EQ + 2 * g + (i >> 1))
            up(k, 136 + i, 208 + 2 * g + (i >> 1))
        for i in range(4):
            r = acc + 4 * g + i
            k(f"v_add_f32 v{r}, v{r}, v{128+i}")
        for i in range(4):
            r = acc + 4 * g + i
            k(f"v_fma_f32 v{132+i}, v{132+i}, v{136+i}, -v{r}")
        for i in range(4):
            r = acc + 4 * g + i
            k(f"v_fmac_f32 v{r}, v{EG}, v{132+i}")
        for d in range(2):
            r = acc + 4 * g + 2 * d
            k(f"v_cvt_pk_bf16_f32 v{X + slot[g] + d}, v{r}, v{r+1}")
    for base in (0, 4):
        k(f"v_permlane32_swap_b32 v{X+base}, v{X+base+2}")
        k(f"v_permlane32_swap_b32 v{X+base+1}, v{X+base+3}")
    k("v_lshlrev_b32 v46, 10, v41")
    k("v_lshl_add_u32 v46, v42, 5, v46")
    osc = ["", " sc1", " nt", " sc0 sc1", " sc1 nt"][CFG.get("osc", 0)]
    vm(k, f"buffer_store_dwordx4 {V(X,4)}, v46, {S(SOUT)}, s82 offen{osc}", "os")
    vm(k, f"buffer_store_dwordx4 {V(X+4,4)}, v46, {S(SOUT)}, s82 offen offset:16{osc}", "os")


def gate_loads(k):
    k("s_and_b32 s5, s2, 7")
    k("s_lshl_b32 s5, s5, 2")
    k("s_lshr_b32 s6, s2, 3")
    k("s_sub_u32 s6, s6, 28")
    k("s_add_u32 s5, s5, s6")
    k("s_lshl_b32 s5, s5, 6")
    k("s_lshl_b32 s6, s4, 4")
    k("s_add_u32 s5, s5, s6")
    k("s_lshl_b32 s6, s5, 10")
    stmp(k, P_GATE, 1024)
    k.vmem(f"buffer_load_dwordx4 {V(4,4)}, v22, {S(STMP)}, 0 offen", "gw")
    for i in range(16):
        if i and i % 4 == 0:
            k("s_add_u32 s6, s6, 4096")
        k.vmem(f"buffer_load_dwordx4 {A(4*i,4)}, v22, {S(SQ)}, s6 offen offset:{1024*(i%4)}", f"gx{i}")


def gate_compute(k):
    k.c("---- gate compute ----")
    k.wait(vm="gw")
    for c in range(8):
        (unpack_hi if c & 1 else unpack_lo)(k, 8 + c, 4 + (c >> 1))
    R = 96
    for i in range(16):
        k.wait(vm=f"gx{i}")
        s = 64 + 4 * (i & 1)
        for c in range(4):
            k(f"v_accvgpr_read_b32 v{s+c}, a{4*i+c}")
        u = 72 + 8 * (i & 1)
        for c in range(8):
            (unpack_hi if c & 1 else unpack_lo)(k, u + c, s + (c >> 1))
        t = 88 + 2 * (i & 1)
        for cp in range(0, 8, 2):
            if cp == 0:
                k(f"v_pk_mul_f32 {V(t,2)}, {V(u,2)}, {V(8,2)}")
            else:
                k(f"v_pk_fma_f32 {V(t,2)}, {V(u+cp,2)}, {V(8+cp,2)}, {V(t,2)}")
        k(f"v_add_f32 v{R+i}, v{t}, v{t+1}")
    for mod in ["row_shr:1", "row_shr:2", "row_shr:4", "row_shr:8", "row_bcast:15 row_mask:0xa",
                "row_bcast:31 row_mask:0xc"]:
        for i in range(16):
            m = mod if "row_mask" in mod else mod + " row_mask:0xf"
            k(f"v_add_f32_dpp v{R+i}, v{R+i}, v{R+i} {m} bank_mask:0xf")
    k("v_mov_b32 v2, 0")
    for g in range(0, 16, 4):
        for i in range(g, g + 4):
            k(f"v_readlane_b32 s{76+i-g}, v{R+i}, 63")
        for i in range(g, g + 4):
            k(f"v_writelane_b32 v2, s{76+i-g}, {i}")
    k("v_mul_f32 v2, 0xbfb8aa3b, v2")
    k("v_exp_f32 v2, v2")
    k("v_add_f32 v2, 1.0, v2")
    k("v_rcp_f32 v2, v2")
    k("v_and_b32 v1, 63, v0")
    k("v_lshlrev_b32 v3, 2, v1")
    k("s_lshl_b32 s6, s5, 2")
    k(f"s_add_u32 s6, s6, {WS_G}")
    k("v_cmp_gt_u32 vcc, 16, v1")
    k("s_and_saveexec_b64 s[74:75], vcc")
    k.vmem(f"buffer_store_dword v2, v3, {S(SWS)}, s6 offen sc1", "gs")
    k("s_mov_b64 exec, s[74:75]")


def rec(f, *a, **kw):
    r = Rec()
    f(r, *a, **kw)
    return r.items


def late_scalars(k):
    k(f"s_load_dword s96, s[{P_WS}:{P_WS+1}], {WS_EPOCH}")
    k("s_lshl_b32 s74, s2, 2")
    k(f"s_load_dword s23, s[{P_SSMD}:{P_SSMD+1}], s74")


def gen_full(cfg):
    global CFG
    CFG = cfg
    if cfg.get("x_nords"):
        G.g1_reads = lambda *a, **kw: None
    g = cfg.get
    k = KT()
    END = "K_END"
    bufs = [0, 32768, 65536, 98304]
    prologue(k, END)
    if g("icpf"):
        code_prefetch(k)
    if g("ts"):
        k("v_mov_b32 v63, 0")
    ts(k, 0)
    k("s_lshr_b32 s74, s2, 3")
    k("s_cmp_ge_u32 s74, 28")
    k("s_cbranch_scc1 GATE")
    G.g1_setup(k, cfg)
    bias_addr(k)
    rot_setup(k)
    t1_addr(k)
    DIST = g("dist", 0)
    if DIST:
        w2p_vaddr(k)
    srd_consts(k)
    k("s_waitcnt lgkmcnt(0)")
    srd_ptrs(k, (SQ, SW1))
    ts_setup(k, cfg) if False else None
    if g("x_dma"):
        srd_ptrs(k, (SK, SV, SWS, SW2, SOUT))
        ts_setup(k, cfg)
        npass = g("x_dma")
        for p in range(npass):
            if p:
                k("s_barrier")
            ts(k, 1 + 10 * p)
            infl = g("x_infl", 8)

            def iss(sl):
                r = Rec()
                g1_dma(r, sl, bufs[sl % 4])
                for it in r.items:
                    emit(k, it)
            for sl in range(infl):
                iss(sl)
            for sl in range(8):
                k.wait(vm=f"slab{sl}")
                ts(k, 2 + sl + 10 * p)
                if sl + infl < 8:
                    iss(sl + infl)
        k.wait_all()
        ts_final(k, cfg, 27)
        k("s_waitcnt vmcnt(0)")
        k("s_endpgm")
        k("GATE:")
        srd_consts(k)
        k("s_waitcnt lgkmcnt(0)")
        srd_ptrs(k, (SK, SV, SWS, SW2, SOUT))
        ts_setup(k, cfg)
        ts_final(k, cfg, 27)
        k("s_waitcnt vmcnt(0)")
        k(f"{END}:")
        k("s_endpgm")
        return k
    T1POS = g("t1pos", 1)
    W = Weaver(k, g("p_g1", 32))
    W.t = W.ta = 8 * 88
    r = Rec()
    g1_dma(r, 0, bufs[0])
    for it in r.items:
        emit(k, it)
    srd_ptrs(k, (SK, SV, SWS, SW2, SOUT))
    if DIST:
        w2p_dma(k)
    late_scalars(k)
    ts_setup(k, cfg)
    ts(k, 1)
    bg = Rec()
    if DIST == 1:
        g1_dma(bg, 1, bufs[1])
        g1_dma(bg, 2, bufs[2])
        r = Rec()
        t1_loads(r)
        first = r.items[0]
        bg.items.append(("a", first[1], "w2st", first[3]))
        bg.items.extend(r.items[1:])
        bias_loads(bg)
        g1_dma(bg, 3, bufs[3])
    elif DIST == 3:
        g1_dma(bg, 1, bufs[1])
        bias_loads(bg)
        g1_dma(bg, 2, bufs[2])
        r = Rec()
        t1_loads(r)
        first = r.items[0]
        bg.items.append(("a", first[1], "w2st", first[3]))
        bg.items.extend(r.items[1:])
        g1_dma(bg, 3, bufs[3])
    else:
        if T1POS == 0:
            t1_loads(bg)
        g1_dma(bg, 1, bufs[1])
        if T1POS == 1:
            t1_loads(bg)
        bias_loads(bg)
        g1_dma(bg, 2, bufs[2])
        if T1POS == 2:
            t1_loads(bg)
        g1_dma(bg, 3, bufs[3])
        if T1POS == 3:
            t1_loads(bg)
    for s in range(4, 8):
        g1_dma(bg, s, bufs[s - 4], after=f"bar{s-4}")
    h_loads(bg, after="t1done")
    w2f_cons_loads(bg, after="f0bok")
    W.push(bg.items)
    W.flush(g("ndirect", 0))
    fg = Rec()
    h_setup(fg)
    kv_zero(fg)
    flag_addrs(fg)
    fg("s_waitcnt lgkmcnt(0)")
    nonce(fg)
    w2f_cons_setup(fg)
    ts(fg, 5)
    t1c = rec(t1_compute)
    t1c.append(("m", "t1done"))
    P0 = g("pub0", 4)
    T1SEG = g("t1seg", 1)
    BSEG = g("bseg", 1)
    POLL0B = g("poll0b", 3)
    CHK0B = g("chk0b", 4)
    POLL0A = g("poll0a", 5)
    CHK0A = g("chk0a", 6)
    TAILPOS = g("tailpos", 1)
    pre = {}
    post = {}

    def addh(d, s, f):
        old = d.get(s)
        d[s] = (lambda: (old(), f())) if old else f
    addh(pre, P0, lambda: fg.wait(vm="t1s"))
    addh(post, P0, lambda: publish(fg, WS_F0))
    addh(pre, CHK0B, lambda: (poll_check(fg, 62, 56, WS_F0, "p0b", "hi"), ts(fg, 2)))
    addh(post, CHK0B, lambda: (fg.mark("f0bok"), fg.period(g("p_wf")) if g("p_wf") is not None else None))
    if not g("pollbm", 0):
        addh(post, POLL0B, lambda: poll_issue(fg, 62, 56, WS_F0, "p0b"))
    if DIST:
        PUBB = g("pubb", 1)
        addh(pre, PUBB, lambda: fg.wait(vm="w2s"))
        addh(post, PUBB, lambda: publish(fg, WS_F0B))
    if CHK0A < 7:
        addh(pre, CHK0A, lambda: (poll_check(fg, 62, 56, WS_F0, "p0a", "lo"), ts(fg, 14)))
        addh(post, CHK0A, lambda: kv_loads(fg))
    if POLL0A < 7:
        addh(post, POLL0A, lambda: poll_issue(fg, 62, 56, WS_F0, "p0a"))
    if T1SEG < 0:
        for it in t1c:
            fg._add(it)
    tail = rec(build_copies) + rec(conv_addr)
    extra = {("a", BSEG): (rec(bias_mfma), 5)}
    if TAILPOS == 0:
        extra[("b", 6)] = (tail, g("tailper", 4))
    if T1SEG >= 0:
        extra[("b", T1SEG)] = (t1c, g("t1per", 5))
    if DIST:
        w2o = rec(w2p_out) + [("m", "w2st")]
        if g("w2pre", 0):
            for it in w2o:
                fg._add(it)
        else:
            extra[("a", 0)] = (w2o, g("w2per", 2))
    if g("pollbm", 0):
        nop = [("c", "poll slot")] * g("pollbm", 0)
        extra[("a", CHK0B)] = (nop + rec(poll_issue, 62, 56, WS_F0, "p0b"), 1)
    g1_main(fg, bufs, pre, post, extra)
    ts(fg, 15)
    if CHK0A == 7:
        if POLL0A == 7:
            poll_issue(fg, 62, 56, WS_F0, "p0a")
        poll_check(fg, 62, 56, WS_F0, "p0a", "lo")
        fg("s_barrier")
        ts(fg, 14)
        kv_loads(fg)
    fg.period(g("p_ep", 32))
    g1_epilogue(fg)
    if CHK0A == 8:
        if POLL0A >= 7:
            poll_issue(fg, 62, 56, WS_F0, "p0a")
        poll_check(fg, 62, 56, WS_F0, "p0a", "lo")
        fg("s_barrier")
        ts(fg, 14)
        kv_loads(fg)
    ts(fg, 4)
    if TAILPOS == 1:
        for it in tail:
            fg._add(it)
    kv_write(fg)
    ts(fg, 16)
    conflicts("g1", fg.items, bg.items, ok=[("s", "m0"), ("v", 62, 62), ("v", 224, 255), ("v", 30, 47), ("s", 92, 93),
                                            ("v", 56, 58), ("s", 84, 91)])
    W.run(fg.items)
    nleft = len(W.bg)
    print("G1 path marks:", W.log, "bg left at JOIN:", nleft)
    for it in W.bg:
        assert all(x[2].startswith("wf") for x in flat([it]) if x[0] == "vm"), it
    if k.pend is not None:
        k("s_waitcnt lgkmcnt(0)")
    vm_join = list(k.vm)
    k("s_branch JOIN")
    k("GATE:")
    k.vm, k.lg = [], []
    if g("ts"):
        k.pend = 0
    if DIST:
        k("v_and_b32 v22, 63, v0")
        k("v_lshlrev_b32 v22, 4, v22")
    else:
        w2f_addr(k)
    t1_addr(k)
    srd_consts(k)
    k("s_waitcnt lgkmcnt(0)")
    srd_ptrs(k, (SW2, SK, SV, SQ, SWS, SOUT))
    if not DIST:
        for it in rec(w2f_dma):
            emit(k, it)
    late_scalars(k)
    ts_setup(k, cfg)
    ts(k, 1)
    GORD = g("gord", 0)
    for it in rec(t1_loads):
        emit(k, it)
    h_setup(k)
    if DIST:
        if g("gearly", 1):
            gate_loads(k)
        for it in rec(kv_zero):
            emit(k, it)
        flag_addrs(k)
        k("s_waitcnt lgkmcnt(0)")
        k.lg = []
        nonce(k)
        for it in rec(t1_compute):
            emit(k, it)
        ts(k, 4)
        if g("gearly", 1):
            for it in rec(h_loads):
                emit(k, it)
        k.wait(vm="t1s")
        k("s_barrier")
        publish(k, WS_F0)
        ts(k, 5)
        if not g("gearly", 1):
            gate_loads(k)
            for it in rec(h_loads):
                emit(k, it)
        gate_compute(k)
        for it in rec(build_copies) + rec(conv_addr):
            emit(k, it)
        poll_issue(k, 62, 56, WS_F0, "p0b")
        poll_check(k, 62, 56, WS_F0, "p0b", "hi")
        k("s_barrier")
        ts(k, 2)
        w2f_cons_setup(k)
        allw = rec(w2f_cons_loads)
        for it in allw[:len(allw) - nleft]:
            emit(k, it)
        poll_issue(k, 62, 56, WS_F0, "p0")
        poll_check(k, 62, 56, WS_F0, "p0", "lo")
        k("s_barrier")
        ts(k, 14)
        for it in rec(kv_loads):
            emit(k, it)
    elif GORD == 0:
        for it in rec(w2f_tr):
            emit(k, it)
        ts(k, 3)
        Wg = Weaver(k, g("p_gw", 32))
        Wg.push(rec(w2f_stores))
        if g("gw2first", 1):
            Wg.flush()
            ts(k, 2)
            for it in rec(t1_compute):
                emit(k, it)
        else:
            Wg.run(rec(t1_compute)[:-12])
            Wg.flush()
            for it in rec(t1_compute)[-12:]:
                emit(k, it)
        ts(k, 4)
        for it in rec(kv_zero):
            emit(k, it)
        flag_addrs(k)
        k("s_waitcnt lgkmcnt(0)")
        k.lg = []
        nonce(k)
        k.wait(vm="w2s")
        k("s_barrier")
        publish(k, WS_F0B, 224)
        ts(k, 6)
        if not g("gswap", 0):
            gate_loads(k)
        k.wait(vm="t1s")
        k("s_barrier")
        publish(k, WS_F0)
        ts(k, 5)
        if g("gswap", 0):
            gate_loads(k)
        for it in rec(h_loads):
            emit(k, it)
        gate_compute(k)
        for it in rec(build_copies) + rec(conv_addr):
            emit(k, it)
        poll_issue(k, 62, 56, WS_F0, "p0")
        poll_check(k, 62, 56, WS_F0, "p0")
        k("s_barrier")
        ts(k, 14)
        for it in rec(kv_loads):
            emit(k, it)
        w2f_cons_setup(k)
        allw = rec(w2f_cons_loads)
        for it in allw[:len(allw) - nleft]:
            emit(k, it)
    else:
        for it in rec(kv_zero):
            emit(k, it)
        flag_addrs(k)
        k("s_waitcnt lgkmcnt(0)")
        k.lg = []
        nonce(k)
        for it in rec(t1_compute):
            emit(k, it)
        ts(k, 4)
        for it in rec(w2f_tr):
            emit(k, it)
        ts(k, 3)
        ws_items = rec(w2f_stores)
        nfirst = g("gsplit", 0)
        for it in ws_items[:nfirst]:
            emit(k, it)
        k.wait(vm="t1s")
        k("s_barrier")
        publish(k, WS_F0)
        ts(k, 5)
        for it in ws_items[nfirst:]:
            emit(k, it)
        ts(k, 2)
        for it in rec(h_loads):
            emit(k, it)
        k.wait(vm="w2s")
        k("s_barrier")
        publish(k, WS_F0B, 224)
        ts(k, 6)
        gate_loads(k)
        for it in rec(build_copies) + rec(conv_addr):
            emit(k, it)
        poll_issue(k, 62, 56, WS_F0, "p0b")
        gate_compute(k)
        poll_check(k, 62, 56, WS_F0, "p0b", "hi")
        k("s_barrier")
        w2f_cons_setup(k)
        allw = rec(w2f_cons_loads)
        for it in allw[:len(allw) - nleft]:
            emit(k, it)
        poll_issue(k, 62, 56, WS_F0, "p0")
        poll_check(k, 62, 56, WS_F0, "p0", "lo")
        k("s_barrier")
        ts(k, 14)
        for it in rec(kv_loads):
            emit(k, it)
    kv_write(k)
    ts(k, 16)
    k.wait_all(vm=True, lg=True)
    k("JOIN:")
    k.vm = vm_join
    k.lg = ["x"]
    k.wait_all(vm=False, lg=True)
    PUB1 = g("pub1", 54)
    if PUB1 < 0:
        k.wait(vm="hs")
    k("s_barrier")
    ts(k, 17)
    if PUB1 < 0:
        publish(k, WS_F1)
    POLL1 = g("poll1", 100)
    CHK1 = g("chk1", -1)
    depth = 16
    fg = Rec()
    bg = Rec()
    g2_setup(fg)
    fg.period(g("p_cv", 32))

    def hook(n):
        if n == PUB1:
            fg.wait(vm="hs")
            fg("s_barrier")
            ts(fg, 18)
            publish(fg, WS_F1)
        if n == POLL1:
            poll_issue(fg, 62, 57, WS_F1, "p1")
        if n == CHK1:
            poll_check(fg, 62, 57, WS_F1, "p1")
            fg("s_barrier")
            fg.mark("f1ok")
            ts(fg, 20)
    conv_main(fg, hook)
    ts(fg, 19)

    def prebar():
        if CHK1 < 0:
            poll_check(fg, 62, 57, WS_F1, "p1")
            ts(fg, 20)
    fg.period(g("p_ce", 32))
    conv_epilogue(fg, prebar)
    ts(fg, 21)
    hf_loads(bg, depth, "cvbar" if CHK1 < 0 else "f1ok")
    epl = Rec()
    g2_ep_loads_plain(epl, after="epaddr")
    eps = Rec()
    g2_ep_loads_sc1(eps, after="f2ok")
    PUB2 = g("pub2", 4)
    POLL2 = g("poll2", 16)
    CHK2 = g("chk2", 22)
    EPQ = g("epq", 8)
    hfi = bg.items
    pos = min(2 * (EPQ + depth), len(hfi))
    bgall = hfi[:pos] + epl.items + hfi[pos:] + eps.items
    fg.period(g("p_g2", 32))

    def h_pub2():
        fg.wait(vm="ys")
        fg("s_barrier")
        ts(fg, 22)
        publish(fg, WS_F2)

    def h_chk2():
        poll_check(fg, 62, 61, WS_F1, "p2")
        fg("s_barrier")
        fg.mark("f2ok")
        ts(fg, 23)
    hooks = {}
    addh(hooks, 0, lambda: (g2_ep_addr(fg), fg.mark("epaddr")))
    addh(hooks, PUB2, h_pub2)
    addh(hooks, POLL2, lambda: poll_issue(fg, 62, 61, WS_F1, "p2"))
    addh(hooks, CHK2, h_chk2)
    g2_main(fg, depth, hooks)
    ts(fg, 24)
    g2_epilogue(fg)
    ts(fg, 26)
    conflicts("g2", fg.items, W.bg + bgall,
              ok=[("a", 0, 223), ("v", 128, 255), ("v", 62, 62), ("s", 80, 86), ("v", 8, 32), ("v", 45, 48), ("s", 94, 94)])
    W.push(bgall)
    W.log = []
    W.run(fg.items)
    print("JOIN path marks:", W.log, "bg left:", len(W.bg))
    assert not W.bg
    k("s_or_b32 s74, s2, s4")
    k("s_cmp_eq_u32 s74, 0")
    k("s_cbranch_scc0 NOEP")
    k("s_add_u32 s96, s96, 1")
    k("v_mov_b32 v62, s96")
    k(f"s_mov_b32 s97, {WS_EPOCH}")
    k("s_mov_b64 exec, 1")
    k(f"buffer_store_dword v62, off, {S(SWS)}, s97")
    k("s_mov_b64 exec, -1")
    k("NOEP:")
    k.wait_all()
    ts_final(k, cfg, 27)
    k("s_waitcnt vmcnt(0)")
    if g("ampn"):
        k(f"s_cmp_eq_u32 s2, {g('ampw', 0)}")
        k(f"s_cbranch_scc0 {END}")
        k("s_cmp_eq_u32 s4, 0")
        k(f"s_cbranch_scc0 {END}")
        k(f"v_readlane_b32 s10, v63, {g('ampa', 0)}")
        k(f"v_readlane_b32 s11, v63, {g('ampb', 27)}")
        k("s_sub_u32 s11, s11, s10")
        k("s_min_u32 s11, s11, 4000")
        k(f"s_mul_i32 s11, s11, {g('ampn')}")
        k("s_memrealtime s[12:13]")
        k("s_waitcnt lgkmcnt(0)")
        k("s_mov_b32 s14, s12")
        k("s_mov_b32 s15, 0x40000")
        k("AMPL:")
        k("s_memrealtime s[12:13]")
        k("s_waitcnt lgkmcnt(0)")
        k("s_sub_u32 s16, s12, s14")
        k("s_cmp_ge_u32 s16, s11")
        k(f"s_cbranch_scc1 {END}")
        k("s_sub_u32 s15, s15, 1")
        k("s_cbranch_scc0 AMPL")
    k(f"{END}:")
    k("s_endpgm")
    k("K_CODE_END:")
    return k


def build(cfg):
    hdr = open("cdna_kernels/" + NAME + ".s.ref").read().split("; Override")[0]
    out = [hdr.rstrip("\n")]
    out.append("; @launch grid=(256,1,1) block=(256,1,1) lds=163840")
    out.append('.amdgcn_target "amdgcn-amd-amdhsa--gfx950"\n.text')
    k = gen_full(cfg)
    lab = NAME + "_kernel"
    out.append(G.khead(lab) + k.text())
    out.append('.section .rodata,"a"\n.p2align 6')
    out.append(G.kdesc(lab))
    return "\n".join(out) + "\n"


if __name__ == "__main__":
    path = sys.argv[1]
    cfg = {}
    for a in sys.argv[2:]:
        kk, vv = a.split("=")
        cfg[kk] = int(vv)
    txt = build(cfg)
    open(path, "w").write(txt)
    print("bytes", len(txt))
```

```python
from contextlib import contextmanager
from asmlib import K, Ins


class Rec:
    def __init__(self):
        self.items = []
        self._st = [self.items]

    def _add(self, it):
        self._st[-1].append(it)

    def __call__(self, s):
        for sub in s.strip("\n").split("\n"):
            self._add(("i", sub.strip()))

    def c(self, s):
        self._add(("c", s))

    def vmem(self, s, tag=None, cost=None):
        self._add(("vm", s, tag, cost))

    def ds(self, s, tag=None):
        self._add(("ds", s, tag))

    def wait(self, vm=None, lg=None):
        self._add(("w", vm, lg))

    def wait_all(self, vm=True, lg=True):
        self._add(("wa", vm, lg))

    def mark(self, name):
        self._add(("m", name))

    def fn(self, f):
        self._add(("f", f))

    def period(self, p):
        self._add(("p", p))

    def force(self, n):
        self._add(("fl", n))

    @contextmanager
    def atom(self, after=None, cost=None):
        lst = []
        self._st.append(lst)
        try:
            yield
        finally:
            self._st.pop()
            self._add(("a", lst, after, cost))


def flat(items):
    for it in items:
        if it[0] == "a":
            yield from flat(it[1])
        else:
            yield it


def emit(k, it):
    t = it[0]
    if t == "i":
        k(it[1])
    elif t == "c":
        k.c(it[1])
    elif t == "vm":
        k.vmem(it[1], it[2])
    elif t == "ds":
        k.ds(it[1], it[2])
    elif t == "w":
        k.wait(vm=it[1], lg=it[2])
    elif t == "wa":
        k.wait_all(vm=it[1], lg=it[2])
    elif t == "f":
        it[1](k)
    elif t == "a":
        for x in it[1]:
            emit(k, x)
    elif t in ("m", "p", "fl"):
        pass
    else:
        raise ValueError(t)


def aslist(x):
    if x is None:
        return []
    return list(x) if isinstance(x, (list, tuple, set)) else [x]


def tags_of(it):
    return {x[2] for x in flat([it]) if x[0] == "vm"}


class Weaver:
    DSLAT = 96

    def __init__(self, k, x=32, cost=88, lat=650):
        self.k = k
        self.bg = []
        self.marks = set()
        self.x = x
        self.cost = cost
        self.lat = lat
        self.t = 0
        self.mf = 0
        self.ta = 0
        self.dst = {}
        self.vt = {}
        self.log = []
        self.nbg = 0

    def push(self, items):
        for it in items:
            if it[0] != "a":
                it = ("a", [it], None, None)
            self.bg.append(it)

    def _time(self, it):
        for x in flat([it]):
            if x[0] == "i":
                op = x[1].split()[0] if x[1] else ""
                if op.startswith("v_mfma"):
                    self.t = max(self.t, self.mf)
                    self.mf = self.t + (32 if "32x32" in op else 16)
                    self.t += 4
                elif op == "s_barrier":
                    self.t += 16
                elif op.endswith(":"):
                    pass
                else:
                    self.t += 4
            elif x[0] == "ds":
                self.t += 12 if x[1].startswith("ds_write_b128") else 4
                self.dst[x[2]] = self.t + self.DSLAT
            elif x[0] == "vm":
                self.t = max(self.t, self.ta) + 4
                c = x[3] if x[3] is not None else self.cost
                self.ta = self.t - 4 + c
                self.vt[x[2]] = self.t + self.lat + c
            elif x[0] == "w":
                self.t = max(self.t, self.ready(x)) + 4
            elif x[0] == "wa":
                self.t += 4

    def ready(self, x):
        r = 0
        for tg in aslist(x[2]):
            r = max(r, self.dst.get(tg, 0))
        for tg in aslist(x[1]):
            r = max(r, self.vt.get(tg, 0))
        return r

    def avail(self):
        return self.bg and (self.bg[0][2] is None or self.bg[0][2] in self.marks)

    def pop(self):
        it = self.bg.pop(0)
        assert it[2] is None or it[2] in self.marks, f"bg item forced before mark {it[2]}"
        emit(self.k, it)
        self._time(it)
        self.nbg += 1

    def flush_tags(self, tags):
        tags = set(tags)
        last = -1
        for i, it in enumerate(self.bg):
            if tags_of(it) & tags:
                last = i
        for _ in range(last + 1):
            self.pop()

    def flush(self, n=None):
        while self.bg and (n is None or n > 0):
            self.pop()
            if n is not None:
                n -= 1

    def run(self, fg):
        for it in fg:
            if it[0] == "m":
                self.marks.add(it[1])
                self.log.append((it[1], self.t, self.nbg))
                continue
            if it[0] == "p":
                self.x = it[1]
                continue
            if it[0] == "fl":
                n = it[1]
                while n > 0 and self.avail():
                    self.ta = min(self.ta, self.t)
                    self.pop()
                    n -= 1
                self.ta = min(self.ta, self.t)
                self.log.append(("force", self.t, self.nbg))
                continue
            wt = []
            first = next(iter(flat([it])), None)
            for x in flat([it]):
                if x[0] == "w":
                    wt += aslist(x[1])
                if x[0] == "m":
                    self.marks.add(x[1])
            if wt:
                self.flush_tags(wt)
            if first is not None and first[0] == "w":
                while self.avail() and self.ta < self.ready(first):
                    self.pop()
            emit(self.k, it)
            self._time(it)
            while self.avail() and self.ta <= max(self.t, self.mf) + self.x:
                self.pop()


def regsets(items):
    d, u = set(), set()
    for x in flat(items):
        if x[0] in ("i", "vm", "ds"):
            ins = Ins(x[1])
            d |= ins.defs
            u |= ins.uses
    return d, u


def conflicts(name, fg, bg, ok=()):
    fd, fu = regsets(fg)
    bd, bu = regsets(bg)
    c = (bd & (fd | fu)) | (fd & bu)
    okset = set()
    for o in ok:
        if isinstance(o, tuple) and len(o) == 3:
            okset |= {(o[0], i) for i in range(o[1], o[2] + 1)}
        else:
            okset.add(o)
    c -= okset
    if c:
        print(f"[conflict] {name}: ", sorted(c, key=str))
```

```python
import sys
from asmlib import K
import gen as G
from gen import (S, V, A, srd, unpack_lo, unpack_hi, NAME, SQ, SK, SV, SW1, SW2, SOUT, SWS, STMP,
                 P_Q, P_K, P_V, P_SHIFT, P_SSMK, P_SSMD, P_W1, P_B1, P_W2, P_B2, P_GATE, P_OUT, P_WS,
                 COPY_O, COPY_STRIDE, CH_STRIDE, KV_STRIDE, conv_order, G1_ACC, G1_FR,
                 CV_ACC, CV_FA, CV_FB, G2_ACC)
from weave import Rec, Weaver, emit, flat, conflicts
import gen2
from gen2 import KT, Lbl, ts_setup, ts_final

WS_F0, WS_F1, WS_F2 = 0, 32768, 65536
WS_EPOCH = 98304
WS_F0B = 102400
WS_G = 0x20000
WS_KVR = 1 << 20
WS_W2F = 3 << 20
WS_HF = 5 << 20
WS_YT = 13 << 20
WS_TS = 15 << 20
WS_SIZE = 16 << 20

L_W2S = 73728
L_KV = 139264
L_H = 0
L_PART = 98304
L_RED = 0
L_YL = 49152

NONCE = 3
SPIN = 1 << 15
OOB = 0x40000000
SDMA = 22
SC_ST = 300
CFG = {}


def ts(k, idx):
    if not CFG.get("ts"):
        return
    if isinstance(k, Rec):
        k.fn(lambda kk: gen2.ts(kk, CFG, idx))
    else:
        gen2.ts(k, CFG, idx)


def vm(k, s, tag, cost=None):
    if isinstance(k, Rec):
        k.vmem(s, tag, cost)
    else:
        k.vmem(s, tag)


class nullatom:
    def __enter__(self):
        return self

    def __exit__(self, *a):
        return False


def atom(k, after=None, cost=None):
    return k.atom(after, cost) if isinstance(k, Rec) else nullatom()


def publish(k, wsoff, sub=0):
    l = Lbl.new("PUB")
    wsoff -= 128 * sub
    with atom(k):
        k("s_cmp_eq_u32 s4, 0")
        k(f"s_cbranch_scc0 {l}")
        k("s_lshl_b32 s97, s2, 7")
        k(f"s_add_u32 s97, s97, {wsoff}")
        k(f"v_mov_b32 v62, s{NONCE}")
        k("s_mov_b64 exec, 1")
        k(f"buffer_store_dword v62, off, {S(SWS)}, s97 sc1")
        k("s_mov_b64 exec, -1")
        k(f"{l}:")


def poll_issue(k, vreg, voff, wsoff, tag, after=None):
    with atom(k, after):
        k(f"s_mov_b32 s94, {wsoff}")
        vm(k, f"buffer_load_dword v{vreg}, v{voff}, {S(SWS)}, s94 offen sc1", tag, 40)


def poll_check(k, vreg, voff, wsoff, tag, half=None):
    ok, rt = Lbl.new("POK"), Lbl.new("PRT")

    def test():
        k(f"v_cmp_ne_u32 vcc, s{NONCE}, v{vreg}")
        if half is None:
            k(f"s_cbranch_vccz {ok}")
        else:
            k(f"s_cmp_eq_u32 vcc_{half}, 0")
            k(f"s_cbranch_scc1 {ok}")
    with atom(k):
        k.wait(vm=tag)
        k("s_cmp_eq_u32 s4, 0")
        k(f"s_cbranch_scc0 {ok}")
        test()
        k(f"s_mov_b32 s97, {wsoff}")
        k(f"s_mov_b32 s101, {SPIN}")
        k(f"{rt}:")
        k("s_sleep 1")
        k(f"buffer_load_dword v{vreg}, v{voff}, {S(SWS)}, s97 offen sc1")
        k("s_waitcnt vmcnt(0)")
        test()
        k("s_sub_u32 s101, s101, 1")
        k(f"s_cbranch_scc0 {rt}")
        k(f"{ok}:")


def prologue(k, endlabel):
    k("s_cmp_ge_u32 s2, 256")
    k(f"s_cbranch_scc1 {endlabel}")
    k("s_load_dwordx16 s[44:59], s[0:1], 0")
    k("s_load_dwordx8 s[60:67], s[0:1], 64")
    k("s_load_dwordx4 s[68:71], s[0:1], 96")
    k("s_load_dwordx2 s[72:73], s[0:1], 112")
    k("v_lshrrev_b32 v1, 6, v0")
    k("s_nop 0")
    k("v_readfirstlane_b32 s4, v1")


def code_prefetch(k):
    lab = NAME + "_kernel"
    k("s_getpc_b64 s[84:85]")
    k("PF_PC:")
    k(f"s_sub_u32 s84, s84, PF_PC-{lab}")
    k("s_subb_u32 s85, s85, 0")
    k(f"s_mov_b32 s86, K_CODE_END-{lab}")
    k("s_mov_b32 s87, 0x00020000")
    k("s_lshr_b32 s88, s2, 3")
    k("s_lshl_b32 s88, s88, 2")
    k("s_add_u32 s88, s88, s4")
    k(f"s_and_b32 s88, s88, {CFG.get('pfmask', 63)}")
    k("s_lshl_b32 s88, s88, 10")
    k("v_and_b32 v2, 63, v0")
    k("v_lshlrev_b32 v2, 4, v2")
    k("v_add_u32 v2, s88, v2")
    k.vmem("buffer_load_dwordx4 a[252:255], v2, s[84:87], 0 offen", "icpf")


SRDS = [(SQ, P_Q, 2 << 20), (SW1, P_W1, 512 * 1792 * 2), (SK, P_K, 2 << 20), (SV, P_V, 2 << 20),
        (SW2, P_W2, 512 * 1792 * 2), (SOUT, P_OUT, 2 << 20), (SWS, P_WS, WS_SIZE)]


def srd_consts(k):
    for d, p, n in SRDS:
        k(f"s_mov_b32 s{d+2}, {n}")
        k(f"s_mov_b32 s{d+3}, 0x00020000")
    k(f"s_mov_b32 s{STMP+3}, 0x00020000")


def srd_ptrs(k, which):
    for d, p, n in SRDS:
        if d in which:
            k(f"s_mov_b32 s{d}, s{p}")
            k(f"s_mov_b32 s{d+1}, s{p+1}")


def stmp(k, ptr, nbytes):
    k(f"s_mov_b32 s{STMP}, s{ptr}")
    k(f"s_mov_b32 s{STMP+1}, s{ptr+1}")
    k(f"s_mov_b32 s{STMP+2}, {nbytes}")


def nonce(k):
    k(f"s_mul_i32 s{NONCE}, s96, 0x9E3779B1")
    k(f"s_add_u32 s{NONCE}, s{NONCE}, 0x85EBCA6B")


T1_KR, T1_VR, T1_WR = 224, 235, 244
T1_K, T1_W, T1_A, T1_V, T1_O = 128, 150, 30, 128, 144


def t1_addr(k):
    k.c("---- T1 addresses ----")
    k("s_lshr_b32 s84, s2, 5")
    k("s_and_b32 s85, s2, 31")
    k("s_lshl_b32 s85, s85, 6")
    k("s_and_b32 s74, s4, 1")
    k("s_lshr_b32 s75, s4, 1")
    k("s_lshl_b32 s76, s74, 5")
    k("s_add_u32 s76, s76, s85")
    k("s_sub_u32 s77, s76, 3")
    k("s_lshl_b32 s77, s77, 10")
    k("s_lshl_b32 s78, s84, 7")
    k("s_add_u32 s77, s77, s78")
    k("s_lshl_b32 s78, s75, 6")
    k("s_add_u32 s77, s77, s78")
    k("v_and_b32 v15, 15, v0")
    k("v_bfe_u32 v16, v0, 4, 2")
    k("v_lshlrev_b32 v10, 13, v16")
    k("v_lshl_add_u32 v10, v15, 2, v10")
    k("v_add_u32 v10, s77, v10")
    k("v_add_u32 v11, 1024, v10")
    k("v_add_u32 v12, 2048, v10")
    k("v_add_u32 v13, 3072, v10")
    k("v_add_u32 v14, 7168, v10")
    k("v_lshlrev_b32 v17, 4, v15")
    k("s_lshl_b32 s78, s84, 9")
    k("s_lshl_b32 s79, s75, 8")
    k("s_add_u32 s7, s78, s79")
    k("v_sub_u32 v16, 3, v16")
    k("v_lshlrev_b32 v16, 4, v16")
    k("v_lshl_add_u32 v18, v15, 13, v16")
    k("s_lshl_b32 s78, s84, 18")
    k("s_lshl_b32 s79, s75, 17")
    k("s_add_u32 s78, s78, s79")
    k("s_sub_u32 s79, 2016, s76")
    k("s_lshl_b32 s79, s79, 1")
    k("s_add_u32 s78, s78, s79")
    k(f"s_add_u32 s95, s78, {WS_KVR}")


def t1_loads(k, cost=32):
    if CFG.get("x_not1"):
        return
    def ad(j):
        if j < 3:
            return 10 + j, 0
        if j < 7:
            return 13, (j - 3) * 1024
        return 14, (j - 7) * 1024
    with atom(k):
        stmp(k, P_SHIFT, 512 * 4 * 2)
        vm(k, f"buffer_load_dwordx4 {V(T1_WR,4)}, v17, {S(STMP)}, s7 offen", "t1", 64)
    for j in range(11):
        r, o = ad(j)
        vm(k, f"buffer_load_dword v{T1_KR+j}, v{r}, {S(SK)}, 0 offen offset:{o}", "t1", cost)
    for i in range(8):
        r, o = ad(i + 3)
        vm(k, f"buffer_load_dword v{T1_VR+i}, v{r}, {S(SV)}, 0 offen offset:{o}", "t1", cost)


def t1_compute(k):
    k.c("---- T1 compute ----")
    if CFG.get("x_not1"):
        for _ in range(16):
            k("s_nop 0")
        return
    k.wait(vm="t1")
    for m in range(4):
        up = unpack_hi if m & 1 else unpack_lo
        up(k, T1_W + 2 * m, T1_WR + (m >> 1))
        up(k, T1_W + 2 * m + 1, T1_WR + 2 + (m >> 1))
    for j in range(11):
        unpack_lo(k, T1_K + 2 * j, T1_KR + j)
        unpack_hi(k, T1_K + 2 * j + 1, T1_KR + j)
    for m in range(4):
        for i in range(8):
            d = T1_A + 2 * i
            a = T1_K + 2 * (i + 3 - m)
            w = T1_W + 2 * m
            if m == 0:
                k(f"v_pk_mul_f32 {V(d,2)}, {V(a,2)}, {V(w,2)}")
            else:
                k(f"v_pk_fma_f32 {V(d,2)}, {V(a,2)}, {V(w,2)}, {V(d,2)}")
    for i in range(8):
        unpack_lo(k, T1_V + 2 * i, T1_VR + i)
        unpack_hi(k, T1_V + 2 * i + 1, T1_VR + i)
    for i in range(8):
        d = T1_A + 2 * i
        k(f"v_pk_mul_f32 {V(d,2)}, {V(d,2)}, {V(T1_V+2*i,2)}")
    for c in range(2):
        for jj in range(4):
            k(f"v_cvt_pk_bf16_f32 v{T1_O+4*c+jj}, v{T1_A+2*(7-2*jj)+c}, v{T1_A+2*(6-2*jj)+c}")
        with atom(k):
            if c:
                k("s_add_u32 s95, s95, 4096")
            vm(k, f"buffer_store_dwordx4 {V(T1_O+4*c,4)}, v18, {S(SWS)}, s95 offen sc1", "t1s", SC_ST)


W2T = 64


def w2f_addr(k):
    k.c("---- W2F producer addresses ----")
    k("s_lshr_b32 s92, s2, 3")
    k("s_sub_u32 s92, s92, 28")
    k("s_mul_i32 s92, s92, 28")
    k("s_mul_i32 s93, s4, 7")
    k("s_add_u32 s92, s92, s93")
    k("s_and_b32 s93, s2, 7")
    k("s_lshl_b32 s21, s93, 7")
    k("s_add_u32 s21, s21, s92")
    k("s_lshl_b32 s21, s21, 11")
    k(f"s_add_u32 s21, s21, {WS_W2F}")
    k("s_lshl_b32 s93, s93, 7")
    k("s_lshl_b32 s92, s92, 14")
    k("s_add_u32 s93, s93, s92")
    k("v_and_b32 v23, 63, v0")
    k("v_lshrrev_b32 v19, 3, v23")
    k("v_and_b32 v20, 7, v23")
    k("v_bfe_u32 v21, v23, 4, 1")
    k("v_lshlrev_b32 v21, 2, v21")
    k("v_xor_b32 v20, v20, v21")
    k("v_lshlrev_b32 v20, 4, v20")
    k("v_lshl_add_u32 v19, v19, 10, v20")
    k("s_mul_i32 s92, s4, 14336")
    k(f"s_add_u32 s92, s92, {L_W2S}")
    k("v_and_b32 v20, 15, v23")
    k("v_lshrrev_b32 v21, 5, v23")
    k("v_lshrrev_b32 v22, 2, v20")
    k("v_lshl_add_u32 v21, v21, 2, v22")
    k("v_lshlrev_b32 v21, 7, v21")
    k("v_bfe_u32 v22, v23, 4, 1")
    k("v_lshlrev_b32 v22, 1, v22")
    k("v_bfe_u32 v24, v20, 1, 1")
    k("v_add_u32 v22, v22, v24")
    k("v_bfe_u32 v24, v20, 3, 1")
    k("v_lshl_add_u32 v22, v24, 2, v22")
    k("v_lshl_add_u32 v21, v22, 4, v21")
    k("v_and_b32 v24, 1, v20")
    k("v_lshl_add_u32 v20, v24, 3, v21")
    k("v_add_u32 v20, s92, v20")
    k("v_xor_b32 v21, 64, v20")
    k("v_lshlrev_b32 v22, 4, v23")


def w2f_dma(k):
    for j in range(7):
        for h in range(2):
            with atom(k):
                k(f"s_add_u32 m0, s92, {2048*j + 1024*h}")
                k(f"s_add_u32 s{SDMA}, s93, {16384*j + 8192*h}")
                vm(k, f"buffer_load_dwordx4 v19, {S(SW2)}, s{SDMA} offen lds", f"w2d{j}")


def w2f_tr(k):
    for j in range(7):
        k.wait(vm=f"w2d{j}")
        for nb in range(2):
            for hf in range(2):
                k.ds(f"ds_read_b64_tr_b16 {V(W2T + 8*j + 4*nb + 2*hf, 2)}, v{20+nb} offset:{2048*j + 1024*hf}", f"w2t{j}")


def w2f_stores(k):
    for j in range(7):
        for nb in range(2):
            with atom(k):
                if nb == 0:
                    k.wait(lg=f"w2t{j}")
                    if j and j % 2 == 0:
                        k("s_add_u32 s21, s21, 4096")
                vm(k, f"buffer_store_dwordx4 {V(W2T+8*j+4*nb,4)}, v22, {S(SWS)}, s21 offen offset:{1024*nb + 2048*(j&1)} sc1",
                   "w2s", 120)


L_STG = 131072
W2P = 128


def w2p_vaddr(k):
    k("v_and_b32 v135, 63, v0")
    k(f"v_lshrrev_b32 v{W2P}, 3, v135")
    k("v_and_b32 v132, 7, v135")
    k("v_bfe_u32 v133, v135, 4, 1")
    k("v_lshlrev_b32 v133, 2, v133")
    k("v_xor_b32 v132, v132, v133")
    k("v_lshlrev_b32 v132, 4, v132")
    k(f"v_lshl_add_u32 v{W2P}, v{W2P}, 10, v132")
    k("s_lshl_b32 s74, s4, 11")
    k(f"s_add_u32 s74, s74, {L_STG}")
    k("v_and_b32 v132, 15, v135")
    k("v_lshrrev_b32 v133, 5, v135")
    k("v_lshrrev_b32 v134, 2, v132")
    k("v_lshl_add_u32 v133, v133, 2, v134")
    k("v_lshlrev_b32 v133, 7, v133")
    k("v_bfe_u32 v134, v135, 4, 1")
    k("v_lshlrev_b32 v134, 1, v134")
    k("v_bfe_u32 v136, v132, 1, 1")
    k("v_add_u32 v134, v134, v136")
    k("v_bfe_u32 v136, v132, 3, 1")
    k("v_lshl_add_u32 v134, v136, 2, v134")
    k("v_lshl_add_u32 v133, v134, 4, v133")
    k("v_and_b32 v136, 1, v132")
    k("v_lshl_add_u32 v133, v136, 3, v133")
    k(f"v_add_u32 v{W2P+1}, s74, v133")
    k(f"v_xor_b32 v{W2P+2}, 64, v{W2P+1}")
    k(f"v_lshlrev_b32 v{W2P+3}, 4, v135")


def w2p_dma(k):
    k("s_lshr_b32 s70, s2, 3")
    k("s_lshl_b32 s70, s70, 2")
    k("s_add_u32 s70, s70, s4")
    k("s_and_b32 s71, s2, 7")
    k("s_lshl_b32 s21, s71, 7")
    k("s_add_u32 s21, s21, s70")
    k("s_lshl_b32 s21, s21, 11")
    k(f"s_add_u32 s21, s21, {WS_W2F}")
    k("s_lshl_b32 s71, s71, 7")
    k("s_lshl_b32 s70, s70, 14")
    k("s_add_u32 s71, s71, s70")
    k("s_lshl_b32 s70, s4, 11")
    k(f"s_add_u32 s70, s70, {L_STG}")
    for h in range(2):
        k(f"s_add_u32 m0, s70, {1024*h}")
        k(f"s_add_u32 s{SDMA}, s71, {8192*h}")
        k.vmem(f"buffer_load_dwordx4 v{W2P}, {S(SW2)}, s{SDMA} offen lds", "w2d")


def w2p_out(k):
    k.wait(vm="w2d")
    for nb in range(2):
        for hf in range(2):
            k.ds(f"ds_read_b64_tr_b16 {V(W2P + 4 + 4*nb + 2*hf, 2)}, v{W2P+1+nb} offset:{1024*hf}", f"w2t{nb}")
    for nb in range(2):
        k.wait(lg=f"w2t{nb}")
        vm(k, f"buffer_store_dwordx4 {V(W2P+4+4*nb,4)}, v{W2P+3}, {S(SWS)}, s21 offen offset:{1024*nb} sc1", "w2s", 120)


def w2f_cons_setup(k):
    k("s_lshr_b32 s92, s2, 5")
    k("s_lshl_b32 s92, s92, 7")
    k("s_mul_i32 s93, s4, 28")
    k("s_add_u32 s92, s92, s93")
    k("s_lshl_b32 s92, s92, 11")
    k(f"s_add_u32 s92, s92, {WS_W2F}")
    k("s_and_b32 s93, s4, 1")
    k("s_lshl_b32 s93, s93, 10")
    k("s_add_u32 s92, s92, s93")
    kr = CFG.get("krot", 0)
    if kr:
        k("s_lshr_b32 s70, s2, 5")
        if kr == 1:
            k("s_bfe_u32 s93, s2, 0x20003")
            k("s_lshl_b32 s93, s93, 1")
            k("s_add_u32 s70, s70, s93")
        elif kr == 3:
            k("s_bfe_u32 s93, s2, 0x20003")
            k("s_add_u32 s70, s70, s93")
        k("s_cmp_ge_u32 s70, 7")
        k("s_cselect_b32 s93, 7, 0")
        k("s_sub_u32 s70, s70, s93")
        k("s_lshl_b32 s93, s70, 13")
        k("s_add_u32 s92, s92, s93")
    k("s_xor_b32 s93, s92, 1024")


def w2f_cons_loads(k, after=None):
    for ii in range(28):
        for a in range(2):
            with atom(k, after):
                if CFG.get("krot") and ii and ii % 4 == 0:
                    if a == 0:
                        k(f"s_cmp_eq_u32 s70, {7 - ii//4}")
                        k(f"s_cselect_b32 s21, {(-7*8192) & 0xffffffff}, 0")
                        k("s_add_u32 s21, s21, 4096")
                        k("s_add_u32 s92, s92, s21")
                        k("s_add_u32 s93, s93, s21")
                elif ii and ii % 2 == 0:
                    k(f"s_add_u32 s{92+a}, s{92+a}, 4096")
                vm(k, f"buffer_load_dwordx4 {A(8*ii+4*a,4)}, v58, {S(SWS)}, s{92+a} offen offset:{2048*(ii%2)} sc1",
                   f"wf{ii}")


HW = 30


def h_setup(k):
    k("s_lshl_b32 s74, s2, 13")
    for ch in range(2):
        d = 84 + 4 * ch
        k(f"s_add_u32 s{d}, s{P_SSMK}, s74")
        k(f"s_addc_u32 s{d+1}, s{P_SSMK+1}, 0")
        k(f"s_mov_b32 s{d+2}, 4096")
        k(f"s_mov_b32 s{d+3}, 0x00020000")
        if ch == 0:
            k("s_add_u32 s74, s74, 4096")
    k("v_lshlrev_b32 v46, 4, v0")
    k("v_add_u32 v47, -16, v46")


def h_loads(k, after=None):
    for ch in range(2):
        with atom(k, after):
            vm(k, f"buffer_load_dwordx4 {V(HW+8*ch,4)}, v47, {S(84+4*ch)}, 0 offen", "hw")
        with atom(k, after):
            vm(k, f"buffer_load_dwordx4 {V(HW+4+8*ch,4)}, v46, {S(84+4*ch)}, 0 offen", "hw")


def kv_zero(k):
    for i in range(4):
        k(f"v_mov_b32 v{48+i}, 0")
    k(f"v_add_u32 v52, {L_KV + 4096}, v46")
    with atom(k):
        k("v_cmp_gt_u32 vcc, 32, v0")
        k("s_and_saveexec_b64 s[74:75], vcc")
        for ch in range(2):
            k.ds(f"ds_write_b128 v52, {V(48,4)} offset:{ch*KV_STRIDE}", "kvz")
        k("s_mov_b64 exec, s[74:75]")


def build_copies(k):
    k.wait(vm="hw")
    k(f"v_add_u32 v52, {L_H + 16}, v46")
    k(f"v_add_u32 v53, {L_H + 16 + CH_STRIDE}, v46")
    for ch in range(2):
        w = HW + 8 * ch
        t = (128, 224)[ch]
        R, P, Q = t, t + 6, t + 12
        src = {0: w, 4: w + 2, 2: R, 6: R + 2, 1: P, 5: P + 2, 3: Q, 7: Q + 2}

        def wr(s):
            k.ds(f"ds_write_b128 v{52+ch}, {V(src[s],4)} offset:{s*COPY_STRIDE + 16*COPY_O[s]}", "hwr")
        wr(0)
        wr(4)
        for j in range(6):
            k(f"v_mov_b32 v{R+j}, v{w+j+1}")
        wr(2)
        wr(6)
        for j in range(6):
            k(f"v_alignbyte_b32 v{P+j}, v{w+j+1}, v{w+j}, 2")
        wr(1)
        wr(5)
        for j in range(6):
            k(f"v_alignbyte_b32 v{Q+j}, v{w+j+2}, v{w+j+1}, 2")
        wr(3)
        wr(7)
    with atom(k):
        k("s_mov_b32 s76, 255")
        k("v_cmp_eq_u32 vcc, s76, v0")
        k("s_and_saveexec_b64 s[74:75], vcc")
        for ch in range(2):
            k.ds(f"ds_write_b128 v{52+ch}, {V(HW+8*ch+4,4)} offset:{16 + 16*COPY_O[0]}", "hwr")
        k("s_mov_b64 exec, s[74:75]")
    with atom(k):
        lut = sum(o << (4 * i) for i, o in enumerate(COPY_O))
        k(f"s_mov_b32 s76, {lut}")
        k("v_lshlrev_b32 v54, 2, v0")
        k("v_bfe_u32 v54, s76, v54, 4")
        k("v_lshlrev_b32 v54, 4, v54")
        k(f"v_mul_u32_u24 v55, {COPY_STRIDE}, v0")
        k("v_add_u32 v54, v54, v55")
        k(f"v_add_u32 v54, {L_H}, v54")
        k("v_cmp_gt_u32 vcc, 8, v0")
        k("s_and_saveexec_b64 s[74:75], vcc")
        k.ds(f"ds_write_b128 v54, {V(48,4)}", "hwr")
        k.ds(f"ds_write_b128 v54, {V(48,4)} offset:{CH_STRIDE}", "hwr")
        k("s_mov_b64 exec, s[74:75]")


KVR = 244


def kv_loads(k, after=None):
    with atom(k, after):
        k("s_lshl_b32 s94, s2, 13")
        k(f"s_add_u32 s94, s94, {WS_KVR}")
        vm(k, f"buffer_load_dwordx4 {V(KVR,4)}, v46, {S(SWS)}, s94 offen sc1", "kv")
    with atom(k, after):
        k("s_lshl_b32 s94, s2, 13")
        k(f"s_add_u32 s94, s94, {WS_KVR + 4096}")
        vm(k, f"buffer_load_dwordx4 {V(KVR+4,4)}, v46, {S(SWS)}, s94 offen sc1", "kv")


def kv_write(k):
    k(f"v_add_u32 v54, {L_KV}, v46")
    k.wait(vm="kv")
    for ch in range(2):
        k.ds(f"ds_write_b128 v54, {V(KVR+4*ch,4)} offset:{ch*KV_STRIDE}", "kvw")


def flag_addrs(k):
    k("v_and_b32 v58, 63, v0")
    k("s_lshr_b32 s75, s2, 5")
    k("s_lshl_b32 s74, s75, 5")
    k("v_and_b32 v59, 31, v58")
    k("v_add_u32 v61, s74, v59")
    if CFG.get("dist"):
        k("v_min_u32 v60, 27, v59")
    else:
        k("v_and_b32 v60, 3, v58")
    k("v_lshlrev_b32 v60, 3, v60")
    k(f"s_add_u32 s75, s75, {(WS_F0B - WS_F0) // 128}")
    k("v_add_u32 v60, s75, v60")
    k("v_cmp_gt_u32 vcc, 32, v58")
    k("v_cndmask_b32 v56, v60, v61, vcc")
    k("v_lshlrev_b32 v56, 7, v56")
    k(f"v_add_u32 v61, {(WS_F2 - WS_F1) // 128}, v61")
    k("v_add_u32 v59, 224, v59")
    k("v_cndmask_b32 v61, v59, v61, vcc")
    k("v_lshlrev_b32 v61, 7, v61")
    k("s_and_b32 s74, s2, 7")
    k("s_lshl_b32 s74, s74, 2")
    k("s_lshr_b32 s75, s2, 3")
    k("s_and_b32 s75, s75, 3")
    k("s_add_u32 s74, s74, s75")
    k("s_lshr_b32 s75, s74, 1")
    if CFG.get("xm"):
        k("s_lshr_b32 s76, s75, 1")
        k("s_and_b32 s77, s75, 1")
        k("s_lshl_b32 s77, s77, 3")
        k("s_add_u32 s76, s76, s77")
        k("v_lshlrev_b32 v60, 4, v58")
    else:
        k("s_lshr_b32 s76, s75, 2")
        k("s_lshl_b32 s76, s76, 1")
        k("s_and_b32 s77, s75, 3")
        k("s_lshl_b32 s77, s77, 3")
        k("s_add_u32 s76, s76, s77")
        k("v_cmp_lt_u32 vcc, 6, v58")
        k("v_cndmask_b32 v59, 0, 1, vcc")
        k("v_mul_u32_u24 v60, 7, v59")
        k("v_sub_u32 v60, v58, v60")
        k("v_lshlrev_b32 v60, 5, v60")
        k("v_add_u32 v60, v60, v59")
    k("v_cmp_gt_u32 vcc, 14, v58")
    k("v_cndmask_b32 v60, 0, v60, vcc")
    k("v_add_u32 v60, s76, v60")
    k("v_lshlrev_b32 v57, 7, v60")
    k("s_cmp_eq_u32 s4, 0")
    k(f"s_cselect_b32 s74, 0, {OOB}")
    k("v_or_b32 v56, s74, v56")
    k("v_or_b32 v57, s74, v57")
    k("v_or_b32 v61, s74, v61")
    k("v_lshlrev_b32 v58, 4, v58")


BA0, BB1 = 248, 20


def rot_setup(k):
    m = CFG.get("rot", 0)
    if not m:
        return
    k("s_lshr_b32 s20, s2, 3")
    if m == 1:
        k("s_and_b32 s20, s20, 7")
    elif m == 2:
        k("s_and_b32 s20, s20, 3")
        k("s_lshl_b32 s20, s20, 1")
    elif m == 3:
        k("s_lshr_b32 s20, s20, 2")
    elif m == 4:
        k("s_lshr_b32 s20, s20, 2")
        k("s_and_b32 s20, s20, 1")
        k("s_lshl_b32 s20, s20, 2")
    elif m == 5:
        k("s_and_b32 s20, s20, 1")
        k("s_lshl_b32 s20, s20, 2")
    elif m == 6:
        k("s_add_u32 s20, s5, s6")
        k("s_and_b32 s20, s20, 7")
    elif m == 7:
        k("s_lshl_b32 s20, s5, 1")
        k("s_add_u32 s20, s20, s6")
        k("s_and_b32 s20, s20, 7")
    elif m == 8:
        k("s_lshr_b32 s20, s5, 2")
        k("s_lshl_b32 s20, s20, 1")
        k("s_add_u32 s20, s20, s5")
        k("s_add_u32 s20, s20, s6")
        k("s_and_b32 s20, s20, 7")


def g1_dma(k, slab, buf, after=None):
    rot = CFG.get("rot", 0)
    for i in range(4):
        with atom(k, after):
            if rot and i == 0:
                k("s_lshl_b32 s56, s20, 7")
                k("s_add_u32 s56, s56, s80")
                k("s_mul_i32 s57, s20, 229376")
                k("s_add_u32 s57, s57, s81")
                k("s_add_u32 s20, s20, 1")
                k("s_and_b32 s20, s20, 7")
            k(f"s_add_u32 m0, s82, {buf + 1024*i}")
            if rot:
                k(f"s_add_u32 s{SDMA}, s56, {8192*i}")
            else:
                k(f"s_add_u32 s{SDMA}, s80, {8192*i + 128*slab}")
            vm(k, f"buffer_load_dwordx4 v{1 + (i&1)}, {S(SQ)}, s{SDMA} offen lds", f"slab{slab}")
    for i in range(4):
        with atom(k, after):
            k(f"s_add_u32 m0, s82, {buf + 16384 + 1024*i}")
            if rot:
                k(f"s_add_u32 s{SDMA}, s57, {4*i*3584}")
            else:
                k(f"s_add_u32 s{SDMA}, s81, {(64*slab + 4*i)*3584}")
            vm(k, f"buffer_load_dwordx4 v3, {S(SW1)}, s{SDMA} offen lds", f"slab{slab}")


def bias_addr(k):
    k("v_lshlrev_b32 v19, 1, v10")
    k("v_cmp_gt_u32 vcc, 32, v10")
    k(f"v_mov_b32 v20, {OOB}")
    k("v_cndmask_b32 v19, v20, v19, vcc")
    k("v_mov_b32 v20, 0")
    k("v_mov_b32 v21, 0x3f80")
    k(f"v_cndmask_b32 v{BB1}, v20, v21, vcc")
    for r in (BB1 + 1, BB1 + 2, BB1 + 3, BA0 + 1, BA0 + 2, BA0 + 3, BA0 + 5, BA0 + 6, BA0 + 7):
        k(f"v_mov_b32 v{r}, 0")
    k("s_lshl_b32 s76, s6, 8")
    k("s_and_b32 s77, s4, 1")
    k("s_lshl_b32 s77, s77, 7")
    k("s_add_u32 s83, s76, s77")


def bias_loads(k):
    with atom(k):
        stmp(k, P_B1, 1792 * 2)
        vm(k, f"buffer_load_ushort v{BA0}, v19, {S(STMP)}, s83 offen", "bias", 32)
    with atom(k):
        vm(k, f"buffer_load_ushort v{BA0+4}, v19, {S(STMP)}, s83 offen offset:64", "bias", 32)


def bias_mfma(k):
    k.wait(vm="bias")
    for fb in range(2):
        for mb in range(2):
            d = G1_ACC + 32 * fb + 16 * mb
            k(f"v_mfma_f32_32x32x16_bf16 {V(d,16)}, {V(BA0+4*fb,4)}, {V(BB1,4)}, {V(d,16)}")


def sprinkle(k, items, per):
    q = list(items)

    def hook(n=per):
        for _ in range(n):
            if q:
                k._add(q.pop(0))
    hook.q = q
    return hook


def g1_main(k, bufs, pre, post, extra):
    nb = len(bufs)
    k.c("---- G1 main ----")
    k.wait(vm="slab0")
    k("s_barrier")
    ts(k, 6)
    G.g1_reads(k, bufs[0], 0, "r0_0")
    G.g1_reads(k, bufs[0], 1, "r0_1")
    hooks = []

    def mf(ks, first):
        fr = G1_FR + 16 * ks
        for fb in range(2):
            for mb in range(2):
                d = G1_ACC + 32 * fb + 16 * mb
                c = "0" if first else V(d, 16)
                k(f"v_mfma_f32_32x32x16_bf16 {V(d,16)}, {V(fr + 4*fb, 4)}, {V(fr + 8 + 4*mb, 4)}, {c}")
                for h in hooks:
                    if h.q:
                        h()
                        break

    for s in range(8):
        buf = bufs[s % nb]
        if ("a", s) in extra:
            hooks.append(sprinkle(k, *extra[("a", s)]))
        G.g1_reads(k, buf, 2, f"r{s}_2")
        k.wait(lg=f"r{s}_0")
        mf(0, s == 0)
        G.g1_reads(k, buf, 3, f"r{s}_3")
        k.wait(lg=f"r{s}_1")
        mf(1, False)
        if s < 7:
            if s in pre:
                pre[s]()
            k.wait(vm=f"slab{s+1}", lg=f"r{s}_3")
            k("s_barrier")
            k.mark(f"bar{s}")
            ts(k, 7 + s)
            if s in post:
                post[s]()
            if ("b", s) in extra:
                hooks.append(sprinkle(k, *extra[("b", s)]))
            nbuf = bufs[(s + 1) % nb]
            G.g1_reads(k, nbuf, 0, f"r{s+1}_0")
            mf(2, False)
            G.g1_reads(k, nbuf, 1, f"r{s+1}_1")
            mf(3, False)
        else:
            k.wait(lg=f"r{s}_2")
            mf(2, False)
            k.wait(lg=f"r{s}_3")
            mf(3, False)
    for h in hooks:
        h(10000)


def g1_epilogue(k):
    k.c("---- G1 epilogue ----")
    k("s_lshl_b32 s74, s5, 2")
    k("s_lshr_b32 s75, s4, 1")
    k("s_lshl_b32 s75, s75, 1")
    k("s_add_u32 s74, s74, s75")
    k("s_mul_i32 s74, s74, 112")
    k("s_lshl_b32 s75, s6, 3")
    k("s_add_u32 s74, s74, s75")
    k("s_and_b32 s75, s4, 1")
    k("s_lshl_b32 s75, s75, 2")
    k("s_add_u32 s74, s74, s75")
    k("s_lshl_b32 s74, s74, 10")
    k(f"s_add_u32 s78, s74, {WS_HF}")
    k(f"s_add_u32 s79, s78, {112*1024}")
    tmp = 160
    ti = 0
    for mb in range(2):
        for fb in range(2):
            acc = G1_ACC + 32 * fb + 16 * mb
            for half in range(2):
                t = tmp + 4 * ti
                ti += 1
                for r in range(8 * half, 8 * half + 8):
                    k(f"v_max_f32 v{acc+r}, 0, v{acc+r}")
                for r in range(8 * half, 8 * half + 8, 2):
                    k(f"v_pk_mul_f32 {V(acc+r,2)}, {V(acc+r,2)}, {V(acc+r,2)}")
                for i in range(4):
                    r = acc + 8 * half + 2 * i
                    k(f"v_cvt_pk_bf16_f32 v{t+i}, v{r}, v{r+1}")
                vm(k, f"buffer_store_dwordx4 {V(t,4)}, v58, {S(SWS)}, s{78+mb} offen offset:{(2*fb+half)*1024} sc1", "hs",
                   CFG.get("hscost", 200))


CA, CB = 59, 60


def conv_addr(k):
    k.c("---- conv addresses ----")
    k("v_and_b32 v10, 63, v0")
    k("v_and_b32 v11, 15, v10")
    k("v_lshrrev_b32 v12, 4, v10")
    k("v_add_u32 v13, 1, v11")
    k("v_and_b32 v14, 7, v13")
    k("v_lshrrev_b32 v15, 3, v13")
    lut = sum(o << (4 * i) for i, o in enumerate(COPY_O))
    k(f"s_mov_b32 s74, {lut}")
    k("v_lshlrev_b32 v16, 2, v14")
    k("v_bfe_u32 v16, s74, v16, 4")
    k("v_add_u32 v16, v16, v15")
    k("v_add_u32 v16, v16, v12")
    k("v_lshlrev_b32 v16, 4, v16")
    k(f"v_mul_u32_u24 v17, {COPY_STRIDE}, v14")
    k("v_add_u32 v16, v16, v17")
    k("s_lshr_b32 s75, s4, 1")
    k(f"s_mul_i32 s76, s75, {CH_STRIDE}")
    k("s_and_b32 s77, s4, 1")
    k("s_lshl_b32 s77, s77, 8")
    k("s_add_u32 s76, s76, s77")
    k(f"s_add_u32 s76, s76, {L_H}")
    k(f"v_add_u32 v{CA}, s76, v16")
    k(f"s_mul_i32 s76, s75, {KV_STRIDE}")
    k("s_add_u32 s76, s76, s77")
    k(f"s_add_u32 s76, s76, {L_KV + 480}")
    k("v_lshlrev_b32 v16, 5, v11")
    k("v_lshlrev_b32 v17, 4, v12")
    k("v_sub_u32 v16, v17, v16")
    k(f"v_add_u32 v{CB}, s76, v16")


def conv_main(k, hook):
    k.c("---- conv main ----")
    order = conv_order()
    for i in range(8):
        k.ds(f"ds_read_b128 {V(CV_FA + 4*i, 4)}, v{CA} offset:{512*i}", f"ca0_{i}")
        k.ds(f"ds_read_b128 {V(CV_FB + 4*i, 4)}, v{CB} offset:{512*(7-i)}", f"cb0_{i}")
    touched = set()
    for c0i in range(4):
        st = c0i & 1
        nxt = []
        if c0i < 3:
            for i in range(8):
                nxt.append((f"ds_read_b128 {V(CV_FA + 32*(st^1) + 4*i, 4)}, v{CA} offset:{512*i + 64*(c0i+1)}", f"ca{c0i+1}_{i}"))
                nxt.append((f"ds_read_b128 {V(CV_FB + 32*(st^1) + 4*i, 4)}, v{CB} offset:{512*(7-i) + 64*(c0i+1)}", f"cb{c0i+1}_{i}"))
        waited = set()
        for n, (d, c1) in enumerate(order):
            tags = [t for t in (f"ca{c0i}_{c1}", f"cb{c0i}_{d}") if t not in waited]
            if tags:
                k.wait(lg=tags)
                waited.update(tags)
            j = d + c1
            acc = V(CV_ACC + 4 * j, 4)
            c = acc if j in touched else "0"
            touched.add(j)
            k(f"v_mfma_f32_16x16x32_bf16 {acc}, {V(CV_FA + 32*st + 4*c1, 4)}, {V(CV_FB + 32*st + 4*d, 4)}, {c}")
            if n >= 18 and nxt:
                t, tg = nxt.pop(0)
                k.ds(t, tg)
            hook(c0i * 36 + n)


def conv_epilogue(k, prebar):
    k.c("---- conv epilogue ----")
    k("v_and_b32 v10, 63, v0")
    k("v_and_b32 v11, 15, v10")
    k("v_lshrrev_b32 v12, 4, v10")
    k("v_lshlrev_b32 v11, 6, v11")
    k("v_lshl_add_u32 v11, v12, 4, v11")
    k("s_lshl_b32 s74, s4, 13")
    k(f"s_add_u32 s74, s74, {L_PART}")
    k("v_add_u32 v11, s74, v11")
    k("s_lshr_b32 s75, s4, 1")
    for j in range(8):
        k.ds(f"ds_write_b128 v11, {V(CV_ACC + 4*j, 4)} offset:{1024*j}", "pw")
    k("v_and_b32 v1, 127, v0")
    k("v_lshlrev_b32 v2, 5, v1")
    k("s_lshl_b32 s74, s75, 14")
    k(f"s_add_u32 s74, s74, {L_PART}")
    k("v_add_u32 v2, s74, v2")
    k(f"s_mul_i32 s74, s75, {KV_STRIDE}")
    k(f"s_add_u32 s74, s74, {L_KV + 4080 - 2048}")
    k("v_lshlrev_b32 v3, 4, v1")
    k("v_sub_u32 v3, s74, v3")
    k("s_lshl_b32 s79, s75, 4")
    k("s_lshr_b32 s77, s23, s79")
    k("s_lshl_b32 s77, s77, 16")
    k.wait(lg="pw")
    prebar()
    k("s_barrier")
    k.mark("cvbar")
    for seg in range(2):
        b = 8 + 24 * seg
        for p in range(2):
            for hh in range(2):
                k.ds(f"ds_read_b128 {V(b + 8*p + 4*hh, 4)}, v2 offset:{8192*p + 4096*seg + 16*hh}", f"pr{seg}")
        k.ds(f"ds_read_b128 {V(b + 16, 4)}, v3 offset:{2048*(1-seg)}", f"pr{seg}")
    if CFG.get("hfb1"):
        k.force(CFG.get("hfb1"))
    k("s_lshl_b32 s74, s2, 13")
    k("s_lshl_b32 s79, s75, 12")
    k("s_add_u32 s74, s74, s79")
    k(f"s_add_u32 s74, s74, {WS_YT}")
    k("v_lshlrev_b32 v4, 4, v1")
    for seg in range(2):
        b = 8 + 24 * seg
        k.wait(lg=f"pr{seg}")
        for i in range(0, 8, 2):
            k(f"v_pk_add_f32 {V(b+i,2)}, {V(b+i,2)}, {V(b+8+i,2)}")
        for i in range(8):
            e = 7 - i
            (unpack_hi if e & 1 else unpack_lo)(k, 6 + (i & 1), b + 16 + (e >> 1))
            k(f"v_fmac_f32 v{b+i}, s77, v{6 + (i & 1)}")
        for i in range(4):
            k(f"v_cvt_pk_bf16_f32 v{b+20+i}, v{b+2*i}, v{b+2*i+1}")
    k.mark("ysready")
    for seg in range(2):
        b = 8 + 24 * seg
        vm(k, f"buffer_store_dwordx4 {V(b+20,4)}, v4, {S(SWS)}, s74 offen offset:{2048*seg} sc1", "ys", SC_ST)
    if CFG.get("hfb2"):
        k.force(CFG.get("hfb2"))


FB = 128


def g2_setup(k):
    G.g2_ids(k)
    k("s_lshr_b32 s74, s4, 1")
    k("s_lshl_b32 s75, s5, 1")
    k("s_add_u32 s80, s75, s74")
    k("s_xor_b32 s81, s80, 1")
    k("s_mul_i32 s78, s4, 28")
    for b in range(2):
        k(f"s_mul_i32 s{80+b}, s{80+b}, 112")
        k(f"s_add_u32 s{80+b}, s{80+b}, s78")
        k(f"s_lshl_b32 s{80+b}, s{80+b}, 10")
        k(f"s_add_u32 s{80+b}, s{80+b}, {WS_HF}")
    if CFG.get("krot"):
        k("s_lshl_b32 s78, s70, 12")
        k("s_add_u32 s80, s80, s78")
        k("s_add_u32 s81, s81, s78")


def hf_loads(k, depth, first_after):
    for i in range(28):
        for b in range(2):
            after = first_after if i < depth else f"g2_{i - depth}"
            with atom(k, after):
                if b == 0 and i and i % 4 == 0:
                    if CFG.get("krot"):
                        k(f"s_cmp_eq_u32 s70, {7 - i//4}")
                        k(f"s_cselect_b32 s21, {(-7*4096) & 0xffffffff}, 0")
                        k("s_add_u32 s21, s21, 4096")
                        k("s_add_u32 s80, s80, s21")
                        k("s_add_u32 s81, s81, s21")
                    else:
                        k("s_add_u32 s80, s80, 4096")
                        k("s_add_u32 s81, s81, 4096")
                r = FB + 8 * (i % depth) + 4 * b
                vm(k, f"buffer_load_dwordx4 {V(r,4)}, v58, {S(SWS)}, s{80+b} offen offset:{1024*(i%4)} sc1", f"hf{i}",
                   CFG.get("hfcost"))


def g2_main(k, depth, hooks):
    k.c("---- G2 main ----")
    for i in range(28):
        k.wait(vm=[f"hf{i}", f"wf{i}"])
        for b in range(2):
            for a in range(2):
                d = G2_ACC + 16 * (a + 2 * b)
                c = V(d, 16) if i else "0"
                k(f"v_mfma_f32_32x32x16_bf16 {V(d,16)}, {A(8*i + 4*a, 4)}, {V(FB + 8*(i%depth) + 4*b, 4)}, {c}")
        k.mark(f"g2_{i}")
        if i in hooks:
            hooks[i]()


EQ, EB2, EY, EG = 8, 16, 24, 32


def g2_ep_addr(k):
    k("v_and_b32 v40, 63, v0")
    k("v_and_b32 v41, 31, v40")
    k("v_lshrrev_b32 v42, 5, v40")
    k("s_and_b32 s74, s4, 1")
    k("s_lshr_b32 s75, s4, 1")
    k("s_lshl_b32 s76, s5, 6")
    k("s_lshl_b32 s77, s75, 5")
    k("s_add_u32 s76, s76, s77")
    k("s_lshl_b32 s77, s6, 6")
    k("s_lshl_b32 s78, s74, 5")
    k("s_add_u32 s77, s77, s78")
    k("v_lshlrev_b32 v46, 10, v41")
    k("v_lshl_add_u32 v46, v42, 3, v46")
    k("s_lshl_b32 s82, s76, 10")
    k("s_lshl_b32 s83, s77, 1")
    k("s_add_u32 s82, s82, s83")
    k("v_lshlrev_b32 v47, 3, v42")
    k("v_lshrrev_b32 v43, 2, v40")
    k("v_and_b32 v44, 3, v40")
    k("v_lshlrev_b32 v45, 12, v43")
    k("v_lshl_add_u32 v45, v44, 4, v45")
    k("s_lshl_b32 s84, s77, 12")
    k("s_lshl_b32 s85, s76, 1")
    k("s_add_u32 s84, s84, s85")
    k(f"s_add_u32 s84, s84, {WS_YT}")
    k(f"s_add_u32 s85, s84, {16*4096}")
    k("v_lshlrev_b32 v48, 2, v41")
    k("s_lshl_b32 s86, s76, 2")
    k(f"s_add_u32 s86, s86, {WS_G}")


def g2_ep_loads_plain(k, after=None):
    for g in range(4):
        with atom(k, after):
            vm(k, f"buffer_load_dwordx2 {V(EQ+2*g,2)}, v46, {S(SQ)}, s82 offen offset:{16*g}", "q", 200)
    for g in range(4):
        with atom(k, after):
            if g == 0:
                stmp(k, P_B2, 1024)
            vm(k, f"buffer_load_dwordx2 {V(EB2+2*g,2)}, v47, {S(STMP)}, s83 offen offset:{16*g}", "b2", 64)


def g2_ep_loads_sc1(k, after=None):
    with atom(k, after):
        vm(k, f"buffer_load_dword v{EG}, v48, {S(SWS)}, s86 offen sc1", "g", 32)
    with atom(k, after):
        vm(k, f"buffer_load_dwordx4 {V(EY,4)}, v45, {S(SWS)}, s84 offen sc1", "yt", 81)
    with atom(k, after):
        vm(k, f"buffer_load_dwordx4 {V(EY+4,4)}, v45, {S(SWS)}, s85 offen sc1", "yt", 81)


def g2_epilogue(k):
    k.c("---- G2 epilogue ----")
    k("v_lshlrev_b32 v49, 4, v40")
    for sg in range(1, 4):
        k(f"s_xor_b32 s80, s4, {sg}")
        k("s_mul_i32 s80, s80, 12288")
        k(f"v_add_u32 v50, s80, v49")
        for g in range(4):
            k.ds(f"ds_write_b128 v50, {V(G2_ACC + 16*sg + 4*g, 4)} offset:{L_RED + (sg-1)*4096 + 1024*g}", "rw")
    k("s_lshl_b32 s80, s4, 11")
    k(f"s_add_u32 s80, s80, {L_YL}")
    k("v_add_u32 v51, s80, v49")
    k.wait(vm="yt")
    k.ds(f"ds_write_b128 v51, {V(EY,4)}", "yw")
    k.ds(f"ds_write_b128 v51, {V(EY+4,4)} offset:1024", "yw")
    k.wait(lg=["rw", "yw"])
    k("s_barrier")
    ts(k, 25)
    k("s_mul_i32 s80, s4, 12288")
    k("v_add_u32 v50, s80, v49")
    for sg in range(3):
        for g in range(4):
            k.ds(f"ds_read_b128 {V(160 + 16*sg + 4*g, 4)}, v50 offset:{L_RED + sg*4096 + 1024*g}", f"rr{sg}")
    k("v_and_b32 v52, 15, v40")
    k("v_lshrrev_b32 v53, 2, v52")
    k("v_lshl_add_u32 v53, v42, 2, v53")
    k("v_lshlrev_b32 v53, 6, v53")
    k("v_bfe_u32 v54, v40, 4, 1")
    k("v_lshl_add_u32 v53, v54, 5, v53")
    k("v_and_b32 v54, 3, v52")
    k("v_lshl_add_u32 v53, v54, 3, v53")
    k("s_lshl_b32 s80, s4, 11")
    k(f"s_add_u32 s80, s80, {L_YL}")
    k("v_add_u32 v53, s80, v53")
    for g in range(4):
        k.ds(f"ds_read_b64_tr_b16 {V(208+2*g,2)}, v53 offset:{512*g}", "yr")
    acc = G2_ACC
    for sg in range(3):
        k.wait(lg=f"rr{sg}")
        for r in range(0, 16, 2):
            k(f"v_pk_add_f32 {V(acc+r,2)}, {V(acc+r,2)}, {V(160+16*sg+r,2)}")
    k.wait(vm=["q", "b2", "g"], lg="yr")
    X = 224
    slot = {0: 0, 2: 2, 1: 4, 3: 6}
    for g in range(4):
        for i in range(4):
            up = unpack_hi if i & 1 else unpack_lo
            up(k, 128 + i, EB2 + 2 * g + (i >> 1))
            up(k, 132 + i, EQ + 2 * g + (i >> 1))
            up(k, 136 + i, 208 + 2 * g + (i >> 1))
        for i in range(4):
            r = acc + 4 * g + i
            k(f"v_add_f32 v{r}, v{r}, v{128+i}")
        for i in range(4):
            r = acc + 4 * g + i
            k(f"v_fma_f32 v{132+i}, v{132+i}, v{136+i}, -v{r}")
        for i in range(4):
            r = acc + 4 * g + i
            k(f"v_fmac_f32 v{r}, v{EG}, v{132+i}")
        for d in range(2):
            r = acc + 4 * g + 2 * d
            k(f"v_cvt_pk_bf16_f32 v{X + slot[g] + d}, v{r}, v{r+1}")
    for base in (0, 4):
        k(f"v_permlane32_swap_b32 v{X+base}, v{X+base+2}")
        k(f"v_permlane32_swap_b32 v{X+base+1}, v{X+base+3}")
    k("v_lshlrev_b32 v46, 10, v41")
    k("v_lshl_add_u32 v46, v42, 5, v46")
    osc = ["", " sc1", " nt", " sc0 sc1", " sc1 nt"][CFG.get("osc", 0)]
    vm(k, f"buffer_store_dwordx4 {V(X,4)}, v46, {S(SOUT)}, s82 offen{osc}", "os")
    vm(k, f"buffer_store_dwordx4 {V(X+4,4)}, v46, {S(SOUT)}, s82 offen offset:16{osc}", "os")


def gate_loads(k):
    k("s_and_b32 s5, s2, 7")
    k("s_lshl_b32 s5, s5, 2")
    k("s_lshr_b32 s6, s2, 3")
    k("s_sub_u32 s6, s6, 28")
    k("s_add_u32 s5, s5, s6")
    k("s_lshl_b32 s5, s5, 6")
    k("s_lshl_b32 s6, s4, 4")
    k("s_add_u32 s5, s5, s6")
    k("s_lshl_b32 s6, s5, 10")
    stmp(k, P_GATE, 1024)
    k.vmem(f"buffer_load_dwordx4 {V(4,4)}, v22, {S(STMP)}, 0 offen", "gw")
    for i in range(16):
        if i and i % 4 == 0:
            k("s_add_u32 s6, s6, 4096")
        k.vmem(f"buffer_load_dwordx4 {A(4*i,4)}, v22, {S(SQ)}, s6 offen offset:{1024*(i%4)}", f"gx{i}")


def gate_compute(k):
    k.c("---- gate compute ----")
    k.wait(vm="gw")
    for c in range(8):
        (unpack_hi if c & 1 else unpack_lo)(k, 8 + c, 4 + (c >> 1))
    R = 96
    for i in range(16):
        k.wait(vm=f"gx{i}")
        s = 64 + 4 * (i & 1)
        for c in range(4):
            k(f"v_accvgpr_read_b32 v{s+c}, a{4*i+c}")
        u = 72 + 8 * (i & 1)
        for c in range(8):
            (unpack_hi if c & 1 else unpack_lo)(k, u + c, s + (c >> 1))
        t = 88 + 2 * (i & 1)
        for cp in range(0, 8, 2):
            if cp == 0:
                k(f"v_pk_mul_f32 {V(t,2)}, {V(u,2)}, {V(8,2)}")
            else:
                k(f"v_pk_fma_f32 {V(t,2)}, {V(u+cp,2)}, {V(8+cp,2)}, {V(t,2)}")
        k(f"v_add_f32 v{R+i}, v{t}, v{t+1}")
    for mod in ["row_shr:1", "row_shr:2", "row_shr:4", "row_shr:8", "row_bcast:15 row_mask:0xa",
                "row_bcast:31 row_mask:0xc"]:
        for i in range(16):
            m = mod if "row_mask" in mod else mod + " row_mask:0xf"
            k(f"v_add_f32_dpp v{R+i}, v{R+i}, v{R+i} {m} bank_mask:0xf")
    k("v_mov_b32 v2, 0")
    for g in range(0, 16, 4):
        for i in range(g, g + 4):
            k(f"v_readlane_b32 s{76+i-g}, v{R+i}, 63")
        for i in range(g, g + 4):
            k(f"v_writelane_b32 v2, s{76+i-g}, {i}")
    k("v_mul_f32 v2, 0xbfb8aa3b, v2")
    k("v_exp_f32 v2, v2")
    k("v_add_f32 v2, 1.0, v2")
    k("v_rcp_f32 v2, v2")
    k("v_and_b32 v1, 63, v0")
    k("v_lshlrev_b32 v3, 2, v1")
    k("s_lshl_b32 s6, s5, 2")
    k(f"s_add_u32 s6, s6, {WS_G}")
    k("v_cmp_gt_u32 vcc, 16, v1")
    k("s_and_saveexec_b64 s[74:75], vcc")
    k.vmem(f"buffer_store_dword v2, v3, {S(SWS)}, s6 offen sc1", "gs")
    k("s_mov_b64 exec, s[74:75]")


def rec(f, *a, **kw):
    r = Rec()
    f(r, *a, **kw)
    return r.items


def late_scalars(k):
    k(f"s_load_dword s96, s[{P_WS}:{P_WS+1}], {WS_EPOCH}")
    k("s_lshl_b32 s74, s2, 2")
    k(f"s_load_dword s23, s[{P_SSMD}:{P_SSMD+1}], s74")


def gen_full(cfg):
    global CFG
    CFG = cfg
    if cfg.get("x_nords"):
        G.g1_reads = lambda *a, **kw: None
    g = cfg.get
    k = KT()
    END = "K_END"
    bufs = [0, 32768, 65536, 98304]
    prologue(k, END)
    if g("icpf"):
        code_prefetch(k)
    if g("ts"):
        k("v_mov_b32 v63, 0")
    ts(k, 0)
    k("s_lshr_b32 s74, s2, 3")
    k("s_cmp_ge_u32 s74, 28")
    k("s_cbranch_scc1 GATE")
    G.g1_setup(k, cfg)
    bias_addr(k)
    rot_setup(k)
    t1_addr(k)
    DIST = g("dist", 0)
    if DIST:
        w2p_vaddr(k)
    srd_consts(k)
    k("s_waitcnt lgkmcnt(0)")
    srd_ptrs(k, (SQ, SW1))
    ts_setup(k, cfg) if False else None
    if g("x_dma"):
        srd_ptrs(k, (SK, SV, SWS, SW2, SOUT))
        ts_setup(k, cfg)
        npass = g("x_dma")
        for p in range(npass):
            if p:
                k("s_barrier")
            ts(k, 1 + 10 * p)
            infl = g("x_infl", 8)

            def iss(sl):
                r = Rec()
                g1_dma(r, sl, bufs[sl % 4])
                for it in r.items:
                    emit(k, it)
            for sl in range(infl):
                iss(sl)
            for sl in range(8):
                k.wait(vm=f"slab{sl}")
                ts(k, 2 + sl + 10 * p)
                if sl + infl < 8:
                    iss(sl + infl)
        k.wait_all()
        ts_final(k, cfg, 27)
        k("s_waitcnt vmcnt(0)")
        k("s_endpgm")
        k("GATE:")
        srd_consts(k)
        k("s_waitcnt lgkmcnt(0)")
        srd_ptrs(k, (SK, SV, SWS, SW2, SOUT))
        ts_setup(k, cfg)
        ts_final(k, cfg, 27)
        k("s_waitcnt vmcnt(0)")
        k(f"{END}:")
        k("s_endpgm")
        return k
    T1POS = g("t1pos", 1)
    W = Weaver(k, g("p_g1", 32))
    W.t = W.ta = 8 * 88
    r = Rec()
    g1_dma(r, 0, bufs[0])
    for it in r.items:
        emit(k, it)
    srd_ptrs(k, (SK, SV, SWS, SW2, SOUT))
    if DIST:
        w2p_dma(k)
    late_scalars(k)
    ts_setup(k, cfg)
    ts(k, 1)
    bg = Rec()
    if DIST == 1:
        g1_dma(bg, 1, bufs[1])
        g1_dma(bg, 2, bufs[2])
        r = Rec()
        t1_loads(r)
        first = r.items[0]
        bg.items.append(("a", first[1], "w2st", first[3]))
        bg.items.extend(r.items[1:])
        bias_loads(bg)
        g1_dma(bg, 3, bufs[3])
    elif DIST == 3:
        g1_dma(bg, 1, bufs[1])
        bias_loads(bg)
        g1_dma(bg, 2, bufs[2])
        r = Rec()
        t1_loads(r)
        first = r.items[0]
        bg.items.append(("a", first[1], "w2st", first[3]))
        bg.items.extend(r.items[1:])
        g1_dma(bg, 3, bufs[3])
    else:
        if T1POS == 0:
            t1_loads(bg)
        g1_dma(bg, 1, bufs[1])
        if T1POS == 1:
            t1_loads(bg)
        bias_loads(bg)
        g1_dma(bg, 2, bufs[2])
        if T1POS == 2:
            t1_loads(bg)
        g1_dma(bg, 3, bufs[3])
        if T1POS == 3:
            t1_loads(bg)
    for s in range(4, 8):
        g1_dma(bg, s, bufs[s - 4], after=f"bar{s-4}")
    h_loads(bg, after="t1done")
    w2f_cons_loads(bg, after="f0bok")
    W.push(bg.items)
    W.flush(g("ndirect", 0))
    fg = Rec()
    h_setup(fg)
    kv_zero(fg)
    flag_addrs(fg)
    fg("s_waitcnt lgkmcnt(0)")
    nonce(fg)
    w2f_cons_setup(fg)
    ts(fg, 5)
    t1c = rec(t1_compute)
    t1c.append(("m", "t1done"))
    P0 = g("pub0", 4)
    T1SEG = g("t1seg", 1)
    BSEG = g("bseg", 1)
    POLL0B = g("poll0b", 3)
    CHK0B = g("chk0b", 4)
    POLL0A = g("poll0a", 5)
    CHK0A = g("chk0a", 6)
    TAILPOS = g("tailpos", 1)
    pre = {}
    post = {}

    def addh(d, s, f):
        old = d.get(s)
        d[s] = (lambda: (old(), f())) if old else f
    addh(pre, P0, lambda: fg.wait(vm="t1s"))
    addh(post, P0, lambda: publish(fg, WS_F0))
    addh(pre, CHK0B, lambda: (poll_check(fg, 62, 56, WS_F0, "p0b", "hi"), ts(fg, 2)))
    addh(post, CHK0B, lambda: (fg.mark("f0bok"), fg.period(g("p_wf")) if g("p_wf") is not None else None))
    if not g("pollbm", 0):
        addh(post, POLL0B, lambda: poll_issue(fg, 62, 56, WS_F0, "p0b"))
    if DIST:
        PUBB = g("pubb", 1)
        addh(pre, PUBB, lambda: fg.wait(vm="w2s"))
        addh(post, PUBB, lambda: publish(fg, WS_F0B))
    if CHK0A < 7:
        addh(pre, CHK0A, lambda: (poll_check(fg, 62, 56, WS_F0, "p0a", "lo"), ts(fg, 14)))
        addh(post, CHK0A, lambda: kv_loads(fg))
    if POLL0A < 7:
        addh(post, POLL0A, lambda: poll_issue(fg, 62, 56, WS_F0, "p0a"))
    if T1SEG < 0:
        for it in t1c:
            fg._add(it)
    tail = rec(build_copies) + rec(conv_addr)
    extra = {("a", BSEG): (rec(bias_mfma), 5)}
    if TAILPOS == 0:
        extra[("b", 6)] = (tail, g("tailper", 4))
    if T1SEG >= 0:
        extra[("b", T1SEG)] = (t1c, g("t1per", 5))
    if DIST:
        w2o = rec(w2p_out) + [("m", "w2st")]
        if g("w2pre", 0):
            for it in w2o:
                fg._add(it)
        else:
            extra[("a", 0)] = (w2o, g("w2per", 2))
    if g("pollbm", 0):
        nop = [("c", "poll slot")] * g("pollbm", 0)
        extra[("a", CHK0B)] = (nop + rec(poll_issue, 62, 56, WS_F0, "p0b"), 1)
    g1_main(fg, bufs, pre, post, extra)
    ts(fg, 15)
    if CHK0A == 7:
        if POLL0A == 7:
            poll_issue(fg, 62, 56, WS_F0, "p0a")
        poll_check(fg, 62, 56, WS_F0, "p0a", "lo")
        fg("s_barrier")
        ts(fg, 14)
        kv_loads(fg)
    fg.period(g("p_ep", 32))
    g1_epilogue(fg)
    if CHK0A == 8:
        if POLL0A >= 7:
            poll_issue(fg, 62, 56, WS_F0, "p0a")
        poll_check(fg, 62, 56, WS_F0, "p0a", "lo")
        fg("s_barrier")
        ts(fg, 14)
        kv_loads(fg)
    ts(fg, 4)
    if TAILPOS == 1:
        for it in tail:
            fg._add(it)
    kv_write(fg)
    ts(fg, 16)
    conflicts("g1", fg.items, bg.items, ok=[("s", "m0"), ("v", 62, 62), ("v", 224, 255), ("v", 30, 47), ("s", 92, 93),
                                            ("v", 56, 58), ("s", 84, 91)])
    W.run(fg.items)
    nleft = len(W.bg)
    print("G1 path marks:", W.log, "bg left at JOIN:", nleft)
    for it in W.bg:
        assert all(x[2].startswith("wf") for x in flat([it]) if x[0] == "vm"), it
    if k.pend is not None:
        k("s_waitcnt lgkmcnt(0)")
    vm_join = list(k.vm)
    k("s_branch JOIN")
    k("GATE:")
    k.vm, k.lg = [], []
    if g("ts"):
        k.pend = 0
    if DIST:
        k("v_and_b32 v22, 63, v0")
        k("v_lshlrev_b32 v22, 4, v22")
    else:
        w2f_addr(k)
    t1_addr(k)
    srd_consts(k)
    k("s_waitcnt lgkmcnt(0)")
    srd_ptrs(k, (SW2, SK, SV, SQ, SWS, SOUT))
    if not DIST:
        for it in rec(w2f_dma):
            emit(k, it)
    late_scalars(k)
    ts_setup(k, cfg)
    ts(k, 1)
    GORD = g("gord", 0)
    for it in rec(t1_loads):
        emit(k, it)
    h_setup(k)
    if DIST:
        if g("gearly", 1):
            gate_loads(k)
        for it in rec(kv_zero):
            emit(k, it)
        flag_addrs(k)
        k("s_waitcnt lgkmcnt(0)")
        k.lg = []
        nonce(k)
        for it in rec(t1_compute):
            emit(k, it)
        ts(k, 4)
        if g("gearly", 1):
            for it in rec(h_loads):
                emit(k, it)
        k.wait(vm="t1s")
        k("s_barrier")
        publish(k, WS_F0)
        ts(k, 5)
        if not g("gearly", 1):
            gate_loads(k)
            for it in rec(h_loads):
                emit(k, it)
        gate_compute(k)
        for it in rec(build_copies) + rec(conv_addr):
            emit(k, it)
        poll_issue(k, 62, 56, WS_F0, "p0b")
        poll_check(k, 62, 56, WS_F0, "p0b", "hi")
        k("s_barrier")
        ts(k, 2)
        w2f_cons_setup(k)
        allw = rec(w2f_cons_loads)
        for it in allw[:len(allw) - nleft]:
            emit(k, it)
        poll_issue(k, 62, 56, WS_F0, "p0")
        poll_check(k, 62, 56, WS_F0, "p0", "lo")
        k("s_barrier")
        ts(k, 14)
        for it in rec(kv_loads):
            emit(k, it)
    elif GORD == 0:
        for it in rec(w2f_tr):
            emit(k, it)
        ts(k, 3)
        Wg = Weaver(k, g("p_gw", 32))
        Wg.push(rec(w2f_stores))
        if g("gw2first", 1):
            Wg.flush()
            ts(k, 2)
            for it in rec(t1_compute):
                emit(k, it)
        else:
            Wg.run(rec(t1_compute)[:-12])
            Wg.flush()
            for it in rec(t1_compute)[-12:]:
                emit(k, it)
        ts(k, 4)
        for it in rec(kv_zero):
            emit(k, it)
        flag_addrs(k)
        k("s_waitcnt lgkmcnt(0)")
        k.lg = []
        nonce(k)
        k.wait(vm="w2s")
        k("s_barrier")
        publish(k, WS_F0B, 224)
        ts(k, 6)
        if not g("gswap", 0):
            gate_loads(k)
        k.wait(vm="t1s")
        k("s_barrier")
        publish(k, WS_F0)
        ts(k, 5)
        if g("gswap", 0):
            gate_loads(k)
        for it in rec(h_loads):
            emit(k, it)
        gate_compute(k)
        for it in rec(build_copies) + rec(conv_addr):
            emit(k, it)
        poll_issue(k, 62, 56, WS_F0, "p0")
        poll_check(k, 62, 56, WS_F0, "p0")
        k("s_barrier")
        ts(k, 14)
        for it in rec(kv_loads):
            emit(k, it)
        w2f_cons_setup(k)
        allw = rec(w2f_cons_loads)
        for it in allw[:len(allw) - nleft]:
            emit(k, it)
    else:
        for it in rec(kv_zero):
            emit(k, it)
        flag_addrs(k)
        k("s_waitcnt lgkmcnt(0)")
        k.lg = []
        nonce(k)
        for it in rec(t1_compute):
            emit(k, it)
        ts(k, 4)
        for it in rec(w2f_tr):
            emit(k, it)
        ts(k, 3)
        ws_items = rec(w2f_stores)
        nfirst = g("gsplit", 0)
        for it in ws_items[:nfirst]:
            emit(k, it)
        k.wait(vm="t1s")
        k("s_barrier")
        publish(k, WS_F0)
        ts(k, 5)
        for it in ws_items[nfirst:]:
            emit(k, it)
        ts(k, 2)
        for it in rec(h_loads):
            emit(k, it)
        k.wait(vm="w2s")
        k("s_barrier")
        publish(k, WS_F0B, 224)
        ts(k, 6)
        gate_loads(k)
        for it in rec(build_copies) + rec(conv_addr):
            emit(k, it)
        poll_issue(k, 62, 56, WS_F0, "p0b")
        gate_compute(k)
        poll_check(k, 62, 56, WS_F0, "p0b", "hi")
        k("s_barrier")
        w2f_cons_setup(k)
        allw = rec(w2f_cons_loads)
        for it in allw[:len(allw) - nleft]:
            emit(k, it)
        poll_issue(k, 62, 56, WS_F0, "p0")
        poll_check(k, 62, 56, WS_F0, "p0", "lo")
        k("s_barrier")
        ts(k, 14)
        for it in rec(kv_loads):
            emit(k, it)
    kv_write(k)
    ts(k, 16)
    k.wait_all(vm=True, lg=True)
    k("JOIN:")
    k.vm = vm_join
    k.lg = ["x"]
    k.wait_all(vm=False, lg=True)
    PUB1 = g("pub1", 54)
    if PUB1 < 0:
        k.wait(vm="hs")
    k("s_barrier")
    ts(k, 17)
    if PUB1 < 0:
        publish(k, WS_F1)
    POLL1 = g("poll1", 100)
    CHK1 = g("chk1", -1)
    depth = 16
    fg = Rec()
    bg = Rec()
    g2_setup(fg)
    fg.period(g("p_cv", 32))

    def hook(n):
        if n == PUB1:
            fg.wait(vm="hs")
            fg("s_barrier")
            ts(fg, 18)
            publish(fg, WS_F1)
        if n == POLL1:
            poll_issue(fg, 62, 57, WS_F1, "p1")
        if n == CHK1:
            poll_check(fg, 62, 57, WS_F1, "p1")
            fg("s_barrier")
            fg.mark("f1ok")
            ts(fg, 20)
    conv_main(fg, hook)
    ts(fg, 19)

    def prebar():
        if CHK1 < 0:
            poll_check(fg, 62, 57, WS_F1, "p1")
            ts(fg, 20)
    fg.period(g("p_ce", 32))
    conv_epilogue(fg, prebar)
    ts(fg, 21)
    hf_loads(bg, depth, "cvbar" if CHK1 < 0 else "f1ok")
    epl = Rec()
    g2_ep_loads_plain(epl, after="epaddr")
    eps = Rec()
    g2_ep_loads_sc1(eps, after="f2ok")
    PUB2 = g("pub2", 4)
    POLL2 = g("poll2", 16)
    CHK2 = g("chk2", 22)
    EPQ = g("epq", 8)
    hfi = bg.items
    pos = min(2 * (EPQ + depth), len(hfi))
    bgall = hfi[:pos] + epl.items + hfi[pos:] + eps.items
    fg.period(g("p_g2", 32))

    def h_pub2():
        fg.wait(vm="ys")
        fg("s_barrier")
        ts(fg, 22)
        publish(fg, WS_F2)

    def h_chk2():
        poll_check(fg, 62, 61, WS_F1, "p2")
        fg("s_barrier")
        fg.mark("f2ok")
        ts(fg, 23)
    hooks = {}
    addh(hooks, 0, lambda: (g2_ep_addr(fg), fg.mark("epaddr")))
    addh(hooks, PUB2, h_pub2)
    addh(hooks, POLL2, lambda: poll_issue(fg, 62, 61, WS_F1, "p2"))
    addh(hooks, CHK2, h_chk2)
    g2_main(fg, depth, hooks)
    ts(fg, 24)
    g2_epilogue(fg)
    ts(fg, 26)
    conflicts("g2", fg.items, W.bg + bgall,
              ok=[("a", 0, 223), ("v", 128, 255), ("v", 62, 62), ("s", 80, 86), ("v", 8, 32), ("v", 45, 48), ("s", 94, 94)])
    W.push(bgall)
    W.log = []
    W.run(fg.items)
    print("JOIN path marks:", W.log, "bg left:", len(W.bg))
    assert not W.bg
    k("s_or_b32 s74, s2, s4")
    k("s_cmp_eq_u32 s74, 0")
    k("s_cbranch_scc0 NOEP")
    k("s_add_u32 s96, s96, 1")
    k("v_mov_b32 v62, s96")
    k(f"s_mov_b32 s97, {WS_EPOCH}")
    k("s_mov_b64 exec, 1")
    k(f"buffer_store_dword v62, off, {S(SWS)}, s97")
    k("s_mov_b64 exec, -1")
    k("NOEP:")
    k.wait_all()
    ts_final(k, cfg, 27)
    k("s_waitcnt vmcnt(0)")
    if g("ampn"):
        k(f"s_cmp_eq_u32 s2, {g('ampw', 0)}")
        k(f"s_cbranch_scc0 {END}")
        k("s_cmp_eq_u32 s4, 0")
        k(f"s_cbranch_scc0 {END}")
        k(f"v_readlane_b32 s10, v63, {g('ampa', 0)}")
        k(f"v_readlane_b32 s11, v63, {g('ampb', 27)}")
        k("s_sub_u32 s11, s11, s10")
        k("s_min_u32 s11, s11, 4000")
        k(f"s_mul_i32 s11, s11, {g('ampn')}")
        k("s_memrealtime s[12:13]")
        k("s_waitcnt lgkmcnt(0)")
        k("s_mov_b32 s14, s12")
        k("s_mov_b32 s15, 0x40000")
        k("AMPL:")
        k("s_memrealtime s[12:13]")
        k("s_waitcnt lgkmcnt(0)")
        k("s_sub_u32 s16, s12, s14")
        k("s_cmp_ge_u32 s16, s11")
        k(f"s_cbranch_scc1 {END}")
        k("s_sub_u32 s15, s15, 1")
        k("s_cbranch_scc0 AMPL")
    k(f"{END}:")
    k("s_endpgm")
    k("K_CODE_END:")
    return k


def build(cfg):
    hdr = open("cdna_kernels/" + NAME + ".s.ref").read().split("; Override")[0]
    out = [hdr.rstrip("\n")]
    out.append("; @launch grid=(256,1,1) block=(256,1,1) lds=163840")
    out.append('.amdgcn_target "amdgcn-amd-amdhsa--gfx950"\n.text')
    k = gen_full(cfg)
    lab = NAME + "_kernel"
    out.append(G.khead(lab) + k.text())
    out.append('.section .rodata,"a"\n.p2align 6')
    out.append(G.kdesc(lab))
    return "\n".join(out) + "\n"


if __name__ == "__main__":
    path = sys.argv[1]
    cfg = {}
    for a in sys.argv[2:]:
        kk, vv = a.split("=")
        cfg[kk] = int(vv)
    txt = build(cfg)
    open(path, "w").write(txt)
    print("bytes", len(txt))
```

```python
import sys
from asmlib import K
import gen as G
from gen import (S, V, A, srd, unpack_lo, unpack_hi, NAME, SQ, SK, SV, SW1, SW2, SOUT, SWS, STMP,
                 P_Q, P_K, P_V, P_SHIFT, P_SSMK, P_SSMD, P_W1, P_B1, P_W2, P_B2, P_GATE, P_OUT, P_WS,
                 COPY_O, COPY_STRIDE, CH_STRIDE, KV_STRIDE, conv_order, G1_ACC, G1_FR,
                 CV_ACC, CV_FA, CV_FB, G2_ACC)
from weave import Rec, Weaver, emit, flat, conflicts
import gen2
from gen2 import KT, Lbl, ts_setup, ts_final

WS_F0, WS_F1, WS_F2 = 0, 32768, 65536
WS_EPOCH = 98304
WS_F0B = 102400
WS_G = 0x20000
WS_KVR = 1 << 20
WS_W2F = 3 << 20
WS_HF = 5 << 20
WS_YT = 13 << 20
WS_TS = 15 << 20
WS_SIZE = 32 << 20
WS_YT2 = 24 << 20

L_W2S = 73728
L_KV = 139264
L_H = 0
L_PART = 98304
L_RED = 0
L_YL = 49152

NONCE = 3
SPIN = 1 << 15
OOB = 0x40000000
SDMA = 22
SC_ST = 300
CFG = {}


def ts(k, idx):
    if not CFG.get("ts"):
        return
    if isinstance(k, Rec):
        k.fn(lambda kk: gen2.ts(kk, CFG, idx))
    else:
        gen2.ts(k, CFG, idx)


def vm(k, s, tag, cost=None):
    if isinstance(k, Rec):
        k.vmem(s, tag, cost)
    else:
        k.vmem(s, tag)


class nullatom:
    def __enter__(self):
        return self

    def __exit__(self, *a):
        return False


def atom(k, after=None, cost=None):
    return k.atom(after, cost) if isinstance(k, Rec) else nullatom()


def publish(k, wsoff, sub=0):
    l = Lbl.new("PUB")
    wsoff -= 128 * sub
    with atom(k):
        k("s_cmp_eq_u32 s4, 0")
        k(f"s_cbranch_scc0 {l}")
        k("s_lshl_b32 s97, s2, 7")
        k(f"s_add_u32 s97, s97, {wsoff}")
        k(f"v_mov_b32 v62, s{NONCE}")
        k("s_mov_b64 exec, 1")
        k(f"buffer_store_dword v62, off, {S(SWS)}, s97 sc1")
        k("s_mov_b64 exec, -1")
        k(f"{l}:")


def poll_issue(k, vreg, voff, wsoff, tag, after=None):
    with atom(k, after):
        k(f"s_mov_b32 s94, {wsoff}")
        vm(k, f"buffer_load_dword v{vreg}, v{voff}, {S(SWS)}, s94 offen sc1", tag, 40)


def poll_check(k, vreg, voff, wsoff, tag, half=None):
    ok, rt = Lbl.new("POK"), Lbl.new("PRT")

    def test():
        k(f"v_cmp_ne_u32 vcc, s{NONCE}, v{vreg}")
        if half is None:
            k(f"s_cbranch_vccz {ok}")
        else:
            k(f"s_cmp_eq_u32 vcc_{half}, 0")
            k(f"s_cbranch_scc1 {ok}")
    with atom(k):
        k.wait(vm=tag)
        k("s_cmp_eq_u32 s4, 0")
        k(f"s_cbranch_scc0 {ok}")
        test()
        k(f"s_mov_b32 s97, {wsoff}")
        k(f"s_mov_b32 s101, {SPIN}")
        k(f"{rt}:")
        k("s_sleep 1")
        k(f"buffer_load_dword v{vreg}, v{voff}, {S(SWS)}, s97 offen sc1")
        k("s_waitcnt vmcnt(0)")
        test()
        k("s_sub_u32 s101, s101, 1")
        k(f"s_cbranch_scc0 {rt}")
        k(f"{ok}:")


def prologue(k, endlabel):
    k("s_cmp_ge_u32 s2, 256")
    k(f"s_cbranch_scc1 {endlabel}")
    k("s_load_dwordx16 s[44:59], s[0:1], 0")
    k("s_load_dwordx8 s[60:67], s[0:1], 64")
    k("s_load_dwordx4 s[68:71], s[0:1], 96")
    k("s_load_dwordx2 s[72:73], s[0:1], 112")
    k("v_lshrrev_b32 v1, 6, v0")
    k("s_nop 0")
    k("v_readfirstlane_b32 s4, v1")


def code_prefetch(k):
    lab = NAME + "_kernel"
    k("s_getpc_b64 s[84:85]")
    k("PF_PC:")
    k(f"s_sub_u32 s84, s84, PF_PC-{lab}")
    k("s_subb_u32 s85, s85, 0")
    k(f"s_mov_b32 s86, K_CODE_END-{lab}")
    k("s_mov_b32 s87, 0x00020000")
    k("s_lshr_b32 s88, s2, 3")
    k("s_lshl_b32 s88, s88, 2")
    k("s_add_u32 s88, s88, s4")
    k(f"s_and_b32 s88, s88, {CFG.get('pfmask', 63)}")
    k("s_lshl_b32 s88, s88, 10")
    k("v_and_b32 v2, 63, v0")
    k("v_lshlrev_b32 v2, 4, v2")
    k("v_add_u32 v2, s88, v2")
    k.vmem("buffer_load_dwordx4 a[252:255], v2, s[84:87], 0 offen", "icpf")


SRDS = [(SQ, P_Q, 2 << 20), (SW1, P_W1, 512 * 1792 * 2), (SK, P_K, 2 << 20), (SV, P_V, 2 << 20),
        (SW2, P_W2, 512 * 1792 * 2), (SOUT, P_OUT, 2 << 20), (SWS, P_WS, WS_SIZE)]


def srd_consts(k):
    for d, p, n in SRDS:
        k(f"s_mov_b32 s{d+2}, {n}")
        k(f"s_mov_b32 s{d+3}, 0x00020000")
    k(f"s_mov_b32 s{STMP+3}, 0x00020000")


def srd_ptrs(k, which):
    for d, p, n in SRDS:
        if d in which:
            k(f"s_mov_b32 s{d}, s{p}")
            k(f"s_mov_b32 s{d+1}, s{p+1}")


def stmp(k, ptr, nbytes):
    k(f"s_mov_b32 s{STMP}, s{ptr}")
    k(f"s_mov_b32 s{STMP+1}, s{ptr+1}")
    k(f"s_mov_b32 s{STMP+2}, {nbytes}")


def nonce(k):
    k(f"s_mul_i32 s{NONCE}, s96, 0x9E3779B1")
    k(f"s_add_u32 s{NONCE}, s{NONCE}, 0x85EBCA6B")


T1_KR, T1_VR, T1_WR = 224, 235, 244
T1_K, T1_W, T1_A, T1_V, T1_O = 128, 150, 30, 128, 144


def t1_addr(k):
    k.c("---- T1 addresses ----")
    k("s_lshr_b32 s84, s2, 5")
    k("s_and_b32 s85, s2, 31")
    k("s_lshl_b32 s85, s85, 6")
    k("s_and_b32 s74, s4, 1")
    k("s_lshr_b32 s75, s4, 1")
    k("s_lshl_b32 s76, s74, 5")
    k("s_add_u32 s76, s76, s85")
    k("s_sub_u32 s77, s76, 3")
    k("s_lshl_b32 s77, s77, 10")
    k("s_lshl_b32 s78, s84, 7")
    k("s_add_u32 s77, s77, s78")
    k("s_lshl_b32 s78, s75, 6")
    k("s_add_u32 s77, s77, s78")
    k("v_and_b32 v15, 15, v0")
    k("v_bfe_u32 v16, v0, 4, 2")
    k("v_lshlrev_b32 v10, 13, v16")
    k("v_lshl_add_u32 v10, v15, 2, v10")
    k("v_add_u32 v10, s77, v10")
    k("v_add_u32 v11, 1024, v10")
    k("v_add_u32 v12, 2048, v10")
    k("v_add_u32 v13, 3072, v10")
    k("v_add_u32 v14, 7168, v10")
    k("v_lshlrev_b32 v17, 4, v15")
    k("s_lshl_b32 s78, s84, 9")
    k("s_lshl_b32 s79, s75, 8")
    k("s_add_u32 s7, s78, s79")
    k("v_sub_u32 v16, 3, v16")
    k("v_lshlrev_b32 v16, 4, v16")
    k("v_lshl_add_u32 v18, v15, 13, v16")
    k("s_lshl_b32 s78, s84, 18")
    k("s_lshl_b32 s79, s75, 17")
    k("s_add_u32 s78, s78, s79")
    k("s_sub_u32 s79, 2016, s76")
    k("s_lshl_b32 s79, s79, 1")
    k("s_add_u32 s78, s78, s79")
    k(f"s_add_u32 s95, s78, {WS_KVR}")


def t1_loads(k, cost=32):
    if CFG.get("x_not1"):
        return
    def ad(j):
        if j < 3:
            return 10 + j, 0
        if j < 7:
            return 13, (j - 3) * 1024
        return 14, (j - 7) * 1024
    with atom(k):
        stmp(k, P_SHIFT, 512 * 4 * 2)
        vm(k, f"buffer_load_dwordx4 {V(T1_WR,4)}, v17, {S(STMP)}, s7 offen", "t1", 64)
    for j in range(11):
        r, o = ad(j)
        vm(k, f"buffer_load_dword v{T1_KR+j}, v{r}, {S(SK)}, 0 offen offset:{o}", "t1", cost)
    for i in range(8):
        r, o = ad(i + 3)
        vm(k, f"buffer_load_dword v{T1_VR+i}, v{r}, {S(SV)}, 0 offen offset:{o}", "t1", cost)


def t1_compute(k):
    k.c("---- T1 compute ----")
    if CFG.get("x_not1"):
        for _ in range(16):
            k("s_nop 0")
        return
    k.wait(vm="t1")
    for m in range(4):
        up = unpack_hi if m & 1 else unpack_lo
        up(k, T1_W + 2 * m, T1_WR + (m >> 1))
        up(k, T1_W + 2 * m + 1, T1_WR + 2 + (m >> 1))
    for j in range(11):
        unpack_lo(k, T1_K + 2 * j, T1_KR + j)
        unpack_hi(k, T1_K + 2 * j + 1, T1_KR + j)
    for m in range(4):
        for i in range(8):
            d = T1_A + 2 * i
            a = T1_K + 2 * (i + 3 - m)
            w = T1_W + 2 * m
            if m == 0:
                k(f"v_pk_mul_f32 {V(d,2)}, {V(a,2)}, {V(w,2)}")
            else:
                k(f"v_pk_fma_f32 {V(d,2)}, {V(a,2)}, {V(w,2)}, {V(d,2)}")
    for i in range(8):
        unpack_lo(k, T1_V + 2 * i, T1_VR + i)
        unpack_hi(k, T1_V + 2 * i + 1, T1_VR + i)
    for i in range(8):
        d = T1_A + 2 * i
        k(f"v_pk_mul_f32 {V(d,2)}, {V(d,2)}, {V(T1_V+2*i,2)}")
    for c in range(2):
        for jj in range(4):
            k(f"v_cvt_pk_bf16_f32 v{T1_O+4*c+jj}, v{T1_A+2*(7-2*jj)+c}, v{T1_A+2*(6-2*jj)+c}")
        with atom(k):
            if c:
                k("s_add_u32 s95, s95, 4096")
            vm(k, f"buffer_store_dwordx4 {V(T1_O+4*c,4)}, v18, {S(SWS)}, s95 offen sc1", "t1s", SC_ST)


W2T = 64


def w2f_addr(k):
    k.c("---- W2F producer addresses ----")
    k("s_lshr_b32 s92, s2, 3")
    k("s_sub_u32 s92, s92, 28")
    k("s_mul_i32 s92, s92, 28")
    k("s_mul_i32 s93, s4, 7")
    k("s_add_u32 s92, s92, s93")
    k("s_and_b32 s93, s2, 7")
    k("s_lshl_b32 s21, s93, 7")
    k("s_add_u32 s21, s21, s92")
    k("s_lshl_b32 s21, s21, 11")
    k(f"s_add_u32 s21, s21, {WS_W2F}")
    k("s_lshl_b32 s93, s93, 7")
    k("s_lshl_b32 s92, s92, 14")
    k("s_add_u32 s93, s93, s92")
    k("v_and_b32 v23, 63, v0")
    k("v_lshrrev_b32 v19, 3, v23")
    k("v_and_b32 v20, 7, v23")
    k("v_bfe_u32 v21, v23, 4, 1")
    k("v_lshlrev_b32 v21, 2, v21")
    k("v_xor_b32 v20, v20, v21")
    k("v_lshlrev_b32 v20, 4, v20")
    k("v_lshl_add_u32 v19, v19, 10, v20")
    k("s_mul_i32 s92, s4, 14336")
    k(f"s_add_u32 s92, s92, {L_W2S}")
    k("v_and_b32 v20, 15, v23")
    k("v_lshrrev_b32 v21, 5, v23")
    k("v_lshrrev_b32 v22, 2, v20")
    k("v_lshl_add_u32 v21, v21, 2, v22")
    k("v_lshlrev_b32 v21, 7, v21")
    k("v_bfe_u32 v22, v23, 4, 1")
    k("v_lshlrev_b32 v22, 1, v22")
    k("v_bfe_u32 v24, v20, 1, 1")
    k("v_add_u32 v22, v22, v24")
    k("v_bfe_u32 v24, v20, 3, 1")
    k("v_lshl_add_u32 v22, v24, 2, v22")
    k("v_lshl_add_u32 v21, v22, 4, v21")
    k("v_and_b32 v24, 1, v20")
    k("v_lshl_add_u32 v20, v24, 3, v21")
    k("v_add_u32 v20, s92, v20")
    k("v_xor_b32 v21, 64, v20")
    k("v_lshlrev_b32 v22, 4, v23")


def w2f_dma(k):
    for j in range(7):
        for h in range(2):
            with atom(k):
                k(f"s_add_u32 m0, s92, {2048*j + 1024*h}")
                k(f"s_add_u32 s{SDMA}, s93, {16384*j + 8192*h}")
                vm(k, f"buffer_load_dwordx4 v19, {S(SW2)}, s{SDMA} offen lds", f"w2d{j}")


def w2f_tr(k):
    for j in range(7):
        k.wait(vm=f"w2d{j}")
        for nb in range(2):
            for hf in range(2):
                k.ds(f"ds_read_b64_tr_b16 {V(W2T + 8*j + 4*nb + 2*hf, 2)}, v{20+nb} offset:{2048*j + 1024*hf}", f"w2t{j}")


def w2f_stores(k):
    for j in range(7):
        for nb in range(2):
            with atom(k):
                if nb == 0:
                    k.wait(lg=f"w2t{j}")
                    if j and j % 2 == 0:
                        k("s_add_u32 s21, s21, 4096")
                vm(k, f"buffer_store_dwordx4 {V(W2T+8*j+4*nb,4)}, v22, {S(SWS)}, s21 offen offset:{1024*nb + 2048*(j&1)} sc1",
                   "w2s", 120)


L_STG = 131072
W2P = 128


def w2p_vaddr(k):
    k("v_and_b32 v135, 63, v0")
    k(f"v_lshrrev_b32 v{W2P}, 3, v135")
    k("v_and_b32 v132, 7, v135")
    k("v_bfe_u32 v133, v135, 4, 1")
    k("v_lshlrev_b32 v133, 2, v133")
    k("v_xor_b32 v132, v132, v133")
    k("v_lshlrev_b32 v132, 4, v132")
    k(f"v_lshl_add_u32 v{W2P}, v{W2P}, 10, v132")
    k("s_lshl_b32 s74, s4, 11")
    k(f"s_add_u32 s74, s74, {L_STG}")
    k("v_and_b32 v132, 15, v135")
    k("v_lshrrev_b32 v133, 5, v135")
    k("v_lshrrev_b32 v134, 2, v132")
    k("v_lshl_add_u32 v133, v133, 2, v134")
    k("v_lshlrev_b32 v133, 7, v133")
    k("v_bfe_u32 v134, v135, 4, 1")
    k("v_lshlrev_b32 v134, 1, v134")
    k("v_bfe_u32 v136, v132, 1, 1")
    k("v_add_u32 v134, v134, v136")
    k("v_bfe_u32 v136, v132, 3, 1")
    k("v_lshl_add_u32 v134, v136, 2, v134")
    k("v_lshl_add_u32 v133, v134, 4, v133")
    k("v_and_b32 v136, 1, v132")
    k("v_lshl_add_u32 v133, v136, 3, v133")
    k(f"v_add_u32 v{W2P+1}, s74, v133")
    k(f"v_xor_b32 v{W2P+2}, 64, v{W2P+1}")
    k(f"v_lshlrev_b32 v{W2P+3}, 4, v135")


def w2p_dma(k):
    k("s_lshr_b32 s70, s2, 3")
    k("s_lshl_b32 s70, s70, 2")
    k("s_add_u32 s70, s70, s4")
    k("s_and_b32 s71, s2, 7")
    k("s_lshl_b32 s21, s71, 7")
    k("s_add_u32 s21, s21, s70")
    k("s_lshl_b32 s21, s21, 11")
    k(f"s_add_u32 s21, s21, {WS_W2F}")
    k("s_lshl_b32 s71, s71, 7")
    k("s_lshl_b32 s70, s70, 14")
    k("s_add_u32 s71, s71, s70")
    k("s_lshl_b32 s70, s4, 11")
    k(f"s_add_u32 s70, s70, {L_STG}")
    for h in range(2):
        k(f"s_add_u32 m0, s70, {1024*h}")
        k(f"s_add_u32 s{SDMA}, s71, {8192*h}")
        k.vmem(f"buffer_load_dwordx4 v{W2P}, {S(SW2)}, s{SDMA} offen lds", "w2d")


def w2p_out(k):
    k.wait(vm="w2d")
    for nb in range(2):
        for hf in range(2):
            k.ds(f"ds_read_b64_tr_b16 {V(W2P + 4 + 4*nb + 2*hf, 2)}, v{W2P+1+nb} offset:{1024*hf}", f"w2t{nb}")
    for nb in range(2):
        k.wait(lg=f"w2t{nb}")
        vm(k, f"buffer_store_dwordx4 {V(W2P+4+4*nb,4)}, v{W2P+3}, {S(SWS)}, s21 offen offset:{1024*nb} sc1", "w2s", 120)


def w2f_cons_setup(k):
    k("s_lshr_b32 s92, s2, 5")
    k("s_lshl_b32 s92, s92, 7")
    k("s_mul_i32 s93, s4, 28")
    k("s_add_u32 s92, s92, s93")
    k("s_lshl_b32 s92, s92, 11")
    k(f"s_add_u32 s92, s92, {WS_W2F}")
    k("s_and_b32 s93, s4, 1")
    k("s_lshl_b32 s93, s93, 10")
    k("s_add_u32 s92, s92, s93")
    kr = CFG.get("krot", 0)
    if kr:
        k("s_lshr_b32 s70, s2, 5")
        if kr == 1:
            k("s_bfe_u32 s93, s2, 0x20003")
            k("s_lshl_b32 s93, s93, 1")
            k("s_add_u32 s70, s70, s93")
        elif kr == 3:
            k("s_bfe_u32 s93, s2, 0x20003")
            k("s_add_u32 s70, s70, s93")
        k("s_cmp_ge_u32 s70, 7")
        k("s_cselect_b32 s93, 7, 0")
        k("s_sub_u32 s70, s70, s93")
        k("s_lshl_b32 s93, s70, 13")
        k("s_add_u32 s92, s92, s93")
    k("s_xor_b32 s93, s92, 1024")


def w2f_cons_loads(k, after=None):
    for ii in range(28):
        for a in range(2):
            with atom(k, after):
                if CFG.get("krot") and ii and ii % 4 == 0:
                    if a == 0:
                        k(f"s_cmp_eq_u32 s70, {7 - ii//4}")
                        k(f"s_cselect_b32 s21, {(-7*8192) & 0xffffffff}, 0")
                        k("s_add_u32 s21, s21, 4096")
                        k("s_add_u32 s92, s92, s21")
                        k("s_add_u32 s93, s93, s21")
                elif ii and ii % 2 == 0:
                    k(f"s_add_u32 s{92+a}, s{92+a}, 4096")
                vm(k, f"buffer_load_dwordx4 {A(8*ii+4*a,4)}, v58, {S(SWS)}, s{92+a} offen offset:{2048*(ii%2)} sc1",
                   f"wf{ii}")


HW = 30


def h_setup(k):
    k("s_lshl_b32 s74, s2, 13")
    for ch in range(2):
        d = 84 + 4 * ch
        k(f"s_add_u32 s{d}, s{P_SSMK}, s74")
        k(f"s_addc_u32 s{d+1}, s{P_SSMK+1}, 0")
        k(f"s_mov_b32 s{d+2}, 4096")
        k(f"s_mov_b32 s{d+3}, 0x00020000")
        if ch == 0:
            k("s_add_u32 s74, s74, 4096")
    k("v_lshlrev_b32 v46, 4, v0")
    k("v_add_u32 v47, -16, v46")


def h_loads(k, after=None):
    for ch in range(2):
        with atom(k, after):
            vm(k, f"buffer_load_dwordx4 {V(HW+8*ch,4)}, v47, {S(84+4*ch)}, 0 offen", "hw")
        with atom(k, after):
            vm(k, f"buffer_load_dwordx4 {V(HW+4+8*ch,4)}, v46, {S(84+4*ch)}, 0 offen", "hw")


def kv_zero(k):
    for i in range(4):
        k(f"v_mov_b32 v{48+i}, 0")
    k(f"v_add_u32 v52, {L_KV + 4096}, v46")
    with atom(k):
        k("v_cmp_gt_u32 vcc, 32, v0")
        k("s_and_saveexec_b64 s[74:75], vcc")
        for ch in range(2):
            k.ds(f"ds_write_b128 v52, {V(48,4)} offset:{ch*KV_STRIDE}", "kvz")
        k("s_mov_b64 exec, s[74:75]")


def build_copies(k):
    k.wait(vm="hw")
    k(f"v_add_u32 v52, {L_H + 16}, v46")
    k(f"v_add_u32 v53, {L_H + 16 + CH_STRIDE}, v46")
    for ch in range(2):
        w = HW + 8 * ch
        t = (128, 224)[ch]
        R, P, Q = t, t + 6, t + 12
        src = {0: w, 4: w + 2, 2: R, 6: R + 2, 1: P, 5: P + 2, 3: Q, 7: Q + 2}

        def wr(s):
            k.ds(f"ds_write_b128 v{52+ch}, {V(src[s],4)} offset:{s*COPY_STRIDE + 16*COPY_O[s]}", "hwr")
        wr(0)
        wr(4)
        for j in range(6):
            k(f"v_mov_b32 v{R+j}, v{w+j+1}")
        wr(2)
        wr(6)
        for j in range(6):
            k(f"v_alignbyte_b32 v{P+j}, v{w+j+1}, v{w+j}, 2")
        wr(1)
        wr(5)
        for j in range(6):
            k(f"v_alignbyte_b32 v{Q+j}, v{w+j+2}, v{w+j+1}, 2")
        wr(3)
        wr(7)
    with atom(k):
        k("s_mov_b32 s76, 255")
        k("v_cmp_eq_u32 vcc, s76, v0")
        k("s_and_saveexec_b64 s[74:75], vcc")
        for ch in range(2):
            k.ds(f"ds_write_b128 v{52+ch}, {V(HW+8*ch+4,4)} offset:{16 + 16*COPY_O[0]}", "hwr")
        k("s_mov_b64 exec, s[74:75]")
    with atom(k):
        lut = sum(o << (4 * i) for i, o in enumerate(COPY_O))
        k(f"s_mov_b32 s76, {lut}")
        k("v_lshlrev_b32 v54, 2, v0")
        k("v_bfe_u32 v54, s76, v54, 4")
        k("v_lshlrev_b32 v54, 4, v54")
        k(f"v_mul_u32_u24 v55, {COPY_STRIDE}, v0")
        k("v_add_u32 v54, v54, v55")
        k(f"v_add_u32 v54, {L_H}, v54")
        k("v_cmp_gt_u32 vcc, 8, v0")
        k("s_and_saveexec_b64 s[74:75], vcc")
        k.ds(f"ds_write_b128 v54, {V(48,4)}", "hwr")
        k.ds(f"ds_write_b128 v54, {V(48,4)} offset:{CH_STRIDE}", "hwr")
        k("s_mov_b64 exec, s[74:75]")


KVR = 244


def kv_loads(k, after=None):
    with atom(k, after):
        k("s_lshl_b32 s94, s2, 13")
        k(f"s_add_u32 s94, s94, {WS_KVR}")
        vm(k, f"buffer_load_dwordx4 {V(KVR,4)}, v46, {S(SWS)}, s94 offen sc1", "kv")
    with atom(k, after):
        k("s_lshl_b32 s94, s2, 13")
        k(f"s_add_u32 s94, s94, {WS_KVR + 4096}")
        vm(k, f"buffer_load_dwordx4 {V(KVR+4,4)}, v46, {S(SWS)}, s94 offen sc1", "kv")


def kv_write(k):
    k(f"v_add_u32 v54, {L_KV}, v46")
    k.wait(vm="kv")
    for ch in range(2):
        k.ds(f"ds_write_b128 v54, {V(KVR+4*ch,4)} offset:{ch*KV_STRIDE}", "kvw")


def flag_addrs(k):
    k("v_and_b32 v58, 63, v0")
    k("s_lshr_b32 s75, s2, 5")
    k("s_lshl_b32 s74, s75, 5")
    k("v_and_b32 v59, 31, v58")
    k("v_add_u32 v61, s74, v59")
    if CFG.get("dist"):
        k("v_min_u32 v60, 27, v59")
    else:
        k("v_and_b32 v60, 3, v58")
    k("v_lshlrev_b32 v60, 3, v60")
    k(f"s_add_u32 s75, s75, {(WS_F0B - WS_F0) // 128}")
    k("v_add_u32 v60, s75, v60")
    k("v_cmp_gt_u32 vcc, 32, v58")
    k("v_cndmask_b32 v56, v60, v61, vcc")
    k("v_lshlrev_b32 v56, 7, v56")
    k(f"v_add_u32 v61, {(WS_F2 - WS_F1) // 128}, v61")
    k("v_add_u32 v59, 224, v59")
    k("v_cndmask_b32 v61, v59, v61, vcc")
    k("v_lshlrev_b32 v61, 7, v61")
    k("s_and_b32 s74, s2, 7")
    k("s_lshl_b32 s74, s74, 2")
    k("s_lshr_b32 s75, s2, 3")
    k("s_and_b32 s75, s75, 3")
    k("s_add_u32 s74, s74, s75")
    k("s_lshr_b32 s75, s74, 1")
    if CFG.get("xm"):
        k("s_lshr_b32 s76, s75, 1")
        k("s_and_b32 s77, s75, 1")
        k("s_lshl_b32 s77, s77, 3")
        k("s_add_u32 s76, s76, s77")
        k("v_lshlrev_b32 v60, 4, v58")
    else:
        k("s_lshr_b32 s76, s75, 2")
        k("s_lshl_b32 s76, s76, 1")
        k("s_and_b32 s77, s75, 3")
        k("s_lshl_b32 s77, s77, 3")
        k("s_add_u32 s76, s76, s77")
        k("v_cmp_lt_u32 vcc, 6, v58")
        k("v_cndmask_b32 v59, 0, 1, vcc")
        k("v_mul_u32_u24 v60, 7, v59")
        k("v_sub_u32 v60, v58, v60")
        k("v_lshlrev_b32 v60, 5, v60")
        k("v_add_u32 v60, v60, v59")
    k("v_cmp_gt_u32 vcc, 14, v58")
    k("v_cndmask_b32 v60, 0, v60, vcc")
    k("v_add_u32 v60, s76, v60")
    k("v_lshlrev_b32 v57, 7, v60")
    with atom(k):
        k("s_cmp_eq_u32 s4, 0")
        k(f"s_cselect_b32 s74, 0, {OOB}")
    k("v_or_b32 v56, s74, v56")
    k("v_or_b32 v57, s74, v57")
    k("v_or_b32 v61, s74, v61")
    k("v_lshlrev_b32 v58, 4, v58")


BA0, BB1 = 248, 20


def rot_setup(k):
    m = CFG.get("rot", 0)
    if not m:
        return
    k("s_lshr_b32 s20, s2, 3")
    if m == 1:
        k("s_and_b32 s20, s20, 7")
    elif m == 2:
        k("s_and_b32 s20, s20, 3")
        k("s_lshl_b32 s20, s20, 1")
    elif m == 3:
        k("s_lshr_b32 s20, s20, 2")
    elif m == 4:
        k("s_lshr_b32 s20, s20, 2")
        k("s_and_b32 s20, s20, 1")
        k("s_lshl_b32 s20, s20, 2")
    elif m == 5:
        k("s_and_b32 s20, s20, 1")
        k("s_lshl_b32 s20, s20, 2")
    elif m == 6:
        k("s_add_u32 s20, s5, s6")
        k("s_and_b32 s20, s20, 7")
    elif m == 7:
        k("s_lshl_b32 s20, s5, 1")
        k("s_add_u32 s20, s20, s6")
        k("s_and_b32 s20, s20, 7")
    elif m == 8:
        k("s_lshr_b32 s20, s5, 2")
        k("s_lshl_b32 s20, s20, 1")
        k("s_add_u32 s20, s20, s5")
        k("s_add_u32 s20, s20, s6")
        k("s_and_b32 s20, s20, 7")


def g1_dma(k, slab, buf, after=None):
    rot = CFG.get("rot", 0)
    for i in range(4):
        with atom(k, after):
            if rot and i == 0:
                k("s_lshl_b32 s56, s20, 7")
                k("s_add_u32 s56, s56, s80")
                k("s_mul_i32 s57, s20, 229376")
                k("s_add_u32 s57, s57, s81")
                k("s_add_u32 s20, s20, 1")
                k("s_and_b32 s20, s20, 7")
            k(f"s_add_u32 m0, s82, {buf + 1024*i}")
            if rot:
                k(f"s_add_u32 s{SDMA}, s56, {8192*i}")
            else:
                k(f"s_add_u32 s{SDMA}, s80, {8192*i + 128*slab}")
            vm(k, f"buffer_load_dwordx4 v{1 + (i&1)}, {S(SQ)}, s{SDMA} offen lds", f"slab{slab}")
    for i in range(4):
        with atom(k, after):
            k(f"s_add_u32 m0, s82, {buf + 16384 + 1024*i}")
            if rot:
                k(f"s_add_u32 s{SDMA}, s57, {4*i*3584}")
            else:
                k(f"s_add_u32 s{SDMA}, s81, {(64*slab + 4*i)*3584}")
            vm(k, f"buffer_load_dwordx4 v3, {S(SW1)}, s{SDMA} offen lds", f"slab{slab}")


def bias_addr(k):
    k("v_lshlrev_b32 v19, 1, v10")
    k("v_cmp_gt_u32 vcc, 32, v10")
    k(f"v_mov_b32 v20, {OOB}")
    k("v_cndmask_b32 v19, v20, v19, vcc")
    k("v_mov_b32 v20, 0")
    k("v_mov_b32 v21, 0x3f80")
    k(f"v_cndmask_b32 v{BB1}, v20, v21, vcc")
    for r in (BB1 + 1, BB1 + 2, BB1 + 3, BA0 + 1, BA0 + 2, BA0 + 3, BA0 + 5, BA0 + 6, BA0 + 7):
        k(f"v_mov_b32 v{r}, 0")
    k("s_lshl_b32 s76, s6, 8")
    k("s_and_b32 s77, s4, 1")
    k("s_lshl_b32 s77, s77, 7")
    k("s_add_u32 s83, s76, s77")


def bias_loads(k):
    with atom(k):
        stmp(k, P_B1, 1792 * 2)
        vm(k, f"buffer_load_ushort v{BA0}, v19, {S(STMP)}, s83 offen", "bias", 32)
    with atom(k):
        vm(k, f"buffer_load_ushort v{BA0+4}, v19, {S(STMP)}, s83 offen offset:64", "bias", 32)


def bias_mfma(k):
    k.wait(vm="bias")
    for fb in range(2):
        for mb in range(2):
            d = G1_ACC + 32 * fb + 16 * mb
            k(f"v_mfma_f32_32x32x16_bf16 {V(d,16)}, {V(BA0+4*fb,4)}, {V(BB1,4)}, {V(d,16)}")


def sprinkle(k, items, per):
    q = list(items)

    def hook(n=per):
        for _ in range(n):
            if q:
                k._add(q.pop(0))
    hook.q = q
    return hook


def g1_main(k, bufs, pre, post, extra):
    nb = len(bufs)
    k.c("---- G1 main ----")
    k.wait(vm="slab0")
    k("s_barrier")
    ts(k, 6)
    G.g1_reads(k, bufs[0], 0, "r0_0")
    G.g1_reads(k, bufs[0], 1, "r0_1")
    hooks = []

    def mf(ks, first):
        fr = G1_FR + 16 * ks
        for fb in range(2):
            for mb in range(2):
                d = G1_ACC + 32 * fb + 16 * mb
                c = "0" if first else V(d, 16)
                k(f"v_mfma_f32_32x32x16_bf16 {V(d,16)}, {V(fr + 4*fb, 4)}, {V(fr + 8 + 4*mb, 4)}, {c}")
                for h in hooks:
                    if h.q:
                        h()
                        break

    for s in range(8):
        buf = bufs[s % nb]
        if ("a", s) in extra:
            hooks.append(sprinkle(k, *extra[("a", s)]))
        G.g1_reads(k, buf, 2, f"r{s}_2")
        k.wait(lg=f"r{s}_0")
        mf(0, s == 0)
        G.g1_reads(k, buf, 3, f"r{s}_3")
        k.wait(lg=f"r{s}_1")
        mf(1, False)
        if s < 7:
            if s in pre:
                pre[s]()
            k.wait(vm=f"slab{s+1}", lg=f"r{s}_3")
            k("s_barrier")
            k.mark(f"bar{s}")
            ts(k, 7 + s)
            if s in post:
                post[s]()
            if ("b", s) in extra:
                hooks.append(sprinkle(k, *extra[("b", s)]))
            nbuf = bufs[(s + 1) % nb]
            G.g1_reads(k, nbuf, 0, f"r{s+1}_0")
            mf(2, False)
            G.g1_reads(k, nbuf, 1, f"r{s+1}_1")
            mf(3, False)
        else:
            k.wait(lg=f"r{s}_2")
            mf(2, False)
            k.wait(lg=f"r{s}_3")
            mf(3, False)
    for h in hooks:
        h(10000)


def g1_epilogue(k):
    k.c("---- G1 epilogue ----")
    k("s_lshl_b32 s74, s5, 2")
    k("s_lshr_b32 s75, s4, 1")
    k("s_lshl_b32 s75, s75, 1")
    k("s_add_u32 s74, s74, s75")
    k("s_mul_i32 s74, s74, 112")
    k("s_lshl_b32 s75, s6, 3")
    k("s_add_u32 s74, s74, s75")
    k("s_and_b32 s75, s4, 1")
    k("s_lshl_b32 s75, s75, 2")
    k("s_add_u32 s74, s74, s75")
    k("s_lshl_b32 s74, s74, 10")
    k(f"s_add_u32 s78, s74, {WS_HF}")
    k(f"s_add_u32 s79, s78, {112*1024}")
    tmp = 160
    ti = 0
    for mb in range(2):
        for fb in range(2):
            acc = G1_ACC + 32 * fb + 16 * mb
            for half in range(2):
                t = tmp + 4 * ti
                ti += 1
                for r in range(8 * half, 8 * half + 8):
                    k(f"v_max_f32 v{acc+r}, 0, v{acc+r}")
                for r in range(8 * half, 8 * half + 8, 2):
                    k(f"v_pk_mul_f32 {V(acc+r,2)}, {V(acc+r,2)}, {V(acc+r,2)}")
                for i in range(4):
                    r = acc + 8 * half + 2 * i
                    k(f"v_cvt_pk_bf16_f32 v{t+i}, v{r}, v{r+1}")
                vm(k, f"buffer_store_dwordx4 {V(t,4)}, v58, {S(SWS)}, s{78+mb} offen offset:{(2*fb+half)*1024} sc1", "hs",
                   CFG.get("hscost", 200))


CA, CB = 59, 60


def conv_addr(k):
    k.c("---- conv addresses ----")
    k("v_and_b32 v10, 63, v0")
    k("v_and_b32 v11, 15, v10")
    k("v_lshrrev_b32 v12, 4, v10")
    k("v_add_u32 v13, 1, v11")
    k("v_and_b32 v14, 7, v13")
    k("v_lshrrev_b32 v15, 3, v13")
    lut = sum(o << (4 * i) for i, o in enumerate(COPY_O))
    k(f"s_mov_b32 s74, {lut}")
    k("v_lshlrev_b32 v16, 2, v14")
    k("v_bfe_u32 v16, s74, v16, 4")
    k("v_add_u32 v16, v16, v15")
    k("v_add_u32 v16, v16, v12")
    k("v_lshlrev_b32 v16, 4, v16")
    k(f"v_mul_u32_u24 v17, {COPY_STRIDE}, v14")
    k("v_add_u32 v16, v16, v17")
    k("s_lshr_b32 s75, s4, 1")
    k(f"s_mul_i32 s76, s75, {CH_STRIDE}")
    k("s_and_b32 s77, s4, 1")
    k("s_lshl_b32 s77, s77, 8")
    k("s_add_u32 s76, s76, s77")
    k(f"s_add_u32 s76, s76, {L_H}")
    k(f"v_add_u32 v{CA}, s76, v16")
    k(f"s_mul_i32 s76, s75, {KV_STRIDE}")
    k("s_add_u32 s76, s76, s77")
    k(f"s_add_u32 s76, s76, {L_KV + 480}")
    k("v_lshlrev_b32 v16, 5, v11")
    k("v_lshlrev_b32 v17, 4, v12")
    k("v_sub_u32 v16, v17, v16")
    k(f"v_add_u32 v{CB}, s76, v16")


def conv_main(k, hook):
    k.c("---- conv main ----")
    order = conv_order()
    for i in range(8):
        k.ds(f"ds_read_b128 {V(CV_FA + 4*i, 4)}, v{CA} offset:{512*i}", f"ca0_{i}")
        k.ds(f"ds_read_b128 {V(CV_FB + 4*i, 4)}, v{CB} offset:{512*(7-i)}", f"cb0_{i}")
    touched = set()
    for c0i in range(4):
        st = c0i & 1
        nxt = []
        if c0i < 3:
            for i in range(8):
                nxt.append((f"ds_read_b128 {V(CV_FA + 32*(st^1) + 4*i, 4)}, v{CA} offset:{512*i + 64*(c0i+1)}", f"ca{c0i+1}_{i}"))
                nxt.append((f"ds_read_b128 {V(CV_FB + 32*(st^1) + 4*i, 4)}, v{CB} offset:{512*(7-i) + 64*(c0i+1)}", f"cb{c0i+1}_{i}"))
        waited = set()
        for n, (d, c1) in enumerate(order):
            tags = [t for t in (f"ca{c0i}_{c1}", f"cb{c0i}_{d}") if t not in waited]
            if tags:
                k.wait(lg=tags)
                waited.update(tags)
            j = d + c1
            acc = V(CV_ACC + 4 * j, 4)
            c = acc if j in touched else "0"
            touched.add(j)
            k(f"v_mfma_f32_16x16x32_bf16 {acc}, {V(CV_FA + 32*st + 4*c1, 4)}, {V(CV_FB + 32*st + 4*d, 4)}, {c}")
            if n >= 18 and nxt:
                t, tg = nxt.pop(0)
                k.ds(t, tg)
            hook(c0i * 36 + n)


def conv_epilogue(k, prebar):
    k.c("---- conv epilogue ----")
    k("v_and_b32 v10, 63, v0")
    k("v_and_b32 v11, 15, v10")
    k("v_lshrrev_b32 v12, 4, v10")
    k("v_lshlrev_b32 v11, 6, v11")
    k("v_lshl_add_u32 v11, v12, 4, v11")
    k("s_lshl_b32 s74, s4, 13")
    k(f"s_add_u32 s74, s74, {L_PART}")
    k("v_add_u32 v11, s74, v11")
    k("s_lshr_b32 s75, s4, 1")
    for j in range(8):
        k.ds(f"ds_write_b128 v11, {V(CV_ACC + 4*j, 4)} offset:{1024*j}", "pw")
    k("v_and_b32 v1, 127, v0")
    k("v_lshlrev_b32 v2, 5, v1")
    k("s_lshl_b32 s74, s75, 14")
    k(f"s_add_u32 s74, s74, {L_PART}")
    k("v_add_u32 v2, s74, v2")
    k(f"s_mul_i32 s74, s75, {KV_STRIDE}")
    k(f"s_add_u32 s74, s74, {L_KV + 4080 - 2048}")
    k("v_lshlrev_b32 v3, 4, v1")
    k("v_sub_u32 v3, s74, v3")
    k("s_lshl_b32 s79, s75, 4")
    k("s_lshr_b32 s77, s23, s79")
    k("s_lshl_b32 s77, s77, 16")
    k.wait(lg="pw")
    prebar()
    k("s_barrier")
    k.mark("cvbar")
    for seg in range(2):
        b = 8 + 24 * seg
        for p in range(2):
            for hh in range(2):
                k.ds(f"ds_read_b128 {V(b + 8*p + 4*hh, 4)}, v2 offset:{8192*p + 4096*seg + 16*hh}", f"pr{seg}")
        k.ds(f"ds_read_b128 {V(b + 16, 4)}, v3 offset:{2048*(1-seg)}", f"pr{seg}")
    if CFG.get("hfb1"):
        k.force(CFG.get("hfb1"))
    YT = CFG.get("ytag", 0)
    if YT:
        k("s_lshl_b32 s74, s2, 14")
        k("s_lshl_b32 s79, s75, 13")
        k("s_add_u32 s74, s74, s79")
        k(f"s_add_u32 s74, s74, {WS_YT2}")
        k("s_add_u32 s79, s74, 4096")
        k("v_lshlrev_b32 v4, 5, v1")
    else:
        k("s_lshl_b32 s74, s2, 13")
        k("s_lshl_b32 s79, s75, 12")
        k("s_add_u32 s74, s74, s79")
        k(f"s_add_u32 s74, s74, {WS_YT}")
        k("v_lshlrev_b32 v4, 4, v1")
    for seg in range(2):
        b = 8 + 24 * seg
        k.wait(lg=f"pr{seg}")
        for i in range(0, 8, 2):
            k(f"v_pk_add_f32 {V(b+i,2)}, {V(b+i,2)}, {V(b+8+i,2)}")
        for i in range(8):
            e = 7 - i
            (unpack_hi if e & 1 else unpack_lo)(k, 6 + (i & 1), b + 16 + (e >> 1))
            k(f"v_fmac_f32 v{b+i}, s77, v{6 + (i & 1)}")
        if YT:
            for i in range(4):
                k(f"v_cvt_pk_bf16_f32 v{b+8+4*(i>>1)+(i&1)}, v{b+2*i}, v{b+2*i+1}")
            for i in (2, 3, 6, 7):
                k(f"v_mov_b32 v{b+8+i}, s{NONCE}")
            if seg == 0 and CFG.get("ysplit", 0):
                for hh in range(2):
                    vm(k, f"buffer_store_dwordx4 {V(b+8+4*hh,4)}, v4, {S(SWS)}, s74 offen offset:{16*hh} sc1", "ys", SC_ST)
        else:
            for i in range(4):
                k(f"v_cvt_pk_bf16_f32 v{b+20+i}, v{b+2*i}, v{b+2*i+1}")
    k.mark("ysready")
    for seg in range(2):
        b = 8 + 24 * seg
        if YT:
            if seg == 0 and CFG.get("ysplit", 0):
                continue
            for hh in range(2):
                vm(k, f"buffer_store_dwordx4 {V(b+8+4*hh,4)}, v4, {S(SWS)}, s{(74, 79)[seg]} offen offset:{16*hh} sc1",
                   "ys", SC_ST)
        else:
            vm(k, f"buffer_store_dwordx4 {V(b+20,4)}, v4, {S(SWS)}, s74 offen offset:{2048*seg} sc1", "ys", SC_ST)
    if CFG.get("hfb2"):
        k.force(CFG.get("hfb2"))


FB = 128


def g2_setup(k):
    G.g2_ids(k)
    k("s_lshr_b32 s74, s4, 1")
    k("s_lshl_b32 s75, s5, 1")
    k("s_add_u32 s80, s75, s74")
    k("s_xor_b32 s81, s80, 1")
    k("s_mul_i32 s78, s4, 28")
    for b in range(2):
        k(f"s_mul_i32 s{80+b}, s{80+b}, 112")
        k(f"s_add_u32 s{80+b}, s{80+b}, s78")
        k(f"s_lshl_b32 s{80+b}, s{80+b}, 10")
        k(f"s_add_u32 s{80+b}, s{80+b}, {WS_HF}")
    if CFG.get("krot"):
        k("s_lshl_b32 s78, s70, 12")
        k("s_add_u32 s80, s80, s78")
        k("s_add_u32 s81, s81, s78")


def hf_loads(k, depth, first_after):
    for i in range(28):
        for b in range(2):
            after = first_after if i < depth else f"g2_{i - depth}"
            with atom(k, after):
                if b == 0 and i and i % 4 == 0:
                    if CFG.get("krot"):
                        k(f"s_cmp_eq_u32 s70, {7 - i//4}")
                        k(f"s_cselect_b32 s21, {(-7*4096) & 0xffffffff}, 0")
                        k("s_add_u32 s21, s21, 4096")
                        k("s_add_u32 s80, s80, s21")
                        k("s_add_u32 s81, s81, s21")
                    else:
                        k("s_add_u32 s80, s80, 4096")
                        k("s_add_u32 s81, s81, 4096")
                r = FB + 8 * (i % depth) + 4 * b
                vm(k, f"buffer_load_dwordx4 {V(r,4)}, v58, {S(SWS)}, s{80+b} offen offset:{1024*(i%4)} sc1", f"hf{i}",
                   CFG.get("hfcost"))


def g2_main(k, depth, hooks):
    k.c("---- G2 main ----")
    for i in range(28):
        k.wait(vm=[f"hf{i}", f"wf{i}"])
        for b in range(2):
            for a in range(2):
                d = G2_ACC + 16 * (a + 2 * b)
                c = V(d, 16) if i else "0"
                k(f"v_mfma_f32_32x32x16_bf16 {V(d,16)}, {A(8*i + 4*a, 4)}, {V(FB + 8*(i%depth) + 4*b, 4)}, {c}")
        k.mark(f"g2_{i}")
        if i in hooks:
            hooks[i]()


EQ, EB2, EY, EG = 8, 16, 24, 32


def g2_ep_addr(k):
    k("v_and_b32 v40, 63, v0")
    k("v_and_b32 v41, 31, v40")
    k("v_lshrrev_b32 v42, 5, v40")
    k("s_and_b32 s74, s4, 1")
    k("s_lshr_b32 s75, s4, 1")
    k("s_lshl_b32 s76, s5, 6")
    k("s_lshl_b32 s77, s75, 5")
    k("s_add_u32 s76, s76, s77")
    k("s_lshl_b32 s77, s6, 6")
    k("s_lshl_b32 s78, s74, 5")
    k("s_add_u32 s77, s77, s78")
    k("v_lshlrev_b32 v46, 10, v41")
    k("v_lshl_add_u32 v46, v42, 3, v46")
    k("s_lshl_b32 s82, s76, 10")
    k("s_lshl_b32 s83, s77, 1")
    k("s_add_u32 s82, s82, s83")
    k("v_lshlrev_b32 v47, 3, v42")
    k("v_lshrrev_b32 v43, 2, v40")
    k("v_and_b32 v44, 3, v40")
    if CFG.get("ytag", 0):
        k("v_lshlrev_b32 v45, 13, v43")
        k("v_lshl_add_u32 v45, v44, 5, v45")
        k("s_lshl_b32 s84, s77, 13")
        k("s_lshl_b32 s85, s76, 2")
        k("s_add_u32 s84, s84, s85")
        k(f"s_add_u32 s84, s84, {WS_YT2}")
        k(f"s_add_u32 s85, s84, {16*8192}")
        k("v_lshlrev_b32 v48, 3, v41")
        k("s_lshl_b32 s86, s76, 3")
        k(f"s_add_u32 s86, s86, {WS_G}")
        return
    k("v_lshlrev_b32 v45, 12, v43")
    k("v_lshl_add_u32 v45, v44, 4, v45")
    k("s_lshl_b32 s84, s77, 12")
    k("s_lshl_b32 s85, s76, 1")
    k("s_add_u32 s84, s84, s85")
    k(f"s_add_u32 s84, s84, {WS_YT}")
    k(f"s_add_u32 s85, s84, {16*4096}")
    k("v_lshlrev_b32 v48, 2, v41")
    k("s_lshl_b32 s86, s76, 2")
    k(f"s_add_u32 s86, s86, {WS_G}")


def g2_ep_loads_plain(k, after=None):
    for g in range(4):
        with atom(k, after):
            vm(k, f"buffer_load_dwordx2 {V(EQ+2*g,2)}, v46, {S(SQ)}, s82 offen offset:{16*g}", "q", 200)
    for g in range(4):
        with atom(k, after):
            if g == 0:
                stmp(k, P_B2, 1024)
            vm(k, f"buffer_load_dwordx2 {V(EB2+2*g,2)}, v47, {S(STMP)}, s83 offen offset:{16*g}", "b2", 64)


YQ = 224


def ytag_ops():
    o = [(f"buffer_load_dwordx2 {V(EG,2)}, v48, {S(SWS)}, s86 offen sc1", "g", 40)]
    for j in range(4):
        o.append((f"buffer_load_dwordx4 {V(YQ+4*j,4)}, v45, {S(SWS)}, s{84+(j>>1)} offen offset:{16*(j&1)} sc1", "yt", 81))
    return o


def ytag_check(k):
    ok, rt = Lbl.new("YOK"), Lbl.new("YRT")

    def test():
        k(f"v_cmp_ne_u32 vcc, s{NONCE}, v{EG+1}")
        for j in range(4):
            k(f"v_cmp_ne_u32 s[80:81], s{NONCE}, v{YQ+4*j+2}")
            k("s_or_b64 vcc, vcc, s[80:81]")
        k(f"s_cbranch_vccz {ok}")
    with atom(k):
        k.wait(vm=["yt", "g"])
        test()
        k(f"s_mov_b32 s101, {SPIN}")
        k(f"{rt}:")
        k("s_sleep 1")
        for s, _, _ in ytag_ops():
            k(s)
        k("s_waitcnt vmcnt(0)")
        test()
        k("s_sub_u32 s101, s101, 1")
        k(f"s_cbranch_scc0 {rt}")
        k(f"{ok}:")


def g2_ep_loads_sc1(k, after=None):
    if CFG.get("ytag", 0):
        for s, tg, c in ytag_ops():
            with atom(k, after):
                vm(k, s, tg, c)
        return
    with atom(k, after):
        vm(k, f"buffer_load_dword v{EG}, v48, {S(SWS)}, s86 offen sc1", "g", 32)
    with atom(k, after):
        vm(k, f"buffer_load_dwordx4 {V(EY,4)}, v45, {S(SWS)}, s84 offen sc1", "yt", 81)
    with atom(k, after):
        vm(k, f"buffer_load_dwordx4 {V(EY+4,4)}, v45, {S(SWS)}, s85 offen sc1", "yt", 81)


def g2_epilogue(k):
    k.c("---- G2 epilogue ----")
    k("v_lshlrev_b32 v49, 4, v40")
    for sg in range(1, 4):
        k(f"s_xor_b32 s80, s4, {sg}")
        k("s_mul_i32 s80, s80, 12288")
        k(f"v_add_u32 v50, s80, v49")
        for g in range(4):
            k.ds(f"ds_write_b128 v50, {V(G2_ACC + 16*sg + 4*g, 4)} offset:{L_RED + (sg-1)*4096 + 1024*g}", "rw")
    k("s_lshl_b32 s80, s4, 11")
    k(f"s_add_u32 s80, s80, {L_YL}")
    k("v_add_u32 v51, s80, v49")
    if CFG.get("ytag", 0):
        ytag_check(k)
        ts(k, 23)
        for j in range(4):
            k.ds(f"ds_write_b64 v51, {V(YQ+4*j,2)} offset:{1024*(j>>1) + 8*(j&1)}", "yw")
    else:
        k.wait(vm="yt")
        k.ds(f"ds_write_b128 v51, {V(EY,4)}", "yw")
        k.ds(f"ds_write_b128 v51, {V(EY+4,4)} offset:1024", "yw")
    k.wait(lg=["rw", "yw"])
    k("s_barrier")
    ts(k, 25)
    k("s_mul_i32 s80, s4, 12288")
    k("v_add_u32 v50, s80, v49")
    for sg in range(3):
        for g in range(4):
            k.ds(f"ds_read_b128 {V(160 + 16*sg + 4*g, 4)}, v50 offset:{L_RED + sg*4096 + 1024*g}", f"rr{sg}")
    k("v_and_b32 v52, 15, v40")
    k("v_lshrrev_b32 v53, 2, v52")
    k("v_lshl_add_u32 v53, v42, 2, v53")
    k("v_lshlrev_b32 v53, 6, v53")
    k("v_bfe_u32 v54, v40, 4, 1")
    k("v_lshl_add_u32 v53, v54, 5, v53")
    k("v_and_b32 v54, 3, v52")
    k("v_lshl_add_u32 v53, v54, 3, v53")
    k("s_lshl_b32 s80, s4, 11")
    k(f"s_add_u32 s80, s80, {L_YL}")
    k("v_add_u32 v53, s80, v53")
    for g in range(4):
        k.ds(f"ds_read_b64_tr_b16 {V(208+2*g,2)}, v53 offset:{512*g}", "yr")
    acc = G2_ACC
    for sg in range(3):
        k.wait(lg=f"rr{sg}")
        for r in range(0, 16, 2):
            k(f"v_pk_add_f32 {V(acc+r,2)}, {V(acc+r,2)}, {V(160+16*sg+r,2)}")
    k.wait(vm=["q", "b2", "g"], lg="yr")
    X = 224
    slot = {0: 0, 2: 2, 1: 4, 3: 6}
    for g in range(4):
        for i in range(4):
            up = unpack_hi if i & 1 else unpack_lo
            up(k, 128 + i, EB2 + 2 * g + (i >> 1))
            up(k, 132 + i, EQ + 2 * g + (i >> 1))
            up(k, 136 + i, 208 + 2 * g + (i >> 1))
        for i in range(4):
            r = acc + 4 * g + i
            k(f"v_add_f32 v{r}, v{r}, v{128+i}")
        for i in range(4):
            r = acc + 4 * g + i
            k(f"v_fma_f32 v{132+i}, v{132+i}, v{136+i}, -v{r}")
        for i in range(4):
            r = acc + 4 * g + i
            k(f"v_fmac_f32 v{r}, v{EG}, v{132+i}")
        for d in range(2):
            r = acc + 4 * g + 2 * d
            k(f"v_cvt_pk_bf16_f32 v{X + slot[g] + d}, v{r}, v{r+1}")
    for base in (0, 4):
        k(f"v_permlane32_swap_b32 v{X+base}, v{X+base+2}")
        k(f"v_permlane32_swap_b32 v{X+base+1}, v{X+base+3}")
    k("v_lshlrev_b32 v46, 10, v41")
    k("v_lshl_add_u32 v46, v42, 5, v46")
    osc = ["", " sc1", " nt", " sc0 sc1", " sc1 nt"][CFG.get("osc", 0)]
    vm(k, f"buffer_store_dwordx4 {V(X,4)}, v46, {S(SOUT)}, s82 offen{osc}", "os")
    vm(k, f"buffer_store_dwordx4 {V(X+4,4)}, v46, {S(SOUT)}, s82 offen offset:16{osc}", "os")


def gate_loads(k):
    k("s_and_b32 s5, s2, 7")
    k("s_lshl_b32 s5, s5, 2")
    k("s_lshr_b32 s6, s2, 3")
    k("s_sub_u32 s6, s6, 28")
    k("s_add_u32 s5, s5, s6")
    k("s_lshl_b32 s5, s5, 6")
    k("s_lshl_b32 s6, s4, 4")
    k("s_add_u32 s5, s5, s6")
    k("s_lshl_b32 s6, s5, 10")
    stmp(k, P_GATE, 1024)
    k.vmem(f"buffer_load_dwordx4 {V(4,4)}, v22, {S(STMP)}, 0 offen", "gw")
    for i in range(16):
        if i and i % 4 == 0:
            k("s_add_u32 s6, s6, 4096")
        k.vmem(f"buffer_load_dwordx4 {A(4*i,4)}, v22, {S(SQ)}, s6 offen offset:{1024*(i%4)}", f"gx{i}")


def gate_compute(k):
    k.c("---- gate compute ----")
    k.wait(vm="gw")
    for c in range(8):
        (unpack_hi if c & 1 else unpack_lo)(k, 8 + c, 4 + (c >> 1))
    R = 96
    for i in range(16):
        k.wait(vm=f"gx{i}")
        s = 64 + 4 * (i & 1)
        for c in range(4):
            k(f"v_accvgpr_read_b32 v{s+c}, a{4*i+c}")
        u = 72 + 8 * (i & 1)
        for c in range(8):
            (unpack_hi if c & 1 else unpack_lo)(k, u + c, s + (c >> 1))
        t = 88 + 2 * (i & 1)
        for cp in range(0, 8, 2):
            if cp == 0:
                k(f"v_pk_mul_f32 {V(t,2)}, {V(u,2)}, {V(8,2)}")
            else:
                k(f"v_pk_fma_f32 {V(t,2)}, {V(u+cp,2)}, {V(8+cp,2)}, {V(t,2)}")
        k(f"v_add_f32 v{R+i}, v{t}, v{t+1}")
    for mod in ["row_shr:1", "row_shr:2", "row_shr:4", "row_shr:8", "row_bcast:15 row_mask:0xa",
                "row_bcast:31 row_mask:0xc"]:
        for i in range(16):
            m = mod if "row_mask" in mod else mod + " row_mask:0xf"
            k(f"v_add_f32_dpp v{R+i}, v{R+i}, v{R+i} {m} bank_mask:0xf")
    k("v_mov_b32 v2, 0")
    for g in range(0, 16, 4):
        for i in range(g, g + 4):
            k(f"v_readlane_b32 s{76+i-g}, v{R+i}, 63")
        for i in range(g, g + 4):
            k(f"v_writelane_b32 v2, s{76+i-g}, {i}")
    k("v_mul_f32 v2, 0xbfb8aa3b, v2")
    k("v_exp_f32 v2, v2")
    k("v_add_f32 v2, 1.0, v2")
    k("v_rcp_f32 v2, v2")
    k("v_and_b32 v1, 63, v0")
    if CFG.get("ytag", 0):
        k("v_lshlrev_b32 v4, 3, v1")
        k(f"v_mov_b32 v3, s{NONCE}")
        k("s_lshl_b32 s6, s5, 3")
    else:
        k("v_lshlrev_b32 v3, 2, v1")
        k("s_lshl_b32 s6, s5, 2")
    k(f"s_add_u32 s6, s6, {WS_G}")
    k("v_cmp_gt_u32 vcc, 16, v1")
    k("s_and_saveexec_b64 s[74:75], vcc")
    if CFG.get("ytag", 0):
        k.vmem(f"buffer_store_dwordx2 {V(2,2)}, v4, {S(SWS)}, s6 offen sc1", "gs")
    else:
        k.vmem(f"buffer_store_dword v2, v3, {S(SWS)}, s6 offen sc1", "gs")
    k("s_mov_b64 exec, s[74:75]")


def rec(f, *a, **kw):
    r = Rec()
    f(r, *a, **kw)
    return r.items


def late_scalars(k):
    k(f"s_load_dword s96, s[{P_WS}:{P_WS+1}], {WS_EPOCH}")
    k("s_lshl_b32 s74, s2, 2")
    k(f"s_load_dword s23, s[{P_SSMD}:{P_SSMD+1}], s74")


def gen_full(cfg):
    global CFG
    CFG = cfg
    if cfg.get("x_nords"):
        G.g1_reads = lambda *a, **kw: None
    g = cfg.get
    k = KT()
    END = "K_END"
    bufs = [0, 32768, 65536, 98304]
    prologue(k, END)
    if g("icpf"):
        code_prefetch(k)
    if g("ts"):
        k("v_mov_b32 v63, 0")
    ts(k, 0)
    k("s_lshr_b32 s74, s2, 3")
    k("s_cmp_ge_u32 s74, 28")
    k("s_cbranch_scc1 GATE")
    G.g1_setup(k, cfg)
    bias_addr(k)
    rot_setup(k)
    t1_addr(k)
    DIST = g("dist", 0)
    if DIST:
        w2p_vaddr(k)
    srd_consts(k)
    k("s_waitcnt lgkmcnt(0)")
    srd_ptrs(k, (SQ, SW1))
    ts_setup(k, cfg) if False else None
    if g("x_dma"):
        srd_ptrs(k, (SK, SV, SWS, SW2, SOUT))
        ts_setup(k, cfg)
        npass = g("x_dma")
        for p in range(npass):
            if p:
                k("s_barrier")
            ts(k, 1 + 10 * p)
            infl = g("x_infl", 8)

            def iss(sl):
                r = Rec()
                g1_dma(r, sl, bufs[sl % 4])
                for it in r.items:
                    emit(k, it)
            for sl in range(infl):
                iss(sl)
            for sl in range(8):
                k.wait(vm=f"slab{sl}")
                ts(k, 2 + sl + 10 * p)
                if sl + infl < 8:
                    iss(sl + infl)
        k.wait_all()
        ts_final(k, cfg, 27)
        k("s_waitcnt vmcnt(0)")
        k("s_endpgm")
        k("GATE:")
        srd_consts(k)
        k("s_waitcnt lgkmcnt(0)")
        srd_ptrs(k, (SK, SV, SWS, SW2, SOUT))
        ts_setup(k, cfg)
        ts_final(k, cfg, 27)
        k("s_waitcnt vmcnt(0)")
        k(f"{END}:")
        k("s_endpgm")
        return k
    T1POS = g("t1pos", 1)
    W = Weaver(k, g("p_g1", 32))
    W.t = W.ta = 8 * 88
    r = Rec()
    g1_dma(r, 0, bufs[0])
    for it in r.items:
        emit(k, it)
    srd_ptrs(k, (SK, SV, SWS, SW2, SOUT))
    if DIST:
        w2p_dma(k)
    late_scalars(k)
    ts_setup(k, cfg)
    ts(k, 1)
    bg = Rec()
    if DIST == 1:
        g1_dma(bg, 1, bufs[1])
        g1_dma(bg, 2, bufs[2])
        r = Rec()
        t1_loads(r)
        first = r.items[0]
        bg.items.append(("a", first[1], "w2st", first[3]))
        bg.items.extend(r.items[1:])
        bias_loads(bg)
        g1_dma(bg, 3, bufs[3])
    elif DIST == 3:
        g1_dma(bg, 1, bufs[1])
        bias_loads(bg)
        g1_dma(bg, 2, bufs[2])
        r = Rec()
        t1_loads(r)
        first = r.items[0]
        bg.items.append(("a", first[1], "w2st", first[3]))
        bg.items.extend(r.items[1:])
        g1_dma(bg, 3, bufs[3])
    else:
        if T1POS == 0:
            t1_loads(bg)
        g1_dma(bg, 1, bufs[1])
        if T1POS == 1:
            t1_loads(bg)
        bias_loads(bg)
        g1_dma(bg, 2, bufs[2])
        if T1POS == 2:
            t1_loads(bg)
        g1_dma(bg, 3, bufs[3])
        if T1POS == 3:
            t1_loads(bg)
    for s in range(4, 8):
        g1_dma(bg, s, bufs[s - 4], after=f"bar{s-4}")
    h_loads(bg, after="t1done")
    w2f_cons_loads(bg, after="f0bok")
    W.push(bg.items)
    W.flush(g("ndirect", 0))
    fg = Rec()
    h_setup(fg)
    kv_zero(fg)
    flag_addrs(fg)
    fg("s_waitcnt lgkmcnt(0)")
    nonce(fg)
    w2f_cons_setup(fg)
    ts(fg, 5)
    t1c = rec(t1_compute)
    t1c.append(("m", "t1done"))
    P0 = g("pub0", 4)
    T1SEG = g("t1seg", 1)
    BSEG = g("bseg", 1)
    POLL0B = g("poll0b", 3)
    CHK0B = g("chk0b", 4)
    POLL0A = g("poll0a", 5)
    CHK0A = g("chk0a", 6)
    TAILPOS = g("tailpos", 1)
    pre = {}
    post = {}

    def addh(d, s, f):
        old = d.get(s)
        d[s] = (lambda: (old(), f())) if old else f
    addh(pre, P0, lambda: fg.wait(vm="t1s"))
    addh(post, P0, lambda: publish(fg, WS_F0))
    addh(pre, CHK0B, lambda: (poll_check(fg, 62, 56, WS_F0, "p0b", "hi"), ts(fg, 2)))
    addh(post, CHK0B, lambda: (fg.mark("f0bok"), fg.period(g("p_wf")) if g("p_wf") is not None else None))
    if not g("pollbm", 0):
        addh(post, POLL0B, lambda: poll_issue(fg, 62, 56, WS_F0, "p0b"))
    if DIST:
        PUBB = g("pubb", 1)
        addh(pre, PUBB, lambda: fg.wait(vm="w2s"))
        addh(post, PUBB, lambda: publish(fg, WS_F0B))
    if CHK0A < 7:
        addh(pre, CHK0A, lambda: (poll_check(fg, 62, 56, WS_F0, "p0a", "lo"), ts(fg, 14)))
        addh(post, CHK0A, lambda: kv_loads(fg))
    if POLL0A < 7:
        addh(post, POLL0A, lambda: poll_issue(fg, 62, 56, WS_F0, "p0a"))
    if T1SEG < 0:
        for it in t1c:
            fg._add(it)
    tail = rec(build_copies) + rec(conv_addr)
    extra = {("a", BSEG): (rec(bias_mfma), 5)}
    if TAILPOS == 0:
        extra[("b", 6)] = (tail, g("tailper", 4))
    if T1SEG >= 0:
        extra[("b", T1SEG)] = (t1c, g("t1per", 5))
    if DIST:
        w2o = rec(w2p_out) + [("m", "w2st")]
        if g("w2pre", 0):
            for it in w2o:
                fg._add(it)
        else:
            extra[("a", 0)] = (w2o, g("w2per", 2))
    if g("pollbm", 0):
        nop = [("c", "poll slot")] * g("pollbm", 0)
        extra[("a", CHK0B)] = (nop + rec(poll_issue, 62, 56, WS_F0, "p0b"), 1)
    g1_main(fg, bufs, pre, post, extra)
    ts(fg, 15)
    if CHK0A == 7:
        if POLL0A == 7:
            poll_issue(fg, 62, 56, WS_F0, "p0a")
        poll_check(fg, 62, 56, WS_F0, "p0a", "lo")
        fg("s_barrier")
        ts(fg, 14)
        kv_loads(fg)
    fg.period(g("p_ep", 32))
    g1_epilogue(fg)
    if CHK0A == 8:
        if POLL0A >= 7:
            poll_issue(fg, 62, 56, WS_F0, "p0a")
        poll_check(fg, 62, 56, WS_F0, "p0a", "lo")
        fg("s_barrier")
        ts(fg, 14)
        kv_loads(fg)
    ts(fg, 4)
    if TAILPOS == 1:
        for it in tail:
            fg._add(it)
    kv_write(fg)
    ts(fg, 16)
    conflicts("g1", fg.items, bg.items, ok=[("s", "m0"), ("v", 62, 62), ("v", 224, 255), ("v", 30, 47), ("s", 92, 93),
                                            ("v", 56, 58), ("s", 84, 91)])
    W.run(fg.items)
    nleft = len(W.bg)
    print("G1 path marks:", W.log, "bg left at JOIN:", nleft)
    for it in W.bg:
        assert all(x[2].startswith("wf") for x in flat([it]) if x[0] == "vm"), it
    if k.pend is not None:
        k("s_waitcnt lgkmcnt(0)")
    vm_join = list(k.vm)
    k("s_branch JOIN")
    k("GATE:")
    k.vm, k.lg = [], []
    if g("ts"):
        k.pend = 0
    if DIST:
        k("v_and_b32 v22, 63, v0")
        k("v_lshlrev_b32 v22, 4, v22")
    else:
        w2f_addr(k)
    t1_addr(k)
    srd_consts(k)
    k("s_waitcnt lgkmcnt(0)")
    srd_ptrs(k, (SW2, SK, SV, SQ, SWS, SOUT))
    if not DIST:
        for it in rec(w2f_dma):
            emit(k, it)
    late_scalars(k)
    ts_setup(k, cfg)
    ts(k, 1)
    GORD = g("gord", 0)
    for it in rec(t1_loads):
        emit(k, it)
    h_setup(k)
    if DIST:
        if g("gearly", 1):
            gate_loads(k)
        for it in rec(kv_zero):
            emit(k, it)
        flag_addrs(k)
        k("s_waitcnt lgkmcnt(0)")
        k.lg = []
        nonce(k)
        for it in rec(t1_compute):
            emit(k, it)
        ts(k, 4)
        if g("gearly", 1):
            for it in rec(h_loads):
                emit(k, it)
        k.wait(vm="t1s")
        k("s_barrier")
        publish(k, WS_F0)
        ts(k, 5)
        if not g("gearly", 1):
            gate_loads(k)
            for it in rec(h_loads):
                emit(k, it)
        gate_compute(k)
        for it in rec(build_copies) + rec(conv_addr):
            emit(k, it)
        poll_issue(k, 62, 56, WS_F0, "p0b")
        poll_check(k, 62, 56, WS_F0, "p0b", "hi")
        k("s_barrier")
        ts(k, 2)
        w2f_cons_setup(k)
        allw = rec(w2f_cons_loads)
        for it in allw[:len(allw) - nleft]:
            emit(k, it)
        poll_issue(k, 62, 56, WS_F0, "p0")
        poll_check(k, 62, 56, WS_F0, "p0", "lo")
        k("s_barrier")
        ts(k, 14)
        for it in rec(kv_loads):
            emit(k, it)
    elif GORD == 0:
        for it in rec(w2f_tr):
            emit(k, it)
        ts(k, 3)
        Wg = Weaver(k, g("p_gw", 32))
        Wg.push(rec(w2f_stores))
        if g("gw2first", 1):
            Wg.flush()
            ts(k, 2)
            for it in rec(t1_compute):
                emit(k, it)
        else:
            Wg.run(rec(t1_compute)[:-12])
            Wg.flush()
            for it in rec(t1_compute)[-12:]:
                emit(k, it)
        ts(k, 4)
        for it in rec(kv_zero):
            emit(k, it)
        flag_addrs(k)
        k("s_waitcnt lgkmcnt(0)")
        k.lg = []
        nonce(k)
        k.wait(vm="w2s")
        k("s_barrier")
        publish(k, WS_F0B, 224)
        ts(k, 6)
        if not g("gswap", 0):
            gate_loads(k)
        k.wait(vm="t1s")
        k("s_barrier")
        publish(k, WS_F0)
        ts(k, 5)
        if g("gswap", 0):
            gate_loads(k)
        for it in rec(h_loads):
            emit(k, it)
        gate_compute(k)
        for it in rec(build_copies) + rec(conv_addr):
            emit(k, it)
        poll_issue(k, 62, 56, WS_F0, "p0")
        poll_check(k, 62, 56, WS_F0, "p0")
        k("s_barrier")
        ts(k, 14)
        for it in rec(kv_loads):
            emit(k, it)
        w2f_cons_setup(k)
        allw = rec(w2f_cons_loads)
        for it in allw[:len(allw) - nleft]:
            emit(k, it)
    else:
        for it in rec(kv_zero):
            emit(k, it)
        flag_addrs(k)
        k("s_waitcnt lgkmcnt(0)")
        k.lg = []
        nonce(k)
        for it in rec(t1_compute):
            emit(k, it)
        ts(k, 4)
        for it in rec(w2f_tr):
            emit(k, it)
        ts(k, 3)
        ws_items = rec(w2f_stores)
        nfirst = g("gsplit", 0)
        for it in ws_items[:nfirst]:
            emit(k, it)
        k.wait(vm="t1s")
        k("s_barrier")
        publish(k, WS_F0)
        ts(k, 5)
        for it in ws_items[nfirst:]:
            emit(k, it)
        ts(k, 2)
        for it in rec(h_loads):
            emit(k, it)
        k.wait(vm="w2s")
        k("s_barrier")
        publish(k, WS_F0B, 224)
        ts(k, 6)
        gate_loads(k)
        for it in rec(build_copies) + rec(conv_addr):
            emit(k, it)
        poll_issue(k, 62, 56, WS_F0, "p0b")
        gate_compute(k)
        poll_check(k, 62, 56, WS_F0, "p0b", "hi")
        k("s_barrier")
        w2f_cons_setup(k)
        allw = rec(w2f_cons_loads)
        for it in allw[:len(allw) - nleft]:
            emit(k, it)
        poll_issue(k, 62, 56, WS_F0, "p0")
        poll_check(k, 62, 56, WS_F0, "p0", "lo")
        k("s_barrier")
        ts(k, 14)
        for it in rec(kv_loads):
            emit(k, it)
    kv_write(k)
    ts(k, 16)
    k.wait_all(vm=True, lg=True)
    k("JOIN:")
    k.vm = vm_join
    k.lg = ["x"]
    k.wait_all(vm=False, lg=True)
    PUB1 = g("pub1", 54)
    if PUB1 < 0:
        k.wait(vm="hs")
    k("s_barrier")
    ts(k, 17)
    if PUB1 < 0:
        publish(k, WS_F1)
    POLL1 = g("poll1", 100)
    CHK1 = g("chk1", -1)
    depth = 16
    fg = Rec()
    bg = Rec()
    g2_setup(fg)
    fg.period(g("p_cv", 32))

    def hook(n):
        if n == PUB1:
            fg.wait(vm="hs")
            fg("s_barrier")
            ts(fg, 18)
            publish(fg, WS_F1)
        if n == POLL1:
            poll_issue(fg, 62, 57, WS_F1, "p1")
        if n == CHK1:
            poll_check(fg, 62, 57, WS_F1, "p1")
            fg("s_barrier")
            fg.mark("f1ok")
            ts(fg, 20)
    conv_main(fg, hook)
    ts(fg, 19)

    def prebar():
        if CHK1 < 0:
            poll_check(fg, 62, 57, WS_F1, "p1")
            ts(fg, 20)
    fg.period(g("p_ce", 32))
    conv_epilogue(fg, prebar)
    ts(fg, 21)
    hf_loads(bg, depth, "cvbar" if CHK1 < 0 else "f1ok")
    epl = Rec()
    g2_ep_loads_plain(epl, after="epaddr")
    eps = Rec()
    g2_ep_loads_sc1(eps, after=f"g2_{max(15, g('ysy', 15))}" if g("ytag", 0) else "f2ok")
    PUB2 = g("pub2", 4)
    POLL2 = g("poll2", 16)
    CHK2 = g("chk2", 22)
    EPQ = g("epq", 8)
    hfi = bg.items
    pos = min(2 * (EPQ + depth), len(hfi))
    bgall = hfi[:pos] + epl.items + hfi[pos:] + eps.items
    fg.period(g("p_g2", 32))

    def h_pub2():
        fg.wait(vm="ys")
        fg("s_barrier")
        ts(fg, 22)
        publish(fg, WS_F2)

    def h_chk2():
        poll_check(fg, 62, 61, WS_F1, "p2")
        fg("s_barrier")
        fg.mark("f2ok")
        ts(fg, 23)
    hooks = {}
    addh(hooks, 0, lambda: (g2_ep_addr(fg), fg.mark("epaddr")))
    if not g("ytag", 0):
        addh(hooks, PUB2, h_pub2)
        addh(hooks, POLL2, lambda: poll_issue(fg, 62, 61, WS_F1, "p2"))
        addh(hooks, CHK2, h_chk2)
    g2_main(fg, depth, hooks)
    ts(fg, 24)
    g2_epilogue(fg)
    ts(fg, 26)
    conflicts("g2", fg.items, W.bg + bgall,
              ok=[("a", 0, 223), ("v", 128, 255), ("v", 62, 62), ("s", 80, 86), ("v", 8, 32), ("v", 45, 48), ("s", 94, 94)])
    W.push(bgall)
    W.log = []
    W.run(fg.items)
    print("JOIN path marks:", W.log, "bg left:", len(W.bg))
    assert not W.bg
    k("s_or_b32 s74, s2, s4")
    k("s_cmp_eq_u32 s74, 0")
    k("s_cbranch_scc0 NOEP")
    k("s_add_u32 s96, s96, 1")
    k("v_mov_b32 v62, s96")
    k(f"s_mov_b32 s97, {WS_EPOCH}")
    k("s_mov_b64 exec, 1")
    k(f"buffer_store_dword v62, off, {S(SWS)}, s97")
    k("s_mov_b64 exec, -1")
    k("NOEP:")
    k.wait_all()
    ts_final(k, cfg, 27)
    k("s_waitcnt vmcnt(0)")
    if g("ampn"):
        k(f"s_cmp_eq_u32 s2, {g('ampw', 0)}")
        k(f"s_cbranch_scc0 {END}")
        k("s_cmp_eq_u32 s4, 0")
        k(f"s_cbranch_scc0 {END}")
        k(f"v_readlane_b32 s10, v63, {g('ampa', 0)}")
        k(f"v_readlane_b32 s11, v63, {g('ampb', 27)}")
        k("s_sub_u32 s11, s11, s10")
        k("s_min_u32 s11, s11, 4000")
        k(f"s_mul_i32 s11, s11, {g('ampn')}")
        k("s_memrealtime s[12:13]")
        k("s_waitcnt lgkmcnt(0)")
        k("s_mov_b32 s14, s12")
        k("s_mov_b32 s15, 0x40000")
        k("AMPL:")
        k("s_memrealtime s[12:13]")
        k("s_waitcnt lgkmcnt(0)")
        k("s_sub_u32 s16, s12, s14")
        k("s_cmp_ge_u32 s16, s11")
        k(f"s_cbranch_scc1 {END}")
        k("s_sub_u32 s15, s15, 1")
        k("s_cbranch_scc0 AMPL")
    k(f"{END}:")
    k("s_endpgm")
    k("K_CODE_END:")
    return k


def build(cfg):
    hdr = open("cdna_kernels/" + NAME + ".s.ref").read().split("; Override")[0]
    out = [hdr.rstrip("\n")]
    out.append("; @launch grid=(256,1,1) block=(256,1,1) lds=163840")
    out.append('.amdgcn_target "amdgcn-amd-amdhsa--gfx950"\n.text')
    k = gen_full(cfg)
    lab = NAME + "_kernel"
    out.append(G.khead(lab) + k.text())
    out.append('.section .rodata,"a"\n.p2align 6')
    out.append(G.kdesc(lab))
    return "\n".join(out) + "\n"


if __name__ == "__main__":
    path = sys.argv[1]
    cfg = {}
    for a in sys.argv[2:]:
        kk, vv = a.split("=")
        cfg[kk] = int(vv)
    txt = build(cfg)
    open(path, "w").write(txt)
    print("bytes", len(txt))
```

```python
import sys
from asmlib import K
import gen as G
from gen import (S, V, A, srd, unpack_lo, unpack_hi, NAME, SQ, SK, SV, SW1, SW2, SOUT, SWS, STMP,
                 P_Q, P_K, P_V, P_SHIFT, P_SSMK, P_SSMD, P_W1, P_B1, P_W2, P_B2, P_GATE, P_OUT, P_WS,
                 COPY_O, COPY_STRIDE, CH_STRIDE, KV_STRIDE, conv_order, G1_ACC, G1_FR,
                 CV_ACC, CV_FA, CV_FB, G2_ACC)
from weave import Rec, Weaver, emit, flat, conflicts
import gen2
from gen2 import KT, Lbl, ts_setup, ts_final

WS_F0, WS_F1, WS_F2 = 0, 32768, 65536
WS_EPOCH = 98304
WS_F0B = 102400
WS_G = 0x20000
WS_KVR = 1 << 20
WS_W2F = 3 << 20
WS_HF = 5 << 20
WS_YT = 13 << 20
WS_TS = 15 << 20
WS_SIZE = 32 << 20
WS_YT2 = 24 << 20

L_W2S = 73728
L_KV = 139264
L_H = 0
L_PART = 98304
L_RED = 0
L_YL = 49152

NONCE = 3
SPIN = 1 << 15
OOB = 0x40000000
SDMA = 22
SC_ST = 300
CFG = {}


def ts(k, idx):
    if not CFG.get("ts"):
        return
    if isinstance(k, Rec):
        k.fn(lambda kk: gen2.ts(kk, CFG, idx))
    else:
        gen2.ts(k, CFG, idx)


def vm(k, s, tag, cost=None):
    if isinstance(k, Rec):
        k.vmem(s, tag, cost)
    else:
        k.vmem(s, tag)


class nullatom:
    def __enter__(self):
        return self

    def __exit__(self, *a):
        return False


def atom(k, after=None, cost=None):
    return k.atom(after, cost) if isinstance(k, Rec) else nullatom()


def publish(k, wsoff, sub=0):
    l = Lbl.new("PUB")
    wsoff -= 128 * sub
    with atom(k):
        k("s_cmp_eq_u32 s4, 0")
        k(f"s_cbranch_scc0 {l}")
        k("s_lshl_b32 s97, s2, 7")
        k(f"s_add_u32 s97, s97, {wsoff}")
        k(f"v_mov_b32 v62, s{NONCE}")
        k("s_mov_b64 exec, 1")
        k(f"buffer_store_dword v62, off, {S(SWS)}, s97 sc1")
        k("s_mov_b64 exec, -1")
        k(f"{l}:")


def poll_issue(k, vreg, voff, wsoff, tag, after=None):
    with atom(k, after):
        k(f"s_mov_b32 s94, {wsoff}")
        vm(k, f"buffer_load_dword v{vreg}, v{voff}, {S(SWS)}, s94 offen sc1", tag, 40)


def poll_check(k, vreg, voff, wsoff, tag, half=None):
    ok, rt = Lbl.new("POK"), Lbl.new("PRT")

    def test():
        k(f"v_cmp_ne_u32 vcc, s{NONCE}, v{vreg}")
        if half is None:
            k(f"s_cbranch_vccz {ok}")
        else:
            k(f"s_cmp_eq_u32 vcc_{half}, 0")
            k(f"s_cbranch_scc1 {ok}")
    with atom(k):
        k.wait(vm=tag)
        k("s_cmp_eq_u32 s4, 0")
        k(f"s_cbranch_scc0 {ok}")
        test()
        k(f"s_mov_b32 s97, {wsoff}")
        k(f"s_mov_b32 s101, {SPIN}")
        k(f"{rt}:")
        k("s_sleep 1")
        k(f"buffer_load_dword v{vreg}, v{voff}, {S(SWS)}, s97 offen sc1")
        k("s_waitcnt vmcnt(0)")
        test()
        k("s_sub_u32 s101, s101, 1")
        k(f"s_cbranch_scc0 {rt}")
        k(f"{ok}:")


def prologue(k, endlabel):
    k("s_cmp_ge_u32 s2, 256")
    k(f"s_cbranch_scc1 {endlabel}")
    k("s_load_dwordx16 s[44:59], s[0:1], 0")
    k("s_load_dwordx8 s[60:67], s[0:1], 64")
    k("s_load_dwordx4 s[68:71], s[0:1], 96")
    k("s_load_dwordx2 s[72:73], s[0:1], 112")
    k("v_lshrrev_b32 v1, 6, v0")
    k("s_nop 0")
    k("v_readfirstlane_b32 s4, v1")


def code_prefetch(k):
    lab = NAME + "_kernel"
    k("s_getpc_b64 s[84:85]")
    k("PF_PC:")
    k(f"s_sub_u32 s84, s84, PF_PC-{lab}")
    k("s_subb_u32 s85, s85, 0")
    k(f"s_mov_b32 s86, K_CODE_END-{lab}")
    k("s_mov_b32 s87, 0x00020000")
    k("s_lshr_b32 s88, s2, 3")
    k("s_lshl_b32 s88, s88, 2")
    k("s_add_u32 s88, s88, s4")
    k(f"s_and_b32 s88, s88, {CFG.get('pfmask', 63)}")
    k("s_lshl_b32 s88, s88, 10")
    k("v_and_b32 v2, 63, v0")
    k("v_lshlrev_b32 v2, 4, v2")
    k("v_add_u32 v2, s88, v2")
    k.vmem("buffer_load_dwordx4 a[252:255], v2, s[84:87], 0 offen", "icpf")


SRDS = [(SQ, P_Q, 2 << 20), (SW1, P_W1, 512 * 1792 * 2), (SK, P_K, 2 << 20), (SV, P_V, 2 << 20),
        (SW2, P_W2, 512 * 1792 * 2), (SOUT, P_OUT, 2 << 20), (SWS, P_WS, WS_SIZE)]


def srd_consts(k):
    for d, p, n in SRDS:
        k(f"s_mov_b32 s{d+2}, {n}")
        k(f"s_mov_b32 s{d+3}, 0x00020000")
    k(f"s_mov_b32 s{STMP+3}, 0x00020000")


def srd_ptrs(k, which):
    for d, p, n in SRDS:
        if d in which:
            k(f"s_mov_b32 s{d}, s{p}")
            k(f"s_mov_b32 s{d+1}, s{p+1}")


def stmp(k, ptr, nbytes):
    k(f"s_mov_b32 s{STMP}, s{ptr}")
    k(f"s_mov_b32 s{STMP+1}, s{ptr+1}")
    k(f"s_mov_b32 s{STMP+2}, {nbytes}")


def nonce(k):
    k(f"s_mul_i32 s{NONCE}, s96, 0x9E3779B1")
    k(f"s_add_u32 s{NONCE}, s{NONCE}, 0x85EBCA6B")


T1_KR, T1_VR, T1_WR = 224, 235, 244
T1_K, T1_W, T1_A, T1_V, T1_O = 128, 150, 30, 128, 144


def t1_addr(k):
    k.c("---- T1 addresses ----")
    k("s_lshr_b32 s84, s2, 5")
    k("s_and_b32 s85, s2, 31")
    k("s_lshl_b32 s85, s85, 6")
    k("s_and_b32 s74, s4, 1")
    k("s_lshr_b32 s75, s4, 1")
    k("s_lshl_b32 s76, s74, 5")
    k("s_add_u32 s76, s76, s85")
    k("s_sub_u32 s77, s76, 3")
    k("s_lshl_b32 s77, s77, 10")
    k("s_lshl_b32 s78, s84, 7")
    k("s_add_u32 s77, s77, s78")
    k("s_lshl_b32 s78, s75, 6")
    k("s_add_u32 s77, s77, s78")
    k("v_and_b32 v15, 15, v0")
    k("v_bfe_u32 v16, v0, 4, 2")
    k("v_lshlrev_b32 v10, 13, v16")
    k("v_lshl_add_u32 v10, v15, 2, v10")
    k("v_add_u32 v10, s77, v10")
    k("v_add_u32 v11, 1024, v10")
    k("v_add_u32 v12, 2048, v10")
    k("v_add_u32 v13, 3072, v10")
    k("v_add_u32 v14, 7168, v10")
    k("v_lshlrev_b32 v17, 4, v15")
    k("s_lshl_b32 s78, s84, 9")
    k("s_lshl_b32 s79, s75, 8")
    k("s_add_u32 s7, s78, s79")
    k("v_sub_u32 v16, 3, v16")
    k("v_lshlrev_b32 v16, 4, v16")
    k("v_lshl_add_u32 v18, v15, 13, v16")
    k("s_lshl_b32 s78, s84, 18")
    k("s_lshl_b32 s79, s75, 17")
    k("s_add_u32 s78, s78, s79")
    k("s_sub_u32 s79, 2016, s76")
    k("s_lshl_b32 s79, s79, 1")
    k("s_add_u32 s78, s78, s79")
    k(f"s_add_u32 s95, s78, {WS_KVR}")


def t1_loads(k, cost=32):
    if CFG.get("x_not1"):
        return
    def ad(j):
        if j < 3:
            return 10 + j, 0
        if j < 7:
            return 13, (j - 3) * 1024
        return 14, (j - 7) * 1024
    with atom(k):
        stmp(k, P_SHIFT, 512 * 4 * 2)
        vm(k, f"buffer_load_dwordx4 {V(T1_WR,4)}, v17, {S(STMP)}, s7 offen", "t1", 64)
    for j in range(11):
        r, o = ad(j)
        vm(k, f"buffer_load_dword v{T1_KR+j}, v{r}, {S(SK)}, 0 offen offset:{o}", "t1", cost)
    for i in range(8):
        r, o = ad(i + 3)
        vm(k, f"buffer_load_dword v{T1_VR+i}, v{r}, {S(SV)}, 0 offen offset:{o}", "t1", cost)


def t1_compute(k):
    k.c("---- T1 compute ----")
    if CFG.get("x_not1"):
        for _ in range(16):
            k("s_nop 0")
        return
    k.wait(vm="t1")
    for m in range(4):
        up = unpack_hi if m & 1 else unpack_lo
        up(k, T1_W + 2 * m, T1_WR + (m >> 1))
        up(k, T1_W + 2 * m + 1, T1_WR + 2 + (m >> 1))
    for j in range(11):
        unpack_lo(k, T1_K + 2 * j, T1_KR + j)
        unpack_hi(k, T1_K + 2 * j + 1, T1_KR + j)
    for m in range(4):
        for i in range(8):
            d = T1_A + 2 * i
            a = T1_K + 2 * (i + 3 - m)
            w = T1_W + 2 * m
            if m == 0:
                k(f"v_pk_mul_f32 {V(d,2)}, {V(a,2)}, {V(w,2)}")
            else:
                k(f"v_pk_fma_f32 {V(d,2)}, {V(a,2)}, {V(w,2)}, {V(d,2)}")
    for i in range(8):
        unpack_lo(k, T1_V + 2 * i, T1_VR + i)
        unpack_hi(k, T1_V + 2 * i + 1, T1_VR + i)
    for i in range(8):
        d = T1_A + 2 * i
        k(f"v_pk_mul_f32 {V(d,2)}, {V(d,2)}, {V(T1_V+2*i,2)}")
    for c in range(2):
        for jj in range(4):
            k(f"v_cvt_pk_bf16_f32 v{T1_O+4*c+jj}, v{T1_A+2*(7-2*jj)+c}, v{T1_A+2*(6-2*jj)+c}")
        with atom(k):
            if c:
                k("s_add_u32 s95, s95, 4096")
            vm(k, f"buffer_store_dwordx4 {V(T1_O+4*c,4)}, v18, {S(SWS)}, s95 offen sc1", "t1s", SC_ST)


W2T = 64


def w2f_addr(k):
    k.c("---- W2F producer addresses ----")
    k("s_lshr_b32 s92, s2, 3")
    k("s_sub_u32 s92, s92, 28")
    k("s_mul_i32 s92, s92, 28")
    k("s_mul_i32 s93, s4, 7")
    k("s_add_u32 s92, s92, s93")
    k("s_and_b32 s93, s2, 7")
    k("s_lshl_b32 s21, s93, 7")
    k("s_add_u32 s21, s21, s92")
    k("s_lshl_b32 s21, s21, 11")
    k(f"s_add_u32 s21, s21, {WS_W2F}")
    k("s_lshl_b32 s93, s93, 7")
    k("s_lshl_b32 s92, s92, 14")
    k("s_add_u32 s93, s93, s92")
    k("v_and_b32 v23, 63, v0")
    k("v_lshrrev_b32 v19, 3, v23")
    k("v_and_b32 v20, 7, v23")
    k("v_bfe_u32 v21, v23, 4, 1")
    k("v_lshlrev_b32 v21, 2, v21")
    k("v_xor_b32 v20, v20, v21")
    k("v_lshlrev_b32 v20, 4, v20")
    k("v_lshl_add_u32 v19, v19, 10, v20")
    k("s_mul_i32 s92, s4, 14336")
    k(f"s_add_u32 s92, s92, {L_W2S}")
    k("v_and_b32 v20, 15, v23")
    k("v_lshrrev_b32 v21, 5, v23")
    k("v_lshrrev_b32 v22, 2, v20")
    k("v_lshl_add_u32 v21, v21, 2, v22")
    k("v_lshlrev_b32 v21, 7, v21")
    k("v_bfe_u32 v22, v23, 4, 1")
    k("v_lshlrev_b32 v22, 1, v22")
    k("v_bfe_u32 v24, v20, 1, 1")
    k("v_add_u32 v22, v22, v24")
    k("v_bfe_u32 v24, v20, 3, 1")
    k("v_lshl_add_u32 v22, v24, 2, v22")
    k("v_lshl_add_u32 v21, v22, 4, v21")
    k("v_and_b32 v24, 1, v20")
    k("v_lshl_add_u32 v20, v24, 3, v21")
    k("v_add_u32 v20, s92, v20")
    k("v_xor_b32 v21, 64, v20")
    k("v_lshlrev_b32 v22, 4, v23")


def w2f_dma(k):
    for j in range(7):
        for h in range(2):
            with atom(k):
                k(f"s_add_u32 m0, s92, {2048*j + 1024*h}")
                k(f"s_add_u32 s{SDMA}, s93, {16384*j + 8192*h}")
                vm(k, f"buffer_load_dwordx4 v19, {S(SW2)}, s{SDMA} offen lds", f"w2d{j}")


def w2f_tr(k):
    for j in range(7):
        k.wait(vm=f"w2d{j}")
        for nb in range(2):
            for hf in range(2):
                k.ds(f"ds_read_b64_tr_b16 {V(W2T + 8*j + 4*nb + 2*hf, 2)}, v{20+nb} offset:{2048*j + 1024*hf}", f"w2t{j}")


def w2f_stores(k):
    for j in range(7):
        for nb in range(2):
            with atom(k):
                if nb == 0:
                    k.wait(lg=f"w2t{j}")
                    if j and j % 2 == 0:
                        k("s_add_u32 s21, s21, 4096")
                vm(k, f"buffer_store_dwordx4 {V(W2T+8*j+4*nb,4)}, v22, {S(SWS)}, s21 offen offset:{1024*nb + 2048*(j&1)} sc1",
                   "w2s", 120)


L_STG = 131072
W2P = 128


def w2p_vaddr(k):
    k("v_and_b32 v135, 63, v0")
    k(f"v_lshrrev_b32 v{W2P}, 3, v135")
    k("v_and_b32 v132, 7, v135")
    k("v_bfe_u32 v133, v135, 4, 1")
    k("v_lshlrev_b32 v133, 2, v133")
    k("v_xor_b32 v132, v132, v133")
    k("v_lshlrev_b32 v132, 4, v132")
    k(f"v_lshl_add_u32 v{W2P}, v{W2P}, 10, v132")
    k("s_lshl_b32 s74, s4, 11")
    k(f"s_add_u32 s74, s74, {L_STG}")
    k("v_and_b32 v132, 15, v135")
    k("v_lshrrev_b32 v133, 5, v135")
    k("v_lshrrev_b32 v134, 2, v132")
    k("v_lshl_add_u32 v133, v133, 2, v134")
    k("v_lshlrev_b32 v133, 7, v133")
    k("v_bfe_u32 v134, v135, 4, 1")
    k("v_lshlrev_b32 v134, 1, v134")
    k("v_bfe_u32 v136, v132, 1, 1")
    k("v_add_u32 v134, v134, v136")
    k("v_bfe_u32 v136, v132, 3, 1")
    k("v_lshl_add_u32 v134, v136, 2, v134")
    k("v_lshl_add_u32 v133, v134, 4, v133")
    k("v_and_b32 v136, 1, v132")
    k("v_lshl_add_u32 v133, v136, 3, v133")
    k(f"v_add_u32 v{W2P+1}, s74, v133")
    k(f"v_xor_b32 v{W2P+2}, 64, v{W2P+1}")
    k(f"v_lshlrev_b32 v{W2P+3}, 4, v135")


def w2p_dma(k):
    k("s_lshr_b32 s70, s2, 3")
    k("s_lshl_b32 s70, s70, 2")
    k("s_add_u32 s70, s70, s4")
    k("s_and_b32 s71, s2, 7")
    k("s_lshl_b32 s21, s71, 7")
    k("s_add_u32 s21, s21, s70")
    k("s_lshl_b32 s21, s21, 11")
    k(f"s_add_u32 s21, s21, {WS_W2F}")
    k("s_lshl_b32 s71, s71, 7")
    k("s_lshl_b32 s70, s70, 14")
    k("s_add_u32 s71, s71, s70")
    k("s_lshl_b32 s70, s4, 11")
    k(f"s_add_u32 s70, s70, {L_STG}")
    for h in range(2):
        k(f"s_add_u32 m0, s70, {1024*h}")
        k(f"s_add_u32 s{SDMA}, s71, {8192*h}")
        k.vmem(f"buffer_load_dwordx4 v{W2P}, {S(SW2)}, s{SDMA} offen lds", "w2d")


def w2p_out(k):
    k.wait(vm="w2d")
    for nb in range(2):
        for hf in range(2):
            k.ds(f"ds_read_b64_tr_b16 {V(W2P + 4 + 4*nb + 2*hf, 2)}, v{W2P+1+nb} offset:{1024*hf}", f"w2t{nb}")
    for nb in range(2):
        k.wait(lg=f"w2t{nb}")
        vm(k, f"buffer_store_dwordx4 {V(W2P+4+4*nb,4)}, v{W2P+3}, {S(SWS)}, s21 offen offset:{1024*nb} sc1", "w2s", 120)


def w2f_cons_setup(k):
    k("s_lshr_b32 s92, s2, 5")
    k("s_lshl_b32 s92, s92, 7")
    k("s_mul_i32 s93, s4, 28")
    k("s_add_u32 s92, s92, s93")
    k("s_lshl_b32 s92, s92, 11")
    k(f"s_add_u32 s92, s92, {WS_W2F}")
    k("s_and_b32 s93, s4, 1")
    k("s_lshl_b32 s93, s93, 10")
    k("s_add_u32 s92, s92, s93")
    kr = CFG.get("krot", 0)
    if kr:
        k("s_lshr_b32 s70, s2, 5")
        if kr == 1:
            k("s_bfe_u32 s93, s2, 0x20003")
            k("s_lshl_b32 s93, s93, 1")
            k("s_add_u32 s70, s70, s93")
        elif kr == 3:
            k("s_bfe_u32 s93, s2, 0x20003")
            k("s_add_u32 s70, s70, s93")
        k("s_cmp_ge_u32 s70, 7")
        k("s_cselect_b32 s93, 7, 0")
        k("s_sub_u32 s70, s70, s93")
        k("s_lshl_b32 s93, s70, 13")
        k("s_add_u32 s92, s92, s93")
    k("s_xor_b32 s93, s92, 1024")


def w2f_cons_loads(k, after=None):
    for ii in range(28):
        for a in range(2):
            with atom(k, after):
                if CFG.get("krot") and ii and ii % 4 == 0:
                    if a == 0:
                        k(f"s_cmp_eq_u32 s70, {7 - ii//4}")
                        k(f"s_cselect_b32 s21, {(-7*8192) & 0xffffffff}, 0")
                        k("s_add_u32 s21, s21, 4096")
                        k("s_add_u32 s92, s92, s21")
                        k("s_add_u32 s93, s93, s21")
                elif ii and ii % 2 == 0:
                    k(f"s_add_u32 s{92+a}, s{92+a}, 4096")
                vm(k, f"buffer_load_dwordx4 {A(8*ii+4*a,4)}, v58, {S(SWS)}, s{92+a} offen offset:{2048*(ii%2)} sc1",
                   f"wf{ii}")


HW = 30


def h_setup(k):
    k("s_lshl_b32 s74, s2, 13")
    for ch in range(2):
        d = 84 + 4 * ch
        k(f"s_add_u32 s{d}, s{P_SSMK}, s74")
        k(f"s_addc_u32 s{d+1}, s{P_SSMK+1}, 0")
        k(f"s_mov_b32 s{d+2}, 4096")
        k(f"s_mov_b32 s{d+3}, 0x00020000")
        if ch == 0:
            k("s_add_u32 s74, s74, 4096")
    k("v_lshlrev_b32 v46, 4, v0")
    k("v_add_u32 v47, -16, v46")


def h_loads(k, after=None):
    for ch in range(2):
        with atom(k, after):
            vm(k, f"buffer_load_dwordx4 {V(HW+8*ch,4)}, v47, {S(84+4*ch)}, 0 offen", "hw")
        with atom(k, after):
            vm(k, f"buffer_load_dwordx4 {V(HW+4+8*ch,4)}, v46, {S(84+4*ch)}, 0 offen", "hw")


def kv_zero(k):
    for i in range(4):
        k(f"v_mov_b32 v{48+i}, 0")
    k(f"v_add_u32 v52, {L_KV + 4096}, v46")
    with atom(k):
        k("v_cmp_gt_u32 vcc, 32, v0")
        k("s_and_saveexec_b64 s[74:75], vcc")
        for ch in range(2):
            k.ds(f"ds_write_b128 v52, {V(48,4)} offset:{ch*KV_STRIDE}", "kvz")
        k("s_mov_b64 exec, s[74:75]")


def build_copies(k):
    k.wait(vm="hw")
    k(f"v_add_u32 v52, {L_H + 16}, v46")
    k(f"v_add_u32 v53, {L_H + 16 + CH_STRIDE}, v46")
    for ch in range(2):
        w = HW + 8 * ch
        t = (128, 224)[ch]
        R, P, Q = t, t + 6, t + 12
        src = {0: w, 4: w + 2, 2: R, 6: R + 2, 1: P, 5: P + 2, 3: Q, 7: Q + 2}

        def wr(s):
            k.ds(f"ds_write_b128 v{52+ch}, {V(src[s],4)} offset:{s*COPY_STRIDE + 16*COPY_O[s]}", "hwr")
        wr(0)
        wr(4)
        for j in range(6):
            k(f"v_mov_b32 v{R+j}, v{w+j+1}")
        wr(2)
        wr(6)
        for j in range(6):
            k(f"v_alignbyte_b32 v{P+j}, v{w+j+1}, v{w+j}, 2")
        wr(1)
        wr(5)
        for j in range(6):
            k(f"v_alignbyte_b32 v{Q+j}, v{w+j+2}, v{w+j+1}, 2")
        wr(3)
        wr(7)
    with atom(k):
        k("s_mov_b32 s76, 255")
        k("v_cmp_eq_u32 vcc, s76, v0")
        k("s_and_saveexec_b64 s[74:75], vcc")
        for ch in range(2):
            k.ds(f"ds_write_b128 v{52+ch}, {V(HW+8*ch+4,4)} offset:{16 + 16*COPY_O[0]}", "hwr")
        k("s_mov_b64 exec, s[74:75]")
    with atom(k):
        lut = sum(o << (4 * i) for i, o in enumerate(COPY_O))
        k(f"s_mov_b32 s76, {lut}")
        k("v_lshlrev_b32 v54, 2, v0")
        k("v_bfe_u32 v54, s76, v54, 4")
        k("v_lshlrev_b32 v54, 4, v54")
        k(f"v_mul_u32_u24 v55, {COPY_STRIDE}, v0")
        k("v_add_u32 v54, v54, v55")
        k(f"v_add_u32 v54, {L_H}, v54")
        k("v_cmp_gt_u32 vcc, 8, v0")
        k("s_and_saveexec_b64 s[74:75], vcc")
        k.ds(f"ds_write_b128 v54, {V(48,4)}", "hwr")
        k.ds(f"ds_write_b128 v54, {V(48,4)} offset:{CH_STRIDE}", "hwr")
        k("s_mov_b64 exec, s[74:75]")


KVR = 244


def kv_loads(k, after=None):
    with atom(k, after):
        k("s_lshl_b32 s94, s2, 13")
        k(f"s_add_u32 s94, s94, {WS_KVR}")
        vm(k, f"buffer_load_dwordx4 {V(KVR,4)}, v46, {S(SWS)}, s94 offen sc1", "kv")
    with atom(k, after):
        k("s_lshl_b32 s94, s2, 13")
        k(f"s_add_u32 s94, s94, {WS_KVR + 4096}")
        vm(k, f"buffer_load_dwordx4 {V(KVR+4,4)}, v46, {S(SWS)}, s94 offen sc1", "kv")


def kv_write(k):
    k(f"v_add_u32 v54, {L_KV}, v46")
    k.wait(vm="kv")
    for ch in range(2):
        k.ds(f"ds_write_b128 v54, {V(KVR+4*ch,4)} offset:{ch*KV_STRIDE}", "kvw")


def flag_addrs(k):
    k("v_and_b32 v58, 63, v0")
    k("s_lshr_b32 s75, s2, 5")
    k("s_lshl_b32 s74, s75, 5")
    k("v_and_b32 v59, 31, v58")
    k("v_add_u32 v61, s74, v59")
    if CFG.get("dist"):
        k("v_min_u32 v60, 27, v59")
    else:
        k("v_and_b32 v60, 3, v58")
    k("v_lshlrev_b32 v60, 3, v60")
    k(f"s_add_u32 s75, s75, {(WS_F0B - WS_F0) // 128}")
    k("v_add_u32 v60, s75, v60")
    k("v_cmp_gt_u32 vcc, 32, v58")
    k("v_cndmask_b32 v56, v60, v61, vcc")
    k("v_lshlrev_b32 v56, 7, v56")
    k(f"v_add_u32 v61, {(WS_F2 - WS_F1) // 128}, v61")
    k("v_add_u32 v59, 224, v59")
    k("v_cndmask_b32 v61, v59, v61, vcc")
    k("v_lshlrev_b32 v61, 7, v61")
    k("s_and_b32 s74, s2, 7")
    k("s_lshl_b32 s74, s74, 2")
    k("s_lshr_b32 s75, s2, 3")
    k("s_and_b32 s75, s75, 3")
    k("s_add_u32 s74, s74, s75")
    k("s_lshr_b32 s75, s74, 1")
    if CFG.get("xm"):
        k("s_lshr_b32 s76, s75, 1")
        k("s_and_b32 s77, s75, 1")
        k("s_lshl_b32 s77, s77, 3")
        k("s_add_u32 s76, s76, s77")
        k("v_lshlrev_b32 v60, 4, v58")
    else:
        k("s_lshr_b32 s76, s75, 2")
        k("s_lshl_b32 s76, s76, 1")
        k("s_and_b32 s77, s75, 3")
        k("s_lshl_b32 s77, s77, 3")
        k("s_add_u32 s76, s76, s77")
        k("v_cmp_lt_u32 vcc, 6, v58")
        k("v_cndmask_b32 v59, 0, 1, vcc")
        k("v_mul_u32_u24 v60, 7, v59")
        k("v_sub_u32 v60, v58, v60")
        k("v_lshlrev_b32 v60, 5, v60")
        k("v_add_u32 v60, v60, v59")
    k("v_cmp_gt_u32 vcc, 14, v58")
    k("v_cndmask_b32 v60, 0, v60, vcc")
    k("v_add_u32 v60, s76, v60")
    k("v_lshlrev_b32 v57, 7, v60")
    with atom(k):
        k("s_cmp_eq_u32 s4, 0")
        k(f"s_cselect_b32 s74, 0, {OOB}")
    k("v_or_b32 v56, s74, v56")
    k("v_or_b32 v57, s74, v57")
    k("v_or_b32 v61, s74, v61")
    k("v_lshlrev_b32 v58, 4, v58")


BA0, BB1 = 248, 20


def rot_setup(k):
    m = CFG.get("rot", 0)
    if not m:
        return
    k("s_lshr_b32 s20, s2, 3")
    if m == 1:
        k("s_and_b32 s20, s20, 7")
    elif m == 2:
        k("s_and_b32 s20, s20, 3")
        k("s_lshl_b32 s20, s20, 1")
    elif m == 3:
        k("s_lshr_b32 s20, s20, 2")
    elif m == 4:
        k("s_lshr_b32 s20, s20, 2")
        k("s_and_b32 s20, s20, 1")
        k("s_lshl_b32 s20, s20, 2")
    elif m == 5:
        k("s_and_b32 s20, s20, 1")
        k("s_lshl_b32 s20, s20, 2")
    elif m == 6:
        k("s_add_u32 s20, s5, s6")
        k("s_and_b32 s20, s20, 7")
    elif m == 7:
        k("s_lshl_b32 s20, s5, 1")
        k("s_add_u32 s20, s20, s6")
        k("s_and_b32 s20, s20, 7")
    elif m == 8:
        k("s_lshr_b32 s20, s5, 2")
        k("s_lshl_b32 s20, s20, 1")
        k("s_add_u32 s20, s20, s5")
        k("s_add_u32 s20, s20, s6")
        k("s_and_b32 s20, s20, 7")


def g1_dma(k, slab, buf, after=None):
    rot = CFG.get("rot", 0)
    for i in range(4):
        with atom(k, after):
            if rot and i == 0:
                k("s_lshl_b32 s56, s20, 7")
                k("s_add_u32 s56, s56, s80")
                k("s_mul_i32 s57, s20, 229376")
                k("s_add_u32 s57, s57, s81")
                k("s_add_u32 s20, s20, 1")
                k("s_and_b32 s20, s20, 7")
            k(f"s_add_u32 m0, s82, {buf + 1024*i}")
            if rot:
                k(f"s_add_u32 s{SDMA}, s56, {8192*i}")
            else:
                k(f"s_add_u32 s{SDMA}, s80, {8192*i + 128*slab}")
            vm(k, f"buffer_load_dwordx4 v{1 + (i&1)}, {S(SQ)}, s{SDMA} offen lds", f"slab{slab}")
    for i in range(4):
        with atom(k, after):
            k(f"s_add_u32 m0, s82, {buf + 16384 + 1024*i}")
            if rot:
                k(f"s_add_u32 s{SDMA}, s57, {4*i*3584}")
            else:
                k(f"s_add_u32 s{SDMA}, s81, {(64*slab + 4*i)*3584}")
            vm(k, f"buffer_load_dwordx4 v3, {S(SW1)}, s{SDMA} offen lds", f"slab{slab}")


def bias_addr(k):
    k("v_lshlrev_b32 v19, 1, v10")
    k("v_cmp_gt_u32 vcc, 32, v10")
    k(f"v_mov_b32 v20, {OOB}")
    k("v_cndmask_b32 v19, v20, v19, vcc")
    k("v_mov_b32 v20, 0")
    k("v_mov_b32 v21, 0x3f80")
    k(f"v_cndmask_b32 v{BB1}, v20, v21, vcc")
    for r in (BB1 + 1, BB1 + 2, BB1 + 3, BA0 + 1, BA0 + 2, BA0 + 3, BA0 + 5, BA0 + 6, BA0 + 7):
        k(f"v_mov_b32 v{r}, 0")
    k("s_lshl_b32 s76, s6, 8")
    k("s_and_b32 s77, s4, 1")
    k("s_lshl_b32 s77, s77, 7")
    k("s_add_u32 s83, s76, s77")


def bias_loads(k):
    with atom(k):
        stmp(k, P_B1, 1792 * 2)
        vm(k, f"buffer_load_ushort v{BA0}, v19, {S(STMP)}, s83 offen", "bias", 32)
    with atom(k):
        vm(k, f"buffer_load_ushort v{BA0+4}, v19, {S(STMP)}, s83 offen offset:64", "bias", 32)


def bias_mfma(k):
    k.wait(vm="bias")
    for fb in range(2):
        for mb in range(2):
            d = G1_ACC + 32 * fb + 16 * mb
            k(f"v_mfma_f32_32x32x16_bf16 {V(d,16)}, {V(BA0+4*fb,4)}, {V(BB1,4)}, {V(d,16)}")


def sprinkle(k, items, per):
    q = list(items)

    def hook(n=per):
        for _ in range(n):
            if q:
                k._add(q.pop(0))
    hook.q = q
    return hook


def g1_main(k, bufs, pre, post, extra):
    nb = len(bufs)
    k.c("---- G1 main ----")
    k.wait(vm="slab0")
    k("s_barrier")
    ts(k, 6)
    G.g1_reads(k, bufs[0], 0, "r0_0")
    G.g1_reads(k, bufs[0], 1, "r0_1")
    hooks = []

    def mf(ks, first):
        fr = G1_FR + 16 * ks
        for fb in range(2):
            for mb in range(2):
                d = G1_ACC + 32 * fb + 16 * mb
                c = "0" if first else V(d, 16)
                k(f"v_mfma_f32_32x32x16_bf16 {V(d,16)}, {V(fr + 4*fb, 4)}, {V(fr + 8 + 4*mb, 4)}, {c}")
                for h in hooks:
                    if h.q:
                        h()
                        break

    for s in range(8):
        buf = bufs[s % nb]
        if ("a", s) in extra:
            hooks.append(sprinkle(k, *extra[("a", s)]))
        G.g1_reads(k, buf, 2, f"r{s}_2")
        k.wait(lg=f"r{s}_0")
        mf(0, s == 0)
        G.g1_reads(k, buf, 3, f"r{s}_3")
        k.wait(lg=f"r{s}_1")
        mf(1, False)
        if s < 7:
            if s in pre:
                pre[s]()
            k.wait(vm=f"slab{s+1}", lg=f"r{s}_3")
            k("s_barrier")
            k.mark(f"bar{s}")
            ts(k, 7 + s)
            if s in post:
                post[s]()
            if ("b", s) in extra:
                hooks.append(sprinkle(k, *extra[("b", s)]))
            nbuf = bufs[(s + 1) % nb]
            G.g1_reads(k, nbuf, 0, f"r{s+1}_0")
            mf(2, False)
            G.g1_reads(k, nbuf, 1, f"r{s+1}_1")
            mf(3, False)
        else:
            k.wait(lg=f"r{s}_2")
            mf(2, False)
            k.wait(lg=f"r{s}_3")
            mf(3, False)
    for h in hooks:
        h(10000)


def g1_epilogue(k):
    k.c("---- G1 epilogue ----")
    k("s_lshl_b32 s74, s5, 2")
    k("s_lshr_b32 s75, s4, 1")
    k("s_lshl_b32 s75, s75, 1")
    k("s_add_u32 s74, s74, s75")
    k("s_mul_i32 s74, s74, 112")
    k("s_lshl_b32 s75, s6, 3")
    k("s_add_u32 s74, s74, s75")
    k("s_and_b32 s75, s4, 1")
    k("s_lshl_b32 s75, s75, 2")
    k("s_add_u32 s74, s74, s75")
    k("s_lshl_b32 s74, s74, 10")
    k(f"s_add_u32 s78, s74, {WS_HF}")
    k(f"s_add_u32 s79, s78, {112*1024}")
    tmp = 160
    ti = 0
    for mb in range(2):
        for fb in range(2):
            acc = G1_ACC + 32 * fb + 16 * mb
            for half in range(2):
                t = tmp + 4 * ti
                ti += 1
                for r in range(8 * half, 8 * half + 8):
                    k(f"v_max_f32 v{acc+r}, 0, v{acc+r}")
                for r in range(8 * half, 8 * half + 8, 2):
                    k(f"v_pk_mul_f32 {V(acc+r,2)}, {V(acc+r,2)}, {V(acc+r,2)}")
                for i in range(4):
                    r = acc + 8 * half + 2 * i
                    k(f"v_cvt_pk_bf16_f32 v{t+i}, v{r}, v{r+1}")
                vm(k, f"buffer_store_dwordx4 {V(t,4)}, v58, {S(SWS)}, s{78+mb} offen offset:{(2*fb+half)*1024} sc1", "hs",
                   CFG.get("hscost", 200))


CA, CB = 59, 60


def conv_addr(k):
    k.c("---- conv addresses ----")
    k("v_and_b32 v10, 63, v0")
    k("v_and_b32 v11, 15, v10")
    k("v_lshrrev_b32 v12, 4, v10")
    k("v_add_u32 v13, 1, v11")
    k("v_and_b32 v14, 7, v13")
    k("v_lshrrev_b32 v15, 3, v13")
    lut = sum(o << (4 * i) for i, o in enumerate(COPY_O))
    k(f"s_mov_b32 s74, {lut}")
    k("v_lshlrev_b32 v16, 2, v14")
    k("v_bfe_u32 v16, s74, v16, 4")
    k("v_add_u32 v16, v16, v15")
    k("v_add_u32 v16, v16, v12")
    k("v_lshlrev_b32 v16, 4, v16")
    k(f"v_mul_u32_u24 v17, {COPY_STRIDE}, v14")
    k("v_add_u32 v16, v16, v17")
    k("s_lshr_b32 s75, s4, 1")
    k(f"s_mul_i32 s76, s75, {CH_STRIDE}")
    k("s_and_b32 s77, s4, 1")
    k("s_lshl_b32 s77, s77, 8")
    k("s_add_u32 s76, s76, s77")
    k(f"s_add_u32 s76, s76, {L_H}")
    k(f"v_add_u32 v{CA}, s76, v16")
    k(f"s_mul_i32 s76, s75, {KV_STRIDE}")
    k("s_add_u32 s76, s76, s77")
    k(f"s_add_u32 s76, s76, {L_KV + 480}")
    k("v_lshlrev_b32 v16, 5, v11")
    k("v_lshlrev_b32 v17, 4, v12")
    k("v_sub_u32 v16, v17, v16")
    k(f"v_add_u32 v{CB}, s76, v16")


def conv_main(k, hook):
    k.c("---- conv main ----")
    order = conv_order()
    for i in range(8):
        k.ds(f"ds_read_b128 {V(CV_FA + 4*i, 4)}, v{CA} offset:{512*i}", f"ca0_{i}")
        k.ds(f"ds_read_b128 {V(CV_FB + 4*i, 4)}, v{CB} offset:{512*(7-i)}", f"cb0_{i}")
    touched = set()
    for c0i in range(4):
        st = c0i & 1
        nxt = []
        if c0i < 3:
            for i in range(8):
                nxt.append((f"ds_read_b128 {V(CV_FA + 32*(st^1) + 4*i, 4)}, v{CA} offset:{512*i + 64*(c0i+1)}", f"ca{c0i+1}_{i}"))
                nxt.append((f"ds_read_b128 {V(CV_FB + 32*(st^1) + 4*i, 4)}, v{CB} offset:{512*(7-i) + 64*(c0i+1)}", f"cb{c0i+1}_{i}"))
        waited = set()
        for n, (d, c1) in enumerate(order):
            tags = [t for t in (f"ca{c0i}_{c1}", f"cb{c0i}_{d}") if t not in waited]
            if tags:
                k.wait(lg=tags)
                waited.update(tags)
            j = d + c1
            acc = V(CV_ACC + 4 * j, 4)
            c = acc if j in touched else "0"
            touched.add(j)
            k(f"v_mfma_f32_16x16x32_bf16 {acc}, {V(CV_FA + 32*st + 4*c1, 4)}, {V(CV_FB + 32*st + 4*d, 4)}, {c}")
            if n >= 18 and nxt:
                t, tg = nxt.pop(0)
                k.ds(t, tg)
            hook(c0i * 36 + n)


def conv_epilogue(k, prebar):
    k.c("---- conv epilogue ----")
    k("v_and_b32 v10, 63, v0")
    k("v_and_b32 v11, 15, v10")
    k("v_lshrrev_b32 v12, 4, v10")
    k("v_lshlrev_b32 v11, 6, v11")
    k("v_lshl_add_u32 v11, v12, 4, v11")
    k("s_lshl_b32 s74, s4, 13")
    k(f"s_add_u32 s74, s74, {L_PART}")
    k("v_add_u32 v11, s74, v11")
    k("s_lshr_b32 s75, s4, 1")
    for j in range(8):
        k.ds(f"ds_write_b128 v11, {V(CV_ACC + 4*j, 4)} offset:{1024*j}", "pw")
    k("v_and_b32 v1, 127, v0")
    k("v_lshlrev_b32 v2, 5, v1")
    k("s_lshl_b32 s74, s75, 14")
    k(f"s_add_u32 s74, s74, {L_PART}")
    k("v_add_u32 v2, s74, v2")
    k(f"s_mul_i32 s74, s75, {KV_STRIDE}")
    k(f"s_add_u32 s74, s74, {L_KV + 4080 - 2048}")
    k("v_lshlrev_b32 v3, 4, v1")
    k("v_sub_u32 v3, s74, v3")
    k("s_lshl_b32 s79, s75, 4")
    k("s_lshr_b32 s77, s23, s79")
    k("s_lshl_b32 s77, s77, 16")
    TCH = CFG.get("tch", 0)
    if TCH:
        k("v_min_u32 v126, 55, v10")
        k("v_lshlrev_b32 v126, 7, v126")
        k("s_lshl_b32 s87, s6, 2")
        k("s_add_u32 s87, s87, s4")
        k("s_mul_i32 s87, s87, 7168")
        k("s_mul_i32 s76, s5, 229376")
        k("s_add_u32 s87, s87, s76")
        k(f"s_add_u32 s87, s87, {WS_HF}")
    k.wait(lg="pw")
    prebar()
    k("s_barrier")
    if TCH:
        vm(k, f"buffer_load_dword v127, v126, {S(SWS)}, s87 offen sc1", "tch", 40)
    k.mark("cvbar")
    for seg in range(2):
        b = 8 + 24 * seg
        for p in range(2):
            for hh in range(2):
                k.ds(f"ds_read_b128 {V(b + 8*p + 4*hh, 4)}, v2 offset:{8192*p + 4096*seg + 16*hh}", f"pr{seg}")
        k.ds(f"ds_read_b128 {V(b + 16, 4)}, v3 offset:{2048*(1-seg)}", f"pr{seg}")
    if CFG.get("hfb1"):
        k.force(CFG.get("hfb1"))
    YT = CFG.get("ytag", 0)
    if YT:
        k("s_lshl_b32 s74, s2, 14")
        k("s_lshl_b32 s79, s75, 13")
        k("s_add_u32 s74, s74, s79")
        k(f"s_add_u32 s74, s74, {WS_YT2}")
        k("s_add_u32 s79, s74, 4096")
        k("v_lshlrev_b32 v4, 4, v1")
    else:
        k("s_lshl_b32 s74, s2, 13")
        k("s_lshl_b32 s79, s75, 12")
        k("s_add_u32 s74, s74, s79")
        k(f"s_add_u32 s74, s74, {WS_YT}")
        k("v_lshlrev_b32 v4, 4, v1")
    for seg in range(2):
        b = 8 + 24 * seg
        k.wait(lg=f"pr{seg}")
        for i in range(0, 8, 2):
            k(f"v_pk_add_f32 {V(b+i,2)}, {V(b+i,2)}, {V(b+8+i,2)}")
        for i in range(8):
            e = 7 - i
            (unpack_hi if e & 1 else unpack_lo)(k, 6 + (i & 1), b + 16 + (e >> 1))
            k(f"v_fmac_f32 v{b+i}, s77, v{6 + (i & 1)}")
        if YT:
            for i in range(4):
                k(f"v_cvt_pk_bf16_f32 v{b+8+4*(i>>1)+(i&1)}, v{b+2*i}, v{b+2*i+1}")
            for i in (2, 3, 6, 7):
                k(f"v_mov_b32 v{b+8+i}, s{NONCE}")
            if seg == 0 and CFG.get("ysplit", 0):
                for hh in range(2):
                    vm(k, f"buffer_store_dwordx4 {V(b+8+4*hh,4)}, v4, {S(SWS)}, s{(74, 79)[hh]} offen sc1", "ys", SC_ST)
        else:
            for i in range(4):
                k(f"v_cvt_pk_bf16_f32 v{b+20+i}, v{b+2*i}, v{b+2*i+1}")
    k.mark("ysready")
    for seg in range(2):
        b = 8 + 24 * seg
        if YT:
            if seg == 0 and CFG.get("ysplit", 0):
                continue
            for hh in range(2):
                vm(k, f"buffer_store_dwordx4 {V(b+8+4*hh,4)}, v4, {S(SWS)}, s{(74, 79)[hh]} offen offset:{2048*seg} sc1",
                   "ys", SC_ST)
        else:
            vm(k, f"buffer_store_dwordx4 {V(b+20,4)}, v4, {S(SWS)}, s74 offen offset:{2048*seg} sc1", "ys", SC_ST)
    if CFG.get("hfb2"):
        k.force(CFG.get("hfb2"))


FB = 128


def g2_setup(k):
    G.g2_ids(k)
    k("s_lshr_b32 s74, s4, 1")
    k("s_lshl_b32 s75, s5, 1")
    k("s_add_u32 s80, s75, s74")
    k("s_xor_b32 s81, s80, 1")
    k("s_mul_i32 s78, s4, 28")
    for b in range(2):
        k(f"s_mul_i32 s{80+b}, s{80+b}, 112")
        k(f"s_add_u32 s{80+b}, s{80+b}, s78")
        k(f"s_lshl_b32 s{80+b}, s{80+b}, 10")
        k(f"s_add_u32 s{80+b}, s{80+b}, {WS_HF}")
    if CFG.get("krot"):
        k("s_lshl_b32 s78, s70, 12")
        k("s_add_u32 s80, s80, s78")
        k("s_add_u32 s81, s81, s78")


def hf_loads(k, depth, first_after):
    for i in range(28):
        for b in range(2):
            after = first_after if i < depth else f"g2_{i - depth}"
            with atom(k, after):
                if b == 0 and i and i % 4 == 0:
                    if CFG.get("krot"):
                        k(f"s_cmp_eq_u32 s70, {7 - i//4}")
                        k(f"s_cselect_b32 s21, {(-7*4096) & 0xffffffff}, 0")
                        k("s_add_u32 s21, s21, 4096")
                        k("s_add_u32 s80, s80, s21")
                        k("s_add_u32 s81, s81, s21")
                    else:
                        k("s_add_u32 s80, s80, 4096")
                        k("s_add_u32 s81, s81, 4096")
                r = FB + 8 * (i % depth) + 4 * b
                vm(k, f"buffer_load_dwordx4 {V(r,4)}, v58, {S(SWS)}, s{80+b} offen offset:{1024*(i%4)} sc1", f"hf{i}",
                   CFG.get("hfcost"))


def g2_main(k, depth, hooks):
    k.c("---- G2 main ----")
    L = CFG.get("gtail", 0)

    def mf(i, sg):
        a, b = sg & 1, sg >> 1
        d = G2_ACC + 16 * sg
        c = V(d, 16) if i else "0"
        k(f"v_mfma_f32_32x32x16_bf16 {V(d,16)}, {A(8*i + 4*a, 4)}, {V(FB + 8*(i%depth) + 4*b, 4)}, {c}")
    for i in range(28 - L):
        k.wait(vm=[f"hf{i}", f"wf{i}"])
        for b in range(2):
            for a in range(2):
                mf(i, a + 2 * b)
        k.mark(f"g2_{i}")
        if i in hooks:
            hooks[i]()
    if L:
        k("v_lshlrev_b32 v49, 4, v40")
        for sg in range(1, 4):
            k(f"s_xor_b32 s74, s4, {sg}")
            k("s_mul_i32 s74, s74, 12288")
            k(f"v_add_u32 v{52+sg}, s74, v49")
        tail = list(range(28 - L, 28))

        def wr(sg, g):
            k.ds(f"ds_write_b128 v{52+sg}, {V(G2_ACC + 16*sg + 4*g, 4)} offset:{L_RED + (sg-1)*4096 + 1024*g}", "rw")
        for n, sg in enumerate((1, 2, 3, 0)):
            pend = [(0, []), (0, []), (1, [0, 1, 2, 3]), (2, [0, 1, 2, 3])][n]
            ws = list(pend[1])
            for j, i in enumerate(tail):
                if n == 0:
                    k.wait(vm=[f"hf{i}", f"wf{i}"])
                mf(i, sg)
                m = (len(ws) + (len(tail) - j) - 1) // (len(tail) - j)
                for _ in range(m):
                    wr(pend[0], ws.pop(0))
        for g in range(4):
            wr(3, g)
        for i in tail:
            k.mark(f"g2_{i}")


EQ, EB2, EY, EG = 8, 16, 24, 32


def g2_ep_addr(k):
    k("v_and_b32 v40, 63, v0")
    k("v_and_b32 v41, 31, v40")
    k("v_lshrrev_b32 v42, 5, v40")
    k("s_and_b32 s74, s4, 1")
    k("s_lshr_b32 s75, s4, 1")
    k("s_lshl_b32 s76, s5, 6")
    k("s_lshl_b32 s77, s75, 5")
    k("s_add_u32 s76, s76, s77")
    k("s_lshl_b32 s77, s6, 6")
    k("s_lshl_b32 s78, s74, 5")
    k("s_add_u32 s77, s77, s78")
    k("v_lshlrev_b32 v46, 10, v41")
    k("v_lshl_add_u32 v46, v42, 3, v46")
    k("s_lshl_b32 s82, s76, 10")
    k("s_lshl_b32 s83, s77, 1")
    k("s_add_u32 s82, s82, s83")
    k("v_lshlrev_b32 v47, 3, v42")
    k("v_lshrrev_b32 v43, 2, v40")
    k("v_and_b32 v44, 3, v40")
    if CFG.get("ytag", 0):
        k("v_lshlrev_b32 v45, 13, v43")
        k("v_lshl_add_u32 v45, v44, 4, v45")
        k("v_add_u32 v44, 4096, v45")
        k("s_lshl_b32 s84, s77, 13")
        k("s_lshl_b32 s85, s76, 1")
        k("s_add_u32 s84, s84, s85")
        k(f"s_add_u32 s84, s84, {WS_YT2}")
        k(f"s_add_u32 s85, s84, {16*8192}")
        k("v_lshlrev_b32 v48, 3, v41")
        k("s_lshl_b32 s86, s76, 3")
        k(f"s_add_u32 s86, s86, {WS_G}")
        return
    k("v_lshlrev_b32 v45, 12, v43")
    k("v_lshl_add_u32 v45, v44, 4, v45")
    k("s_lshl_b32 s84, s77, 12")
    k("s_lshl_b32 s85, s76, 1")
    k("s_add_u32 s84, s84, s85")
    k(f"s_add_u32 s84, s84, {WS_YT}")
    k(f"s_add_u32 s85, s84, {16*4096}")
    k("v_lshlrev_b32 v48, 2, v41")
    k("s_lshl_b32 s86, s76, 2")
    k(f"s_add_u32 s86, s86, {WS_G}")


def g2_ep_loads_plain(k, after=None):
    for g in range(4):
        with atom(k, after):
            vm(k, f"buffer_load_dwordx2 {V(EQ+2*g,2)}, v46, {S(SQ)}, s82 offen offset:{16*g}", "q", 200)
    for g in range(4):
        with atom(k, after):
            if g == 0:
                stmp(k, P_B2, 1024)
            vm(k, f"buffer_load_dwordx2 {V(EB2+2*g,2)}, v47, {S(STMP)}, s83 offen offset:{16*g}", "b2", 64)


YQ = 224


def ytag_ops():
    o = [(f"buffer_load_dwordx2 {V(EG,2)}, v48, {S(SWS)}, s86 offen sc1", "g", 40)]
    for j in range(4):
        o.append((f"buffer_load_dwordx4 {V(YQ+4*j,4)}, v{45-(j&1)}, {S(SWS)}, s{84+(j>>1)} offen sc1", "yt", 81))
    return o


def ytag_check(k):
    ok, rt = Lbl.new("YOK"), Lbl.new("YRT")

    def test():
        k(f"v_cmp_ne_u32 vcc, s{NONCE}, v{EG+1}")
        for j in range(4):
            k(f"v_cmp_ne_u32 s[80:81], s{NONCE}, v{YQ+4*j+2}")
            k("s_or_b64 vcc, vcc, s[80:81]")
        k(f"s_cbranch_vccz {ok}")
    with atom(k):
        k.wait(vm=["yt", "g"])
        test()
        k(f"s_mov_b32 s101, {SPIN}")
        k(f"{rt}:")
        k("s_sleep 1")
        for s, _, _ in ytag_ops():
            k(s)
        k("s_waitcnt vmcnt(0)")
        test()
        k("s_sub_u32 s101, s101, 1")
        k(f"s_cbranch_scc0 {rt}")
        k(f"{ok}:")


def g2_ep_loads_sc1(k, after=None):
    if CFG.get("ytag", 0):
        for s, tg, c in ytag_ops():
            with atom(k, after):
                vm(k, s, tg, c)
        return
    with atom(k, after):
        vm(k, f"buffer_load_dword v{EG}, v48, {S(SWS)}, s86 offen sc1", "g", 32)
    with atom(k, after):
        vm(k, f"buffer_load_dwordx4 {V(EY,4)}, v45, {S(SWS)}, s84 offen sc1", "yt", 81)
    with atom(k, after):
        vm(k, f"buffer_load_dwordx4 {V(EY+4,4)}, v45, {S(SWS)}, s85 offen sc1", "yt", 81)


def g2_epilogue(k):
    k.c("---- G2 epilogue ----")
    k("v_lshlrev_b32 v49, 4, v40")
    for sg in range(1, 4):
        if CFG.get("gtail", 0):
            break
        k(f"s_xor_b32 s80, s4, {sg}")
        k("s_mul_i32 s80, s80, 12288")
        k(f"v_add_u32 v50, s80, v49")
        for g in range(4):
            k.ds(f"ds_write_b128 v50, {V(G2_ACC + 16*sg + 4*g, 4)} offset:{L_RED + (sg-1)*4096 + 1024*g}", "rw")
    k("s_lshl_b32 s80, s4, 11")
    k(f"s_add_u32 s80, s80, {L_YL}")
    k("v_add_u32 v51, s80, v49")
    if CFG.get("ytag", 0):
        ytag_check(k)
        ts(k, 23)
        for j in range(4):
            k.ds(f"ds_write_b64 v51, {V(YQ+4*j,2)} offset:{1024*(j>>1) + 8*(j&1)}", "yw")
    else:
        k.wait(vm="yt")
        k.ds(f"ds_write_b128 v51, {V(EY,4)}", "yw")
        k.ds(f"ds_write_b128 v51, {V(EY+4,4)} offset:1024", "yw")
    k.wait(lg=["rw", "yw"])
    k("s_barrier")
    ts(k, 25)
    k("s_mul_i32 s80, s4, 12288")
    k("v_add_u32 v50, s80, v49")
    for sg in range(3):
        for g in range(4):
            k.ds(f"ds_read_b128 {V(160 + 16*sg + 4*g, 4)}, v50 offset:{L_RED + sg*4096 + 1024*g}", f"rr{sg}")
    k("v_and_b32 v52, 15, v40")
    k("v_lshrrev_b32 v53, 2, v52")
    k("v_lshl_add_u32 v53, v42, 2, v53")
    k("v_lshlrev_b32 v53, 6, v53")
    k("v_bfe_u32 v54, v40, 4, 1")
    k("v_lshl_add_u32 v53, v54, 5, v53")
    k("v_and_b32 v54, 3, v52")
    k("v_lshl_add_u32 v53, v54, 3, v53")
    k("s_lshl_b32 s80, s4, 11")
    k(f"s_add_u32 s80, s80, {L_YL}")
    k("v_add_u32 v53, s80, v53")
    for g in range(4):
        k.ds(f"ds_read_b64_tr_b16 {V(208+2*g,2)}, v53 offset:{512*g}", "yr")
    acc = G2_ACC
    for sg in range(3):
        k.wait(lg=f"rr{sg}")
        for r in range(0, 16, 2):
            k(f"v_pk_add_f32 {V(acc+r,2)}, {V(acc+r,2)}, {V(160+16*sg+r,2)}")
    k.wait(vm=["q", "b2", "g"], lg="yr")
    X = 224
    slot = {0: 0, 2: 2, 1: 4, 3: 6}
    for g in range(4):
        for i in range(4):
            up = unpack_hi if i & 1 else unpack_lo
            up(k, 128 + i, EB2 + 2 * g + (i >> 1))
            up(k, 132 + i, EQ + 2 * g + (i >> 1))
            up(k, 136 + i, 208 + 2 * g + (i >> 1))
        for i in range(4):
            r = acc + 4 * g + i
            k(f"v_add_f32 v{r}, v{r}, v{128+i}")
        for i in range(4):
            r = acc + 4 * g + i
            k(f"v_fma_f32 v{132+i}, v{132+i}, v{136+i}, -v{r}")
        for i in range(4):
            r = acc + 4 * g + i
            k(f"v_fmac_f32 v{r}, v{EG}, v{132+i}")
        for d in range(2):
            r = acc + 4 * g + 2 * d
            k(f"v_cvt_pk_bf16_f32 v{X + slot[g] + d}, v{r}, v{r+1}")
    for base in (0, 4):
        k(f"v_permlane32_swap_b32 v{X+base}, v{X+base+2}")
        k(f"v_permlane32_swap_b32 v{X+base+1}, v{X+base+3}")
    k("v_lshlrev_b32 v46, 10, v41")
    k("v_lshl_add_u32 v46, v42, 5, v46")
    osc = ["", " sc1", " nt", " sc0 sc1", " sc1 nt"][CFG.get("osc", 0)]
    vm(k, f"buffer_store_dwordx4 {V(X,4)}, v46, {S(SOUT)}, s82 offen{osc}", "os")
    vm(k, f"buffer_store_dwordx4 {V(X+4,4)}, v46, {S(SOUT)}, s82 offen offset:16{osc}", "os")


def gate_loads(k):
    k("s_and_b32 s5, s2, 7")
    k("s_lshl_b32 s5, s5, 2")
    k("s_lshr_b32 s6, s2, 3")
    k("s_sub_u32 s6, s6, 28")
    k("s_add_u32 s5, s5, s6")
    k("s_lshl_b32 s5, s5, 6")
    k("s_lshl_b32 s6, s4, 4")
    k("s_add_u32 s5, s5, s6")
    k("s_lshl_b32 s6, s5, 10")
    stmp(k, P_GATE, 1024)
    k.vmem(f"buffer_load_dwordx4 {V(4,4)}, v22, {S(STMP)}, 0 offen", "gw")
    for i in range(16):
        if i and i % 4 == 0:
            k("s_add_u32 s6, s6, 4096")
        k.vmem(f"buffer_load_dwordx4 {A(4*i,4)}, v22, {S(SQ)}, s6 offen offset:{1024*(i%4)}", f"gx{i}")


def gate_compute(k):
    k.c("---- gate compute ----")
    k.wait(vm="gw")
    for c in range(8):
        (unpack_hi if c & 1 else unpack_lo)(k, 8 + c, 4 + (c >> 1))
    R = 96
    for i in range(16):
        k.wait(vm=f"gx{i}")
        s = 64 + 4 * (i & 1)
        for c in range(4):
            k(f"v_accvgpr_read_b32 v{s+c}, a{4*i+c}")
        u = 72 + 8 * (i & 1)
        for c in range(8):
            (unpack_hi if c & 1 else unpack_lo)(k, u + c, s + (c >> 1))
        t = 88 + 2 * (i & 1)
        for cp in range(0, 8, 2):
            if cp == 0:
                k(f"v_pk_mul_f32 {V(t,2)}, {V(u,2)}, {V(8,2)}")
            else:
                k(f"v_pk_fma_f32 {V(t,2)}, {V(u+cp,2)}, {V(8+cp,2)}, {V(t,2)}")
        k(f"v_add_f32 v{R+i}, v{t}, v{t+1}")
    for mod in ["row_shr:1", "row_shr:2", "row_shr:4", "row_shr:8", "row_bcast:15 row_mask:0xa",
                "row_bcast:31 row_mask:0xc"]:
        for i in range(16):
            m = mod if "row_mask" in mod else mod + " row_mask:0xf"
            k(f"v_add_f32_dpp v{R+i}, v{R+i}, v{R+i} {m} bank_mask:0xf")
    k("v_mov_b32 v2, 0")
    for g in range(0, 16, 4):
        for i in range(g, g + 4):
            k(f"v_readlane_b32 s{76+i-g}, v{R+i}, 63")
        for i in range(g, g + 4):
            k(f"v_writelane_b32 v2, s{76+i-g}, {i}")
    k("v_mul_f32 v2, 0xbfb8aa3b, v2")
    k("v_exp_f32 v2, v2")
    k("v_add_f32 v2, 1.0, v2")
    k("v_rcp_f32 v2, v2")
    k("v_and_b32 v1, 63, v0")
    if CFG.get("ytag", 0):
        k("v_lshlrev_b32 v4, 3, v1")
        k(f"v_mov_b32 v3, s{NONCE}")
        k("s_lshl_b32 s6, s5, 3")
    else:
        k("v_lshlrev_b32 v3, 2, v1")
        k("s_lshl_b32 s6, s5, 2")
    k(f"s_add_u32 s6, s6, {WS_G}")
    k("v_cmp_gt_u32 vcc, 16, v1")
    k("s_and_saveexec_b64 s[74:75], vcc")
    if CFG.get("ytag", 0):
        k.vmem(f"buffer_store_dwordx2 {V(2,2)}, v4, {S(SWS)}, s6 offen sc1", "gs")
    else:
        k.vmem(f"buffer_store_dword v2, v3, {S(SWS)}, s6 offen sc1", "gs")
    k("s_mov_b64 exec, s[74:75]")


def rec(f, *a, **kw):
    r = Rec()
    f(r, *a, **kw)
    return r.items


def late_scalars(k):
    k(f"s_load_dword s96, s[{P_WS}:{P_WS+1}], {WS_EPOCH}")
    k("s_lshl_b32 s74, s2, 2")
    k(f"s_load_dword s23, s[{P_SSMD}:{P_SSMD+1}], s74")


def gen_full(cfg):
    global CFG
    CFG = cfg
    if cfg.get("x_nords"):
        G.g1_reads = lambda *a, **kw: None
    g = cfg.get
    k = KT()
    END = "K_END"
    bufs = [0, 32768, 65536, 98304]
    prologue(k, END)
    if g("icpf"):
        code_prefetch(k)
    if g("ts"):
        k("v_mov_b32 v63, 0")
    ts(k, 0)
    k("s_lshr_b32 s74, s2, 3")
    k("s_cmp_ge_u32 s74, 28")
    k("s_cbranch_scc1 GATE")
    G.g1_setup(k, cfg)
    bias_addr(k)
    rot_setup(k)
    t1_addr(k)
    DIST = g("dist", 0)
    if DIST:
        w2p_vaddr(k)
    srd_consts(k)
    k("s_waitcnt lgkmcnt(0)")
    srd_ptrs(k, (SQ, SW1))
    ts_setup(k, cfg) if False else None
    if g("x_dma"):
        srd_ptrs(k, (SK, SV, SWS, SW2, SOUT))
        ts_setup(k, cfg)
        npass = g("x_dma")
        for p in range(npass):
            if p:
                k("s_barrier")
            ts(k, 1 + 10 * p)
            infl = g("x_infl", 8)

            def iss(sl):
                r = Rec()
                g1_dma(r, sl, bufs[sl % 4])
                for it in r.items:
                    emit(k, it)
            for sl in range(infl):
                iss(sl)
            for sl in range(8):
                k.wait(vm=f"slab{sl}")
                ts(k, 2 + sl + 10 * p)
                if sl + infl < 8:
                    iss(sl + infl)
        k.wait_all()
        ts_final(k, cfg, 27)
        k("s_waitcnt vmcnt(0)")
        k("s_endpgm")
        k("GATE:")
        srd_consts(k)
        k("s_waitcnt lgkmcnt(0)")
        srd_ptrs(k, (SK, SV, SWS, SW2, SOUT))
        ts_setup(k, cfg)
        ts_final(k, cfg, 27)
        k("s_waitcnt vmcnt(0)")
        k(f"{END}:")
        k("s_endpgm")
        return k
    T1POS = g("t1pos", 1)
    W = Weaver(k, g("p_g1", 32))
    W.t = W.ta = 8 * 88
    r = Rec()
    g1_dma(r, 0, bufs[0])
    for it in r.items:
        emit(k, it)
    srd_ptrs(k, (SK, SV, SWS, SW2, SOUT))
    if DIST:
        w2p_dma(k)
    late_scalars(k)
    ts_setup(k, cfg)
    ts(k, 1)
    bg = Rec()
    if DIST == 1:
        g1_dma(bg, 1, bufs[1])
        g1_dma(bg, 2, bufs[2])
        r = Rec()
        t1_loads(r)
        first = r.items[0]
        bg.items.append(("a", first[1], "w2st", first[3]))
        bg.items.extend(r.items[1:])
        bias_loads(bg)
        g1_dma(bg, 3, bufs[3])
    elif DIST == 3:
        g1_dma(bg, 1, bufs[1])
        bias_loads(bg)
        g1_dma(bg, 2, bufs[2])
        r = Rec()
        t1_loads(r)
        first = r.items[0]
        bg.items.append(("a", first[1], "w2st", first[3]))
        bg.items.extend(r.items[1:])
        g1_dma(bg, 3, bufs[3])
    else:
        if T1POS == 0:
            t1_loads(bg)
        g1_dma(bg, 1, bufs[1])
        if T1POS == 1:
            t1_loads(bg)
        bias_loads(bg)
        g1_dma(bg, 2, bufs[2])
        if T1POS == 2:
            t1_loads(bg)
        g1_dma(bg, 3, bufs[3])
        if T1POS == 3:
            t1_loads(bg)
    for s in range(4, 8):
        g1_dma(bg, s, bufs[s - 4], after=f"bar{s-4}")
    h_loads(bg, after="t1done")
    w2f_cons_loads(bg, after="f0bok")
    W.push(bg.items)
    W.flush(g("ndirect", 0))
    fg = Rec()
    h_setup(fg)
    kv_zero(fg)
    flag_addrs(fg)
    fg("s_waitcnt lgkmcnt(0)")
    nonce(fg)
    w2f_cons_setup(fg)
    ts(fg, 5)
    t1c = rec(t1_compute)
    t1c.append(("m", "t1done"))
    P0 = g("pub0", 4)
    T1SEG = g("t1seg", 1)
    BSEG = g("bseg", 1)
    POLL0B = g("poll0b", 3)
    CHK0B = g("chk0b", 4)
    POLL0A = g("poll0a", 5)
    CHK0A = g("chk0a", 6)
    TAILPOS = g("tailpos", 1)
    pre = {}
    post = {}

    def addh(d, s, f):
        old = d.get(s)
        d[s] = (lambda: (old(), f())) if old else f
    addh(pre, P0, lambda: fg.wait(vm="t1s"))
    addh(post, P0, lambda: publish(fg, WS_F0))
    addh(pre, CHK0B, lambda: (poll_check(fg, 62, 56, WS_F0, "p0b", "hi"), ts(fg, 2)))
    addh(post, CHK0B, lambda: (fg.mark("f0bok"), fg.period(g("p_wf")) if g("p_wf") is not None else None))
    if not g("pollbm", 0):
        addh(post, POLL0B, lambda: poll_issue(fg, 62, 56, WS_F0, "p0b"))
    if DIST:
        PUBB = g("pubb", 1)
        addh(pre, PUBB, lambda: fg.wait(vm="w2s"))
        addh(post, PUBB, lambda: publish(fg, WS_F0B))
    if CHK0A < 7:
        addh(pre, CHK0A, lambda: (poll_check(fg, 62, 56, WS_F0, "p0a", "lo"), ts(fg, 14)))
        addh(post, CHK0A, lambda: kv_loads(fg))
    if POLL0A < 7:
        addh(post, POLL0A, lambda: poll_issue(fg, 62, 56, WS_F0, "p0a"))
    if T1SEG < 0:
        for it in t1c:
            fg._add(it)
    tail = rec(build_copies) + rec(conv_addr)
    extra = {("a", BSEG): (rec(bias_mfma), 5)}
    if TAILPOS == 0:
        extra[("b", 6)] = (tail, g("tailper", 4))
    if T1SEG >= 0:
        extra[("b", T1SEG)] = (t1c, g("t1per", 5))
    if DIST:
        w2o = rec(w2p_out) + [("m", "w2st")]
        if g("w2pre", 0):
            for it in w2o:
                fg._add(it)
        else:
            extra[("a", 0)] = (w2o, g("w2per", 2))
    if g("pollbm", 0):
        nop = [("c", "poll slot")] * g("pollbm", 0)
        extra[("a", CHK0B)] = (nop + rec(poll_issue, 62, 56, WS_F0, "p0b"), 1)
    g1_main(fg, bufs, pre, post, extra)
    ts(fg, 15)
    if CHK0A == 7:
        if POLL0A == 7:
            poll_issue(fg, 62, 56, WS_F0, "p0a")
        poll_check(fg, 62, 56, WS_F0, "p0a", "lo")
        fg("s_barrier")
        ts(fg, 14)
        kv_loads(fg)
    fg.period(g("p_ep", 32))
    g1_epilogue(fg)
    if CHK0A == 8:
        if POLL0A >= 7:
            poll_issue(fg, 62, 56, WS_F0, "p0a")
        poll_check(fg, 62, 56, WS_F0, "p0a", "lo")
        fg("s_barrier")
        ts(fg, 14)
        kv_loads(fg)
    ts(fg, 4)
    if TAILPOS == 1:
        for it in tail:
            fg._add(it)
    kv_write(fg)
    ts(fg, 16)
    conflicts("g1", fg.items, bg.items, ok=[("s", "m0"), ("v", 62, 62), ("v", 224, 255), ("v", 30, 47), ("s", 92, 93),
                                            ("v", 56, 58), ("s", 84, 91)])
    W.run(fg.items)
    nleft = len(W.bg)
    print("G1 path marks:", W.log, "bg left at JOIN:", nleft)
    for it in W.bg:
        assert all(x[2].startswith("wf") for x in flat([it]) if x[0] == "vm"), it
    if k.pend is not None:
        k("s_waitcnt lgkmcnt(0)")
    vm_join = list(k.vm)
    GNW = g("gnw", 0)
    if GNW:
        assert g("pub1", 54) >= 0 and vm_join
        vm_join[-1] = "prej"
    k("s_branch JOIN")
    k("GATE:")
    k.vm, k.lg = [], []
    if g("ts"):
        k.pend = 0
    if DIST:
        k("v_and_b32 v22, 63, v0")
        k("v_lshlrev_b32 v22, 4, v22")
    else:
        w2f_addr(k)
    t1_addr(k)
    srd_consts(k)
    k("s_waitcnt lgkmcnt(0)")
    srd_ptrs(k, (SW2, SK, SV, SQ, SWS, SOUT))
    if not DIST:
        for it in rec(w2f_dma):
            emit(k, it)
    late_scalars(k)
    ts_setup(k, cfg)
    ts(k, 1)
    GORD = g("gord", 0)
    for it in rec(t1_loads):
        emit(k, it)
    h_setup(k)
    if DIST:
        if g("gearly", 1):
            gate_loads(k)
        for it in rec(kv_zero):
            emit(k, it)
        flag_addrs(k)
        k("s_waitcnt lgkmcnt(0)")
        k.lg = []
        nonce(k)
        for it in rec(t1_compute):
            emit(k, it)
        ts(k, 4)
        if g("gearly", 1):
            for it in rec(h_loads):
                emit(k, it)
        k.wait(vm="t1s")
        k("s_barrier")
        publish(k, WS_F0)
        ts(k, 5)
        if not g("gearly", 1):
            gate_loads(k)
            for it in rec(h_loads):
                emit(k, it)
        gate_compute(k)
        for it in rec(build_copies) + rec(conv_addr):
            emit(k, it)
        poll_issue(k, 62, 56, WS_F0, "p0b")
        poll_check(k, 62, 56, WS_F0, "p0b", "hi")
        k("s_barrier")
        ts(k, 2)
        w2f_cons_setup(k)
        allw = rec(w2f_cons_loads)
        for it in allw[:len(allw) - nleft]:
            emit(k, it)
        poll_issue(k, 62, 56, WS_F0, "p0")
        poll_check(k, 62, 56, WS_F0, "p0", "lo")
        k("s_barrier")
        ts(k, 14)
        for it in rec(kv_loads):
            emit(k, it)
    elif GORD == 0:
        for it in rec(w2f_tr):
            emit(k, it)
        ts(k, 3)
        Wg = Weaver(k, g("p_gw", 32))
        Wg.push(rec(w2f_stores))
        if g("gw2first", 1):
            Wg.flush()
            ts(k, 2)
            for it in rec(t1_compute):
                emit(k, it)
        else:
            Wg.run(rec(t1_compute)[:-12])
            Wg.flush()
            for it in rec(t1_compute)[-12:]:
                emit(k, it)
        ts(k, 4)
        for it in rec(kv_zero):
            emit(k, it)
        flag_addrs(k)
        k("s_waitcnt lgkmcnt(0)")
        k.lg = []
        nonce(k)
        k.wait(vm="w2s")
        k("s_barrier")
        publish(k, WS_F0B, 224)
        ts(k, 6)
        if not g("gswap", 0):
            gate_loads(k)
        k.wait(vm="t1s")
        k("s_barrier")
        publish(k, WS_F0)
        ts(k, 5)
        if g("gswap", 0):
            gate_loads(k)
        for it in rec(h_loads):
            emit(k, it)
        gate_compute(k)
        for it in rec(build_copies) + rec(conv_addr):
            emit(k, it)
        poll_issue(k, 62, 56, WS_F0, "p0")
        poll_check(k, 62, 56, WS_F0, "p0")
        k("s_barrier")
        ts(k, 14)
        for it in rec(kv_loads):
            emit(k, it)
        w2f_cons_setup(k)
        allw = rec(w2f_cons_loads)
        for it in allw[:len(allw) - nleft]:
            emit(k, it)
    else:
        for it in rec(kv_zero):
            emit(k, it)
        flag_addrs(k)
        k("s_waitcnt lgkmcnt(0)")
        k.lg = []
        nonce(k)
        for it in rec(t1_compute):
            emit(k, it)
        ts(k, 4)
        for it in rec(w2f_tr):
            emit(k, it)
        ts(k, 3)
        ws_items = rec(w2f_stores)
        nfirst = g("gsplit", 0)
        for it in ws_items[:nfirst]:
            emit(k, it)
        k.wait(vm="t1s")
        k("s_barrier")
        publish(k, WS_F0)
        ts(k, 5)
        for it in ws_items[nfirst:]:
            emit(k, it)
        ts(k, 2)
        for it in rec(h_loads):
            emit(k, it)
        k.wait(vm="w2s")
        k("s_barrier")
        publish(k, WS_F0B, 224)
        ts(k, 6)
        gate_loads(k)
        for it in rec(build_copies) + rec(conv_addr):
            emit(k, it)
        poll_issue(k, 62, 56, WS_F0, "p0b")
        gate_compute(k)
        poll_check(k, 62, 56, WS_F0, "p0b", "hi")
        k("s_barrier")
        w2f_cons_setup(k)
        allw = rec(w2f_cons_loads)
        for it in allw[:len(allw) - nleft]:
            emit(k, it)
        poll_issue(k, 62, 56, WS_F0, "p0")
        poll_check(k, 62, 56, WS_F0, "p0", "lo")
        k("s_barrier")
        ts(k, 14)
        for it in rec(kv_loads):
            emit(k, it)
    kv_write(k)
    ts(k, 16)
    k.wait_all(vm=not GNW, lg=True)
    k("JOIN:")
    k.vm = vm_join
    k.lg = ["x"]
    k.wait_all(vm=False, lg=True)
    PUB1 = g("pub1", 54)
    if PUB1 < 0:
        k.wait(vm="hs")
    k("s_barrier")
    ts(k, 17)
    if PUB1 < 0:
        publish(k, WS_F1)
    POLL1 = g("poll1", 100)
    CHK1 = g("chk1", -1)
    depth = 16
    fg = Rec()
    bg = Rec()
    g2_setup(fg)
    fg.period(g("p_cv", 32))

    def hook(n):
        if n == PUB1:
            fg.wait(vm=["hs", "prej"] if GNW else "hs")
            fg("s_barrier")
            ts(fg, 18)
            publish(fg, WS_F1)
        if n == POLL1:
            poll_issue(fg, 62, 57, WS_F1, "p1")
        if n == CHK1:
            poll_check(fg, 62, 57, WS_F1, "p1")
            fg("s_barrier")
            fg.mark("f1ok")
            ts(fg, 20)
    conv_main(fg, hook)
    ts(fg, 19)

    def prebar():
        if CHK1 < 0:
            poll_check(fg, 62, 57, WS_F1, "p1")
            ts(fg, 20)
    fg.period(g("p_ce", 32))
    conv_epilogue(fg, prebar)
    ts(fg, 21)
    hf_loads(bg, depth, "cvbar" if CHK1 < 0 else "f1ok")
    epl = Rec()
    g2_ep_loads_plain(epl, after="epaddr")
    eps = Rec()
    g2_ep_loads_sc1(eps, after=f"g2_{max(15, g('ysy', 15))}" if g("ytag", 0) else "f2ok")
    PUB2 = g("pub2", 4)
    POLL2 = g("poll2", 16)
    CHK2 = g("chk2", 22)
    EPQ = g("epq", 8)
    hfi = bg.items
    pos = min(2 * (EPQ + depth), len(hfi))
    bgall = hfi[:pos] + epl.items + hfi[pos:] + eps.items
    fg.period(g("p_g2", 32))

    def h_pub2():
        fg.wait(vm="ys")
        fg("s_barrier")
        ts(fg, 22)
        publish(fg, WS_F2)

    def h_chk2():
        poll_check(fg, 62, 61, WS_F1, "p2")
        fg("s_barrier")
        fg.mark("f2ok")
        ts(fg, 23)
    hooks = {}
    addh(hooks, 0, lambda: (g2_ep_addr(fg), fg.mark("epaddr")))
    if not g("ytag", 0):
        addh(hooks, PUB2, h_pub2)
        addh(hooks, POLL2, lambda: poll_issue(fg, 62, 61, WS_F1, "p2"))
        addh(hooks, CHK2, h_chk2)
    g2_main(fg, depth, hooks)
    ts(fg, 24)
    g2_epilogue(fg)
    ts(fg, 26)
    conflicts("g2", fg.items, W.bg + bgall,
              ok=[("a", 0, 223), ("v", 128, 255), ("v", 62, 62), ("s", 80, 86), ("v", 8, 32), ("v", 45, 48), ("s", 94, 94)])
    W.push(bgall)
    W.log = []
    W.run(fg.items)
    print("JOIN path marks:", W.log, "bg left:", len(W.bg))
    assert not W.bg
    k("s_or_b32 s74, s2, s4")
    k("s_cmp_eq_u32 s74, 0")
    k("s_cbranch_scc0 NOEP")
    k("s_add_u32 s96, s96, 1")
    k("v_mov_b32 v62, s96")
    k(f"s_mov_b32 s97, {WS_EPOCH}")
    k("s_mov_b64 exec, 1")
    k(f"buffer_store_dword v62, off, {S(SWS)}, s97")
    k("s_mov_b64 exec, -1")
    k("NOEP:")
    k.wait_all()
    ts_final(k, cfg, 27)
    k("s_waitcnt vmcnt(0)")
    if g("ampn"):
        k(f"s_cmp_eq_u32 s2, {g('ampw', 0)}")
        k(f"s_cbranch_scc0 {END}")
        k("s_cmp_eq_u32 s4, 0")
        k(f"s_cbranch_scc0 {END}")
        k(f"v_readlane_b32 s10, v63, {g('ampa', 0)}")
        k(f"v_readlane_b32 s11, v63, {g('ampb', 27)}")
        k("s_sub_u32 s11, s11, s10")
        k("s_min_u32 s11, s11, 4000")
        k(f"s_mul_i32 s11, s11, {g('ampn')}")
        k("s_memrealtime s[12:13]")
        k("s_waitcnt lgkmcnt(0)")
        k("s_mov_b32 s14, s12")
        k("s_mov_b32 s15, 0x40000")
        k("AMPL:")
        k("s_memrealtime s[12:13]")
        k("s_waitcnt lgkmcnt(0)")
        k("s_sub_u32 s16, s12, s14")
        k("s_cmp_ge_u32 s16, s11")
        k(f"s_cbranch_scc1 {END}")
        k("s_sub_u32 s15, s15, 1")
        k("s_cbranch_scc0 AMPL")
    k(f"{END}:")
    k("s_endpgm")
    k("K_CODE_END:")
    return k


def build(cfg):
    hdr = open("cdna_kernels/" + NAME + ".s.ref").read().split("; Override")[0]
    out = [hdr.rstrip("\n")]
    out.append("; @launch grid=(256,1,1) block=(256,1,1) lds=163840")
    out.append('.amdgcn_target "amdgcn-amd-amdhsa--gfx950"\n.text')
    k = gen_full(cfg)
    lab = NAME + "_kernel"
    out.append(G.khead(lab) + k.text())
    out.append('.section .rodata,"a"\n.p2align 6')
    out.append(G.kdesc(lab))
    return "\n".join(out) + "\n"


if __name__ == "__main__":
    path = sys.argv[1]
    cfg = {}
    for a in sys.argv[2:]:
        kk, vv = a.split("=")
        cfg[kk] = int(vv)
    txt = build(cfg)
    open(path, "w").write(txt)
    print("bytes", len(txt))
```
